```python
import torch

def _softmax(x, axis=-1):
    return torch.softmax(x, dim=axis)
def _gelu(x):
    return torch.nn.functional.gelu(x, approximate="tanh")
def _silu(x):
    return torch.nn.functional.silu(x)
def _sigmoid(x):
    return torch.sigmoid(x)
def _layernorm(x, axis=-1, eps=1e-5):
    m = x.mean(dim=axis, keepdim=True)
    v = x.var(dim=axis, keepdim=True, unbiased=False)
    return (x - m) / torch.sqrt(v + eps)
def _scatter_add(tgt, idx, src, axis=0):
    return tgt.clone().index_add_(axis, idx, src)
def _segment_sum(src, seg, n):
    out = torch.zeros((n,) + src.shape[1:], dtype=src.dtype)
    return out.index_add_(0, seg, src)
def _pad(x, pw):
    flat = tuple(v for pair in reversed(pw) for v in pair)
    return torch.nn.functional.pad(x, flat)

kernel_name = 'standalone__cross_network_dcn__recsys'

def setup_inputs():

    _w = (lambda a: (lambda t: t.to(torch.bfloat16) if t.is_floating_point() else t)(torch.as_tensor(a)))
    B, F, D, L = 16384, 100, 16, 6
    Din = min(F * D, 1024)
    return {
        "x0": _w((lambda *s: torch.randn(*s, dtype=torch.bfloat16) * 0.05)(B, Din)),
        "ws": _w((lambda *s: torch.randn(*s, dtype=torch.bfloat16) * 0.8)(L, Din, Din) * (Din ** -0.5)),
        "bs": _w((lambda *s: torch.randn(*s, dtype=torch.bfloat16) * 3.2)(L, Din) * 0.01),
    }

def reference(x0, ws, bs):
    x = x0
    L = ws.shape[0]
    for l in range(L):
        proj = torch.einsum('bd,de->be', x, ws[l]) + bs[l]
        x = x0 * proj + x
    return x
```

```python
import re


def regs(spec):
    m = re.fullmatch(r"([vas])\[(\d+):(\d+)\]", spec)
    if m:
        return [f"{m.group(1)}{i}" for i in range(int(m.group(2)), int(m.group(3)) + 1)]
    return [spec]


def R(kind, base, n=1):
    return f"{kind}{base}" if n == 1 else f"{kind}[{base}:{base + n - 1}]"


class I:
    __slots__ = ("text", "kind", "rd", "wr", "passes", "srcc", "need_vm", "need_lg", "vm", "lg", "states", "note",
                 "all_vm", "all_lg", "big")

    def __init__(self, text, kind, rd=(), wr=(), passes=0, srcc=(), big=False):
        self.text = text
        self.kind = kind
        self.rd = set(x for s in rd for x in regs(s))
        self.wr = set(x for s in wr for x in regs(s))
        self.passes = passes
        self.srcc = set(x for s in srcc for x in regs(s))
        self.states = 1
        self.big = big
        self.note = ""

    def emit(self):
        return self.text


class Wait(I):
    def __init__(self, vm=(), lg=(), all_vm=False, all_lg=False):
        super().__init__("", "wait")
        self.need_vm = set(x for s in vm for x in regs(s))
        self.need_lg = set(x for s in lg for x in regs(s))
        self.all_vm = all_vm
        self.all_lg = all_lg
        self.vm = None
        self.lg = None

    def emit(self):
        parts = []
        if self.vm is not None:
            parts.append(f"vmcnt({self.vm})")
        if self.lg is not None:
            parts.append(f"lgkmcnt({self.lg})")
        if not parts:
            return None
        return "s_waitcnt " + " ".join(parts)


class Label(I):
    def __init__(self, name):
        super().__init__(name + ":", "label")
        self.states = 0


def nop(n):
    i = I(f"s_nop {n}", "nop")
    i.states = n + 1
    return i


def mfma(shape, d, a, b, c=None):
    c = c or d
    name = "v_mfma_f32_16x16x32_bf16" if shape == 16 else "v_mfma_f32_32x32x16_bf16"
    return I(f"{name} {d}, {a}, {b}, {c}", "mfma", rd=[a, b] + ([c] if c[0] in "va" else []), wr=[d],
             passes=4 if shape == 16 else 8, srcc=[c] if c[0] in "va" else [])


def _isreg(x):
    return isinstance(x, str) and re.fullmatch(r"[vas](\d+|\[\d+:\d+\])", x) is not None


def valu(op, d, *src, extra=""):
    rd = [s for s in src if _isreg(s)]
    if op.startswith("v_fmac"):
        rd.append(d)
    return I(f"{op} {d}, " + ", ".join(str(s) for s in src) + extra, "valu", rd=rd, wr=[d])


def salu(op, d, *src):
    rd = [s for s in src if _isreg(s)]
    wr = [d] if _isreg(d) else []
    if op.startswith("s_cmp"):
        rd = [s for s in (d,) + src if _isreg(s)]
        wr = []
    return I(f"{op} {d}" + "".join(f", {s}" for s in src), "salu", rd=rd, wr=wr)


def bload(d, voff, srd, soff, off=0, w="dwordx4", flags=""):
    o = f" offset:{off}" if off else ""
    return I(f"buffer_load_{w} {d}, {voff}, {srd}, {soff} offen{o}{flags}", "vld",
             rd=[voff, srd] + ([soff] if _isreg(soff) else []), wr=[d])


def bstore(s, voff, srd, soff, off=0, w="dwordx4", flags=""):
    o = f" offset:{off}" if off else ""
    return I(f"buffer_store_{w} {s}, {voff}, {srd}, {soff} offen{o}{flags}", "vst",
             rd=[s, voff, srd] + ([soff] if _isreg(soff) else []), big=(w in ("dwordx4", "dwordx3")))


def dsread(d, addr, off=0, w="b128"):
    assert 0 <= off < 65536
    o = f" offset:{off}" if off else ""
    return I(f"ds_read_{w} {d}, {addr}{o}", "dsr", rd=[addr], wr=[d])


def dswrite(addr, s, off=0, w="b128"):
    assert 0 <= off < 65536
    o = f" offset:{off}" if off else ""
    return I(f"ds_write_{w} {addr}, {s}{o}", "dsw", rd=[addr, s])


def raw(text, kind="other", rd=(), wr=()):
    return I(text, kind, rd=rd, wr=wr)


def barrier():
    return I("s_barrier", "barrier")


def resolve_waits(trace):
    vmq = []
    lgq = []
    for ins in trace:
        k = ins.kind
        if k == "wait":
            if ins.all_vm:
                n = 0
            else:
                n = None
                for idx in range(len(vmq) - 1, -1, -1):
                    if vmq[idx].wr & ins.need_vm:
                        n = len(vmq) - 1 - idx
                        break
            if n is not None:
                n = min(n, 63)
                ins.vm = n if ins.vm is None else min(ins.vm, n)
            if ins.all_lg:
                m = 0
            else:
                m = None
                for idx in range(len(lgq) - 1, -1, -1):
                    if lgq[idx].wr & ins.need_lg:
                        m = len(lgq) - 1 - idx
                        break
                if m is not None and any(x.kind == "smem" for x in lgq):
                    m = 0
            if m is not None:
                m = min(m, 15)
                ins.lg = m if ins.lg is None else min(ins.lg, m)
            if n is not None:
                vmq = vmq[len(vmq) - n:] if n else []
            if m is not None:
                lgq = lgq[len(lgq) - m:] if m else []
        elif k in ("vld", "vst"):
            vmq.append(ins)
        elif k in ("dsr", "dsw", "smem"):
            lgq.append(ins)


def check(trace):
    errs = []
    vmq, lgq = [], []
    pos = 0
    last_mfma_w = {}
    last_mfma_c = {}
    last_valu_w = {}
    last_bigst = {}
    last_valu_sw = {}
    maxvm = maxlg = 0
    for n, ins in enumerate(trace):
        k = ins.kind
        if k == "label":
            continue
        if k == "wait":
            if ins.emit() is None:
                continue
            if ins.vm is not None:
                vmq = vmq[len(vmq) - ins.vm:] if (ins.vm and len(vmq) > ins.vm) else (vmq if ins.vm else [])
            if ins.lg is not None:
                lgq = lgq[len(lgq) - ins.lg:] if (ins.lg and len(lgq) > ins.lg) else (lgq if ins.lg else [])
            pos += 1
            continue
        touched = ins.rd | ins.wr
        for q in (vmq, lgq):
            for p in q:
                if p.wr & touched:
                    errs.append(f"[{n}] '{ins.text}' touches pending load '{p.text}'")
        if k == "barrier" and any(p.kind == "dsw" for p in lgq):
            errs.append(f"[{n}] barrier with pending ds_write")

        def need(tbl, regset, dist, why):
            for r in regset:
                if r in tbl:
                    p0 = tbl[r]
                    d = dist(p0) if callable(dist) else dist
                    if pos - p0[0] - 1 < d:
                        errs.append(f"[{n}] hazard {why}: '{ins.text}' after '{p0[2].text}' dist {pos - p0[0] - 1} < {d}")
                        return

        if k == "mfma":
            need(last_valu_w, ins.rd, 2, "valu->mfma")
            ab = ins.rd - ins.srcc
            need(last_mfma_w, ab, lambda p: 8 if p[1] == 4 else 12, "mfmaD->AB")
            for r in ins.srcc:
                if r in last_mfma_w:
                    p0 = last_mfma_w[r]
                    if p0[2].wr != ins.srcc:
                        d = 6 if p0[1] == 4 else 10
                        if pos - p0[0] - 1 < d:
                            errs.append(f"[{n}] hazard mfmaD->C overlap '{ins.text}'")
        elif k in ("valu", "vld", "vst", "dsr", "dsw"):
            need(last_mfma_w, touched, lambda p: 8 if p[1] == 4 else 12, "mfmaD->valu/mem")
            if k == "valu":
                need(last_mfma_c, ins.wr, lambda p: 3 if p[1] == 4 else 7, "mfmaC WAR")
                need(last_bigst, ins.wr, 2, "store data WAR")
                need(last_valu_sw, {r for r in ins.rd if r[0] == "s"}, 2, "valu sgpr->valu")
                if ins.text.startswith("v_readfirstlane") or ins.text.startswith("v_readlane"):
                    need(last_valu_w, ins.rd, 1, "valu->readlane")
                if "dpp" in ins.text or "row_" in ins.text or "quad_perm" in ins.text or "permlane" in ins.text:
                    need(last_valu_w, ins.rd | (ins.wr if "permlane" in ins.text else set()), 2, "valu->dpp/permlane")
            else:
                need(last_bigst, ins.wr, 1, "store data WAR (load)")
                need(last_valu_sw, {r for r in ins.rd if r[0] == "s"}, 5, "valu sgpr->vmem")
        if k == "mfma":
            for r in ins.wr:
                last_mfma_w[r] = (pos, ins.passes, ins)
            for r in ins.srcc:
                last_mfma_c[r] = (pos, ins.passes, ins)
        else:
            if k == "valu":
                for r in ins.wr:
                    if r[0] == "s":
                        last_valu_sw[r] = (pos, 0, ins)
                    else:
                        last_valu_w[r] = (pos, 0, ins)
            if k == "vst" and ins.big:
                for r in ins.rd:
                    if r[0] in "va":
                        last_bigst[r] = (pos, 0, ins)
        if k in ("vld", "vst"):
            vmq.append(ins)
            maxvm = max(maxvm, len(vmq))
        elif k in ("dsr", "dsw", "smem"):
            lgq.append(ins)
            maxlg = max(maxlg, len(lgq))
        pos += ins.states
    return errs, maxvm, maxlg


def emit(block):
    out = []
    for ins in block:
        t = ins.emit()
        if t is None:
            continue
        out.append(t if ins.kind == "label" else " " + t)
    return "\n".join(out)
```

```python
import argparse
import sys
from asmir import *

KNAME = "standalone__cross_network_dcn__recsys_kernel"
PNAME = "dcn_prep_kernel"
NL = 6
D = 1024
NB = 16384

HEADER = """; Kernarg layout for this problem (48 bytes, ptrs only, base s[0:1]):
; Generated by gen/gen.py (hand-written generator). Options: {opts}
"""

LDS_X = 131072
LDS_BIAS = LDS_X
LDS_TOTAL = LDS_X + NL * D * 4


def kd(name, vgpr, sgpr, accum):
    return f""".section .rodata,"a"
.p2align 6
.amdhsa_kernel {name}
  .amdhsa_next_free_vgpr {vgpr}
  .amdhsa_next_free_sgpr {sgpr}
  .amdhsa_accum_offset {accum}
  .amdhsa_group_segment_fixed_size 0
  .amdhsa_kernarg_size 48
  .amdhsa_user_sgpr_count 2
  .amdhsa_user_sgpr_kernarg_segment_ptr 1
  .amdhsa_system_sgpr_workgroup_id_x 1
  .amdhsa_float_denorm_mode_32 3
.end_amdhsa_kernel
"""


def srd(base, lo, hi, nbytes):
    return [salu("s_mov_b32", f"s{base}", lo), salu("s_mov_b32", f"s{base + 1}", hi),
            salu("s_mov_b32", f"s{base + 2}", hex(nbytes)), salu("s_mov_b32", f"s{base + 3}", "0x20000")]


def sload(d, off):
    return I(f"s_load_dwordx2 {d}, s[0:1], {off}", "smem", wr=[d])


def gen_prep(o):
    S = o.shape
    b = []
    b.append(salu("s_cmp_ge_u32", "s2", 384))
    b.append(raw("s_cbranch_scc1 Lprep_end", "branch"))
    b += [sload("s[4:5]", 8), sload("s[6:7]", 40)]
    b.append(valu("v_lshrrev_b32", "v1", 6, "v0"))
    b.append(valu("v_and_b32", "v2", 63, "v0"))
    b.append(valu("v_readfirstlane_b32", "s3", "v1"))
    b.append(valu("v_and_b32", "v3", 15, "v2"))
    b.append(valu("v_lshrrev_b32", "v4", 4, "v2"))
    b.append(nop(1))
    b.append(salu("s_lshl_b32", "s16", "s2", 2))
    b.append(salu("s_add_u32", "s16", "s16", "s3"))
    b.append(salu("s_and_b32", "s17", "s16", 7))
    b.append(salu("s_lshr_b32", "s18", "s16", 3))
    b.append(salu("s_lshl_b32", "s19", "s18", 16))
    b.append(salu("s_lshl_b32", "s20", "s17", 8))
    b.append(salu("s_add_u32", "s19", "s19", "s20"))
    b.append(salu("s_lshr_b32", "s20", "s18", 5))
    b.append(salu("s_and_b32", "s21", "s18", 31))
    b.append(salu("s_lshr_b32", "s22", "s17", 2))
    b.append(salu("s_and_b32", "s23", "s17", 3))
    b.append(salu("s_lshl_b32", "s20", "s20", 1))
    b.append(salu("s_add_u32", "s20", "s20", "s22"))
    b.append(salu("s_lshl_b32", "s20", "s20", 5))
    b.append(salu("s_add_u32", "s20", "s20", "s21"))
    b.append(salu("s_lshl_b32", "s20", "s20", 2))
    b.append(salu("s_add_u32", "s20", "s20", "s23"))
    b.append(salu("s_lshl_b32", "s20", "s20", 13))
    b.append(valu("v_lshlrev_b32", "v5", 14, "v4"))
    b.append(valu("v_lshl_add_u32", "v5", "v3", 4, "v5"))
    b.append(valu("v_add_u32", "v6", 4096, "v5"))
    b.append(valu("v_add_u32", "v7", 8192, "v5"))
    b.append(valu("v_add_u32", "v8", 12288, "v5"))
    b.append(valu("v_lshrrev_b32", "v9", 2, "v3"))
    b.append(valu("v_and_b32", "v10", 3, "v3"))
    if S == 16:
        b.append(valu("v_lshlrev_b32", "v11", 11, "v9"))
        b.append(valu("v_lshl_add_u32", "v11", "v4", 8, "v11"))
        b.append(valu("v_lshl_add_u32", "v11", "v10", 6, "v11"))
        eoff = lambda e: (e >> 2) * 1024 + (e & 3) * 16
    else:
        b.append(valu("v_lshrrev_b32", "v12", 1, "v4"))
        b.append(valu("v_and_b32", "v13", 1, "v4"))
        b.append(valu("v_lshlrev_b32", "v11", 12, "v12"))
        b.append(valu("v_lshl_add_u32", "v11", "v9", 10, "v11"))
        b.append(valu("v_lshl_add_u32", "v11", "v13", 9, "v11"))
        b.append(valu("v_lshrrev_b32", "v12", 1, "v10"))
        b.append(valu("v_and_b32", "v13", 1, "v10"))
        b.append(valu("v_lshl_add_u32", "v11", "v12", 8, "v11"))
        b.append(valu("v_lshl_add_u32", "v11", "v13", 6, "v11"))
        eoff = lambda e: (e >> 2) * 128 + (e & 3) * 16
    b.append(salu("s_mov_b32", "s24", "0x05040100"))
    b.append(salu("s_mov_b32", "s25", "0x07060302"))
    b.append(Wait(all_lg=True))
    b += srd(8, "s4", "s5", NL * D * D * 2)
    b += srd(12, "s6", "s7", NL * D * D * 2)
    for j in range(8):
        b.append(bload(R("v", 16 + 4 * j, 4), f"v{5 + (j >> 1)}", "s[8:11]", "s19", (j & 1) * 2048))
    for m in range(4):
        b.append(Wait(vm=[R("v", 16 + 8 * m, 8)]))
        for e in range(8):
            b.append(valu("v_perm_b32", f"v{48 + 4 * e + m}", f"v{16 + 4 * (2 * m + 1) + (e >> 1)}",
                          f"v{16 + 4 * (2 * m) + (e >> 1)}", "s25" if e & 1 else "s24"))
    for e in range(8):
        b.append(bstore(R("v", 48 + 4 * e, 4), "v11", "s[12:15]", "s20", eoff(e)))
    b.append(Label("Lprep_end"))
    b.append(raw("s_endpgm"))
    resolve_waits(b)
    errs, _, _ = check(b)
    assert not errs, errs
    txt = f".globl {PNAME}\n.p2align 8\n.type {PNAME},@function\n{PNAME}:\n" + emit(b) + "\n"
    return txt, kd(PNAME, 80, 32, 80)


class Main:
    def __init__(self, o):
        self.o = o
        self.S = o.shape
        S = self.S
        self.sX, self.sW, self.sO, self.sB = "s[8:11]", "s[12:15]", "s[16:19]", "s[20:23]"
        self.sWoff, self.sL, self.sMask, self.sWave = "s24", "s25", "s26", "s27"
        self.sRow = ["s28", "s29", "s30", "s31"]
        self.vW = ["v1", "v2"]
        self.vXr = ["v3", "v4"]
        self.vXw = ["v5", "v6"]
        self.vB = "v7"
        self.vG = "v8"
        self.T = 10
        self.RING = o.ring
        self.aX0 = 0
        self.aXF = 128
        self.aW = 160
        self.aACC = self.aW + 4 * self.RING
        self.nA = 256 - self.aACC
        assert self.nA % 32 == 0 or (S == 16 and self.nA % 8 == 0)
        self.vACC = 256 - (256 - self.nA)
        assert self.vACC >= 32, self.vACC
        self.NM = 32 if S == 16 else 16
        self.stampn = 0

    def acc(self, p, i, n=1):
        h = self.nA // 2
        nv = 128 - h
        if i < nv:
            assert i + n <= nv
            return R("v", self.vACC + p * nv + i, n)
        return R("a", self.aACC + p * h + (i - nv), n)

    def acc_tile(self, p, nt, bt):
        if self.S == 16:
            return self.acc(p, (nt * 4 + bt) * 4, 4)
        return self.acc(p, (nt * 2 + bt) * 16, 16)

    def unit_acc(self, p, kb, sub):
        if self.S == 16:
            return [self.acc(p, ((2 * kb + t) * 4 + sub) * 4 + r) for t in range(2) for r in range(4)]
        half, bt = sub >> 1, sub & 1
        return [self.acc(p, (kb * 2 + bt) * 16 + 8 * half + r) for r in range(8)]

    def x0reg(self, p, kb, sub, j=0, n=4):
        return R("a", self.aX0 + p * 64 + (kb * 4 + sub) * 4 + j, n)

    def gaddr(self, p, kb, sub):
        if self.S == 16:
            return self.sRow[sub], p * 1024 + kb * 64
        half, bt = sub >> 1, sub & 1
        return self.sRow[bt], p * 1024 + kb * 64 + half * 32

    def xf(self, buf, i):
        return R("a", self.aXF + buf * 16 + i * 4, 4)

    def wslot(self, f):
        return R("a", self.aW + (f % self.RING) * 4, 4)

    def wload(self, f):
        j = f % 8
        return bload(self.wslot(f), self.vW[j >> 2], self.sW, self.sWoff, (j & 3) * 1024, flags=self.o.wflags)

    def xread(self, buf, i, kb):
        h = kb >> 4
        return dsread(self.xf(buf, i), self.vXr[h], ((kb & 15) * 4 + i) * 1024)

    def stamp(self):
        if not self.o.stamps:
            return []
        n = self.stampn
        self.stampn += 1
        return [raw(f"s_memtime s[{40 + 2 * n}:{41 + 2 * n}]", "other")]

    def epi_stream(self, p, dest):
        T = self.T
        s = []
        u = 0
        for kb in range(4):
            for sub in range(4):
                accs = self.unit_acc(p, kb, sub)
                q = T + 2 + 4 * (u & 1)
                for j in range(4):
                    t = T + 10 + 4 * (j & 1)
                    xr, lo, m0, m1 = f"v{t}", f"v{t + 1}", f"v{t + 2}", f"v{t + 3}"
                    a0, a1 = accs[2 * j], accs[2 * j + 1]
                    s.append(valu("v_accvgpr_read_b32", xr, self.x0reg(p, kb, sub, j, 1)))
                    if a0[0] == "a":
                        s.append(valu("v_accvgpr_read_b32", m0, a0))
                        s.append(valu("v_accvgpr_read_b32", m1, a1))
                        a0, a1 = m0, m1
                    s.append(valu("v_lshlrev_b32", lo, 16, xr))
                    s.append(valu("v_and_b32", xr, self.sMask, xr))
                    s.append(valu("v_mul_f32", m0, lo, a0))
                    s.append(valu("v_mul_f32", m1, xr, a1))
                    s.append(valu("v_cvt_pk_bf16_f32", f"v{q + j}", m0, m1))
                if dest == "lds":
                    s.append(dswrite(self.vXw[p], R("v", q, 4), (kb * 4 + sub) * 1024))
                else:
                    so, off = self.gaddr(p, kb, sub)
                    s.append(bstore(R("v", q, 4), self.vG, self.sO, so, off, flags=self.o.oflags))
                u += 1
        return s

    def x0_stream(self, p):
        s = []
        for kb in range(4):
            for sub in range(4):
                s.append(Wait(vm=[self.x0reg(p, kb, sub)]))
                s.append(dswrite(self.vXw[p], self.x0reg(p, kb, sub), (kb * 4 + sub) * 1024))
        return s

    def bias_stream(self, p):
        T = self.T
        groups = []
        for kb in range(4):
            if self.S == 16:
                groups.append((kb * 128, [(kb, sub) for sub in range(4)]))
            else:
                for half in range(2):
                    groups.append((kb * 128 + half * 64, [(kb, half * 2 + bt) for bt in range(2)]))
        s = []

        def rd(gi):
            base = T + 2 + 8 * (gi & 1)
            off = p * 2048 + groups[gi][0]
            return [dsread(R("v", base, 4), self.vB, off), dsread(R("v", base + 4, 4), self.vB, off + 16)]

        s += rd(0)
        for gi, (off, units) in enumerate(groups):
            base = T + 2 + 8 * (gi & 1)
            first = True
            cnt = 0
            for (kb, sub) in units:
                accs = self.unit_acc(p, kb, sub)
                for r in range(8):
                    if first:
                        s.append(Wait(lg=[R("v", base, 8)]))
                        first = False
                    a = accs[r]
                    if a[0] == "a":
                        t = f"v{T + 18 + (cnt & 1)}"
                        s.append(valu("v_accvgpr_read_b32", t, a))
                        s.append(valu("v_add_f32", t, t, f"v{base + r}"))
                        s.append(valu("v_accvgpr_write_b32", a, t))
                    else:
                        s.append(valu("v_add_f32", a, a, f"v{base + r}"))
                    cnt += 1
                    if cnt == 2 and gi + 1 < len(groups):
                        s += rd(gi + 1)
        return s

    def quarter(self, p, h, stream, next_kb, barrier_last, last=False, stream_start=0, pre_last=()):
        o = self.o
        S, NM = self.S, self.NM
        mf = []
        gaps = [[] for _ in range(16 * NM)]
        per = NM // 8
        for ks in range(16):
            buf = ks & 1
            base = ks * NM
            for f in range(8):
                for m in range(per):
                    if S == 16:
                        d = self.acc_tile(p, f, m)
                        x = self.xf(buf, m)
                    else:
                        d = self.acc_tile(p, f & 3, m)
                        x = self.xf(buf, (f >> 2) * 2 + m)
                    mf.append(mfma(S, d, self.wslot(ks * 8 + f), x))
                g = base + f * per + per - 1
                fn = ks * 8 + f + self.RING
                if not (last and fn >= 128) and not o.now:
                    gaps[g].append(self.wload(fn))
                    if fn % 8 == 7:
                        gaps[g].append(salu("s_add_u32", self.sWoff, self.sWoff, 32768))
                nf = ks * 8 + f + 1
                if nf % o.wgroup == 0 and not (last and nf >= 128):
                    gaps[g].append(Wait(vm=[self.wslot(nf + i) for i in range(o.wgroup)]))
            nkb = h * 16 + ks + 1 if ks < 15 else next_kb
            g0 = base
            if ks == 15 and barrier_last:
                gaps[base - 1] += list(pre_last) + [Wait(all_lg=True), barrier()]
            if nkb is not None:
                for i in range(4):
                    gi = base + (1 + 4 * i if S == 16 else 2 * i)
                    gaps[gi].append(self.xread(buf ^ 1, i, nkb))
                if not (ks == 14 and barrier_last):
                    gaps[base + NM - 1].append(Wait(lg=[self.xf(buf ^ 1, i) for i in range(4)]))
        lo = stream_start
        hi = (15 if barrier_last else 16) * NM - 1
        if stream:
            cap = o.cap
            n = len(stream)
            free = [max(0, cap - len(gaps[g])) for g in range(lo, hi)]
            tot = sum(free)
            ncost = sum(1 for x in stream)
            if tot < ncost:
                print(f"; warning: stream {ncost} > capacity {tot}", file=sys.stderr)
                free = [f + 1 for f in free]
                tot = sum(free)
            quota = [0] * len(free)
            lvl = 0
            rem = n
            while rem > 0:
                lvl += 1
                cand = [i for i in range(len(free)) if len(gaps[lo + i]) + quota[i] < lvl and quota[i] < free[i]]
                if len(cand) <= rem:
                    for i in cand:
                        quota[i] += 1
                    rem -= len(cand)
                else:
                    for k in range(rem):
                        quota[cand[(k * len(cand)) // rem]] += 1
                    rem = 0
                assert lvl < 20
            it = iter(stream)
            for i, qn in enumerate(quota):
                ins = [next(it) for _ in range(qn)]
                gaps[lo + i] = ins + gaps[lo + i]
        out = []
        for i, m in enumerate(mf):
            out.append(m)
            out += gaps[i]
        return out

    def prologue(self):
        o = self.o
        S = self.S
        T = self.T
        b = []
        b.append(salu("s_cmp_ge_u32", "s2", NB // 64))
        b.append(raw("s_cbranch_scc1 Lend", "branch"))
        b += self.stamp()
        if o.stamps:
            b.append(raw("s_memrealtime s[36:37]"))
        b += [sload("s[4:5]", 0), sload("s[6:7]", 16), sload("s[32:33]", 24), sload("s[34:35]", 40)]
        b.append(valu("v_lshrrev_b32", "v9", 6, "v0"))
        b.append(valu("v_and_b32", "v10", 63, "v0"))
        b.append(valu("v_lshlrev_b32", "v11", 4, "v10"))
        b.append(valu("v_lshl_add_u32", self.vW[0], "v9", 13, "v11"))
        b.append(valu("v_add_u32", self.vW[1], 4096, self.vW[0]))
        b.append(valu("v_mov_b32", self.vXr[0], "v11"))
        b.append(valu("v_add_u32", self.vXr[1], 65536, "v11"))
        b.append(valu("v_lshl_add_u32", self.vXw[0], "v9", 14, "v11"))
        b.append(valu("v_add_u32", self.vXw[1], 65536, self.vXw[0]))
        sh = 4 if S == 16 else 5
        b.append(valu("v_lshrrev_b32", "v12", sh, "v10"))
        b.append(valu("v_and_b32", "v13", S - 1, "v10"))
        b.append(valu("v_lshlrev_b32", self.vB, 9, "v9"))
        b.append(valu("v_lshl_add_u32", self.vB, "v12", 5, self.vB))
        b.append(valu("v_add_u32", self.vB, LDS_BIAS, self.vB))
        b.append(valu("v_lshlrev_b32", self.vG, 11, "v13"))
        b.append(valu("v_lshl_add_u32", self.vG, "v9", 8, self.vG))
        b.append(valu("v_lshl_add_u32", self.vG, "v12", 4, self.vG))
        b.append(salu("s_lshl_b32", self.sRow[0], "s2", 17))
        for i in range(1, 4):
            b.append(salu("s_add_u32", self.sRow[i], self.sRow[0], i * S * 2048))
        b.append(salu("s_mov_b32", self.sMask, "0xffff0000"))
        b.append(salu("s_mov_b32", self.sWoff, 0))
        b.append(salu("s_mov_b32", self.sL, 0))
        b.append(valu("v_lshlrev_b32", "v14", 4, "v0"))
        b.append(Wait(all_lg=True))
        b += srd(8, "s4", "s5", NB * D * 2)
        b += srd(20, "s6", "s7", NL * D * 2)
        b += srd(16, "s32", "s33", NB * D * 2)
        b += srd(12, "s34", "s35", NL * D * D * 2)
        for m in range(3):
            b.append(salu("s_mov_b32", "s3", m * 4096))
            b.append(bload(R("v", 16 + 4 * m, 4), "v14", self.sB, "s3"))

        def x0loads(p):
            r = []
            for kb in range(4):
                for sub in range(4):
                    so, off = self.gaddr(p, kb, sub)
                    r.append(bload(self.x0reg(p, kb, sub), self.vG, self.sX, so, off, flags=o.xflags))
            return r

        b += x0loads(0)
        for f in range(self.RING):
            b.append(self.wload(f))
            if f % 8 == 7:
                b.append(salu("s_add_u32", self.sWoff, self.sWoff, 32768))
        b += x0loads(1)
        for p in range(2):
            for i in range(128):
                a = self.acc(p, i)
                b.append(valu("v_accvgpr_write_b32" if a[0] == "a" else "v_mov_b32", a, "1.0"))
        b.append(valu("v_lshlrev_b32", "v14", 5, "v0"))
        b.append(valu("v_add_u32", "v14", LDS_BIAS, "v14"))
        for m in range(3):
            b.append(Wait(vm=[R("v", 16 + 4 * m, 4)]))
            for hf in range(2):
                for j in range(2):
                    src = f"v{16 + 4 * m + 2 * hf + j}"
                    b.append(valu("v_lshlrev_b32", f"v{28 + 2 * j}", 16, src))
                    b.append(valu("v_and_b32", f"v{29 + 2 * j}", self.sMask, src))
                b.append(dswrite("v14", "v[28:31]", m * 8192 + hf * 16))
                b.append(Wait(all_lg=True))
        b += self.stamp()
        b += self.x0_stream(0)
        b += [Wait(all_lg=True), barrier()]
        for i in range(4):
            b.append(self.xread(0, i, 0))
        b.append(Wait(lg=[self.xf(0, i) for i in range(4)], vm=[self.wslot(i) for i in range(o.wgroup)]))
        b += self.stamp()
        return b

    def build(self):
        o = self.o
        pro = self.prologue()
        e = (lambda s: []) if o.noepi else (lambda s: s)
        q1f = self.quarter(0, 0, self.x0_stream(1), 16, True, stream_start=o.x0b_start * self.NM) + self.stamp()
        q2 = [Label("Lloop")] + self.quarter(0, 1, e(self.bias_stream(1)), 0, False)
        q3 = self.quarter(1, 0, e(self.bias_stream(0)), 16, True)
        q3 += [valu("v_add_u32", self.vB, 4096, self.vB), salu("s_add_u32", self.sL, self.sL, 1),
               salu("s_cmp_eq_u32", self.sL, NL), raw("s_cbranch_scc1 Llast", "branch")]
        q4 = self.quarter(1, 1, e(self.epi_stream(0, "lds")), 0, True)
        q1 = self.quarter(0, 0, e(self.epi_stream(1, "lds")), 16, True, stream_start=o.epib_start)
        if o.stamps:
            q1 += [raw("s_cmp_eq_u32 s25, 1"), raw("s_cbranch_scc0 Lnostamp"), raw("s_memtime s[48:49]"),
                   Label("Lnostamp")]
            self.stampn += 1
        q1 += [raw("s_branch Lloop", "branch")]
        q4l = [Label("Llast")] + self.stamp() + self.quarter(1, 1, self.epi_stream(0, "glb"), None, False, last=True)
        tail = self.stamp() + [nop(7)] + self.epi_stream(1, "glb")
        if o.stamps:
            tail += self.stamp()
            tail += [Wait(all_vm=True)]
            tail += self.stamp()
            tail.append(raw("s_memrealtime s[38:39]"))
            tail.append(raw("s_waitcnt lgkmcnt(0)"))
            tail.append(raw("v_cmp_eq_u32 vcc, 0, v0"))
            tail.append(raw("s_and_saveexec_b64 s[4:5], vcc"))
            tail.append(raw("s_cbranch_execz Lend"))
            tail.append(raw("s_lshl_b32 s3, s2, 8"))
            tail.append(raw("s_add_u32 s3, s3, 0x1000000"))
            tail.append(raw("s_mov_b32 s14, 0x10000000"))
            tail.append(raw("v_mov_b32 v1, 0"))
            for i in range(36, 64):
                tail.append(raw(f"v_mov_b32 v2, s{i}"))
                tail.append(raw(f"buffer_store_dword v2, v1, s[12:15], s3 offen offset:{(i - 36) * 4}"))
        tail += [Label("Lend"), raw("s_endpgm")]
        trace = pro + q1f
        for l in range(NL - 1):
            trace = trace + q2 + q3 + q4 + q1
        trace = trace + q2 + q3 + q4l + tail
        resolve_waits(trace)
        errs, mv, ml = check(trace)
        if errs and not (o.now):
            for x in errs[:20]:
                print(x, file=sys.stderr)
            raise SystemExit("hazard/dependency errors")
        prog = pro + q1f + q2 + q3 + q4 + q1 + q4l + tail
        txt = f".globl {KNAME}\n.p2align 8\n.type {KNAME},@function\n{KNAME}:\n" + emit(prog) + "\n"
        return txt, kd(KNAME, 512, 72, 256)


def main():
    ap = argparse.ArgumentParser()
    ap.add_argument("-o", default="standalone__cross_network_dcn__recsys.s")
    ap.add_argument("--shape", type=int, default=16)
    ap.add_argument("--ring", type=int, default=16)
    ap.add_argument("--wgroup", type=int, default=2)
    ap.add_argument("--cap", type=int, default=0)
    ap.add_argument("--wflags", default="")
    ap.add_argument("--xflags", default="")
    ap.add_argument("--oflags", default="")
    ap.add_argument("--x0b_start", type=int, default=4)
    ap.add_argument("--epib_start", type=int, default=0)
    ap.add_argument("--stamps", action="store_true")
    ap.add_argument("--now", action="store_true", help="diagnostic: no W loads in the loop")
    ap.add_argument("--noepi", action="store_true", help="diagnostic: no epilogue/bias in the loop")
    o = ap.parse_args()
    if not o.cap:
        o.cap = 2 if o.shape == 16 else 4
    for k in ("wflags", "xflags", "oflags"):
        v = getattr(o, k)
        setattr(o, k, (" " + v.replace(",", " ")) if v else "")
    ptxt, pkd = gen_prep(o)
    mtxt, mkd = Main(o).build()
    opts = " ".join(a for a in sys.argv[1:] if not a.endswith(".s") and a != "-o")
    s = HEADER.format(opts=opts)
    s += f"; @launch kernel={PNAME} grid=(384,1,1) block=(256,1,1) lds=0\n"
    s += f"; @launch kernel={KNAME} grid=(256,1,1) block=(256,1,1) lds={LDS_TOTAL}\n"
    s += '.amdgcn_target "amdgcn-amd-amdhsa--gfx950"\n.text\n'
    s += mtxt + ptxt + mkd + pkd
    open(o.o, "w").write(s)
    print(o.o, len(s), "bytes")


if __name__ == "__main__":
    main()
```

```python
import argparse
import sys
from asmir import *

KNAME = "standalone__cross_network_dcn__recsys_kernel"
NL = 6
D = 1024
NB = 16384

HEADER = """; Kernarg layout for this problem (48 bytes, ptrs only, base s[0:1]):
; Generated by gen/gen2.py (hand-written generator). Options: {opts}
"""

LDS_BIAS = 131072
LDS_STAGE = LDS_BIAS + NL * D * 4
LDS_TOTAL = LDS_STAGE + 8192


def kd(name, vgpr, sgpr, accum):
    return f""".section .rodata,"a"
.p2align 6
.amdhsa_kernel {name}
  .amdhsa_next_free_vgpr {vgpr}
  .amdhsa_next_free_sgpr {sgpr}
  .amdhsa_accum_offset {accum}
  .amdhsa_group_segment_fixed_size 0
  .amdhsa_kernarg_size 48
  .amdhsa_user_sgpr_count 2
  .amdhsa_user_sgpr_kernarg_segment_ptr 1
  .amdhsa_system_sgpr_workgroup_id_x 1
  .amdhsa_float_denorm_mode_32 3
.end_amdhsa_kernel
"""


def srd(base, lo, hi, nbytes):
    return [salu("s_mov_b32", f"s{base}", lo), salu("s_mov_b32", f"s{base + 1}", hi),
            salu("s_mov_b32", f"s{base + 2}", hex(nbytes)), salu("s_mov_b32", f"s{base + 3}", "0x20000")]


def sload(d, off, n=2):
    return I(f"s_load_dwordx{n} {d}, s[0:1], {off}", "smem", wr=[d])


def tagged(ins, tag):
    ins.wr = set(ins.wr) | {tag}
    return ins


class Main:
    def __init__(self, o):
        self.o = o
        self.sX, self.sW, self.sO, self.sB = "s[8:11]", "s[12:15]", "s[16:19]", "s[20:23]"
        self.sR, self.sD = "s[40:43]", "s[44:47]"
        self.sWoff, self.sL, self.sMask, self.sNeed = "s24", "s25", "s26", "s27"
        self.sRow = ["s28", "s29", "s30", "s31"]
        self.sRaw, self.sDst, self.sCnt, self.sBias, self.sStage, self.sSpin, self.sWave = (
            "s48", "s49", "s50", "s51", "s52", "s53", "s54")
        self.vW, self.vXw, self.vBG = "v0", "v3", "v4"
        self.vXr = ["v1", "v2"]
        self.t = ["v5", "v6", "v7"]
        self.Q = [8, 12]
        self.RING = 16
        self.NDB = o.ndb
        self.aX0 = 0
        self.aXF = 128
        nxf = 8 + 2 * self.NDB
        self.aW = self.aXF + 4 * nxf
        self.aACC = self.aW + 4 * self.RING
        self.nA = 256 - self.aACC
        assert self.nA >= 0 and self.nA % 8 == 0
        self.vACC = self.nA
        assert self.vACC >= 16
        if self.NDB == 1:
            self.order = [[0, 1, 2, 3], [3, 2, 1, 0]] * 3 + [[0, 3, 2, 1], [1, 2, 3, 0]]
        else:
            self.order = [[0, 1, 2, 3], [3, 2, 1, 0]] * 4
        self.stampn = 0
        self.names = []
        self.ool = []

    def acc(self, p, i, n=1):
        h = self.nA // 2
        nv = 128 - h
        if i < nv:
            assert i + n <= nv
            return R("v", self.vACC + p * nv + i, n)
        return R("a", self.aACC + p * h + (i - nv), n)

    def acc_tile(self, p, nt, bt):
        return self.acc(p, (nt * 4 + bt) * 4, 4)

    def unit_acc(self, p, kb, bt):
        return [self.acc(p, ((2 * kb + t) * 4 + bt) * 4 + r) for t in range(2) for r in range(4)]

    def x0reg(self, p, kb, bt, j=0, n=4):
        return R("a", self.aX0 + p * 64 + (kb * 4 + bt) * 4 + j, n)

    def xf(self, bt, c, par):
        if bt < self.NDB:
            i = 8 + self.NDB * 0 + (bt * 2 + c) if par else bt * 2 + c
        else:
            i = bt * 2 + c
        return R("a", self.aXF + 4 * i, 4)

    def wslot(self, nt, c):
        return R("a", self.aW + (nt * 2 + c) * 4, 4)

    def wload(self, nt, c):
        return bload(self.wslot(nt, c), self.vW, self.sW, self.sWoff, (nt & 1) * 2048 + c * 1024, flags=self.o.wflags)

    def wstep(self, nt):
        return salu("s_add_u32", self.sWoff, self.sWoff, 4096 if nt < 7 else 65536 - 12288)

    def xread(self, bt, c, par, h, ss):
        kb = 2 * ss + c
        w = kb >> 2
        return dsread(self.xf(bt, c, par), self.vXr[w >> 1], (w & 1) * 32768 + h * 16384 + (kb & 3) * 4096 + bt * 1024)

    def stamp(self, name="x"):
        if not self.o.stamps:
            return []
        n = self.stampn
        self.stampn += 1
        self.names.append(name)
        assert n < 15
        return [raw(f"s_memtime s[{70 + 2 * n}:{71 + 2 * n}]", "other")]

    def epi_unit(self, p, kb, bt, q):
        s = []
        accs = self.unit_acc(p, kb, bt)
        hi, lo, m = self.t
        for j in range(4):
            a0, a1 = accs[2 * j], accs[2 * j + 1]
            s.append(valu("v_accvgpr_read_b32", hi, self.x0reg(p, kb, bt, j, 1)))
            if a0[0] == "a":
                s.append(valu("v_accvgpr_read_b32", m, a0))
                a0 = m
            s.append(valu("v_lshlrev_b32", lo, 16, hi))
            s.append(valu("v_and_b32", hi, self.sMask, hi))
            s.append(valu("v_mul_f32", lo, lo, a0))
            if a1[0] == "a":
                s.append(valu("v_accvgpr_read_b32", m, a1))
                a1 = m
            s.append(valu("v_mul_f32", hi, hi, a1))
            s.append(valu("v_cvt_pk_bf16_f32", f"v{q + j}", lo, hi))
        return s

    def epi_stream(self, p, dest):
        s = []
        u = 0
        for (kb, bt) in (self.x0order() if dest == "glb" else [(kb, bt) for kb in range(4) for bt in range(4)]):
            if True:
                q = self.Q[u & 1]
                s += self.epi_unit(p, kb, bt, q)
                if dest == "lds":
                    s.append(dswrite(self.vXw, R("v", q, 4), p * 16384 + (kb * 4 + bt) * 1024))
                    if self.o.xch:
                        s.append(bstore(R("v", q, 4), self.vXw, "s[32:35]", "s68", (u & 3) * 1024, flags=self.o.xsflags))
                        if (u & 3) == 3:
                            s.append(salu("s_add_u32", "s68", "s68", 4096 if (u < 15 or p == 0) else (4096 - 32768 + 0x2000000)))
                else:
                    s.append(bstore(R("v", q, 4), self.vBG, self.sO, self.sRow[bt], p * 1024 + kb * 64,
                                    flags=self.o.oflags))
                u += 1
        return s

    def x0order(self):
        if self.o.x0ord == 0:
            return [(kb, bt) for kb in range(4) for bt in range(4)]
        return [(kb, bt) for bt in range(4) for kb in range(4)]

    def x0_stream(self, p):
        s = []
        for (kb, bt) in self.x0order():
            s.append(Wait(vm=[self.x0reg(p, kb, bt)]))
            s.append(dswrite(self.vXw, self.x0reg(p, kb, bt), p * 16384 + (kb * 4 + bt) * 1024))
        return s

    def calc_vB(self):
        return [valu("v_lshrrev_b32", self.vBG, 8, self.vXr[0]),
                valu("v_lshl_add_u32", self.vBG, self.vBG, 5, self.sBias)]

    def calc_vG(self):
        t = self.t[0]
        return [valu("v_bfe_u32", self.vBG, self.vXr[0], 4, 4),
                valu("v_lshlrev_b32", self.vBG, 11, self.vBG),
                valu("v_lshrrev_b32", t, 8, self.vXr[0]),
                valu("v_lshl_add_u32", self.vBG, t, 4, self.vBG),
                valu("v_lshrrev_b32", t, 14, self.vW),
                valu("v_lshl_add_u32", self.vBG, t, 8, self.vBG)]

    def bias_stream(self, p):
        s = []

        def rd(nt):
            return dsread(R("v", self.Q[nt & 1], 4), self.vBG, p * 2048 + (nt >> 1) * 128 + (nt & 1) * 16)

        s.append(rd(0))
        for nt in range(8):
            q = self.Q[nt & 1]
            cnt = 0
            for bt in range(4):
                for r in range(4):
                    if cnt == 0:
                        s.append(Wait(lg=[R("v", q, 4)]))
                    a = self.acc(p, (nt * 4 + bt) * 4 + r)
                    if a[0] == "a":
                        t = self.t[cnt & 1]
                        s.append(valu("v_accvgpr_read_b32", t, a))
                        s.append(valu("v_add_f32", t, t, f"v{q + r}"))
                        s.append(valu("v_accvgpr_write_b32", a, t))
                    else:
                        s.append(valu("v_add_f32", a, a, f"v{q + r}"))
                    cnt += 1
                    if self.o.xch and cnt % 8 == 5:
                        u = nt * 2 + (cnt >> 3)
                        s.append(I(f"buffer_load_dwordx4 {self.vXw}, s[32:35], s69 offen offset:{(u & 1) * 1024}{self.o.xlflags} lds", "vld", rd=[self.vXw]))
                        if (u & 1) == 1:
                            s.append(salu("s_add_u32", "s69", "s69", 2048 if (u < 15 or p == 1) else (2048 - 32768 + 0x2000000)))
                    if cnt == 1 and nt + 1 < 8:
                        s.append(rd(nt + 1))
        return s

    def prep_load(self):
        t0, t1 = self.t[0], self.t[1]
        s = [valu("v_lshrrev_b32", t0, 6, self.vXr[0]),
             valu("v_and_b32", t1, 48, self.vXr[0]),
             valu("v_lshl_add_u32", t0, t0, 11, t1),
             raw(f"s_mov_b32 m0, {self.sStage}", "salu", rd=[self.sStage]),
             salu("s_add_u32", "s3", self.sRaw, 32768 - 1024)]
        s.append(tagged(I(f"buffer_load_dwordx4 {t0}, {self.sR}, {self.sRaw} offen lds", "vld", rd=[t0]), "raw0"))
        s.append(tagged(I(f"buffer_load_dwordx4 {t0}, {self.sR}, s3 offen offset:1024 lds", "vld", rd=[t0]), "raw1"))
        s.append(salu("s_add_u32", self.sRaw, self.sRaw, D * D * 2))
        return s

    def prep_store(self):
        t0 = self.t[0]
        s = [valu("v_and_b32", t0, 0x300, self.vXr[0]),
             valu("v_add3_u32", t0, t0, self.vXr[0], self.sStage),
             Wait(vm=["raw0", "raw1"])]
        for t in range(2):
            for h in range(2):
                s.append(I(f"ds_read_b64_tr_b16 {R('v', self.Q[t] + 2 * h, 2)}, {t0} offset:{h * 256 + t * 8}", "dsr",
                           rd=[t0], wr=[R("v", self.Q[t] + 2 * h, 2)]))
        for t in range(2):
            s.append(Wait(lg=[R("v", self.Q[t], 4)]))
            s.append(tagged(bstore(R("v", self.Q[t], 4), self.vXr[0], self.sW, self.sDst, t * 2048, flags=" sc1"),
                            f"pst{t}"))
        s.append(salu("s_add_u32", self.sDst, self.sDst, D * D * 2))
        return s

    def signal(self):
        t0, t1 = self.t[0], self.t[1]
        return [valu("v_lshlrev_b32", t0, 4, self.vW),
                valu("v_mov_b32", t1, 1),
                I(f"buffer_atomic_add {t1}, {t0}, {self.sD}, {self.sCnt} offen sc1", "vst", rd=[t0, t1])]

    def poll_load(self):
        v = self.vBG
        return [valu("v_lshlrev_b32", v, 2, self.vXr[0]), valu("v_and_b32", v, 0xc0, v),
                bload(v, v, self.sD, 0, w="dword", flags=" sc1")]

    def poll_check(self, name):
        v, t = self.vBG, self.t[2]
        spin = [Label(f"Lspin_{name}"),
                valu("v_lshlrev_b32", v, 2, self.vXr[0]), valu("v_and_b32", v, 0xc0, v),
                raw(f"s_add_u32 {self.sSpin}, {self.sSpin}, 1"),
                raw(f"buffer_load_dword {v}, {v}, {self.sD}, 0 offen sc1"),
                raw(f"s_cmp_ge_u32 {self.sSpin}, 0x400000"),
                raw(f"s_cbranch_scc1 Lgiveup_{name}"),
                raw("s_waitcnt vmcnt(0)"),
                raw(f"v_cmp_gt_u32 vcc, {self.sNeed}, {v}"),
                raw(f"s_cbranch_vccnz Lspin_{name}"),
                Label(f"Lgiveup_{name}"),
                raw("s_waitcnt vmcnt(0)"),
                raw(f"s_branch Lok_{name}")]
        self.ool += spin
        return [Wait(vm=[v]), I(f"v_cmp_gt_u32 vcc, {self.sNeed}, {v}", "valu", rd=[v, self.sNeed]),
                raw(f"s_cbranch_vccnz Lspin_{name}", "branch"), Label(f"Lok_{name}"),
                salu("s_add_u32", self.sNeed, self.sNeed, 64)]

    def quarter(self, p, h, stream, next_h, bar, last=False, start=0, end=None, pre_bar=(), fixed=()):
        o = self.o
        NDB = self.NDB
        mf = []
        gaps = [[] for _ in range(512)]
        for ss in range(8):
            par = ss & 1
            base = ss * 64
            for nt in range(8):
                for j in range(4):
                    bt = self.order[nt][j]
                    for i in range(2):
                        c = i ^ (j & 1)
                        mf.append(mfma(16, self.acc_tile(p, nt, bt), self.wslot(nt, c), self.xf(bt, c, par)))
                g = base + nt * 8
                fin = last and ss == 7
                if not fin and not o.now:
                    if not o.whalf:
                        gaps[g + 6].append(self.wload(nt, 1))
                    if o.x15 and p == h:
                        gaps[g + 3].append(dsread(R("v", 16, 4), self.vXr[nt & 1], ((ss * 8 + nt) & 63) * 1024))
                    gaps[g + 7].append(self.wload(nt, 0))
                    if nt & 1:
                        gi = g + 9 if g + 9 < 512 else g + 7
                        gaps[gi].append(self.wstep(nt))
                if nt < 7:
                    if not (fin and False):
                        gaps[g + 7].append(Wait(vm=[self.wslot(nt + 1, 0), self.wslot(nt + 1, 1)]))
            nh, nss = (h, ss + 1) if ss < 7 else (next_h, 0)
            bg = base + o.bar_gap
            if ss == 7 and bar:
                gaps[bg] += list(pre_bar) + [Wait(all_lg=True), barrier()]
            if nh is not None:
                dbg = (bg + 1) if (ss == 7 and bar) else base + 10
                k = 0
                for bt in range(NDB):
                    for c in range(2):
                        gi = dbg + 2 * k + (1 if (dbg + 2 * k) % 8 >= 6 else 0) + (1 if (dbg + 2 * k) % 8 == 6 else 0)
                        gaps[gi].append(self.xread(bt, c, par ^ 1, nh, nss))
                        k += 1
                for j in range(4):
                    bt = self.order[7][j]
                    if bt >= NDB:
                        for i in range(2):
                            c = i ^ (j & 1)
                            gaps[base + 56 + 2 * j + i].append(self.xread(bt, c, par ^ 1, nh, nss))
                gaps[base + 63].append(Wait(vm=[self.wslot(0, 0), self.wslot(0, 1)],
                                            lg=[self.xf(0, c, par ^ 1) for c in range(2)]))
            for j in range(1, 4):
                bt = self.order[0][j]
                gaps[base + 2 * j - 1].append(Wait(lg=[self.xf(bt, c, par) for c in range(2)]))
        for gi, inss in fixed:
            gaps[gi] += inss
        lo = start
        hi = end if end is not None else (448 + o.bar_gap if bar else 511)
        self.place(gaps, stream, lo, hi)
        out = []
        for i, m in enumerate(mf):
            out.append(m)
            out += gaps[i]
        return out

    def place(self, gaps, stream, lo, hi):
        if not stream:
            return

        def load(g):
            return sum(1 for x in gaps[g] if x.kind not in ("label",) and not getattr(x, "soft", False))

        n = len(stream)
        quota = [0] * (hi - lo)
        lvl = 0
        rem = n
        while rem > 0:
            lvl += 1
            cand = [i for i in range(hi - lo) if load(lo + i) + quota[i] < lvl]
            if len(cand) <= rem:
                for i in cand:
                    quota[i] += 1
                rem -= len(cand)
            else:
                for k in range(rem):
                    quota[cand[(k * len(cand)) // rem]] += 1
                rem = 0
        if lvl > self.o.cap:
            print(f"; note: stream of {n} needs level {lvl}", file=sys.stderr)
        it = iter(stream)
        for i, qn in enumerate(quota):
            ins = [next(it) for _ in range(qn)]
            gaps[lo + i] = ins + gaps[lo + i]

    def prologue(self):
        o = self.o
        b = []
        b.append(salu("s_cmp_ge_u32", "s2", NB // 64))
        b.append(raw("s_cbranch_scc1 Lend", "branch"))
        b += self.stamp("start")
        if o.stamps:
            b.append(raw("s_memrealtime s[36:37]"))
        b += [sload("s[56:59]", 0, 4), sload("s[60:63]", 16, 4), sload("s[64:67]", 32, 4)]
        b.append(valu("v_lshrrev_b32", "v9", 6, "v0"))
        b.append(valu("v_and_b32", "v10", 63, "v0"))
        b.append(valu("v_readfirstlane_b32", self.sWave, "v9"))
        b.append(valu("v_lshlrev_b32", self.vXr[0], 4, "v10"))
        b.append(valu("v_lshlrev_b32", "v14", 4, "v0"))
        b.append(valu("v_lshlrev_b32", "v15", 5, "v0"))
        b.append(valu("v_add_u32", "v15", LDS_BIAS, "v15"))
        b.append(valu("v_add_u32", self.vXr[1], 65536, self.vXr[0]))
        b.append(valu("v_lshl_add_u32", self.vXw, "v9", 15, self.vXr[0]))
        b.append(valu("v_lshl_add_u32", self.vW, "v9", 14, self.vXr[0]))
        b += self.calc_vG()
        b.append(salu("s_lshl_b32", self.sRow[0], "s2", 17))
        for i in range(1, 4):
            b.append(salu("s_add_u32", self.sRow[i], self.sRow[0], i * 16 * 2048))
        b.append(salu("s_mov_b32", self.sMask, "0xffff0000"))
        b.append(salu("s_mov_b32", self.sWoff, 0))
        b.append(salu("s_mov_b32", self.sL, 0))
        b.append(salu("s_mov_b32", self.sSpin, 0))
        b.append(salu("s_mov_b32", self.sNeed, 64))
        b.append(salu("s_lshr_b32", "s4", "s2", 3))
        b.append(salu("s_and_b32", "s5", "s2", 7))
        b.append(salu("s_lshl_b32", self.sRaw, "s4", 16))
        b.append(salu("s_lshl_b32", "s6", "s5", 8))
        b.append(salu("s_add_u32", self.sRaw, self.sRaw, "s6"))
        b.append(salu("s_lshl_b32", "s6", self.sWave, 6))
        b.append(salu("s_add_u32", self.sRaw, self.sRaw, "s6"))
        b.append(salu("s_lshr_b32", "s6", "s5", 2))
        b.append(salu("s_lshl_b32", self.sDst, "s6", 20))
        b.append(salu("s_lshr_b32", "s6", "s4", 1))
        b.append(salu("s_lshl_b32", "s6", "s6", 16))
        b.append(salu("s_add_u32", self.sDst, self.sDst, "s6"))
        b.append(salu("s_and_b32", "s6", "s5", 3))
        b.append(salu("s_lshl_b32", "s6", "s6", 14))
        b.append(salu("s_add_u32", self.sDst, self.sDst, "s6"))
        b.append(salu("s_lshl_b32", "s6", self.sWave, 12))
        b.append(salu("s_add_u32", self.sDst, self.sDst, "s6"))
        b.append(salu("s_and_b32", "s6", "s4", 1))
        b.append(salu("s_lshl_b32", "s6", "s6", 10))
        b.append(salu("s_add_u32", self.sDst, self.sDst, "s6"))
        b.append(salu("s_and_b32", self.sCnt, "s2", 3))
        b.append(salu("s_lshl_b32", self.sCnt, self.sCnt, 6))
        b.append(salu("s_lshl_b32", self.sStage, self.sWave, 11))
        b.append(salu("s_add_u32", self.sStage, self.sStage, LDS_STAGE))
        b.append(salu("s_lshl_b32", self.sBias, self.sWave, 9))
        b.append(salu("s_add_u32", self.sBias, self.sBias, LDS_BIAS))
        b.append(Wait(all_lg=True))
        b += self.stamp("kernarg")
        b += srd(40, "s58", "s59", NL * D * D * 2)
        b += self.prep_load()
        b += srd(8, "s56", "s57", NB * D * 2)
        b += srd(20, "s60", "s61", NL * D * 2)
        b += srd(16, "s62", "s63", NB * D * 2)
        b += srd(12, "s66", "s67", NL * D * D * 2)
        b += srd(44, "s64", "s65", 256)
        if o.xch:
            b += srd(32, "s66", "s67", 0x10000000)
            b.append(salu("s_lshl_b32", "s68", "s2", 17))
            b.append(salu("s_xor_b32", "s69", "s2", o.xch))
            b.append(salu("s_lshl_b32", "s69", "s69", 17))
            b.append(salu("s_add_u32", "s68", "s68", 0x4000000))
            b.append(salu("s_add_u32", "s69", "s69", 0x2000000))
        tb = 16
        for m in range(3):
            b.append(salu("s_mov_b32", "s3", m * 4096))
            b.append(bload(R("v", tb + 4 * m, 4), "v14", self.sB, "s3"))

        def x0loads(p):
            return [bload(self.x0reg(p, kb, bt), self.vBG, self.sX, self.sRow[bt], p * 1024 + kb * 64, flags=o.xflags)
                    for (kb, bt) in self.x0order()]

        def only(ins_list, w0):
            n = self.nseg = getattr(self, "nseg", 0) + 1
            pre = [salu("s_cmp_eq_u32", self.sWave, 0), raw(f"s_cbranch_scc{0 if w0 else 1} Lseg{n}", "branch")]
            for x in ins_list:
                x.note = "w0" if w0 else "wn"
            return pre + ins_list + [Label(f"Lseg{n}")]

        def biascvt():
            r = []
            for m in range(3):
                r.append(Wait(vm=[R("v", tb + 4 * m, 4)]))
                for hf in range(2):
                    for j in range(2):
                        src = f"v{tb + 4 * m + 2 * hf + j}"
                        r.append(valu("v_lshlrev_b32", f"v{28 + 4 * hf + 2 * j}", 16, src))
                        r.append(valu("v_and_b32", f"v{29 + 4 * hf + 2 * j}", self.sMask, src))
                    r.append(dswrite("v36", R("v", 28 + 4 * hf, 4), m * 8192 + hf * 16))
                r.append(Wait(all_lg=True))
            return r

        def accinit():
            r = []
            for p in range(2):
                for i in range(128):
                    a = self.acc(p, i)
                    r.append(valu("v_accvgpr_write_b32" if a[0] == "a" else "v_mov_b32", a, "1.0"))
            return r

        def wring():
            r = []
            for nt in range(8):
                r += [self.wload(nt, 1), self.wload(nt, 0)]
                if nt & 1:
                    r.append(self.wstep(nt))
            return r

        xr0 = [self.xread(bt, c, 0, 0, 0) for bt in range(4) for c in range(2)]
        b.append(valu("v_mov_b32", "v36", "v15"))
        if o.pro == 0:
            b += x0loads(0)
            b += self.stamp("x0A_issued")
            b += biascvt() + self.prep_store() + x0loads(1)
            b += self.stamp("x0B_issued")
            b += accinit() + self.x0_stream(0)
            b += [Wait(all_lg=True, vm=["pst0", "pst1"]), barrier()]
            b += self.stamp("x0A_lds")
            b += self.signal() + self.poll_load() + xr0 + self.poll_check("pro")
            b += self.stamp("flag_seen")
            b += wring()
        elif o.pro == 1:
            b += self.prep_store()
            b += self.stamp("stores_issued")
            b += x0loads(0) + x0loads(1)
            b += self.stamp("x0_issued")
            b += [Wait(vm=["pst0", "pst1"]), barrier()] + self.signal()
            b += self.stamp("signalled")
            b += biascvt() + accinit() + self.x0_stream(0)
            b += [Wait(all_lg=True), barrier()]
            b += self.stamp("x0A_lds")
            b += self.poll_load() + xr0 + self.poll_check("pro")
            b += self.stamp("flag_seen")
            b += wring()
        elif o.pro == 2:
            b += self.prep_store()
            b += self.stamp("stores_issued")
            b += [Wait(vm=["pst0", "pst1"]), barrier()] + self.signal()
            b += self.stamp("signalled")
            b += x0loads(0) + x0loads(1)
            b += self.stamp("x0_issued")
            b += biascvt() + accinit() + self.x0_stream(0)
            b += [Wait(all_lg=True), barrier()]
            b += self.stamp("x0A_lds")
            b += self.poll_load() + xr0 + self.poll_check("pro")
            b += self.stamp("flag_seen")
            b += wring()
        elif o.pro in (3, 4):
            b += self.prep_store()
            b += self.stamp("stores_issued")
            if o.pro == 4:
                b += [Wait(vm=["pst0", "pst1"]), barrier()] + self.signal()
            b += x0loads(0)
            if o.pro == 3:
                b += [Wait(vm=["pst0", "pst1"]), barrier()] + self.signal()
            b += self.stamp("signalled")
            b += only(x0loads(1), False)
            b += self.stamp("x0_issued")
            b += biascvt() + accinit() + self.x0_stream(0)
            b.append(valu("v_mov_b32", self.t[2], self.vBG))
            b += only(self.poll_load() + self.poll_check("pro")[:-1], True)
            b.append(salu("s_add_u32", self.sNeed, self.sNeed, 64))
            b += [Wait(all_lg=True), barrier()]
            b += self.stamp("flag_seen")
            b += wring() + xr0
            b.append(valu("v_mov_b32", self.vBG, self.t[2]))
            b += only(x0loads(1), True)
        b.append(Wait(all_lg=True, vm=[self.wslot(0, 0), self.wslot(0, 1)]))
        b += self.stamp("pro_done")
        return b

    def build(self):
        o = self.o
        pro = self.prologue()
        e = (lambda s: []) if o.noepi else (lambda s: s)
        q1f = self.quarter(0, 0, self.x0_stream(1), 1, True) + self.stamp("q1f")
        q2 = [Label("Lloop")] + self.quarter(
            0, 1, (self.calc_vB() + e(self.bias_stream(1)) + self.prep_load() + [nop(0) for _ in range(40)] + self.prep_store()) if o.xch else
            (self.prep_load() + self.calc_vB() + e(self.bias_stream(1)) + self.prep_store()), 0, False)
        q3 = self.quarter(1, 0, e(self.bias_stream(0)), 1, True, pre_bar=[Wait(vm=["pst0", "pst1"])])
        q3 += [salu("s_add_u32", self.sBias, self.sBias, 4096), salu("s_add_u32", self.sL, self.sL, 1),
               salu("s_cmp_eq_u32", self.sL, NL), raw("s_cbranch_scc1 Llast", "branch")]
        es = e(self.epi_stream(0, "lds"))
        cut = (len(es) * o.poll_at) // 100
        while cut < len(es) and cut > 0 and es[cut - 1].kind != "dsw":
            cut += 1
        if o.epiwin:
            q4 = self.quarter(1, 1, es, 0, True, fixed=[(4, self.signal()), (200, self.poll_load()), (448 + 2, self.poll_check("loop"))],
                              start=480 - o.epiwin)
        else:
            q4 = self.quarter(1, 1, self.signal() + es[:cut] + self.poll_load() + es[cut:], 0, True,
                              fixed=[(448 + 2, self.poll_check("loop"))])
        q1 = self.quarter(0, 0, e(self.epi_stream(1, "lds")), 1, True, start=o.epib_start, end=(o.epiwin or None))
        if o.stamps:
            q1 += [raw("s_cmp_eq_u32 s25, 1"), raw("s_cbranch_scc0 Lnostamp")] + self.stamp("layer1") + [raw("s_memrealtime s[4:5]"), Label("Lnostamp")]
        q1 += [raw("s_branch Lloop", "branch")]
        q4l = [Label("Llast")] + self.stamp("4.5layers") + ([raw("s_memrealtime s[6:7]")] if o.stamps else []) + self.quarter(
            1, 1, self.calc_vG() + self.epi_stream(0, "glb"), None, False, last=True)
        tail = self.stamp("q4last") + [nop(7)] + self.epi_stream(1, "glb")
        if o.stamps:
            tail += self.stamp("tail_issued")
            tail += [Wait(all_vm=True)]
            tail += self.stamp("tail_drained")
            tail.append(raw("s_memrealtime s[38:39]"))
            tail.append(raw("s_waitcnt lgkmcnt(0)"))
            tail.append(raw("v_cmp_eq_u32 vcc, 0, v0"))
            tail.append(raw("s_and_saveexec_b64 s[56:57], vcc"))
            tail.append(raw("s_cbranch_execz Lend"))
            tail.append(raw("s_lshl_b32 s3, s2, 8"))
            tail.append(raw("s_add_u32 s3, s3, 0x1000000"))
            tail.append(raw("s_mov_b32 s14, 0x10000000"))
            tail.append(raw("v_mov_b32 v1, 0"))
            for n, i in enumerate(list(range(36, 40)) + list(range(70, 100)) + [4, 5, 6, 7, 53]):
                tail.append(raw(f"v_mov_b32 v2, s{i}"))
                tail.append(raw(f"buffer_store_dword v2, v1, s[12:15], s3 offen offset:{n * 4}"))
        tail += [Label("Lend"), raw("s_endpgm")]
        rest = list(q1f)
        for l in range(NL - 1):
            rest = rest + q2 + q3 + q4 + q1
        rest = rest + q2 + q3 + q4l + tail
        traces = [[x for x in pro if x.note != skip] + rest for skip in ("w0", "wn")]
        for tr in traces:
            resolve_waits(tr)
        for tr in traces:
            errs, mv, ml = check(tr)
            if errs and not (o.now or o.x15):
                for x in errs[:20]:
                    print(x, file=sys.stderr)
                raise SystemExit("hazard/dependency errors")
        prog = pro + q1f + q2 + q3 + q4 + q1 + q4l + tail + self.ool
        txt = f".globl {KNAME}\n.p2align 8\n.type {KNAME},@function\n{KNAME}:\n" + emit(prog) + "\n"
        txt = "; stamps: " + " ".join(self.names) + "\n" + txt
        return txt, kd(KNAME, 512, 102, 256)


def main():
    ap = argparse.ArgumentParser()
    ap.add_argument("-o", default="standalone__cross_network_dcn__recsys.s")
    ap.add_argument("--ndb", type=int, default=2)
    ap.add_argument("--cap", type=int, default=2)
    ap.add_argument("--wflags", default="")
    ap.add_argument("--xflags", default="")
    ap.add_argument("--oflags", default="")
    ap.add_argument("--bar_gap", type=int, default=33)
    ap.add_argument("--poll_at", type=int, default=40)
    ap.add_argument("--epib_start", type=int, default=0)
    ap.add_argument("--stamps", action="store_true")
    ap.add_argument("--epiwin", type=int, default=0, help="diagnostic")
    ap.add_argument("--whalf", action="store_true", help="diagnostic")
    ap.add_argument("--x15", action="store_true", help="diagnostic")
    ap.add_argument("--xch", type=int, default=0, help="diagnostic: emulate pair exchange traffic, partner = wg^N")
    ap.add_argument("--xsflags", default="")
    ap.add_argument("--xlflags", default="")
    ap.add_argument("--x0ord", type=int, default=0)
    ap.add_argument("--pro", type=int, default=0)
    ap.add_argument("--now", action="store_true", help="diagnostic: no W loads in the loop")
    ap.add_argument("--noepi", action="store_true", help="diagnostic: no epilogue/bias in the loop")
    o = ap.parse_args()
    for k in ("wflags", "xflags", "oflags", "xsflags", "xlflags"):
        v = getattr(o, k)
        setattr(o, k, (" " + v.replace(",", " ")) if v else "")
    mtxt, mkd = Main(o).build()
    opts = " ".join(a for a in sys.argv[1:] if not a.endswith(".s") and a != "-o")
    s = HEADER.format(opts=opts)
    s += f"; @launch grid=(256,1,1) block=(256,1,1) lds={LDS_TOTAL}\n"
    s += '.amdgcn_target "amdgcn-amd-amdhsa--gfx950"\n.text\n'
    s += mtxt + mkd
    open(o.o, "w").write(s)
    print(o.o, len(s), "bytes")


if __name__ == "__main__":
    main()
```

```python
import re


def regs(spec):
    m = re.fullmatch(r"([vas])\[(\d+):(\d+)\]", spec)
    if m:
        return [f"{m.group(1)}{i}" for i in range(int(m.group(2)), int(m.group(3)) + 1)]
    return [spec]


def R(kind, base, n=1):
    return f"{kind}{base}" if n == 1 else f"{kind}[{base}:{base + n - 1}]"


class I:
    __slots__ = ("text", "kind", "rd", "wr", "passes", "srcc", "need_vm", "need_lg", "vm", "lg", "states", "note",
                 "all_vm", "all_lg", "big")

    def __init__(self, text, kind, rd=(), wr=(), passes=0, srcc=(), big=False):
        self.text = text
        self.kind = kind
        self.rd = set(x for s in rd for x in regs(s))
        self.wr = set(x for s in wr for x in regs(s))
        self.passes = passes
        self.srcc = set(x for s in srcc for x in regs(s))
        self.states = 1
        self.big = big
        self.note = ""

    def emit(self):
        return self.text


class Wait(I):
    def __init__(self, vm=(), lg=(), all_vm=False, all_lg=False):
        super().__init__("", "wait")
        self.need_vm = set(x for s in vm for x in regs(s))
        self.need_lg = set(x for s in lg for x in regs(s))
        self.all_vm = all_vm
        self.all_lg = all_lg
        self.vm = None
        self.lg = None

    def emit(self):
        parts = []
        if self.vm is not None:
            parts.append(f"vmcnt({self.vm})")
        if self.lg is not None:
            parts.append(f"lgkmcnt({self.lg})")
        if not parts:
            return None
        return "s_waitcnt " + " ".join(parts)


class Label(I):
    def __init__(self, name):
        super().__init__(name + ":", "label")
        self.states = 0


def nop(n):
    i = I(f"s_nop {n}", "nop")
    i.states = n + 1
    return i


def mfma(shape, d, a, b, c=None):
    c = c or d
    name = "v_mfma_f32_16x16x32_bf16" if shape == 16 else "v_mfma_f32_32x32x16_bf16"
    return I(f"{name} {d}, {a}, {b}, {c}", "mfma", rd=[a, b] + ([c] if c[0] in "va" else []), wr=[d],
             passes=4 if shape == 16 else 8, srcc=[c] if c[0] in "va" else [])


def _isreg(x):
    return isinstance(x, str) and re.fullmatch(r"[vas](\d+|\[\d+:\d+\])", x) is not None


def valu(op, d, *src, extra=""):
    rd = [s for s in src if _isreg(s)]
    if op.startswith("v_fmac"):
        rd.append(d)
    return I(f"{op} {d}, " + ", ".join(str(s) for s in src) + extra, "valu", rd=rd, wr=[d])


def salu(op, d, *src):
    rd = [s for s in src if _isreg(s)]
    wr = [d] if _isreg(d) else []
    if op.startswith("s_cmp") or op.startswith("s_bitcmp"):
        rd = [s for s in (d,) + src if _isreg(s)]
        wr = []
    return I(f"{op} {d}" + "".join(f", {s}" for s in src), "salu", rd=rd, wr=wr)


def bload(d, voff, srd, soff, off=0, w="dwordx4", flags=""):
    o = f" offset:{off}" if off else ""
    return I(f"buffer_load_{w} {d}, {voff}, {srd}, {soff} offen{o}{flags}", "vld",
             rd=[voff, srd] + ([soff] if _isreg(soff) else []), wr=[d])


def bstore(s, voff, srd, soff, off=0, w="dwordx4", flags=""):
    o = f" offset:{off}" if off else ""
    return I(f"buffer_store_{w} {s}, {voff}, {srd}, {soff} offen{o}{flags}", "vst",
             rd=[s, voff, srd] + ([soff] if _isreg(soff) else []), big=(w in ("dwordx4", "dwordx3")))


def dsread(d, addr, off=0, w="b128"):
    assert 0 <= off < 65536
    o = f" offset:{off}" if off else ""
    return I(f"ds_read_{w} {d}, {addr}{o}", "dsr", rd=[addr], wr=[d])


def dswrite(addr, s, off=0, w="b128"):
    assert 0 <= off < 65536
    o = f" offset:{off}" if off else ""
    return I(f"ds_write_{w} {addr}, {s}{o}", "dsw", rd=[addr, s])


def raw(text, kind="other", rd=(), wr=()):
    return I(text, kind, rd=rd, wr=wr)


def barrier():
    return I("s_barrier", "barrier")


def resolve_waits(trace):
    vmq = []
    lgq = []
    for ins in trace:
        k = ins.kind
        if k == "wait":
            if ins.all_vm:
                n = 0
            else:
                n = None
                for idx in range(len(vmq) - 1, -1, -1):
                    if vmq[idx].wr & ins.need_vm:
                        n = len(vmq) - 1 - idx
                        break
            if n is not None:
                n = min(n, 63)
                ins.vm = n if ins.vm is None else min(ins.vm, n)
            if ins.all_lg:
                m = 0
            else:
                m = None
                for idx in range(len(lgq) - 1, -1, -1):
                    if lgq[idx].wr & ins.need_lg:
                        m = len(lgq) - 1 - idx
                        break
                if m is not None and any(x.kind == "smem" for x in lgq):
                    m = 0
            if m is not None:
                m = min(m, 15)
                ins.lg = m if ins.lg is None else min(ins.lg, m)
            if n is not None:
                vmq = vmq[len(vmq) - n:] if n else []
            if m is not None:
                lgq = lgq[len(lgq) - m:] if m else []
        elif k in ("vld", "vst"):
            vmq.append(ins)
        elif k in ("dsr", "dsw", "smem"):
            lgq.append(ins)


def check(trace):
    errs = []
    vmq, lgq = [], []
    pos = 0
    last_mfma_w = {}
    last_mfma_c = {}
    last_valu_w = {}
    last_bigst = {}
    last_valu_sw = {}
    maxvm = maxlg = 0
    last_m0 = -10
    for n, ins in enumerate(trace):
        k = ins.kind
        if k == "label":
            continue
        if k == "wait":
            if ins.emit() is None:
                continue
            if ins.vm is not None:
                vmq = vmq[len(vmq) - ins.vm:] if (ins.vm and len(vmq) > ins.vm) else (vmq if ins.vm else [])
            if ins.lg is not None:
                lgq = lgq[len(lgq) - ins.lg:] if (ins.lg and len(lgq) > ins.lg) else (lgq if ins.lg else [])
            pos += 1
            continue
        touched = {r for r in (ins.rd | ins.wr) if r[1:].isdigit() and r[0] in 'vas'}
        for q in (vmq, lgq):
            for p in q:
                if p.wr & touched:
                    errs.append(f"[{n}] '{ins.text}' touches pending load '{p.text}'")
        if k == "barrier" and any(p.kind == "dsw" for p in lgq):
            errs.append(f"[{n}] barrier with pending ds_write")

        def need(tbl, regset, dist, why):
            for r in regset:
                if r in tbl:
                    p0 = tbl[r]
                    d = dist(p0) if callable(dist) else dist
                    if pos - p0[0] - 1 < d:
                        errs.append(f"[{n}] hazard {why}: '{ins.text}' after '{p0[2].text}' dist {pos - p0[0] - 1} < {d}")
                        return

        if k == "mfma":
            need(last_valu_w, ins.rd, 2, "valu->mfma")
            ab = ins.rd - ins.srcc
            need(last_mfma_w, ab, lambda p: 8 if p[1] == 4 else 12, "mfmaD->AB")
            for r in ins.srcc:
                if r in last_mfma_w:
                    p0 = last_mfma_w[r]
                    if p0[2].wr != ins.srcc:
                        d = 6 if p0[1] == 4 else 10
                        if pos - p0[0] - 1 < d:
                            errs.append(f"[{n}] hazard mfmaD->C overlap '{ins.text}'")
        elif k in ("valu", "vld", "vst", "dsr", "dsw"):
            need(last_mfma_w, touched, lambda p: 8 if p[1] == 4 else 12, "mfmaD->valu/mem")
            if k == "valu":
                need(last_mfma_c, ins.wr, lambda p: 3 if p[1] == 4 else 7, "mfmaC WAR")
                need(last_bigst, ins.wr, 2, "store data WAR")
                need(last_valu_sw, {r for r in ins.rd if r[0] == "s"}, 2, "valu sgpr->valu")
                if ins.text.startswith("v_readfirstlane") or ins.text.startswith("v_readlane"):
                    need(last_valu_w, ins.rd, 1, "valu->readlane")
                if "dpp" in ins.text or "row_" in ins.text or "quad_perm" in ins.text or "permlane" in ins.text:
                    need(last_valu_w, ins.rd | (ins.wr if "permlane" in ins.text else set()), 2, "valu->dpp/permlane")
            else:
                need(last_bigst, ins.wr, 1, "store data WAR (load)")
                need(last_valu_sw, {r for r in ins.rd if r[0] == "s"}, 5, "valu sgpr->vmem")
        if k == "vld" and ins.text.endswith(" lds") and pos - last_m0 - 1 < 1:
            errs.append(f"[{n}] m0 hazard before '{ins.text}'")
        if re.match(r"s_\w+ m0,", ins.text):
            last_m0 = pos
        if k == "mfma":
            for r in ins.wr:
                last_mfma_w[r] = (pos, ins.passes, ins)
            for r in ins.srcc:
                last_mfma_c[r] = (pos, ins.passes, ins)
        else:
            if k == "valu":
                for r in ins.wr:
                    if r[0] == "s":
                        last_valu_sw[r] = (pos, 0, ins)
                    else:
                        last_valu_w[r] = (pos, 0, ins)
            if k == "vst" and ins.big:
                for r in ins.rd:
                    if r[0] in "va":
                        last_bigst[r] = (pos, 0, ins)
        if k in ("vld", "vst"):
            vmq.append(ins)
            maxvm = max(maxvm, len(vmq))
        elif k in ("dsr", "dsw", "smem"):
            lgq.append(ins)
            maxlg = max(maxlg, len(lgq))
        pos += ins.states
    return errs, maxvm, maxlg


def emit(block):
    out = []
    for ins in block:
        t = ins.emit()
        if t is None:
            continue
        out.append(t if ins.kind == "label" else " " + t)
    return "\n".join(out)
```

```python
import argparse
import sys
from asmir import *

KNAME = "standalone__cross_network_dcn__recsys_kernel"
NL = 6
D = 1024
NB = 16384
MB = 1 << 20

HEADER = """; Kernarg layout for this problem (48 bytes, ptrs only, base s[0:1]):
; Generated by gen/gen3.py (hand-written generator). Options: {opts}
"""

LDS_BIAS = 131072
LDS_STAGE = LDS_BIAS + NL * 512 * 4
LDS_TOTAL = LDS_STAGE + 8192
WS_FLAGS = 15 * MB
WS_XCH = 32 * MB
WS_STAMP = 16 * MB


def kd(name, vgpr, sgpr, accum):
    return f""".section .rodata,"a"
.p2align 6
.amdhsa_kernel {name}
  .amdhsa_next_free_vgpr {vgpr}
  .amdhsa_next_free_sgpr {sgpr}
  .amdhsa_accum_offset {accum}
  .amdhsa_group_segment_fixed_size 0
  .amdhsa_kernarg_size 48
  .amdhsa_user_sgpr_count 2
  .amdhsa_user_sgpr_kernarg_segment_ptr 1
  .amdhsa_system_sgpr_workgroup_id_x 1
  .amdhsa_float_denorm_mode_32 3
.end_amdhsa_kernel
"""


def srd(base, lo, hi, nbytes):
    return [salu("s_mov_b32", f"s{base}", lo), salu("s_mov_b32", f"s{base + 1}", hi),
            salu("s_mov_b32", f"s{base + 2}", hex(nbytes)), salu("s_mov_b32", f"s{base + 3}", "0x20000")]


def srd_off(base, lo, hi, off, nbytes):
    return [salu("s_add_u32", f"s{base}", lo, off), salu("s_addc_u32", f"s{base + 1}", hi, 0),
            salu("s_mov_b32", f"s{base + 2}", hex(nbytes)), salu("s_mov_b32", f"s{base + 3}", "0x20000")]


def sload(d, off, n=2):
    return I(f"s_load_dwordx{n} {d}, s[0:1], {off}", "smem", wr=[d])


def tagged(ins, tag):
    ins.wr = set(ins.wr) | {tag}
    return ins


def dma(voff, srdn, soff, off, flags, tag):
    o = f" offset:{off}" if off else ""
    return tagged(I(f"buffer_load_dwordx4 {voff}, {srdn}, {soff} offen{o}{flags} lds", "vld", rd=[voff]), tag)


def insert_at(stream, frac, items, ok):
    i = int(len(stream) * frac)
    while 0 < i < len(stream) and not ok(stream[i - 1]):
        i += 1
    return stream[:i] + items + stream[i:]


class Main:
    def __init__(self, o):
        self.o = o
        self.sX, self.sW, self.sO, self.sB = "s[8:11]", "s[12:15]", "s[16:19]", "s[20:23]"
        self.sE, self.sR, self.sD = "s[32:35]", "s[40:43]", "s[44:47]"
        self.sC, self.sFm, self.sFp = "s[56:59]", "s[60:63]", "s[64:67]"
        self.sWoff, self.sL, self.sMask, self.sNeed = "s24", "s25", "s26", "s27"
        self.sRow, self.sXs, self.sXl, self.sFlag = "s28", "s29", "s30", "s31"
        self.sRaw, self.sDst, self.sLds, self.sBias, self.sStage, self.sSpin, self.sWave, self.sPNeed = (
            "s48", "s49", "s50", "s51", "s52", "s53", "s54", "s55")
        self.vW, self.vXw, self.vB = "v0", "v3", "v4"
        self.vXr = ["v1", "v2"]
        self.vL = "v1"
        self.t = ["v5", "v6", "v7"]
        self.Q = [8, 12]
        self.vP, self.vG = "v16", "v17"
        self.vS = ["v18", "v19"]
        self.RQ = [20, 24]
        self.NS = o.slots
        self.aX0 = 0
        self.aXF = 128
        self.aW = 192
        self.aACC = self.aW + 8 * self.NS
        self.nA = 256 - self.aACC
        self.vACC = self.nA
        assert self.vACC >= 28
        self.slot = [s % self.NS for s in range(128)]
        assert 128 % self.NS == 0
        self.stampn = 0
        self.names = []
        self.ool = []

    def acc(self, p, i, n=1):
        h = self.nA // 2
        nv = 128 - h
        if i < nv:
            assert i + n <= nv
            return R("v", self.vACC + p * nv + i, n)
        return R("a", self.aACC + p * h + (i - nv), n)

    def acc_tile(self, nt, bt, r=0, n=4):
        return self.acc(nt >> 2, ((nt & 3) * 8 + bt) * 4 + r, n)

    def x0reg(self, kbl, bt, j=0, n=4):
        return R("a", self.aX0 + (kbl * 8 + bt) * 4 + j, n)

    def xf(self, bt, c):
        return R("a", self.aXF + (bt * 2 + c) * 4, 4)

    def wslot(self, s, c):
        return R("a", self.aW + (self.slot[s % 128] * 2 + c) * 4, 4)

    def wload(self, s, c):
        return bload(self.wslot(s, c), self.vW, self.sW, self.sWoff, (s & 1) * 2048 + c * 1024, flags=self.o.wflags)

    def wstep(self, s):
        return salu("s_add_u32", self.sWoff, self.sWoff, 4096 if (s % 128) != 127 else 4096 + 2 * MB - 256 * 1024)

    def xread(self, bt, c, rho, ss):
        return dsread(self.xf(bt, c), self.vXr[ss >> 1], (ss & 1) * 32768 + bt * 4096 + rho * 2048 + c * 1024)

    def stamp(self, name="x"):
        if not self.o.stamps:
            return []
        if self.o.pstamps and name in ("kernarg", "stores_issued", "signalled", "x0_issued", "x0_part", "flag_seen"):
            return []
        n = self.stampn
        self.stampn += 1
        self.names.append(name)
        assert n < 15
        return [raw(f"s_memtime s[{72 + 2 * n}:{73 + 2 * n}]", "other")]

    def lstamp(self, name, lval):
        if not self.o.pstamps:
            return []
        n = self.stampn
        return [raw(f"s_cmp_eq_u32 s25, {lval}"), raw(f"s_cbranch_scc0 Lns{n}")] + self.stamp(name) + [Label(f"Lns{n}")]

    def epi_unit(self, kbl, bt, q):
        s = []
        accs = [self.acc_tile(2 * kbl + t, bt, r, 1) for t in range(2) for r in range(4)]
        hi, lo, m = self.t
        for j in range(4):
            a0, a1 = accs[2 * j], accs[2 * j + 1]
            s.append(valu("v_accvgpr_read_b32", hi, self.x0reg(kbl, bt, j, 1)))
            if a0[0] == "a":
                s.append(valu("v_accvgpr_read_b32", m, a0))
                a0 = m
            s.append(valu("v_lshlrev_b32", lo, 16, hi))
            s.append(valu("v_and_b32", hi, self.sMask, hi))
            s.append(valu("v_mul_f32", lo, lo, a0))
            if a1[0] == "a":
                s.append(valu("v_accvgpr_read_b32", m, a1))
                a1 = m
            s.append(valu("v_mul_f32", hi, hi, a1))
            s.append(valu("v_cvt_pk_bf16_f32", f"v{q + j}", lo, hi))
        return s

    def xs_step(self, p, bt):
        if not bt & 1:
            return []
        if bt == 7 and p == 1:
            return self.xnext(self.sXs, 7 * 4096)
        return [salu("s_add_u32", self.sXs, self.sXs, 4096)]

    def xnext(self, reg, back):
        n = self.o.xbufs
        if n == 1:
            return [salu("s_sub_u32", reg, reg, back)]
        if n == 2:
            return [salu("s_sub_u32", reg, reg, back), salu("s_xor_b32", reg, reg, hex(32 * MB))]
        return [salu("s_add_u32", reg, reg, hex(32 * MB - back))]

    def epi_stream(self, p, ndirect=8):
        s = []
        for bt in range(8):
            for c in range(2):
                q = self.Q[c]
                s += self.epi_unit(2 * p + c, bt, q)
                s.append(dswrite(self.vXw, R("v", q, 4), bt * 4096 + p * 2048 + c * 1024))
                if not self.o.noxch and bt < ndirect:
                    s.append(tagged(bstore(R("v", q, 4), self.vXw, self.sE, self.sXs, (bt & 1) * 2048 + c * 1024,
                                           flags=self.o.xsflags), f"xs{p}"))
            if bt < ndirect:
                s += self.xs_step(p, bt)
        return s

    def pub_stream(self, p, lo, hi):
        s = []
        units = [(bt, c) for bt in range(lo, hi) for c in range(2)]

        def rd(i):
            bt, c = units[i]
            return dsread(R("v", self.RQ[i & 1], 4), self.vXw, bt * 4096 + p * 2048 + c * 1024)

        if units and not self.o.noxch:
            s.append(rd(0))
        for i, (bt, c) in enumerate(units):
            if not self.o.noxch:
                if i + 1 < len(units):
                    s.append(rd(i + 1))
                s.append(Wait(lg=[R("v", self.RQ[i & 1], 4)]))
                s.append(tagged(bstore(R("v", self.RQ[i & 1], 4), self.vXw, self.sE, self.sXs,
                                       (bt & 1) * 2048 + c * 1024, flags=self.o.xsflags), f"xs{p}"))
            if c == 1:
                s += self.xs_step(p, bt)
        return s

    def x0pub_stream(self, p):
        s = []
        for bt in range(8):
            for c in range(2):
                if not self.o.noxch:
                    s.append(tagged(bstore(self.x0reg(2 * p + c, bt), self.vXw, self.sE, self.sXs,
                                           (bt & 1) * 2048 + c * 1024, flags=self.o.xsflags), f"xs{p}"))
            s += self.xs_step(p, bt)
        return s

    def xch_dma(self, p):
        s = [raw(f"s_add_u32 m0, {self.sLds}, {p * 2048}", "salu", rd=[self.sLds]), nop(0)]
        for bt in range(8):
            for c in range(2):
                if not self.o.noxch:
                    s.append(dma(self.vXw, self.sE, self.sXl, c * 1024, self.o.xlflags, f"xl{p}"))
            if bt < 7:
                s.append(raw("s_add_u32 m0, m0, 4096", "salu"))
            if bt == 7 and p == 1:
                s += self.xnext(self.sXl, 15 * 2048)
            else:
                s.append(salu("s_add_u32", self.sXl, self.sXl, 2048))
        return s

    def out_setup(self):
        t0, t1 = self.t[0], self.t[1]
        vL = self.vL
        s = [
            valu("v_lshrrev_b32", t0, 7, vL),
            valu("v_lshlrev_b32", t1, 4, t0),
            valu("v_xor_b32", t1, t1, vL),
            valu("v_and_b32", t1, 0x70, t1),
            valu("v_lshl_add_u32", self.vG, t0, 11, t1),
            valu("v_lshrrev_b32", t0, 4, vL),
            valu("v_and_b32", t0, 0x30, t0),
            valu("v_xor_b32", t0, t0, vL),
            valu("v_and_b32", t0, 0x70, t0),
            valu("v_and_b32", t1, 0xf0, vL),
            valu("v_lshl_add_u32", t0, t1, 3, t0),
            valu("v_add_u32", self.vS[0], self.sLds, t0),
            valu("v_xor_b32", self.vS[1], 64, self.vS[0]),
        ]
        return s

    def out_stream(self, p):
        s = []
        pend = []
        for bt in range(8):
            for c in range(2):
                q = self.Q[c]
                u = self.epi_unit(2 * p + c, bt, q)
                if c == 0 and pend:
                    u = u[:12] + pend + u[12:]
                    pend = []
                s += u
                s.append(dswrite(self.vS[c], R("v", q, 4), bt * 4096))
            for i in range(2):
                s.append(dsread(R("v", self.RQ[i], 4), self.vXw, bt * 4096 + i * 1024))
            for i in range(2):
                pend.append(Wait(lg=[R("v", self.RQ[i], 4)]))
                pend.append(salu("s_add_u32", "s3", self.sRow, bt * 32768 + i * 16384))
                pend.append(bstore(R("v", self.RQ[i], 4), self.vG, self.sO, "s3", p * 128, flags=self.o.oflags))
        return s + pend

    def calc_vB(self):
        return [valu("v_lshrrev_b32", self.vB, 8, self.vL),
                valu("v_lshl_add_u32", self.vB, self.vB, 5, self.sBias)]

    def bias_stream(self, p):
        s = []

        def rd(nt):
            return dsread(R("v", self.Q[nt & 1], 4), self.vB, (nt >> 1) * 128 + (nt & 1) * 16)

        s.append(rd(4 * p))
        for nt in range(4 * p, 4 * p + 4):
            q = self.Q[nt & 1]
            cnt = 0
            for bt in range(8):
                for r in range(4):
                    if cnt == 0:
                        s.append(Wait(lg=[R("v", q, 4)]))
                    a = self.acc_tile(nt, bt, r, 1)
                    if a[0] == "a":
                        t = self.t[cnt & 1]
                        s.append(valu("v_accvgpr_read_b32", t, a))
                        s.append(valu("v_add_f32", t, t, f"v{q + r}"))
                        s.append(valu("v_accvgpr_write_b32", a, t))
                    else:
                        s.append(valu("v_add_f32", a, a, f"v{q + r}"))
                    cnt += 1
                    if cnt == 1 and nt + 1 < 4 * p + 4:
                        s.append(rd(nt + 1))
        return s

    def prep_load(self):
        t0, t1 = self.t[0], self.t[1]
        s = [valu("v_lshrrev_b32", t0, 6, self.vL),
             valu("v_and_b32", t1, 48, self.vL),
             valu("v_lshl_add_u32", t0, t0, 11, t1),
             raw(f"s_mov_b32 m0, {self.sStage}", "salu", rd=[self.sStage]),
             salu("s_add_u32", "s3", self.sRaw, 32768 - 1024)]
        s.append(dma(t0, self.sR, self.sRaw, 0, self.o.rflags, "raw"))
        s.append(dma(t0, self.sR, "s3", 1024, self.o.rflags, "raw"))
        s.append(salu("s_add_u32", self.sRaw, self.sRaw, D * D * 2))
        return s

    def prep_store(self):
        t0 = self.t[0]
        s = [valu("v_and_b32", t0, 0x300, self.vL),
             valu("v_add3_u32", t0, t0, self.vL, self.sStage),
             Wait(vm=["raw"])]
        for t in range(2):
            for h in range(2):
                s.append(I(f"ds_read_b64_tr_b16 {R('v', self.Q[t] + 2 * h, 2)}, {t0} offset:{h * 256 + t * 8}", "dsr",
                           rd=[t0], wr=[R("v", self.Q[t] + 2 * h, 2)]))
        for t in range(2):
            s.append(Wait(lg=[R("v", self.Q[t], 4)]))
            s.append(tagged(bstore(R("v", self.Q[t], 4), self.vL, self.sW, self.sDst, t * 2048, flags=" sc1"), "pst"))
        s.append(salu("s_add_u32", self.sDst, self.sDst, D * D * 2))
        return s

    def wsignal(self):
        t = self.t[2]
        return [valu("v_mov_b32", t, 1),
                I(f"buffer_atomic_add {t}, {self.vW}, {self.sC}, 0 offen sc1", "vst", rd=[t, self.vW])]

    def psignal(self, p):
        t = self.t[2]
        return [salu("s_add_u32", self.sFlag, self.sFlag, 1), Wait(vm=[f"xs{p}"]),
                valu("v_mov_b32", t, self.sFlag),
                bstore(t, self.vL, self.sFm, 0, w="dword", flags=" sc1")]

    def wpoll_load(self):
        v = self.vP
        return [valu("v_lshlrev_b32", v, 2, self.vL), valu("v_and_b32", v, 0xc0, v),
                bload(v, v, self.sD, 0, w="dword", flags=" sc1")]

    def ppoll_load(self):
        return [I(f"buffer_load_dword {self.vP}, off, {self.sFp}, 0 sc1", "vld", wr=[self.vP])]

    def poll_check(self, name, need, inc, loader):
        v = self.vP
        spin = [Label(f"Lspin_{name}"), raw(f"s_add_u32 {self.sSpin}, {self.sSpin}, 1")]
        spin += [raw(x.text) for x in loader()]
        spin += [raw(f"s_cmp_ge_u32 {self.sSpin}, 0x400000"),
                 raw(f"s_cbranch_scc1 Lgiveup_{name}"),
                 raw("s_waitcnt vmcnt(0)"),
                 raw(f"v_cmp_gt_u32 vcc, {need}, {v}"),
                 raw(f"s_cbranch_vccnz Lspin_{name}"),
                 Label(f"Lgiveup_{name}"),
                 raw("s_waitcnt vmcnt(0)"),
                 raw(f"s_branch Lok_{name}")]
        self.ool += spin
        return [Wait(vm=[v]), I(f"v_cmp_gt_u32 vcc, {need}, {v}", "valu", rd=[v, need]),
                raw(f"s_cbranch_vccnz Lspin_{name}", "branch"), Label(f"Lok_{name}"),
                salu("s_add_u32", need, need, inc)]

    def phase(self, s0, nts, rho, next_rho, stream=(), bar=False, last=False, start=0, end=None, pre_bar=(),
              fixed=(), extra=()):
        o = self.o
        NS = self.NS
        NT = len(nts)
        L = NT * 16
        mf = []
        gaps = [[] for _ in range(4 * L)]
        fwd = list(range(8))
        for ss in range(4):
            base = ss * L
            for k, nt in enumerate(nts):
                s = s0 + ss * NT + k
                order = fwd if ((ss + k) & 1) == 0 else fwd[::-1]
                for j, bt in enumerate(order):
                    for i in range(2):
                        c = i ^ (j & 1)
                        mf.append(mfma(16, self.acc_tile(nt, bt), self.wslot(s, c), self.xf(bt, c)))
                g = base + k * 16
                sn = s + NS
                if not (last and sn >= s0 + 4 * NT) and not o.now:
                    gaps[g + 14].append(self.wload(sn, 1))
                    gaps[g + 15].append(self.wload(sn, 0))
                    if sn & 1:
                        gi = g + 18 if g + 18 < 4 * L else g + 15
                        gaps[gi].append(self.wstep(sn))
                if k < NT - 1:
                    gaps[g + 15].append(Wait(vm=[self.wslot(s + 1, 0), self.wslot(s + 1, 1)]))
                if k == 0:
                    for j in range(o.xw, 8, o.xw):
                        gaps[g + 2 * j - 1].append(
                            Wait(lg=[self.xf(order[jj], c) for jj in range(j, min(8, j + o.xw)) for c in range(2)]))
            nrho, nss = (rho, ss + 1) if ss < 3 else (next_rho, 0)
            gl = base + L - 16
            if ss == 3 and bar:
                gaps[gl - o.bar_lead] += list(pre_bar) + [Wait(all_lg=True), barrier()]
            if nrho is not None:
                for j, bt in enumerate(order):
                    for i in range(2):
                        c = i ^ (j & 1)
                        gaps[gl + 2 * j + i].append(self.xread(bt, c, nrho, nss))
                s = s0 + (ss + 1) * NT
                gaps[base + L - 1].append(Wait(vm=[self.wslot(s, 0), self.wslot(s, 1)],
                                               lg=[self.xf(order[jj], c) for jj in range(o.xw) for c in range(2)]))
        for gi, inss in fixed:
            gaps[gi] += inss
        hi = end if end is not None else (4 * L - 16 - o.bar_lead if bar else 4 * L - 1)
        for st, lo2, hi2 in extra:
            self.place(gaps, list(st), lo2, hi2)
        self.place(gaps, list(stream), start, hi)
        out = []
        for i, m in enumerate(mf):
            out.append(m)
            out += gaps[i]
        return out

    def place(self, gaps, stream, lo, hi):
        if not stream:
            return

        def load(g):
            return sum(1 for x in gaps[g] if x.kind != "label")

        n = len(stream)
        quota = [0] * (hi - lo)
        lvl = 0
        rem = n
        while rem > 0:
            lvl += 1
            cand = [i for i in range(hi - lo) if load(lo + i) + quota[i] < lvl]
            if len(cand) <= rem:
                for i in cand:
                    quota[i] += 1
                rem -= len(cand)
            else:
                for k in range(rem):
                    quota[cand[(k * len(cand)) // rem]] += 1
                rem = 0
        it = iter(stream)
        for i, qn in enumerate(quota):
            ins = [next(it) for _ in range(qn)]
            gaps[lo + i] = ins + gaps[lo + i]

    def prologue(self):
        o = self.o
        vL = self.vL
        b = []
        b.append(salu("s_cmp_ge_u32", "s2", 256))
        b.append(raw("s_cbranch_scc1 Lend", "branch"))
        b += self.stamp("start")
        if o.stamps:
            b.append(raw("s_memrealtime s[36:37]"))
        b += [sload("s[56:59]", 0, 4), sload("s[60:63]", 16, 4), sload("s[64:67]", 32, 4)]
        b.append(valu("v_lshrrev_b32", "v9", 6, "v0"))
        b.append(valu("v_and_b32", "v10", 63, "v0"))
        b.append(valu("v_readfirstlane_b32", self.sWave, "v9"))
        b.append(valu("v_lshlrev_b32", vL, 4, "v10"))
        if o.cpf:
            b.append(raw("s_getpc_b64 s[4:5]", "salu"))
            b.append(Label("Lpc"))
            b.append(valu("v_lshlrev_b32", "v11", 6, "v0"))
            for i in range(o.cpf):
                b.append(raw(f"v_min_u32 v12, Lend-Lpc, v11", "valu", rd=["v11"], wr=["v12"]))
                b.append(I(f"global_load_dword v{60 + i}, v12, s[4:5]", "vld", rd=["v12"], wr=[f"v{60 + i}"]))
                b.append(valu("v_add_u32", "v11", 16384, "v11"))
        b.append(valu("v_lshrrev_b32", "v11", 7, "v0"))
        b.append(valu("v_and_b32", "v12", 127, "v0"))
        b.append(valu("v_lshlrev_b32", "v12", 3, "v12"))
        b.append(valu("v_lshl_add_u32", "v30", "v11", 11, "v12"))
        b.append(valu("v_lshlrev_b32", "v31", 4, "v0"))
        b.append(valu("v_add_u32", "v31", LDS_BIAS, "v31"))
        b.append(valu("v_add_u32", self.vXr[1], 65536, vL))
        b.append(valu("v_lshl_add_u32", self.vXw, "v9", 15, vL))
        b.append(valu("v_lshl_add_u32", self.vW, "v9", 18, vL))
        b.append(valu("v_lshrrev_b32", "v11", 4, "v10"))
        b.append(valu("v_and_b32", "v12", 15, "v10"))
        b.append(valu("v_xor_b32", "v13", "v11", "v12"))
        b.append(valu("v_lshlrev_b32", "v13", 4, "v13"))
        b.append(valu("v_lshl_add_u32", "v20", "v11", 11, "v13"))
        for i in range(1, 4):
            b.append(valu("v_xor_b32", f"v{20 + i}", 64 * i, "v20"))
        b.append(valu("v_lshl_add_u32", "v24", "v12", 8, "v13"))
        b.append(valu("v_lshl_add_u32", "v24", "v9", 15, "v24"))
        for i in range(1, 4):
            b.append(valu("v_xor_b32", f"v{24 + i}", 64 * i, "v24"))
        b.append(salu("s_and_b32", "s7", "s2", 1))
        b.append(salu("s_lshr_b32", self.sRow, "s2", 1))
        b.append(salu("s_lshl_b32", self.sRow, self.sRow, 18))
        b.append(salu("s_lshl_b32", "s6", "s7", 10))
        b.append(salu("s_add_u32", self.sRow, self.sRow, "s6"))
        b.append(salu("s_lshl_b32", "s6", self.sWave, 8))
        b.append(salu("s_add_u32", self.sRow, self.sRow, "s6"))
        b.append(salu("s_mov_b32", self.sMask, "0xffff0000"))
        b.append(salu("s_lshl_b32", self.sWoff, "s7", 20))
        b.append(salu("s_mov_b32", self.sL, 0))
        b.append(salu("s_mov_b32", self.sSpin, 0))
        b.append(salu("s_mov_b32", self.sFlag, 0))
        b.append(salu("s_mov_b32", self.sNeed, 64))
        b.append(salu("s_mov_b32", self.sPNeed, 1))
        b.append(salu("s_lshl_b32", self.sLds, self.sWave, 15))
        b.append(salu("s_lshl_b32", self.sXs, "s2", 17))
        b.append(salu("s_add_u32", self.sXs, self.sXs, o.xbase * MB))
        b.append(salu("s_xor_b32", self.sXl, self.sXs, 1 << 17))
        b.append(salu("s_lshr_b32", "s4", "s2", 3))
        b.append(salu("s_and_b32", "s5", "s2", 7))
        b.append(salu("s_lshl_b32", self.sRaw, "s4", 16))
        b.append(salu("s_lshl_b32", "s6", "s5", 8))
        b.append(salu("s_add_u32", self.sRaw, self.sRaw, "s6"))
        b.append(salu("s_lshl_b32", "s6", self.sWave, 6))
        b.append(salu("s_add_u32", self.sRaw, self.sRaw, "s6"))
        b.append(salu("s_lshl_b32", self.sDst, "s5", 18))
        b.append(salu("s_and_b32", "s6", "s4", 1))
        b.append(salu("s_lshl_b32", "s6", "s6", 10))
        b.append(salu("s_add_u32", self.sDst, self.sDst, "s6"))
        b.append(salu("s_lshr_b32", "s6", "s4", 4))
        b.append(salu("s_lshr_b32", "s5", "s5", 2))
        b.append(salu("s_xor_b32", "s5", "s5", "s6"))
        b.append(salu("s_bfe_u32", "s6", "s4", "0x10001"))
        b.append(salu("s_lshl_b32", "s3", "s5", 1))
        b.append(salu("s_add_u32", "s3", "s3", "s6"))
        b.append(salu("s_lshl_b32", "s3", "s3", 16))
        b.append(salu("s_add_u32", self.sDst, self.sDst, "s3"))
        b.append(salu("s_bfe_u32", "s4", "s4", "0x20002"))
        b.append(salu("s_xor_b32", "s5", "s5", "s6"))
        b.append(salu("s_lshr_b32", "s3", self.sWave, 1))
        b.append(salu("s_lshl_b32", "s3", "s3", 4))
        b.append(salu("s_lshl_b32", "s6", "s4", 2))
        b.append(salu("s_add_u32", "s3", "s3", "s6"))
        b.append(salu("s_and_b32", "s6", self.sWave, 1))
        b.append(salu("s_lshl_b32", "s6", "s6", 1))
        b.append(salu("s_add_u32", "s3", "s3", "s6"))
        b.append(salu("s_lshl_b32", "s4", "s4", 3))
        b.append(salu("s_lshl_b32", "s6", self.sWave, 1))
        b.append(salu("s_add_u32", "s4", "s4", "s6"))
        b.append(salu("s_cmp_eq_u32", "s5", 0))
        b.append(salu("s_cselect_b32", "s3", "s3", "s4"))
        b.append(salu("s_lshl_b32", "s3", "s3", 11))
        b.append(salu("s_add_u32", self.sDst, self.sDst, "s3"))
        b.append(salu("s_lshl_b32", self.sStage, self.sWave, 11))
        b.append(salu("s_add_u32", self.sStage, self.sStage, LDS_STAGE))
        b.append(salu("s_lshl_b32", self.sBias, self.sWave, 9))
        b.append(salu("s_add_u32", self.sBias, self.sBias, LDS_BIAS))
        b.append(Wait(all_lg=True))
        b += self.stamp("kernarg")
        b += srd(40, "s58", "s59", NL * D * D * 2)
        b += self.prep_load()
        b += srd(20, "s60", "s61", NL * D * 2)
        tb = 32
        b.append(salu("s_lshl_b32", "s3", "s7", 10))
        for m in range(3):
            b.append(bload(R("v", tb + 2 * m, 2), "v30", self.sB, "s3", w="dwordx2"))
            b.append(salu("s_add_u32", "s3", "s3", 4096))
        b += srd(8, "s56", "s57", NB * D * 2)
        b += srd(16, "s62", "s63", NB * D * 2)
        b += srd(12, "s66", "s67", NL * D * D * 2)
        b += srd(32, "s66", "s67", 256 * MB)
        b += srd(44, "s64", "s65", 256)
        b.append(salu("s_and_b32", "s3", "s2", 3))
        b.append(salu("s_lshl_b32", "s3", "s3", 6))
        b += srd_off(56, "s44", "s45", "s3", 4)
        b.append(salu("s_lshl_b32", "s3", "s2", 2))
        b.append(salu("s_add_u32", "s3", "s3", self.sWave))
        b.append(salu("s_lshl_b32", "s3", "s3", 7))
        b.append(salu("s_add_u32", "s3", "s3", WS_FLAGS))
        b += srd_off(60, "s32", "s33", "s3", 4)
        b.append(salu("s_xor_b32", "s3", "s3", 512))
        b += srd_off(64, "s32", "s33", "s3", 4)
        if o.delay:
            for _ in range(o.delay):
                b.append(raw("s_sleep 127"))
        if o.touch:
            for l in range(6):
                b.append(salu("s_add_u32", "s3", self.sXs, l * 32 * MB))
                if o.touch == 1:
                    b.append(bload(f"v{60 + l}", self.vXw, self.sE, "s3", w="dword"))
                else:
                    b.append(bstore(f"v{60 + l}", self.vXw, self.sE, "s3", w="dword", flags=" sc1"))
            b.append(Wait(all_vm=True))
        def x0dma(lo, hi):
            r = []
            for i in range(lo, hi):
                r.append(raw(f"s_add_u32 m0, {self.sLds}, {i * 1024}", "salu"))
                r.append(salu("s_add_u32", "s3", self.sRow, i * 8192))
                r.append(dma(f"v{20 + (i & 3)}", self.sX, "s3", 0, o.xflags, f"x0_{i >> 2}"))
            return r

        def x0fix(bt):
            r = [Wait(vm=[f"x0_{bt}"])]
            for kbl in range(4):
                r.append(dsread(self.x0reg(kbl, bt), f"v{24 + kbl}", bt * 4096))
            r.append(Wait(all_lg=True))
            for kbl in range(4):
                r.append(dswrite(self.vXw, self.x0reg(kbl, bt), bt * 4096 + kbl * 1024))
            if o.apub:
                for c in range(2):
                    r.append(tagged(bstore(self.x0reg(c, bt), self.vXw, self.sE, self.sXs, (bt & 1) * 2048 + c * 1024,
                                           flags=o.xsflags), "xs0"))
                r += self.xs_step(0, bt)
            return r

        def accinit(pred):
            r = []
            for p in range(2):
                for i in range(128):
                    a = self.acc(p, i)
                    if pred(a):
                        r.append(valu("v_accvgpr_write_b32" if a[0] == "a" else "v_mov_b32", a, "1.0"))
            return r

        late = lambda a: a[0] == "v" and int(a[1:]) < 64
        na, nb, ahead, npoll = o.x0split
        b.append(valu("v_mov_b32", self.t[2], 0))
        b.append(tagged(bstore(self.t[2], vL, self.sFm, 0, w="dword", flags=" sc1"), "pst"))
        b += x0dma(0, na)
        b += accinit(lambda a: not late(a))
        b += self.prep_store()
        b += self.stamp("stores_issued")
        b += x0dma(na, nb)
        for m in range(3):
            b.append(Wait(vm=[R("v", tb + 2 * m, 2)]))
            for j in range(2):
                src = f"v{tb + 2 * m + j}"
                b.append(valu("v_lshlrev_b32", f"v{40 + 4 * m + 2 * j}", 16, src))
                b.append(valu("v_and_b32", f"v{41 + 4 * m + 2 * j}", self.sMask, src))
            b.append(dswrite("v31", R("v", 40 + 4 * m, 4), m * 4096))
        b.append(Wait(all_lg=True))
        b += accinit(late)
        b += [Wait(vm=["pst"]), barrier()] + self.wsignal()
        b += self.stamp("signalled")
        issued = nb
        checked = False
        poll_before = None
        for bt in range(8):
            want = min(32, 4 * (bt + 1 + ahead))
            if bt == npoll:
                b += self.wpoll_load()
                poll_before = (issued + 3) // 4
            if want > issued:
                b += x0dma(issued, want)
                issued = want
            if poll_before is not None and not checked and bt >= poll_before:
                b += self.stamp("x0_part")
                b += self.poll_check("pro", self.sNeed, 64, self.wpoll_load)
                b += self.stamp("flag_seen")
                checked = True
                if issued < 32:
                    b += x0dma(issued, 32)
                    issued = 32
                for s in range(self.NS):
                    b += [self.wload(s, 1), self.wload(s, 0)]
                    if s & 1:
                        b.append(self.wstep(s))
            b += x0fix(bt)
        assert checked
        b += [Wait(all_lg=True), barrier()]
        for j in range(8):
            for i in range(2):
                b.append(self.xread(j, i ^ (j & 1), 0, 0))
        b.append(Wait(lg=[self.xf(j, c) for j in range(o.xw) for c in range(2)], vm=[self.wslot(0, 0), self.wslot(0, 1)]))
        if o.desync:
            b += [raw("s_lshr_b32 s3, s2, 1"), raw("s_and_b32 s3, s3, 15"), Label("Lds"), raw(f"s_sleep {o.desync}"),
                  raw("s_sub_u32 s3, s3, 1"), raw("s_cbranch_scc0 Lds")]
        b += self.stamp("pro_done")
        return b

    def build(self):
        o = self.o
        A, B, AB = [0, 1, 2, 3], [4, 5, 6, 7], list(range(8))
        e = (lambda s: []) if o.noepi else (lambda s: s)
        unit_end = lambda x: x.kind in ("vst", "dsw") and x.rd & {"v12"}
        safe_bias = lambda x: x.kind == "valu" and x.text.startswith("v_add_f32") and not x.wr & set(self.t)
        pro = self.prologue()
        PL = o.pstamps - 1
        if not o.smooth:
            if o.apub:
                s1a0 = self.phase(0, A, 0, 0, insert_at(self.x0pub_stream(1), 0.4, self.psignal(0), lambda x: True))
            else:
                s1a0 = self.phase(0, A, 0, 0, self.x0pub_stream(0) + self.x0pub_stream(1) + self.psignal(0))
            s1a0 += self.stamp("s1a0")
            st = self.prep_load() + self.calc_vB() + e(self.bias_stream(0))
            st = insert_at(st, o.sigb_at, self.psignal(1), safe_bias)
            st = insert_at(st, o.polla_at, self.ppoll_load(), safe_bias)
            s1b = [Label("Lloop")] + self.phase(16, B, 0, 1, st, bar=True,
                                                pre_bar=self.poll_check("pa", self.sPNeed, 1, self.ppoll_load))
            s2 = self.phase(32, AB, 1, 0, self.xch_dma(0) + self.prep_store(), bar=True, end=o.dma_end,
                            fixed=[(o.pollb_gap, self.ppoll_load())],
                            pre_bar=[Wait(vm=["xl0"])] + self.poll_check("pb", self.sPNeed, 1, self.ppoll_load))
            s3 = self.phase(64, AB, 0, 1, self.xch_dma(1), bar=True, end=o.dma_end, pre_bar=[Wait(vm=["xl1", "pst"])])
        else:
            s1a0 = self.phase(0, A, 0, 0, self.x0pub_stream(0)) + self.stamp("s1a0")
            st = self.prep_load() + self.calc_vB() + e(self.bias_stream(0))
            st = insert_at(st, o.sigb_at, self.psignal(0), safe_bias)
            s1b = [Label("Lloop")] + self.phase(16, B, 0, 1, st, bar=True, extra=[(self.pub_stream(1, 0, 4), 0, 232)])
            g0, g1, g2, g3, g4 = o.sg
            s2 = self.phase(32, AB, 1, 0, self.xch_dma(0), bar=True, start=g1 + 1, end=g2,
                            extra=[(self.pub_stream(1, 4, 8), 0, g3)],
                            fixed=[(g0, self.ppoll_load()),
                                   (g1, self.poll_check("pa", self.sPNeed, 1, self.ppoll_load)),
                                   (g4, self.psignal(1))],
                            pre_bar=[Wait(vm=["xl0"])])
            s3 = self.phase(64, AB, 0, 1, self.xch_dma(1), bar=True, start=g1 + 1, end=g2,
                            extra=[(self.prep_store(), 0, 24)],
                            fixed=[(g0, self.ppoll_load()),
                                   (g1, self.poll_check("pb", self.sPNeed, 1, self.ppoll_load))],
                            pre_bar=[Wait(vm=["xl1", "pst"])])
        s1b[1:1] = self.lstamp("pre", PL) if PL > 0 else []
        s1b += self.lstamp("s1b", PL)
        s2 += self.lstamp("s2", PL)
        s3 += self.lstamp("s3", PL)
        s4a = self.phase(96, A, 1, 1, self.wsignal() + e(self.bias_stream(1)))
        s4a += self.lstamp("s4a", PL)
        s4a += [salu("s_add_u32", self.sBias, self.sBias, 2048), salu("s_add_u32", self.sL, self.sL, 1),
                salu("s_cmp_eq_u32", self.sL, NL), raw("s_cbranch_scc1 Llast", "branch")]
        st = insert_at(e(self.epi_stream(0, 4 if o.smooth else 8)), o.pollw_at, self.wpoll_load(), unit_end)
        chk = 256 - 16 * self.NS + 2
        s4b = self.phase(112, B, 1, 0, st, bar=True,
                         fixed=[(chk, self.poll_check("w", self.sNeed, 64, self.wpoll_load))])
        s4b += self.lstamp("s4b", PL + 1)
        if o.smooth:
            s1a = self.phase(0, A, 0, 0, e(self.epi_stream(1, 0)), extra=[(self.pub_stream(0, 4, 8), 0, 250)])
        else:
            st = insert_at(e(self.epi_stream(1)), o.siga_at, self.psignal(0), unit_end)
            s1a = self.phase(0, A, 0, 0, st)
        if o.stamps:
            s1a += [raw(f"s_cmp_eq_u32 s25, {max(1, o.pstamps)}"), raw("s_cbranch_scc0 Lnostamp")] + self.stamp("layer1") + [
                raw("s_memrealtime s[4:5]"), Label("Lnostamp")]
        s1a += [raw("s_branch Lloop", "branch")]
        s4bl = [Label("Llast")] + self.stamp("4.75layers") + ([raw("s_memrealtime s[6:7]")] if o.stamps else [])
        s4bl += self.phase(112, B, 1, None, self.out_setup() + self.out_stream(0), last=True)
        tail = self.stamp("s4b_last") + [nop(7)] + self.out_stream(1)
        if o.stamps:
            tail += self.stamp("tail_issued")
            tail += [Wait(all_vm=True)]
            tail += self.stamp("tail_drained")
            tail.append(raw("s_memrealtime s[38:39]"))
            tail.append(raw("s_waitcnt lgkmcnt(0)"))
            tail.append(raw("v_cmp_eq_u32 vcc, 0, v0"))
            tail.append(raw("s_and_saveexec_b64 s[68:69], vcc"))
            tail.append(raw("s_cbranch_execz Lend"))
            tail.append(raw("s_lshl_b32 s3, s2, 8"))
            tail.append(raw(f"s_add_u32 s3, s3, {WS_STAMP}"))
            tail.append(raw("v_mov_b32 v1, 0"))
            for n, i in enumerate(list(range(36, 40)) + list(range(72, 102)) + [4, 5, 6, 7, 53]):
                tail.append(raw(f"v_mov_b32 v2, s{i}"))
                tail.append(raw(f"buffer_store_dword v2, v1, s[32:35], s3 offen offset:{n * 4}"))
        tail += [Label("Lend"), raw("s_endpgm")]
        trace = pro + s1a0
        for l in range(NL - 1):
            trace = trace + s1b + s2 + s3 + s4a + s4b + s1a
        trace = trace + s1b + s2 + s3 + s4a + s4bl + tail
        resolve_waits(trace)
        errs, mv, ml = check(trace)
        if errs and not o.now:
            for x in errs[:20]:
                print(x, file=sys.stderr)
            raise SystemExit("hazard/dependency errors")
        prog = pro + s1a0 + s1b + s2 + s3 + s4a + s4b + s1a + s4bl + tail + self.ool
        txt = f".globl {KNAME}\n.p2align 8\n.type {KNAME},@function\n{KNAME}:\n" + emit(prog) + "\n"
        txt = "; stamps: " + " ".join(self.names) + "\n" + txt
        return txt, kd(KNAME, 512, 102, 256)


def main():
    ap = argparse.ArgumentParser()
    ap.add_argument("-o", default="standalone__cross_network_dcn__recsys.s")
    ap.add_argument("--slots", type=int, default=4)
    ap.add_argument("--wflags", default="")
    ap.add_argument("--xflags", default="nt")
    ap.add_argument("--oflags", default="nt")
    ap.add_argument("--rflags", default="")
    ap.add_argument("--xsflags", default="sc1")
    ap.add_argument("--xlflags", default="sc1")
    ap.add_argument("--bar_lead", type=int, default=6)
    ap.add_argument("--xw", type=int, default=2)
    ap.add_argument("--x0split", type=int, nargs=4, default=[4, 8, 3, 2])
    ap.add_argument("--sigb_at", type=float, default=0.45)
    ap.add_argument("--polla_at", type=float, default=0.6)
    ap.add_argument("--siga_at", type=float, default=0.45)
    ap.add_argument("--pollw_at", type=float, default=0.3)
    ap.add_argument("--pollb_gap", type=int, default=386)
    ap.add_argument("--dma_end", type=int, default=320)
    ap.add_argument("--stamps", action="store_true")
    ap.add_argument("--apub", type=int, default=0, help="publish x0's A half in the prologue")
    ap.add_argument("--cpf", type=int, default=3, help="code prefetch loads per wave (16 KB each)")
    ap.add_argument("--desync", type=int, default=0, help="diagnostic")
    ap.add_argument("--smooth", type=int, default=0)
    ap.add_argument("--sg", type=int, nargs=5, default=[34, 114, 400, 250, 338])
    ap.add_argument("--delay", type=int, default=0, help="diagnostic")
    ap.add_argument("--touch", type=int, default=0, help="diagnostic")
    ap.add_argument("--pstamps", type=int, default=0, help="phase stamps in layer N-1")
    ap.add_argument("--xbase", type=int, default=32)
    ap.add_argument("--xbufs", type=int, default=6)
    ap.add_argument("--now", action="store_true", help="diagnostic: no W loads in the loop")
    ap.add_argument("--noxch", action="store_true", help="diagnostic: no exchange traffic")
    ap.add_argument("--noepi", action="store_true", help="diagnostic: no epilogue/bias in the loop")
    o = ap.parse_args()
    for k in ("wflags", "xflags", "oflags", "rflags", "xsflags", "xlflags"):
        v = getattr(o, k)
        setattr(o, k, (" " + v.replace(",", " ")) if v and v != "none" else "")
    mtxt, mkd = Main(o).build()
    opts = " ".join(a for a in sys.argv[1:] if not a.endswith(".s") and a != "-o")
    s = HEADER.format(opts=opts)
    s += f"; @launch grid=(256,1,1) block=(256,1,1) lds={LDS_TOTAL}\n"
    s += '.amdgcn_target "amdgcn-amd-amdhsa--gfx950"\n.text\n'
    s += mtxt + mkd
    open(o.o, "w").write(s)
    print(o.o, len(s), "bytes")


if __name__ == "__main__":
    main()
```

```python
import argparse
import sys
from asmir import *

KNAME = "standalone__cross_network_dcn__recsys_kernel"
NL = 6
D = 1024
NB = 16384
MB = 1 << 20

HEADER = """; Kernarg layout for this problem (48 bytes, ptrs only, base s[0:1]):
;   offset  40: d_ws      268435456 bytes workspace
; Generated by gen/gen3.py (hand-written generator). Options: {opts}
"""

LDS_BIAS = 131072
LDS_STAGE = LDS_BIAS + NL * 512 * 4
LDS_TOTAL = LDS_STAGE + 8192
WS_FLAGS = 15 * MB
WS_XCH = 32 * MB
WS_STAMP = 16 * MB


def kd(name, vgpr, sgpr, accum):
    return f""".section .rodata,"a"
.p2align 6
.amdhsa_kernel {name}
  .amdhsa_next_free_vgpr {vgpr}
  .amdhsa_next_free_sgpr {sgpr}
  .amdhsa_accum_offset {accum}
  .amdhsa_group_segment_fixed_size 0
  .amdhsa_kernarg_size 48
  .amdhsa_user_sgpr_count 2
  .amdhsa_user_sgpr_kernarg_segment_ptr 1
  .amdhsa_system_sgpr_workgroup_id_x 1
  .amdhsa_float_denorm_mode_32 3
.end_amdhsa_kernel
"""


def srd(base, lo, hi, nbytes):
    return [salu("s_mov_b32", f"s{base}", lo), salu("s_mov_b32", f"s{base + 1}", hi),
            salu("s_mov_b32", f"s{base + 2}", hex(nbytes)), salu("s_mov_b32", f"s{base + 3}", "0x20000")]


def srd_off(base, lo, hi, off, nbytes):
    return [salu("s_add_u32", f"s{base}", lo, off), salu("s_addc_u32", f"s{base + 1}", hi, 0),
            salu("s_mov_b32", f"s{base + 2}", hex(nbytes)), salu("s_mov_b32", f"s{base + 3}", "0x20000")]


def sload(d, off, n=2):
    return I(f"s_load_dwordx{n} {d}, s[0:1], {off}", "smem", wr=[d])


def tagged(ins, tag):
    ins.wr = set(ins.wr) | {tag}
    return ins


def dma(voff, srdn, soff, off, flags, tag):
    o = f" offset:{off}" if off else ""
    return tagged(I(f"buffer_load_dwordx4 {voff}, {srdn}, {soff} offen{o}{flags} lds", "vld", rd=[voff]), tag)


def hoist(ins):
    ins.note = "hoist"
    return ins


def space(n):
    return [I("", "space") for _ in range(n)]


def insert_at(stream, frac, items, ok):
    i = int(len(stream) * frac)
    while 0 < i < len(stream) and not ok(stream[i - 1]):
        i += 1
    return stream[:i] + items + stream[i:]


class Main:
    def __init__(self, o):
        self.o = o
        self.sX, self.sW, self.sO, self.sB = "s[8:11]", "s[12:15]", "s[16:19]", "s[20:23]"
        self.sE, self.sR, self.sD = "s[32:35]", "s[40:43]", "s[44:47]"
        self.sC, self.sFm, self.sFp = "s[56:59]", "s[60:63]", "s[64:67]"
        self.sWoff, self.sL, self.sMask, self.sNeed = "s24", "s25", "s26", "s27"
        self.sRow, self.sXs, self.sXl, self.sFlag = "s28", "s29", "s30", "s31"
        self.sRaw, self.sDst, self.sLds, self.sBias, self.sStage, self.sSpin, self.sWave, self.sPNeed = (
            "s48", "s49", "s50", "s51", "s52", "s53", "s54", "s55")
        self.vW, self.vXw, self.vB = "v0", "v3", "v4"
        self.vXr = ["v1", "v2"]
        self.vL = "v1"
        self.t = ["v5", "v6", "v7"]
        self.Q = [8, 12]
        self.vP, self.vG = "v16", "v17"
        self.vS = ["v18", "v19"]
        self.RQ = [20, 24]
        self.NS = o.slots
        self.aX0 = 0
        self.aXF = 128
        self.aW = 192
        self.aACC = self.aW + 8 * self.NS
        self.nA = 256 - self.aACC
        self.vACC = self.nA
        NS = self.NS
        nshort = (-128) % NS
        nlong = (128 - nshort * (NS - 1)) // NS
        first = min(nlong, o.short_at // NS)
        seq = list(range(NS)) * first + list(range(NS - 1)) * nshort + list(range(NS)) * (nlong - first)
        assert len(seq) == 128
        self.slot = seq
        site = {}
        for s2 in range(-128, 256):
            p = s2 - 1
            while seq[p % 128] != seq[s2 % 128]:
                p -= 1
            site[s2] = max(p, site.get(s2 - 1, -10 ** 9))
        self.site = site
        self.loads_at = {}
        for s2 in range(0, 256):
            self.loads_at.setdefault(site[s2], []).append(s2)
        self.small = self.vACC < 28
        if self.small:
            self.vP = self.vB
            q0 = [int(self.acc_tile(nt, 0, 0, 1)[1:]) for nt in range(4)]
            self.vG, self.vS, self.RQ = f"v{q0[0]}", [f"v{q0[0] + 1}", f"v{q0[0] + 2}"], [q0[1], q0[2]]
        self.stampn = 0
        self.names = []
        self.ool = []

    def acc(self, p, i, n=1):
        h = self.nA // 2
        nv = 128 - h
        if i < nv:
            assert i + n <= nv
            return R("v", self.vACC + p * nv + i, n)
        return R("a", self.aACC + p * h + (i - nv), n)

    def acc_tile(self, nt, bt, r=0, n=4):
        return self.acc(nt >> 2, ((nt & 3) * 8 + bt) * 4 + r, n)

    def x0reg(self, kbl, bt, j=0, n=4):
        return R("a", self.aX0 + (kbl * 8 + bt) * 4 + j, n)

    def xf(self, bt, c):
        return R("a", self.aXF + (bt * 2 + c) * 4, 4)

    def wslot(self, s, c):
        return R("a", self.aW + (self.slot[s % 128] * 2 + c) * 4, 4)

    def wload(self, s, c, dst=None):
        if self.o.gload:
            d = dst or self.wslot(s, c)
            off = (s & 3) * 2048 + c * 1024 - 4096
            return I(f"global_load_dwordx4 {d}, {self.vW}, s[70:71] offset:{off}{self.o.wflags}", "vld",
                     rd=[self.vW, "s[70:71]"], wr=[d])
        return bload(dst or self.wslot(s, c), self.vW, self.sW, self.sWoff, (s & 1) * 2048 + c * 1024, flags=self.o.wflags)

    def wstep(self, s):
        if self.o.gload:
            if (s & 3) != 3:
                return []
            d = 8192 if (s % 128) != 127 else 8192 + 2 * MB - 256 * 1024
            both = I(f"s_add_u32 s70, s70, {d}\n s_addc_u32 s71, s71, 0", "salu", rd=["s[70:71]"], wr=["s[70:71]"])
            both.states = 2
            return [both]
        if not s & 1:
            return []
        return [salu("s_add_u32", self.sWoff, self.sWoff, 4096 if (s % 128) != 127 else 4096 + 2 * MB - 256 * 1024)]

    def xread(self, bt, c, rho, ss):
        return dsread(self.xf(bt, c), self.vXr[ss >> 1], (ss & 1) * 32768 + bt * 4096 + rho * 2048 + c * 1024)

    def stamp(self, name="x"):
        if not self.o.stamps:
            return []
        if self.o.pstamps and name in ("kernarg", "stores_issued", "signalled", "x0_issued", "x0_part", "flag_seen"):
            return []
        n = self.stampn
        self.stampn += 1
        self.names.append(name)
        assert n < 15
        return [raw(f"s_memtime s[{72 + 2 * n}:{73 + 2 * n}]", "other")]

    def lstamp(self, name, lval):
        if not self.o.pstamps:
            return []
        n = self.stampn
        return [raw(f"s_cmp_eq_u32 s25, {lval}"), raw(f"s_cbranch_scc0 Lns{n}")] + self.stamp(name) + [Label(f"Lns{n}")]

    def epi_unit(self, kbl, bt, q, pk=False):
        s = []
        accs = [self.acc_tile(2 * kbl + t, bt, r, 1) for t in range(2) for r in range(4)]
        hi, lo, m = self.t
        for j in range(4):
            a0, a1 = accs[2 * j], accs[2 * j + 1]
            if self.o.pkmul or pk:
                s.append(valu("v_accvgpr_read_b32", "v7", self.x0reg(kbl, bt, j, 1)))
                ap = f"v[{a0[1:]}:{a1[1:]}]"
                if a0[0] == "a":
                    tp = int(self.acc_tile(3, 0, 0, 1)[1:]) if pk else 28
                    s.append(valu("v_accvgpr_read_b32", f"v{tp}", a0))
                    s.append(valu("v_accvgpr_read_b32", f"v{tp + 1}", a1))
                    ap = R("v", tp, 2)
                s.append(valu("v_lshlrev_b32", "v6", 16, "v7"))
                s.append(valu("v_and_b32", "v7", self.sMask, "v7"))
                s.append(valu("v_pk_mul_f32", "v[6:7]", "v[6:7]", ap))
                s.append(valu("v_cvt_pk_bf16_f32", f"v{q + j}", "v6", "v7"))
                continue
            s.append(valu("v_accvgpr_read_b32", hi, self.x0reg(kbl, bt, j, 1)))
            if a0[0] == "a":
                s.append(valu("v_accvgpr_read_b32", m, a0))
                a0 = m
            s.append(valu("v_lshlrev_b32", lo, 16, hi))
            s.append(valu("v_and_b32", hi, self.sMask, hi))
            s.append(valu("v_mul_f32", lo, lo, a0))
            if a1[0] == "a":
                s.append(valu("v_accvgpr_read_b32", m, a1))
                a1 = m
            s.append(valu("v_mul_f32", hi, hi, a1))
            s.append(valu("v_cvt_pk_bf16_f32", f"v{q + j}", lo, hi))
        return s

    def xstore(self, src, p, u, tmp, state):
        if self.o.noxch:
            return []
        s = []
        off = p * 16384 + u * 1024
        if state.get("g") != off >> 12:
            state["g"] = off >> 12
            s.append(salu("s_add_u32", tmp, self.sXs, off & ~4095))
        s.append(tagged(bstore(src, self.vXw, self.sE, tmp, off & 4095, flags=self.o.xsflags), f"xs{p}"))
        return s

    def xnext(self, reg, back):
        n = self.o.xbufs
        if n == 1:
            return [salu("s_sub_u32", reg, reg, back)]
        if n == 2:
            return [salu("s_sub_u32", reg, reg, back), salu("s_xor_b32", reg, reg, hex(32 * MB))]
        return [salu("s_add_u32", reg, reg, hex(32 * MB - back))]

    def epi_stream(self, p, ndirect=16):
        s = []
        st = {}
        for bt in range(8):
            for c in range(2):
                q = self.Q[c]
                s += self.epi_unit(2 * p + c, bt, q)
                s.append(dswrite(self.vXw, R("v", q, 4), bt * 4096 + p * 2048 + c * 1024))
                if bt * 2 + c < ndirect:
                    s += self.xstore(R("v", q, 4), p, bt * 2 + c, "s68", st)
        return s

    def pub_stream(self, p, lo, hi):
        s = []
        st = {}
        if self.o.noxch or lo >= hi:
            return s
        assert not self.small

        def rd(u):
            return dsread(R("v", self.RQ[u & 1], 4), self.vXw, (u >> 1) * 4096 + p * 2048 + (u & 1) * 1024)

        s.append(rd(lo))
        s += space(6)
        for u in range(lo, hi):
            if u + 1 < hi:
                s.append(rd(u + 1))
            s.append(Wait(lg=[R("v", self.RQ[u & 1], 4)]))
            s += self.xstore(R("v", self.RQ[u & 1], 4), p, u, "s69", st)
        return s

    def x0pub_stream(self, p, lo=0, hi=16):
        s = []
        st = {}
        for u in range(lo, hi):
            s += self.xstore(self.x0reg(2 * p + (u & 1), u >> 1), p, u, "s68", st)
        return s

    def xch_dma(self, p):
        if self.o.gather:
            return self.xch_dma_g(p)
        s = [raw(f"s_add_u32 m0, {self.sLds}, {p * 2048}", "salu", rd=[self.sLds])] + space(1)
        for bt in range(8):
            for c in range(2):
                if not self.o.noxch:
                    s.append(dma(self.vXw, self.sE, self.sXl, c * 1024, self.o.xlflags, f"xl{p}"))
            if bt < 7:
                s.append(raw("s_add_u32 m0, m0, 4096", "salu"))
            if bt == 7 and p == 1:
                s += self.xnext(self.sXl, 15 * 2048)
            else:
                s.append(salu("s_add_u32", self.sXl, self.sXl, 2048))
        return s

    def xch_dma_g(self, p):
        t0, t1 = self.t[0], self.t[1]
        vL = self.vL
        self.ool += [Label(f"Lgat{p}"),
                     raw(f"v_and_b32 {t0}, 0xf0, {vL}"), raw(f"v_lshrrev_b32 {t1}, 4, {vL}"),
                     raw(f"v_and_b32 {t1}, 0x30, {t1}"), raw(f"v_lshl_add_u32 {t1}, {t0}, 7, {t1}"),
                     raw(f"s_branch Lgatr{p}")]
        sel = I(f"v_mov_b32 {t1}, {self.vXw}\n s_cmp_eq_u32 {self.sL}, 0\n s_cbranch_scc1 Lgat{p}\nLgatr{p}:", "valu",
                rd=[self.vXw], wr=[t0, t1])
        s = [sel, raw(f"s_add_u32 m0, {self.sLds}, {p * 2048}", "salu", rd=[self.sLds])] + space(1)
        for bt in range(8):
            for c in range(2):
                if not self.o.noxch:
                    s.append(dma(t1, self.sX, self.sXl, 0, self.o.xlflags, f"xl{p}"))
                s.append(raw(f"s_add_u32 m0, m0, {1024 if c == 0 else 3072}", "salu"))
                s.append(salu("s_add_u32", self.sXl, self.sXl, "s20" if c == 0 else "s21" if bt < 7 else "s22"))
        return s

    def xch_switch(self):
        return [salu("s_mov_b32", "s8", "s32"), salu("s_mov_b32", "s9", "s33"), salu("s_mov_b32", "s10", "s34"),
                salu("s_mov_b32", "s20", 1024), salu("s_mov_b32", "s21", 1024), salu("s_mov_b32", "s22", 1024),
                salu("s_xor_b32", self.sXl, self.sXs, 1 << 17)]

    def calc_vG(self, vG):
        t0, t1 = self.t[0], self.t[1]
        return [valu("v_lshrrev_b32", t0, 7, self.vL), valu("v_lshlrev_b32", t1, 4, t0),
                valu("v_xor_b32", t1, t1, self.vL), valu("v_and_b32", t1, 0x70, t1),
                valu("v_lshl_add_u32", vG, t0, 11, t1)]

    def calc_vS(self, vS):
        t0, t1 = self.t[0], self.t[1]
        vL = self.vL
        return [valu("v_lshrrev_b32", t0, 4, vL), valu("v_and_b32", t0, 0x30, t0), valu("v_xor_b32", t0, t0, vL),
                valu("v_and_b32", t0, 0x70, t0), valu("v_and_b32", t1, 0xf0, vL),
                valu("v_lshl_add_u32", t0, t1, 3, t0), valu("v_add_u32", vS[0], self.sLds, t0),
                valu("v_xor_b32", vS[1], 64, vS[0])]

    def out_setup(self):
        return self.calc_vG(self.vG) + self.calc_vS(self.vS)

    def x0h_dma(self, p, lo, hi, vG):
        r = []
        for i in range(lo, hi):
            r.append(raw(f"s_add_u32 m0, {self.sLds}, {(i >> 1) * 4096 + p * 2048 + (i & 1) * 1024}", "salu"))
            r.append(salu("s_add_u32", "s3", self.sRow, i * 16384 + p * 128))
            r.append(dma(vG, self.sX, "s3", 0, self.o.xflags, f"x0_{p}_{i >> 1}"))
        return r

    def x0h_read(self, p, bt, vS):
        return [Wait(vm=[f"x0_{p}_{bt}"])] + [dsread(self.x0reg(2 * p + c, bt), vS[c], bt * 4096 + p * 2048)
                                              for c in range(2)]

    def x0h_write(self, p, bt):
        return [Wait(lg=[self.x0reg(2 * p + c, bt) for c in range(2)])] + [
            dswrite(self.vXw, self.x0reg(2 * p + c, bt), bt * 4096 + p * 2048 + c * 1024) for c in range(2)]

    def wreg0(self, s, c):
        if s < 16 - self.NS:
            return self.acc(1, (s * 2 + c) * 4, 4)
        return self.wslot(s, c)

    def out_stream(self, p):
        s = []
        pend = []
        for bt in range(8):
            for c in range(2):
                q = self.Q[c]
                u = self.epi_unit(2 * p + c, bt, q, pk=(p == 1 and self.o.tailpk))
                if c == 0 and pend:
                    u = u[:12] + pend + u[12:]
                    pend = []
                s += u
                if p == 0 and bt == 0 and c == 0:
                    s += self.out_setup()
                s.append(dswrite(self.vS[c], R("v", q, 4), bt * 4096))
            for i in range(2):
                s.append(dsread(R("v", self.RQ[i], 4), self.vXw, bt * 4096 + i * 1024))
            for i in range(2):
                pend.append(Wait(lg=[R("v", self.RQ[i], 4)]))
                pend.append(salu("s_add_u32", "s3", self.sRow, bt * 32768 + i * 16384))
                pend.append(bstore(R("v", self.RQ[i], 4), self.vG, self.sO, "s3", p * 128, flags=self.o.oflags))
        return s + pend

    def calc_vB(self):
        return [valu("v_lshrrev_b32", self.vB, 8, self.vL),
                valu("v_lshl_add_u32", self.vB, self.vB, 5, self.sBias)]

    def bias_stream(self, p):
        s = []

        def rd(nt):
            return dsread(R("v", self.Q[nt & 1], 4), self.vB, (nt >> 1) * 128 + (nt & 1) * 16)

        s.append(rd(4 * p))
        s += space(8)
        for nt in range(4 * p, 4 * p + 4):
            q = self.Q[nt & 1]
            cnt = 0
            for bt in range(8):
                for r in range(4):
                    if cnt == 0:
                        s.append(Wait(lg=[R("v", q, 4)]))
                    a = self.acc_tile(nt, bt, r, 1)
                    if self.o.pkadd and a[0] == "v":
                        if not r & 1:
                            ap = self.acc_tile(nt, bt, r, 2)
                            s.append(valu("v_pk_add_f32", ap, ap, R("v", q + r, 2)))
                    elif a[0] == "a":
                        t = self.t[cnt & 1]
                        s.append(valu("v_accvgpr_read_b32", t, a))
                        s.append(valu("v_add_f32", t, t, f"v{q + r}"))
                        s.append(valu("v_accvgpr_write_b32", a, t))
                    else:
                        s.append(valu("v_add_f32", a, a, f"v{q + r}"))
                    cnt += 1
                    if cnt == 1 and nt + 1 < 4 * p + 4:
                        s.append(rd(nt + 1))
        return s

    def prep_load(self):
        t0, t1 = self.t[0], self.t[1]
        s = [valu("v_lshrrev_b32", t0, 6, self.vL),
             valu("v_and_b32", t1, 48, self.vL),
             valu("v_lshl_add_u32", t0, t0, 11, t1),
             raw(f"s_mov_b32 m0, {self.sStage}", "salu", rd=[self.sStage]),
             salu("s_add_u32", "s3", self.sRaw, 32768 - 1024)]
        s.append(dma(t0, self.sR, self.sRaw, 0, self.o.rflags, "raw"))
        s.append(dma(t0, self.sR, "s3", 1024, self.o.rflags, "raw"))
        s.append(salu("s_add_u32", self.sRaw, self.sRaw, D * D * 2))
        return s

    def prep_store(self, sp=0):
        t0 = self.t[0]
        s = [valu("v_and_b32", t0, 0x300, self.vL),
             valu("v_add3_u32", t0, t0, self.vL, self.sStage),
             Wait(vm=["raw"])]
        for t in range(2):
            for h in range(2):
                s.append(I(f"ds_read_b64_tr_b16 {R('v', self.Q[t] + 2 * h, 2)}, {t0} offset:{h * 256 + t * 8}", "dsr",
                           rd=[t0], wr=[R("v", self.Q[t] + 2 * h, 2)]))
        s += space(sp)
        for t in range(2):
            s.append(Wait(lg=[R("v", self.Q[t], 4)]))
            s.append(tagged(bstore(R("v", self.Q[t], 4), self.vL, self.sW, self.sDst, t * 2048, flags=" sc1"), "pst"))
        s.append(salu("s_add_u32", self.sDst, self.sDst, D * D * 2))
        return s

    def wsignal(self):
        t = self.t[2]
        return [valu("v_mov_b32", t, 1),
                I(f"buffer_atomic_add {t}, {self.vW}, {self.sC}, 0 offen sc1", "vst", rd=[t, self.vW])]

    def psignal(self, p):
        t = self.t[2]
        return [salu("s_add_u32", self.sFlag, self.sFlag, 1), Wait(vm=[f"xs{p}"]),
                valu("v_mov_b32", t, self.sFlag),
                bstore(t, self.vL, self.sFm, 0, w="dword", flags=" sc1")]

    def wpoll_load(self):
        v = self.vP
        return [valu("v_lshlrev_b32", v, 2, self.vL), valu("v_and_b32", v, 0xc0, v),
                bload(v, v, self.sD, 0, w="dword", flags=" sc1")]

    def ppoll_load(self):
        return [I(f"buffer_load_dword {self.vP}, off, {self.sFp}, 0 sc1", "vld", wr=[self.vP])]

    def poll_check(self, name, need, inc, loader):
        v = self.vP
        spin = [Label(f"Lspin_{name}"), raw(f"s_add_u32 {self.sSpin}, {self.sSpin}, 1")]
        spin += [raw(x.text) for x in loader()]
        spin += [raw(f"s_cmp_ge_u32 {self.sSpin}, 0x400000"),
                 raw(f"s_cbranch_scc1 Lgiveup_{name}"),
                 raw("s_waitcnt vmcnt(0)"),
                 raw(f"v_cmp_gt_i32 vcc, {need}, {v}"),
                 raw(f"s_cbranch_vccnz Lspin_{name}"),
                 Label(f"Lgiveup_{name}"),
                 raw("s_waitcnt vmcnt(0)"),
                 raw(f"s_branch Lok_{name}")]
        self.ool += spin
        return [Wait(vm=[v]), I(f"v_cmp_gt_i32 vcc, {need}, {v}", "valu", rd=[v, need]),
                raw(f"s_cbranch_vccnz Lspin_{name}", "branch"), Label(f"Lok_{name}"),
                salu("s_add_u32", need, need, inc)]

    def phase(self, s0, nts, rho, next_rho, stream=(), bar=False, last=False, start=0, end=None, pre_bar=(),
              fixed=(), extra=(), wreg=None, skip_below=0):
        o = self.o
        NS = self.NS
        NT = len(nts)
        L = NT * 16
        mf = []
        gaps = [[] for _ in range(4 * L)]
        fwd = list(range(8))
        wreg = wreg or self.wslot
        for ss in range(4):
            base = ss * L
            for k, nt in enumerate(nts):
                s = s0 + ss * NT + k
                order = fwd if ((ss + k) & 1) == 0 else fwd[::-1]
                for j, bt in enumerate(order):
                    for i in range(2):
                        c = i ^ (j & 1)
                        mf.append(mfma(16, self.acc_tile(nt, bt), wreg(s, c), self.xf(bt, c)))
                g = base + k * 16
                at = self.loads_at.get(s, [])
                for n, sn in enumerate(at):
                    if (last and sn >= 128) or o.now or sn < skip_below:
                        continue
                    ga, gb, gc = g + (14 if n == 0 else 15), g + 15, g + 18
                    if o.wdelay and g + 16 < 4 * L and (o.wdelay == 2 or k == NT - 1):
                        ga, gb, gc = g + 17 + 4 * n, g + 19 + 4 * n, g + 20 + 4 * n
                    elif o.wdelay and g + 16 < 4 * L and len(at) == 1:
                        gb, gc = g + 17, g + 19
                    elif not (g + 18 < 4 * L and n == len(at) - 1):
                        gc = g + 15
                    gaps[ga].append(hoist(self.wload(sn, 1)))
                    gaps[gb].append(hoist(self.wload(sn, 0)))
                    gaps[gc] += self.wstep(sn)
                if k < NT - 1:
                    gaps[g + 15].append(Wait(vm=[wreg(s + 1, 0), wreg(s + 1, 1)]))
                if k == 0:
                    for j in range(o.xw, 8, o.xw):
                        gaps[g + 2 * j - 1].append(
                            Wait(lg=[self.xf(order[jj], c) for jj in range(j, min(8, j + o.xw)) for c in range(2)]))
            nrho, nss = (rho, ss + 1) if ss < 3 else (next_rho, 0)
            gl = base + L - 16
            if ss == 3 and bar:
                gaps[gl - o.bar_lead] += list(pre_bar) + [Wait(all_lg=True), barrier()]
            if nrho is not None:
                for j, bt in enumerate(order):
                    for i in range(2):
                        c = i ^ (j & 1)
                        gaps[gl + 2 * j + i].append(hoist(self.xread(bt, c, nrho, nss)))
                s = s0 + (ss + 1) * NT
                gaps[base + L - 1].append(Wait(vm=[wreg(s, 0), wreg(s, 1)],
                                               lg=[self.xf(order[jj], c) for jj in range(o.xw) for c in range(2)]))
        for gi, inss in fixed:
            gaps[gi] += inss
        hi = end if end is not None else (4 * L - 16 - o.bar_lead if bar else 4 * L - 1)
        for st, lo2, hi2 in extra:
            self.place(gaps, list(st), lo2, hi2)
        self.place(gaps, list(stream), start, hi)
        out = []
        for i, m in enumerate(mf):
            out.append(m)
            gaps[i] = self.merge([], gaps[i])
            out += gaps[i]
        if o.verbose:
            print(f"; phase s0={s0} mfma={len(mf)} modelled excess={sum(self.gap_excess(g) for g in gaps)}", file=sys.stderr)
        return out

    @staticmethod
    def gap_excess(items):
        slots = 0
        ex = 0
        free = 2
        seenv = False
        for x in items:
            k = x.kind
            if k in ("valu", "nop"):
                slots += 1
                seenv = True
                continue
            if k in ("dsr", "vld", "dsw", "vst") and seenv:
                ex += 8
            if k == "dsr":
                slots += 1
            elif k == "vld":
                slots += 1 if x.text.startswith("global") else 2
            elif k == "dsw":
                ex += 12
                free -= 2
            elif k == "vst":
                ex += (20 if x.big else 4) + 4 * slots + (8 if free < 2 else 0)
                free = 4 if x.big else free - 1
            elif k == "barrier":
                ex += 24
        return ex + 4 * max(0, slots - max(free, 0))

    @staticmethod
    def merge(items, fixed):
        k = 0
        lead, rest = [], []
        stop = False
        for x in fixed:
            if not stop and x.kind in ("dsr", "vld") and getattr(x, "note", "") == "hoist":
                lead.append(x)
            else:
                rest.append(x)
                if x.kind not in ("wait",):
                    stop = True
        items = [x for x in items if x.kind != "space"]
        j = 0
        while j < len(items) and items[j].kind in ("salu", "wait"):
            j += 1
        if j < len(items) and items[j].kind == "vst":
            return items[:j + 1] + lead + items[j + 1:] + rest
        return lead + items + rest

    def place(self, gaps, stream, lo, hi):
        if not stream:
            return
        n, G = len(stream), hi - lo
        KMAX = 8
        INF = float("inf")
        dp = [INF] * (n + 1)
        dp[0] = 0.0
        back = []
        NG = len(gaps)
        cnt = lambda g, kind: sum(1 for x in gaps[g] if x.kind == kind) if g < NG else 0
        for g in range(G):
            fixed = gaps[lo + g]
            base = self.gap_excess(self.merge([], fixed))
            wpen = 7 * sum(cnt(lo + g + d, "dsr") for d in (1, 2, 3)) + 4 * cnt(lo + g, "dsr")
            spen = 12 * cnt(lo + g + 1, "vld") + 6 * cnt(lo + g, "vld") + 4 * cnt(lo + g + 2, "vld")
            nd = [INF] * (n + 1)
            bk = [0] * (n + 1)
            tgt = n * (g + 1) / G
            for i in range(n + 1):
                if dp[i] == INF:
                    continue
                for k in range(0, min(KMAX, n - i) + 1):
                    c = dp[i]
                    if k:
                        its = stream[i:i + k]
                        if k > 1 and its[-2].kind == "space":
                            break
                        c += self.gap_excess(self.merge(its, fixed)) - base
                        c += sum(wpen if x.kind == "dsw" else spen if x.kind == "vst" else 0 for x in its)
                    c += self.o.pace * ((i + k - tgt) / max(1.0, n / G)) ** 2 + 0.02 * k * k
                    if c < nd[i + k]:
                        nd[i + k] = c
                        bk[i + k] = k
            dp = nd
            back.append(bk)
        assert dp[n] < INF
        i = n
        for g in range(G - 1, -1, -1):
            k = back[g][i]
            gaps[lo + g] = self.merge(stream[i - k:i], gaps[lo + g])
            i -= k

    def prologue(self):
        o = self.o
        vL = self.vL
        b = []
        b.append(salu("s_cmp_ge_u32", "s2", 256))
        b.append(raw("s_cbranch_scc1 Lend", "branch"))
        b += self.stamp("start")
        if o.stamps:
            b.append(raw("s_memrealtime s[36:37]"))
        b += [sload("s[56:59]", 0, 4), sload("s[60:63]", 16, 4), sload("s[64:67]", 32, 4)]
        b.append(valu("v_lshrrev_b32", "v9", 6, "v0"))
        b.append(valu("v_and_b32", "v10", 63, "v0"))
        b.append(valu("v_readfirstlane_b32", self.sWave, "v9"))
        b.append(valu("v_lshlrev_b32", vL, 4, "v10"))
        if o.cpf:
            b.append(raw("s_getpc_b64 s[4:5]", "salu"))
            b.append(Label("Lpc"))
            b.append(valu("v_lshlrev_b32", "v11", 6, "v0"))
            for i in range(o.cpf):
                b.append(raw(f"v_min_u32 v12, Lend-Lpc, v11", "valu", rd=["v11"], wr=["v12"]))
                b.append(I(f"global_load_dword v{60 + i}, v12, s[4:5]", "vld", rd=["v12"], wr=[f"v{60 + i}"]))
                b.append(valu("v_add_u32", "v11", 16384, "v11"))
        b.append(valu("v_lshrrev_b32", "v11", 7, "v0"))
        b.append(valu("v_and_b32", "v12", 127, "v0"))
        b.append(valu("v_lshlrev_b32", "v12", 3, "v12"))
        b.append(valu("v_lshl_add_u32", "v30", "v11", 11, "v12"))
        b.append(valu("v_lshlrev_b32", "v31", 4, "v0"))
        b.append(valu("v_add_u32", "v31", LDS_BIAS, "v31"))
        b.append(valu("v_add_u32", self.vXr[1], 65536, vL))
        b.append(valu("v_lshl_add_u32", self.vXw, "v9", 15, vL))
        b.append(valu("v_lshl_add_u32", self.vW, "v9", 18, vL))
        b.append(valu("v_lshrrev_b32", "v11", 4, "v10"))
        b.append(valu("v_and_b32", "v12", 15, "v10"))
        b.append(valu("v_xor_b32", "v13", "v11", "v12"))
        b.append(valu("v_lshlrev_b32", "v13", 4, "v13"))
        b.append(valu("v_lshl_add_u32", "v20", "v11", 11, "v13"))
        for i in range(1, 4):
            b.append(valu("v_xor_b32", f"v{20 + i}", 64 * i, "v20"))
        b.append(valu("v_lshl_add_u32", "v24", "v12", 8, "v13"))
        b.append(valu("v_lshl_add_u32", "v24", "v9", 15, "v24"))
        for i in range(1, 4):
            b.append(valu("v_xor_b32", f"v{24 + i}", 64 * i, "v24"))
        b.append(salu("s_and_b32", "s7", "s2", 1))
        b.append(salu("s_lshr_b32", self.sRow, "s2", 1))
        b.append(salu("s_lshl_b32", self.sRow, self.sRow, 18))
        b.append(salu("s_lshl_b32", "s6", "s7", 10))
        b.append(salu("s_add_u32", self.sRow, self.sRow, "s6"))
        b.append(salu("s_lshl_b32", "s6", self.sWave, 8))
        b.append(salu("s_add_u32", self.sRow, self.sRow, "s6"))
        b.append(salu("s_mov_b32", self.sMask, "0xffff0000"))
        b.append(salu("s_lshl_b32", self.sWoff, "s7", 20))
        b.append(salu("s_mov_b32", self.sL, 0))
        b.append(salu("s_mov_b32", self.sSpin, 0))
        b.append(salu("s_mov_b32", self.sFlag, -1 if o.gather else 0))
        b.append(salu("s_mov_b32", self.sNeed, 64))
        b.append(salu("s_mov_b32", self.sPNeed, -1 if o.gather else 1))
        b.append(salu("s_lshl_b32", self.sLds, self.sWave, 15))
        b.append(salu("s_lshl_b32", self.sXs, "s2", 17))
        b.append(salu("s_add_u32", self.sXs, self.sXs, o.xbase * MB))
        b.append(salu("s_xor_b32", self.sXl, self.sXs, 1 << 17))
        b.append(salu("s_lshr_b32", "s4", "s2", 3))
        b.append(salu("s_and_b32", "s5", "s2", 7))
        b.append(salu("s_lshl_b32", self.sRaw, "s4", 16))
        b.append(salu("s_lshl_b32", "s6", "s5", 8))
        b.append(salu("s_add_u32", self.sRaw, self.sRaw, "s6"))
        b.append(salu("s_lshl_b32", "s6", self.sWave, 6))
        b.append(salu("s_add_u32", self.sRaw, self.sRaw, "s6"))
        b.append(salu("s_lshl_b32", self.sDst, "s5", 18))
        b.append(salu("s_and_b32", "s6", "s4", 1))
        b.append(salu("s_lshl_b32", "s6", "s6", 10))
        b.append(salu("s_add_u32", self.sDst, self.sDst, "s6"))
        b.append(salu("s_lshr_b32", "s6", "s4", 4))
        b.append(salu("s_lshr_b32", "s5", "s5", 2))
        b.append(salu("s_xor_b32", "s5", "s5", "s6"))
        b.append(salu("s_bfe_u32", "s6", "s4", "0x10001"))
        b.append(salu("s_lshl_b32", "s3", "s5", 1))
        b.append(salu("s_add_u32", "s3", "s3", "s6"))
        b.append(salu("s_lshl_b32", "s3", "s3", 16))
        b.append(salu("s_add_u32", self.sDst, self.sDst, "s3"))
        b.append(salu("s_bfe_u32", "s4", "s4", "0x20002"))
        b.append(salu("s_xor_b32", "s5", "s5", "s6"))
        b.append(salu("s_lshr_b32", "s3", self.sWave, 1))
        b.append(salu("s_lshl_b32", "s3", "s3", 4))
        b.append(salu("s_lshl_b32", "s6", "s4", 2))
        b.append(salu("s_add_u32", "s3", "s3", "s6"))
        b.append(salu("s_and_b32", "s6", self.sWave, 1))
        b.append(salu("s_lshl_b32", "s6", "s6", 1))
        b.append(salu("s_add_u32", "s3", "s3", "s6"))
        b.append(salu("s_lshl_b32", "s4", "s4", 3))
        b.append(salu("s_lshl_b32", "s6", self.sWave, 1))
        b.append(salu("s_add_u32", "s4", "s4", "s6"))
        b.append(salu("s_cmp_eq_u32", "s5", 0))
        b.append(salu("s_cselect_b32", "s3", "s3", "s4"))
        b.append(salu("s_lshl_b32", "s3", "s3", 11))
        b.append(salu("s_add_u32", self.sDst, self.sDst, "s3"))
        b.append(salu("s_lshl_b32", self.sStage, self.sWave, 11))
        b.append(salu("s_add_u32", self.sStage, self.sStage, LDS_STAGE))
        b.append(salu("s_lshl_b32", self.sBias, self.sWave, 9))
        b.append(salu("s_add_u32", self.sBias, self.sBias, LDS_BIAS))
        b.append(Wait(all_lg=True))
        b += self.stamp("kernarg")
        b += srd(40, "s58", "s59", NL * D * D * 2)
        b += self.prep_load()
        b += srd(20, "s60", "s61", NL * D * 2)
        tb = 32
        b.append(salu("s_lshl_b32", "s3", "s7", 10))
        for m in range(3):
            b.append(bload(R("v", tb + 2 * m, 2), "v30", self.sB, "s3", w="dwordx2"))
            b.append(salu("s_add_u32", "s3", "s3", 4096))
        b += srd(8, "s56", "s57", NB * D * 2)
        b += srd(16, "s62", "s63", NB * D * 2)
        b += srd(12, "s66", "s67", NL * D * D * 2)
        b += srd(32, "s66", "s67", 256 * MB)
        b += srd(44, "s64", "s65", 256)
        b += [salu("s_add_u32", self.sWoff, self.sWoff, 4096), salu("s_add_u32", "s70", "s66", self.sWoff),
              salu("s_addc_u32", "s71", "s67", 0), salu("s_sub_u32", self.sWoff, self.sWoff, 4096)]
        b.append(salu("s_and_b32", "s3", "s2", 3))
        b.append(salu("s_lshl_b32", "s3", "s3", 6))
        b += srd_off(56, "s44", "s45", "s3", 4)
        b.append(salu("s_lshl_b32", "s3", "s2", 2))
        b.append(salu("s_add_u32", "s3", "s3", self.sWave))
        b.append(salu("s_lshl_b32", "s3", "s3", 7))
        b.append(salu("s_add_u32", "s3", "s3", WS_FLAGS))
        b += srd_off(60, "s32", "s33", "s3", 4)
        b.append(salu("s_xor_b32", "s3", "s3", 512))
        b += srd_off(64, "s32", "s33", "s3", 4)
        if o.delay:
            for _ in range(o.delay):
                b.append(raw("s_sleep 127"))
        if o.touch:
            for l in range(6):
                b.append(salu("s_add_u32", "s3", self.sXs, l * 32 * MB))
                if o.touch == 1:
                    b.append(bload(f"v{60 + l}", self.vXw, self.sE, "s3", w="dword"))
                else:
                    b.append(bstore(f"v{60 + l}", self.vXw, self.sE, "s3", w="dword", flags=" sc1"))
            b.append(Wait(all_vm=True))
        def x0dma(lo, hi):
            r = []
            for i in range(lo, hi):
                r.append(raw(f"s_add_u32 m0, {self.sLds}, {i * 1024}", "salu"))
                r.append(salu("s_add_u32", "s3", self.sRow, i * 8192))
                r.append(dma(f"v{20 + (i & 3)}", self.sX, "s3", 0, o.xflags, f"x0_{i >> 2}"))
            return r

        def x0fix(bt):
            r = [Wait(vm=[f"x0_{bt}"])]
            for kbl in range(4):
                r.append(dsread(self.x0reg(kbl, bt), f"v{24 + kbl}", bt * 4096))
            r.append(Wait(all_lg=True))
            for kbl in range(4):
                r.append(dswrite(self.vXw, self.x0reg(kbl, bt), bt * 4096 + kbl * 1024))
            if o.apub:
                r += self.x0pub_stream(0, 2 * bt, 2 * bt + 2)
            return r

        def accinit(pred):
            r = []
            for p in range(2):
                for i in range(128):
                    a = self.acc(p, i)
                    if pred(a):
                        r.append(valu("v_accvgpr_write_b32" if a[0] == "a" else "v_mov_b32", a, "1.0"))
            return r

        if o.early == 1:
            return b + self.prologue_early(accinit, tb)
        late = lambda a: a[0] == "v" and 32 <= int(a[1:]) < 64
        final = lambda a: a[0] == "v" and int(a[1:]) < 32
        na, nb, ahead, npoll = o.x0split
        b.append(valu("v_mov_b32", self.t[2], 0))
        b.append(tagged(bstore(self.t[2], vL, self.sFm, 0, w="dword", flags=" sc1"), "pst"))
        b += x0dma(0, na)
        b += accinit(lambda a: not late(a) and not final(a))
        b += self.prep_store()
        b += self.stamp("stores_issued")
        b += x0dma(na, nb)
        for m in range(3):
            b.append(Wait(vm=[R("v", tb + 2 * m, 2)]))
            for j in range(2):
                src = f"v{tb + 2 * m + j}"
                b.append(valu("v_lshlrev_b32", f"v{40 + 4 * m + 2 * j}", 16, src))
                b.append(valu("v_and_b32", f"v{41 + 4 * m + 2 * j}", self.sMask, src))
            b.append(dswrite("v31", R("v", 40 + 4 * m, 4), m * 4096))
        b.append(Wait(all_lg=True))
        b += accinit(late)
        b += [Wait(vm=["pst"]), barrier()] + self.wsignal()
        b += self.stamp("signalled")
        def wring():
            r = []
            for s in [x for x in range(128) if self.site[x] < 0]:
                r += [self.wload(s, 1), self.wload(s, 0)] + self.wstep(s)
            return r

        def path(name, nb2, npoll, stamps):
            st = self.stamp if stamps else (lambda n: [])
            r = x0dma(nb, nb2)
            issued = max(nb, nb2)
            checked = False
            poll_before = None
            for bt in range(8):
                want = min(32, 4 * (bt + 1 + ahead))
                if bt == npoll:
                    r += self.wpoll_load()
                    poll_before = (issued + 3) // 4 if npoll else 0
                if want > issued and (npoll or checked):
                    r += x0dma(issued, want)
                    issued = want
                if poll_before is not None and not checked and bt >= poll_before:
                    r += st("x0_part")
                    r += self.poll_check(name, self.sNeed, 64, self.wpoll_load)
                    r += st("flag_seen")
                    checked = True
                    if npoll:
                        r += x0dma(issued, 32) + wring()
                        issued = 32
                    else:
                        r += wring() + x0dma(issued, want)
                        issued = max(issued, want)
                r += x0fix(bt)
            assert checked and issued == 32
            return r

        if o.stagger < 0:
            b += path("pro", nb, npoll, True)
        else:
            px = path("prox", nb, npoll, True)
            n0 = self.stampn
            self.stampn -= 2 if o.stamps and not o.pstamps else 0
            self.names = self.names[:self.stampn]
            py = path("proy", o.ynb, 0, True)
            assert self.stampn == n0
            for x in px:
                x.note = "gx"
            for x in py:
                x.note = "gy"
            b += [salu("s_bitcmp1_b32", "s2", o.stagger), raw("s_cbranch_scc1 Lgy", "branch")]
            b += px + [raw("s_branch Lgjoin", "branch"), Label("Lgy")] + py + [Label("Lgjoin")]
        b += accinit(final)
        if o.gather:
            b += [salu("s_xor_b32", self.sXl, self.sRow, 1024), salu("s_mov_b32", "s20", 64),
                  salu("s_mov_b32", "s21", 32768 - 64), salu("s_mov_b32", "s22", hex((128 - 64 - 7 * 32768) & 0xffffffff))]
        b += [Wait(all_lg=True), barrier()]
        for j in range(8):
            for i in range(2):
                b.append(self.xread(j, i ^ (j & 1), 0, 0))
        b.append(Wait(lg=[self.xf(j, c) for j in range(o.xw) for c in range(2)], vm=[self.wslot(0, 0), self.wslot(0, 1)]))
        if o.desync:
            b += [raw("s_lshr_b32 s3, s2, 1"), raw("s_and_b32 s3, s3, 15"), Label("Lds"), raw(f"s_sleep {o.desync}"),
                  raw("s_sub_u32 s3, s3, 1"), raw("s_cbranch_scc0 Lds")]
        b += self.stamp("pro_done")
        return b

    def prologue_early(self, accinit, tb):
        o = self.o
        vL = self.vL
        b = []
        vG, vS = "v20", ["v21", "v22"]
        wbuf = set(r for s in range(16 - self.NS) for c in range(2) for r in regs(self.wreg0(s, c)))
        late = lambda a: a[0] == "v" and 32 <= int(a[1:]) < 64
        final = lambda a: a[0] == "v" and int(a[1:]) < 32
        na, nb, npoll, nB0 = o.x0split
        b.append(valu("v_mov_b32", self.t[2], 0))
        b.append(tagged(bstore(self.t[2], vL, self.sFm, 0, w="dword", flags=" sc1"), "pst"))
        b += self.calc_vG(vG) + self.calc_vS(vS)
        b += self.x0h_dma(0, 0, na, vG)
        b += accinit(lambda a: not late(a) and not final(a) and a not in wbuf)
        b += self.prep_store()
        b += self.stamp("stores_issued")
        b += self.x0h_dma(0, na, nb, vG)
        for m in range(3):
            b.append(Wait(vm=[R("v", tb + 2 * m, 2)]))
            for j in range(2):
                src = f"v{tb + 2 * m + j}"
                b.append(valu("v_lshlrev_b32", f"v{40 + 4 * m + 2 * j}", 16, src))
                b.append(valu("v_and_b32", f"v{41 + 4 * m + 2 * j}", self.sMask, src))
            b.append(dswrite("v31", R("v", 40 + 4 * m, 4), m * 4096))
        b.append(Wait(all_lg=True))
        b += accinit(late)
        b += [Wait(vm=["pst"]), barrier()] + self.wsignal()
        b += self.stamp("signalled")
        b += self.x0h_dma(0, nb, 16, vG)
        for bt in range(8):
            if bt == npoll:
                b += self.wpoll_load() + self.x0h_dma(1, 0, nB0, vG)
            b += self.x0h_read(0, bt, vS)
            if bt:
                b += self.x0h_write(0, bt - 1)
        if npoll >= 8:
            b += self.wpoll_load() + self.x0h_dma(1, 0, nB0, vG)
        b += self.x0h_write(0, 7)
        b += self.stamp("x0_part")
        b += [Wait(all_lg=True), barrier()]
        for j in range(8):
            for i in range(2):
                b.append(self.xread(j, i ^ (j & 1), 0, 0))
        b += self.poll_check("pro", self.sNeed, 64, self.wpoll_load)
        b += self.stamp("flag_seen")
        for s in range(16):
            b += [self.wload(s, 1, self.wreg0(s, 1)), self.wload(s, 0, self.wreg0(s, 0))]
            b += self.wstep(s)
        b += self.x0h_dma(1, nB0, 16, vG)
        b += accinit(final)
        b.append(Wait(lg=[self.xf(j, c) for j in range(o.xw) for c in range(2)], vm=[self.wreg0(0, 0), self.wreg0(0, 1)]))
        b += self.stamp("pro_done")
        return b

    def build(self):
        o = self.o
        A, B, AB = [0, 1, 2, 3], [4, 5, 6, 7], list(range(8))
        e = (lambda s: []) if o.noepi else (lambda s: s)
        unit_end = lambda x: x.kind in ("vst", "dsw") and x.rd & {"v12"}
        safe_bias = lambda x: x.kind == "valu" and "add_f32" in x.text and not x.wr & set(self.t)
        pro = self.prologue()
        PL = o.pstamps - 1
        dA, dB = o.direct
        g0, g1, g2, g3 = o.sg
        ep = o.earlyprep
        if o.gather:
            assert not o.early
            s1a0 = self.phase(0, A, 0, 0, []) + self.stamp("s1a0")
        elif o.early == 2:
            s1a0 = self.phase(0, A, 0, 0, self.x0pub_stream(0), end=o.pub0_end) + self.stamp("s1a0")
            st = insert_at(self.calc_vB() + e(self.bias_stream(0)), o.sig0_at, self.psignal(0), safe_bias)
            st = insert_at(st, o.poll0_at, self.ppoll_load(), safe_bias)
            if o.wsig2:
                st = st + self.prep_load()
            s1a0 += self.phase(16, B, 0, 1, st, bar=True, extra=[(self.x0pub_stream(1), 0, 230)],
                               pre_bar=self.poll_check("pa0", self.sPNeed, 1, self.ppoll_load))
            s1a0 += self.stamp("s1b0")
        elif o.early:
            ini = []
            for s in range(16 - self.NS):
                ini.append(([valu("v_mov_b32", r, "1.0") for c in range(2) for r in regs(self.wreg0(s, c))],
                            16 * s + 18, 16 * s + 30))
            s1a0 = self.phase(0, A, 0, 0, self.x0pub_stream(0), wreg=self.wreg0, skip_below=16, extra=ini,
                              end=o.pub0_end) + self.stamp("s1a0")
            vS = [f"v{self.Q[0]}", f"v{self.Q[0] + 1}"]
            fix = self.calc_vS(vS)
            for bt in range(8):
                fix += self.x0h_read(1, bt, vS)
                if bt:
                    fix += self.x0h_write(1, bt - 1) + self.x0pub_stream(1, 2 * bt - 2, 2 * bt)
                if bt == 1:
                    fix += self.psignal(0)
            fix += self.x0h_write(1, 7) + self.x0pub_stream(1, 14, 16)
            st = insert_at(self.calc_vB() + e(self.bias_stream(0)), 0.6, self.ppoll_load(), safe_bias)
            s1a0 += self.phase(16, B, 0, 1, fix + st, bar=True,
                               pre_bar=self.poll_check("pa0", self.sPNeed, 1, self.ppoll_load))
            s1a0 += self.stamp("s1b0")
        else:
            s1a0 = self.phase(0, A, 0, 0, (self.prep_load() if ep else []) + self.x0pub_stream(0) +
                              self.x0pub_stream(1, 0, dB) + (self.psignal(0) if dA == 16 else [])) + self.stamp("s1a0")
        lp = o.lateprep
        st = (self.prep_store() if ep else [] if lp else self.prep_load()) + self.calc_vB() + e(self.bias_stream(0))
        if o.wsig2:
            st = st + self.prep_load()
        if dA < 16:
            st = insert_at(st, o.siga2_at, self.psignal(0), safe_bias)
        if dB == 16 and not o.early:
            st = insert_at(st, o.sigb_at, self.psignal(1), safe_bias)
        fx2 = [(o.pollb_gap, self.ppoll_load()), (1, self.xnext(self.sXs, 0))]
        if dB < 16 or o.early:
            fx2.append((g3, self.psignal(1)))
        if g0 < 0:
            st = insert_at(st, o.polla_at, self.ppoll_load(), safe_bias)
            pb1 = self.poll_check("pa", self.sPNeed, 1, self.ppoll_load)
            g1 = -1
        else:
            assert not o.early
            pb1 = []
            fx2 += [(g0, self.ppoll_load()), (g1, self.poll_check("pa", self.sPNeed, 1, self.ppoll_load))]
        if ep:
            pb1 = [Wait(vm=["pst"])] + pb1
            fx2.append((3, self.wsignal()))
        s1b = [Label("Ls1b")] + self.phase(16, B, 0, 1, st, bar=True, pre_bar=pb1,
                                            extra=[(self.pub_stream(1, dB, 16), 0, 232)])
        s2 = self.phase(32, AB, 1, 0, self.xch_dma(0) + ([] if ep or lp else self.prep_store()), bar=True, start=g1 + 1, end=g2, fixed=fx2,
                        extra=[(self.prep_store(10) if o.wsig2 else self.prep_load() if lp else [], lp, lp + (30 if o.wsig2 else 12))],
                        pre_bar=[Wait(vm=["xl0", "pst"] if o.wsig2 else ["xl0"])] + self.poll_check("pb", self.sPNeed, 1, self.ppoll_load))
        s3 = self.phase(64, AB, 0, 1, self.xch_dma(1), bar=True, end=o.dma_end, pre_bar=[Wait(vm=["xl1", "pst"])],
                        extra=[(self.wsignal(), 2, 6)] if o.wsig2 else
                        [(self.prep_store(10) if lp else [], o.preps_at, o.preps_at + 30)])
        s1b[1:1] = self.lstamp("pre", PL) if PL > 0 else []
        s1b += self.lstamp("s1b", PL)
        s2 += self.lstamp("s2", PL)
        s3 += self.lstamp("s3", PL)
        s4a = self.phase(96, A, 1, 1, ([] if ep or o.wsig2 else self.wsignal()) + (self.calc_vB() if self.small else []) + e(self.bias_stream(1)))
        if o.gather:
            s4a += self.xch_switch()
        s4a += self.lstamp("s4a", PL)
        s4a += [salu("s_add_u32", self.sBias, self.sBias, 2048), salu("s_add_u32", self.sL, self.sL, 1),
                salu("s_cmp_eq_u32", self.sL, NL), raw("s_cbranch_scc1 Llast", "branch")]
        st = insert_at(e(self.epi_stream(0, dA)), o.pollw_at, self.wpoll_load(), unit_end)
        chk = (self.site[128] - 112) * 16 + 2
        s4b = self.phase(112, B, 1, 0, st, bar=True,
                         fixed=[(chk, self.poll_check("w", self.sNeed, 64, self.wpoll_load))])
        s4b += self.lstamp("s4b", PL + 1)
        st = e(self.epi_stream(1, dB))
        if dA == 16:
            st = insert_at(st, o.siga_at, self.psignal(0), unit_end)
        if ep:
            st = insert_at(st, o.prepl_at, self.prep_load(), unit_end)
        s1a = self.phase(0, A, 0, 0, st, extra=[(self.pub_stream(0, dA, 16), 0, o.puba_end)])
        if o.stamps:
            s1a += [raw(f"s_cmp_eq_u32 s25, {max(1, o.pstamps)}"), raw("s_cbranch_scc0 Lnostamp")] + self.stamp("layer1") + [
                raw("s_memrealtime s[4:5]"), Label("Lnostamp")]
        if o.early:
            assert lp
            s2 = [Label("Lloop")] + s2
            s1b += [raw("s_branch Lloop", "branch")]
        else:
            s1a += [raw("s_branch Ls1b", "branch")]
        s4bl = [Label("Llast")] + self.stamp("4.75layers") + ([raw("s_memrealtime s[6:7]")] if o.stamps else [])
        s4bl += self.phase(112, B, 1, None, self.out_stream(0), last=True)
        tail = self.stamp("s4b_last") + [nop(7)] + [x for x in self.out_stream(1) if x.kind != "space"]
        if o.stamps:
            tail += self.stamp("tail_issued")
            tail += [Wait(all_vm=True)]
            tail += self.stamp("tail_drained")
            tail.append(raw("s_memrealtime s[38:39]"))
            tail.append(raw("s_waitcnt lgkmcnt(0)"))
            tail.append(raw("v_cmp_eq_u32 vcc, 0, v0"))
            tail.append(raw("s_and_saveexec_b64 s[68:69], vcc"))
            tail.append(raw("s_cbranch_execz Lend"))
            tail.append(raw("s_lshl_b32 s3, s2, 8"))
            tail.append(raw(f"s_add_u32 s3, s3, {WS_STAMP}"))
            tail.append(raw("v_mov_b32 v1, 0"))
            for n, i in enumerate(list(range(36, 40)) + list(range(72, 102)) + [4, 5, 6, 7, 53]):
                tail.append(raw(f"v_mov_b32 v2, s{i}"))
                tail.append(raw(f"buffer_store_dword v2, v1, s[32:35], s3 offen offset:{n * 4}"))
        tail += [Label("Lend"), raw("s_endpgm")]
        rest = s1a0 + ([] if o.early else s1b)
        for l in range(NL - 1):
            rest = rest + s2 + s3 + s4a + s4b + s1a + s1b
        rest = rest + s2 + s3 + s4a + s4bl + tail
        traces = [[x for x in pro if x.note != skip] + rest for skip in ("gx", "gy")]
        for tr in traces:
            resolve_waits(tr)
        for tr in traces:
            errs, mv, ml = check(tr)
            if errs and not o.now:
                for x in errs[:20]:
                    print(x, file=sys.stderr)
                raise SystemExit("hazard/dependency errors")
        if o.early:
            prog = pro + s1a0 + s2 + s3 + s4a + s4b + s1a + s1b + s4bl + tail + self.ool
        else:
            prog = pro + s1a0 + s1b + s2 + s3 + s4a + s4b + s1a + s4bl + tail + self.ool
        txt = f".globl {KNAME}\n.p2align 8\n.type {KNAME},@function\n{KNAME}:\n" + emit(prog) + "\n"
        txt = "; stamps: " + " ".join(self.names) + "\n" + txt
        return txt, kd(KNAME, 512, 102, 256)


def main():
    ap = argparse.ArgumentParser()
    ap.add_argument("-o", default="standalone__cross_network_dcn__recsys.s")
    ap.add_argument("--slots", type=int, default=6)
    ap.add_argument("--wflags", default="")
    ap.add_argument("--xflags", default="")
    ap.add_argument("--oflags", default="nt")
    ap.add_argument("--rflags", default="")
    ap.add_argument("--xsflags", default="sc1")
    ap.add_argument("--xlflags", default="sc1")
    ap.add_argument("--bar_lead", type=int, default=6)
    ap.add_argument("--xw", type=int, default=4)
    ap.add_argument("--x0split", type=int, nargs=4, default=[4, 4, 3, 3])
    ap.add_argument("--sigb_at", type=float, default=0.45)
    ap.add_argument("--polla_at", type=float, default=0.6)
    ap.add_argument("--siga_at", type=float, default=0.45)
    ap.add_argument("--pollw_at", type=float, default=0.3)
    ap.add_argument("--pollb_gap", type=int, default=386)
    ap.add_argument("--dma_end", type=int, default=320)
    ap.add_argument("--stamps", action="store_true")
    ap.add_argument("--tailpk", type=int, default=1)
    ap.add_argument("--gather", type=int, default=1)
    ap.add_argument("--wsig2", type=int, default=0)
    ap.add_argument("--stagger", type=int, default=-1, help="workgroup-id bit selecting the late group")
    ap.add_argument("--ynb", type=int, default=4)
    ap.add_argument("--sig0_at", type=float, default=0.1)
    ap.add_argument("--poll0_at", type=float, default=0.7)
    ap.add_argument("--verbose", action="store_true")
    ap.add_argument("--gload", type=int, default=1)
    ap.add_argument("--pace", type=float, default=0.1)
    ap.add_argument("--early", type=int, default=0)
    ap.add_argument("--pub0_end", type=int, default=250)
    ap.add_argument("--earlyprep", type=int, default=0)
    ap.add_argument("--lateprep", type=int, default=400)
    ap.add_argument("--preps_at", type=int, default=330)
    ap.add_argument("--prepl_at", type=float, default=0.1)
    ap.add_argument("--wdelay", type=int, default=2)
    ap.add_argument("--short_at", type=int, default=72)
    ap.add_argument("--pkmul", type=int, default=0)
    ap.add_argument("--pkadd", type=int, default=0)
    ap.add_argument("--apub", type=int, default=0, help="publish x0's A half in the prologue")
    ap.add_argument("--cpf", type=int, default=4, help="code prefetch loads per wave (16 KB each)")
    ap.add_argument("--desync", type=int, default=0, help="diagnostic")
    ap.add_argument("--direct", type=int, nargs=2, default=[16, 16])
    ap.add_argument("--siga2_at", type=float, default=0.15)
    ap.add_argument("--puba_end", type=int, default=200)
    ap.add_argument("--sg", type=int, nargs=4, default=[-1, 0, 320, 82])
    ap.add_argument("--delay", type=int, default=0, help="diagnostic")
    ap.add_argument("--touch", type=int, default=0, help="diagnostic")
    ap.add_argument("--pstamps", type=int, default=0, help="phase stamps in layer N-1")
    ap.add_argument("--xbase", type=int, default=32)
    ap.add_argument("--xbufs", type=int, default=6)
    ap.add_argument("--now", action="store_true", help="diagnostic: no W loads in the loop")
    ap.add_argument("--noxch", action="store_true", help="diagnostic: no exchange traffic")
    ap.add_argument("--noepi", action="store_true", help="diagnostic: no epilogue/bias in the loop")
    o = ap.parse_args()
    for k in ("wflags", "xflags", "oflags", "rflags", "xsflags", "xlflags"):
        v = getattr(o, k)
        setattr(o, k, (" " + v.replace(",", " ")) if v and v != "none" else "")
    mtxt, mkd = Main(o).build()
    opts = " ".join(a for a in sys.argv[1:] if not a.endswith(".s") and a != "-o")
    s = HEADER.format(opts=opts)
    s += f"; @launch grid=(256,1,1) block=(256,1,1) lds={LDS_TOTAL}\n"
    s += '.amdgcn_target "amdgcn-amd-amdhsa--gfx950"\n.text\n'
    s += mtxt + mkd
    open(o.o, "w").write(s)
    print(o.o, len(s), "bytes")


if __name__ == "__main__":
    main()
```

```python
import argparse
import sys
from asmir import *

KNAME = "standalone__cross_network_dcn__recsys_kernel"
NL = 6
D = 1024
NB = 16384
MB = 1 << 20

HEADER = """; Kernarg layout for this problem (48 bytes, ptrs only, base s[0:1]):
;   offset  40: d_ws      268435456 bytes workspace
; Generated by gen/gen3.py (hand-written generator). Options: {opts}
"""

LDS_BIAS = 131072
LDS_STAGE = LDS_BIAS + NL * 512 * 4
LDS_TOTAL = LDS_STAGE + 8192
WS_FLAGS = 15 * MB
WS_XCH = 32 * MB
WS_STAMP = 16 * MB


def kd(name, vgpr, sgpr, accum):
    return f""".section .rodata,"a"
.p2align 6
.amdhsa_kernel {name}
  .amdhsa_next_free_vgpr {vgpr}
  .amdhsa_next_free_sgpr {sgpr}
  .amdhsa_accum_offset {accum}
  .amdhsa_group_segment_fixed_size 0
  .amdhsa_kernarg_size 48
  .amdhsa_user_sgpr_count 2
  .amdhsa_user_sgpr_kernarg_segment_ptr 1
  .amdhsa_system_sgpr_workgroup_id_x 1
  .amdhsa_float_denorm_mode_32 3
.end_amdhsa_kernel
"""


def srd(base, lo, hi, nbytes):
    return [salu("s_mov_b32", f"s{base}", lo), salu("s_mov_b32", f"s{base + 1}", hi),
            salu("s_mov_b32", f"s{base + 2}", hex(nbytes)), salu("s_mov_b32", f"s{base + 3}", "0x20000")]


def srd_off(base, lo, hi, off, nbytes):
    return [salu("s_add_u32", f"s{base}", lo, off), salu("s_addc_u32", f"s{base + 1}", hi, 0),
            salu("s_mov_b32", f"s{base + 2}", hex(nbytes)), salu("s_mov_b32", f"s{base + 3}", "0x20000")]


def sload(d, off, n=2):
    return I(f"s_load_dwordx{n} {d}, s[0:1], {off}", "smem", wr=[d])


def tagged(ins, tag):
    ins.wr = set(ins.wr) | {tag}
    return ins


def dma(voff, srdn, soff, off, flags, tag):
    o = f" offset:{off}" if off else ""
    return tagged(I(f"buffer_load_dwordx4 {voff}, {srdn}, {soff} offen{o}{flags} lds", "vld", rd=[voff]), tag)


def hoist(ins):
    ins.note = "hoist"
    return ins


def space(n):
    return [I("", "space") for _ in range(n)]


def insert_at(stream, frac, items, ok):
    i = int(len(stream) * frac)
    while 0 < i < len(stream) and not ok(stream[i - 1]):
        i += 1
    return stream[:i] + items + stream[i:]


class Main:
    def __init__(self, o):
        self.o = o
        self.sX, self.sW, self.sO, self.sB = "s[8:11]", "s[12:15]", "s[16:19]", "s[20:23]"
        self.sE, self.sR, self.sD = "s[32:35]", "s[40:43]", "s[44:47]"
        self.sC, self.sFm, self.sFp = "s[56:59]", "s[60:63]", "s[64:67]"
        self.sWoff, self.sL, self.sMask, self.sNeed = "s24", "s25", "s26", "s27"
        self.sRow, self.sXs, self.sXl, self.sFlag = "s28", "s29", "s30", "s31"
        self.sRaw, self.sDst, self.sLds, self.sBias, self.sStage, self.sSpin, self.sWave, self.sPNeed = (
            "s48", "s49", "s50", "s51", "s52", "s53", "s54", "s55")
        self.vW, self.vXw, self.vB = "v0", "v3", "v4"
        self.vXr = ["v1", "v2"]
        self.vL = "v1"
        self.t = ["v5", "v6", "v7"]
        self.Q = [8, 12]
        self.vP, self.vG = "v16", "v17"
        self.vS = ["v18", "v19"]
        self.RQ = [20, 24]
        self.NS = o.slots
        self.aX0 = 0
        self.aXF = 128
        self.aW = 192
        self.aACC = self.aW + 8 * self.NS
        self.nA = 256 - self.aACC
        self.vACC = self.nA
        NS = self.NS
        nshort = (-128) % NS
        nlong = (128 - nshort * (NS - 1)) // NS
        first = min(nlong, o.short_at // NS)
        seq = list(range(NS)) * first + list(range(NS - 1)) * nshort + list(range(NS)) * (nlong - first)
        assert len(seq) == 128
        self.slot = seq
        site = {}
        for s2 in range(-128, 256):
            p = s2 - 1
            while seq[p % 128] != seq[s2 % 128]:
                p -= 1
            site[s2] = max(p, site.get(s2 - 1, -10 ** 9))
        self.site = site
        self.loads_at = {}
        for s2 in range(0, 256):
            self.loads_at.setdefault(site[s2], []).append(s2)
        self.small = self.vACC < 28
        if self.small:
            self.vP = self.vB
            q0 = [int(self.acc_tile(nt, 0, 0, 1)[1:]) for nt in range(4)]
            self.vG, self.vS, self.RQ = f"v{q0[0]}", [f"v{q0[0] + 1}", f"v{q0[0] + 2}"], [q0[1], q0[2]]
        self.stampn = 0
        self.names = []
        self.ool = []

    def acc(self, p, i, n=1):
        h = self.nA // 2
        nv = 128 - h
        if i < nv:
            assert i + n <= nv
            return R("v", self.vACC + p * nv + i, n)
        return R("a", self.aACC + p * h + (i - nv), n)

    def acc_tile(self, nt, bt, r=0, n=4):
        return self.acc(nt >> 2, ((nt & 3) * 8 + bt) * 4 + r, n)

    def x0reg(self, kbl, bt, j=0, n=4):
        return R("a", self.aX0 + (kbl * 8 + bt) * 4 + j, n)

    def xf(self, bt, c):
        return R("a", self.aXF + (bt * 2 + c) * 4, 4)

    def wslot(self, s, c):
        return R("a", self.aW + (self.slot[s % 128] * 2 + c) * 4, 4)

    def wload(self, s, c, dst=None):
        if self.o.gload:
            d = dst or self.wslot(s, c)
            off = (s & 3) * 2048 + c * 1024 - 4096
            return I(f"global_load_dwordx4 {d}, {self.vW}, s[70:71] offset:{off}{self.o.wflags}", "vld",
                     rd=[self.vW, "s[70:71]"], wr=[d])
        return bload(dst or self.wslot(s, c), self.vW, self.sW, self.sWoff, (s & 1) * 2048 + c * 1024, flags=self.o.wflags)

    def wstep(self, s):
        if self.o.gload:
            if (s & 3) != 3:
                return []
            d = 8192 if (s % 128) != 127 else 8192 + 2 * MB - 256 * 1024
            both = I(f"s_add_u32 s70, s70, {d}\n s_addc_u32 s71, s71, 0", "salu", rd=["s[70:71]"], wr=["s[70:71]"])
            both.states = 2
            return [both]
        if not s & 1:
            return []
        return [salu("s_add_u32", self.sWoff, self.sWoff, 4096 if (s % 128) != 127 else 4096 + 2 * MB - 256 * 1024)]

    def xread(self, bt, c, rho, ss):
        return dsread(self.xf(bt, c), self.vXr[ss >> 1], (ss & 1) * 32768 + bt * 4096 + rho * 2048 + c * 1024)

    def stamp(self, name="x"):
        if not self.o.stamps:
            return []
        if self.o.pstamps and name in ("kernarg", "stores_issued", "signalled", "x0_issued", "x0_part", "flag_seen"):
            return []
        n = self.stampn
        self.stampn += 1
        self.names.append(name)
        assert n < 15
        return [raw(f"s_memtime s[{72 + 2 * n}:{73 + 2 * n}]", "other")]

    def lstamp(self, name, lval):
        if not self.o.pstamps:
            return []
        n = self.stampn
        return [raw(f"s_cmp_eq_u32 s25, {lval}"), raw(f"s_cbranch_scc0 Lns{n}")] + self.stamp(name) + [Label(f"Lns{n}")]

    def epi_unit(self, kbl, bt, q, pk=False):
        s = []
        accs = [self.acc_tile(2 * kbl + t, bt, r, 1) for t in range(2) for r in range(4)]
        hi, lo, m = self.t
        for j in range(4):
            a0, a1 = accs[2 * j], accs[2 * j + 1]
            if self.o.pkmul or pk:
                s.append(valu("v_accvgpr_read_b32", "v7", self.x0reg(kbl, bt, j, 1)))
                ap = f"v[{a0[1:]}:{a1[1:]}]"
                if a0[0] == "a":
                    tp = int(self.acc_tile(3, 0, 0, 1)[1:]) if pk else 28
                    s.append(valu("v_accvgpr_read_b32", f"v{tp}", a0))
                    s.append(valu("v_accvgpr_read_b32", f"v{tp + 1}", a1))
                    ap = R("v", tp, 2)
                s.append(valu("v_lshlrev_b32", "v6", 16, "v7"))
                s.append(valu("v_and_b32", "v7", self.sMask, "v7"))
                s.append(valu("v_pk_mul_f32", "v[6:7]", "v[6:7]", ap))
                s.append(valu("v_cvt_pk_bf16_f32", f"v{q + j}", "v6", "v7"))
                continue
            s.append(valu("v_accvgpr_read_b32", hi, self.x0reg(kbl, bt, j, 1)))
            if a0[0] == "a":
                s.append(valu("v_accvgpr_read_b32", m, a0))
                a0 = m
            s.append(valu("v_lshlrev_b32", lo, 16, hi))
            s.append(valu("v_and_b32", hi, self.sMask, hi))
            s.append(valu("v_mul_f32", lo, lo, a0))
            if a1[0] == "a":
                s.append(valu("v_accvgpr_read_b32", m, a1))
                a1 = m
            s.append(valu("v_mul_f32", hi, hi, a1))
            s.append(valu("v_cvt_pk_bf16_f32", f"v{q + j}", lo, hi))
        return s

    def xstore(self, src, p, u, tmp, state):
        if self.o.noxch:
            return []
        s = []
        off = p * 16384 + u * 1024
        if state.get("g") != off >> 12:
            state["g"] = off >> 12
            s.append(salu("s_add_u32", tmp, self.sXs, off & ~4095))
        s.append(tagged(bstore(src, self.vXw, self.sE, tmp, off & 4095, flags=self.o.xsflags), f"xs{p}"))
        return s

    def xnext(self, reg, back):
        n = self.o.xbufs
        if n == 1:
            return [salu("s_sub_u32", reg, reg, back)]
        if n == 2:
            return [salu("s_sub_u32", reg, reg, back), salu("s_xor_b32", reg, reg, hex(32 * MB))]
        return [salu("s_add_u32", reg, reg, hex(32 * MB - back))]

    def epi_stream(self, p, ndirect=16):
        s = []
        st = {}
        for bt in range(8):
            for c in range(2):
                q = self.Q[c]
                s += self.epi_unit(2 * p + c, bt, q)
                s.append(dswrite(self.vXw, R("v", q, 4), bt * 4096 + p * 2048 + c * 1024))
                if bt * 2 + c < ndirect:
                    s += self.xstore(R("v", q, 4), p, bt * 2 + c, "s68", st)
        return s

    def pub_stream(self, p, lo, hi):
        s = []
        st = {}
        if self.o.noxch or lo >= hi:
            return s
        assert not self.small

        def rd(u):
            return dsread(R("v", self.RQ[u & 1], 4), self.vXw, (u >> 1) * 4096 + p * 2048 + (u & 1) * 1024)

        s.append(rd(lo))
        s += space(6)
        for u in range(lo, hi):
            if u + 1 < hi:
                s.append(rd(u + 1))
            s.append(Wait(lg=[R("v", self.RQ[u & 1], 4)]))
            s += self.xstore(R("v", self.RQ[u & 1], 4), p, u, "s69", st)
        return s

    def x0pub_stream(self, p, lo=0, hi=16):
        s = []
        st = {}
        for u in range(lo, hi):
            s += self.xstore(self.x0reg(2 * p + (u & 1), u >> 1), p, u, "s68", st)
        return s

    def xch_dma(self, p):
        if self.o.gather:
            return self.xch_dma_g(p)
        s = [raw(f"s_add_u32 m0, {self.sLds}, {p * 2048}", "salu", rd=[self.sLds])] + space(1)
        for bt in range(8):
            for c in range(2):
                if not self.o.noxch:
                    s.append(dma(self.vXw, self.sE, self.sXl, c * 1024, self.o.xlflags, f"xl{p}"))
            if bt < 7:
                s.append(raw("s_add_u32 m0, m0, 4096", "salu"))
            if bt == 7 and p == 1:
                s += self.xnext(self.sXl, 15 * 2048)
            else:
                s.append(salu("s_add_u32", self.sXl, self.sXl, 2048))
        return s

    def xch_dma_g(self, p):
        t0, t1 = self.t[0], self.t[1]
        vL = self.vL
        self.ool += [Label(f"Lgat{p}"),
                     raw(f"v_and_b32 {t0}, 0xf0, {vL}"), raw(f"v_lshrrev_b32 {t1}, 4, {vL}"),
                     raw(f"v_and_b32 {t1}, 0x30, {t1}"), raw(f"v_lshl_add_u32 {t1}, {t0}, 7, {t1}"),
                     raw(f"s_branch Lgatr{p}")]
        sel = I(f"v_mov_b32 {t1}, {self.vXw}\n s_cmp_eq_u32 {self.sL}, 0\n s_cbranch_scc1 Lgat{p}\nLgatr{p}:", "valu",
                rd=[self.vXw], wr=[t0, t1])
        s = [sel, raw(f"s_add_u32 m0, {self.sLds}, {p * 2048}", "salu", rd=[self.sLds])] + space(1)
        for bt in range(8):
            for c in range(2):
                if not self.o.noxch:
                    s.append(dma(t1, self.sX, self.sXl, 0, self.o.xlflags, f"xl{p}"))
                s.append(raw(f"s_add_u32 m0, m0, {1024 if c == 0 else 3072}", "salu"))
                s.append(salu("s_add_u32", self.sXl, self.sXl, "s20" if c == 0 else "s21" if bt < 7 else "s22"))
        return s

    def xch_switch(self):
        return [salu("s_mov_b32", "s8", "s32"), salu("s_mov_b32", "s9", "s33"), salu("s_mov_b32", "s10", "s34"),
                salu("s_mov_b32", "s20", 1024), salu("s_mov_b32", "s21", 1024), salu("s_mov_b32", "s22", 1024),
                salu("s_xor_b32", self.sXl, self.sXs, 1 << 17)]

    def calc_vG(self, vG):
        t0, t1 = self.t[0], self.t[1]
        return [valu("v_lshrrev_b32", t0, 7, self.vL), valu("v_lshlrev_b32", t1, 4, t0),
                valu("v_xor_b32", t1, t1, self.vL), valu("v_and_b32", t1, 0x70, t1),
                valu("v_lshl_add_u32", vG, t0, 11, t1)]

    def calc_vS(self, vS):
        t0, t1 = self.t[0], self.t[1]
        vL = self.vL
        return [valu("v_lshrrev_b32", t0, 4, vL), valu("v_and_b32", t0, 0x30, t0), valu("v_xor_b32", t0, t0, vL),
                valu("v_and_b32", t0, 0x70, t0), valu("v_and_b32", t1, 0xf0, vL),
                valu("v_lshl_add_u32", t0, t1, 3, t0), valu("v_add_u32", vS[0], self.sLds, t0),
                valu("v_xor_b32", vS[1], 64, vS[0])]

    def out_setup(self):
        return self.calc_vG(self.vG) + self.calc_vS(self.vS)

    def x0h_dma(self, p, lo, hi, vG):
        r = []
        for i in range(lo, hi):
            r.append(raw(f"s_add_u32 m0, {self.sLds}, {(i >> 1) * 4096 + p * 2048 + (i & 1) * 1024}", "salu"))
            r.append(salu("s_add_u32", "s3", self.sRow, i * 16384 + p * 128))
            r.append(dma(vG, self.sX, "s3", 0, self.o.xflags, f"x0_{p}_{i >> 1}"))
        return r

    def x0h_read(self, p, bt, vS):
        return [Wait(vm=[f"x0_{p}_{bt}"])] + [dsread(self.x0reg(2 * p + c, bt), vS[c], bt * 4096 + p * 2048)
                                              for c in range(2)]

    def x0h_write(self, p, bt):
        return [Wait(lg=[self.x0reg(2 * p + c, bt) for c in range(2)])] + [
            dswrite(self.vXw, self.x0reg(2 * p + c, bt), bt * 4096 + p * 2048 + c * 1024) for c in range(2)]

    def wreg0(self, s, c):
        if s < 16 - self.NS:
            return self.acc(1, (s * 2 + c) * 4, 4)
        return self.wslot(s, c)

    def out_stream(self, p):
        s = []
        pend = []
        for bt in range(8):
            for c in range(2):
                q = self.Q[c]
                u = self.epi_unit(2 * p + c, bt, q, pk=(p == 1 and self.o.tailpk))
                if c == 0 and pend:
                    u = u[:12] + pend + u[12:]
                    pend = []
                s += u
                if p == 0 and bt == 0 and c == 0:
                    s += self.out_setup()
                s.append(dswrite(self.vS[c], R("v", q, 4), bt * 4096))
            for i in range(2):
                s.append(dsread(R("v", self.RQ[i], 4), self.vXw, bt * 4096 + i * 1024))
            for i in range(2):
                pend.append(Wait(lg=[R("v", self.RQ[i], 4)]))
                pend.append(salu("s_add_u32", "s3", self.sRow, bt * 32768 + i * 16384))
                pend.append(bstore(R("v", self.RQ[i], 4), self.vG, self.sO, "s3", p * 128, flags=self.o.oflags))
        return s + pend

    def calc_vB(self):
        return [valu("v_lshrrev_b32", self.vB, 8, self.vL),
                valu("v_lshl_add_u32", self.vB, self.vB, 5, self.sBias)]

    def bias_stream(self, p):
        s = []

        def rd(nt):
            return dsread(R("v", self.Q[nt & 1], 4), self.vB, (nt >> 1) * 128 + (nt & 1) * 16)

        s.append(rd(4 * p))
        s += space(8)
        for nt in range(4 * p, 4 * p + 4):
            q = self.Q[nt & 1]
            cnt = 0
            for bt in range(8):
                for r in range(4):
                    if cnt == 0:
                        s.append(Wait(lg=[R("v", q, 4)]))
                    a = self.acc_tile(nt, bt, r, 1)
                    if self.o.pkadd and a[0] == "v":
                        if not r & 1:
                            ap = self.acc_tile(nt, bt, r, 2)
                            s.append(valu("v_pk_add_f32", ap, ap, R("v", q + r, 2)))
                    elif a[0] == "a":
                        t = self.t[cnt & 1]
                        s.append(valu("v_accvgpr_read_b32", t, a))
                        s.append(valu("v_add_f32", t, t, f"v{q + r}"))
                        s.append(valu("v_accvgpr_write_b32", a, t))
                    else:
                        s.append(valu("v_add_f32", a, a, f"v{q + r}"))
                    cnt += 1
                    if cnt == 1 and nt + 1 < 4 * p + 4:
                        s.append(rd(nt + 1))
        return s

    def prep_load(self):
        t0, t1 = self.t[0], self.t[1]
        s = [valu("v_lshrrev_b32", t0, 6, self.vL),
             valu("v_and_b32", t1, 48, self.vL),
             valu("v_lshl_add_u32", t0, t0, 11, t1),
             raw(f"s_mov_b32 m0, {self.sStage}", "salu", rd=[self.sStage]),
             salu("s_add_u32", "s3", self.sRaw, 32768 - 1024)]
        s.append(dma(t0, self.sR, self.sRaw, 0, self.o.rflags, "raw"))
        s.append(dma(t0, self.sR, "s3", 1024, self.o.rflags, "raw"))
        s.append(salu("s_add_u32", self.sRaw, self.sRaw, D * D * 2))
        return s

    def prep_store(self, sp=0):
        t0 = self.t[0]
        s = [valu("v_and_b32", t0, 0x300, self.vL),
             valu("v_add3_u32", t0, t0, self.vL, self.sStage),
             Wait(vm=["raw"])]
        for t in range(2):
            for h in range(2):
                s.append(I(f"ds_read_b64_tr_b16 {R('v', self.Q[t] + 2 * h, 2)}, {t0} offset:{h * 256 + t * 8}", "dsr",
                           rd=[t0], wr=[R("v", self.Q[t] + 2 * h, 2)]))
        s += space(sp)
        for t in range(2):
            s.append(Wait(lg=[R("v", self.Q[t], 4)]))
            s.append(tagged(bstore(R("v", self.Q[t], 4), self.vL, self.sW, self.sDst, t * 2048, flags=" sc1"), "pst"))
        s.append(salu("s_add_u32", self.sDst, self.sDst, D * D * 2))
        return s

    def wsignal(self):
        t = self.t[2]
        return [valu("v_mov_b32", t, 1),
                I(f"buffer_atomic_add {t}, {self.vW}, {self.sC}, 0 offen sc1", "vst", rd=[t, self.vW])]

    def psignal(self, p):
        t = self.t[2]
        return [salu("s_add_u32", self.sFlag, self.sFlag, 1), Wait(vm=[f"xs{p}"]),
                valu("v_mov_b32", t, self.sFlag),
                bstore(t, self.vL, self.sFm, 0, w="dword", flags=" sc1")]

    def wpoll_load(self):
        v = self.vP
        return [valu("v_lshlrev_b32", v, 2, self.vL), valu("v_and_b32", v, 0xc0, v),
                bload(v, v, self.sD, 0, w="dword", flags=" sc1")]

    def ppoll_load(self):
        return [I(f"buffer_load_dword {self.vP}, off, {self.sFp}, 0 sc1", "vld", wr=[self.vP])]

    def poll_check(self, name, need, inc, loader):
        v = self.vP
        spin = [Label(f"Lspin_{name}"), raw(f"s_add_u32 {self.sSpin}, {self.sSpin}, 1")]
        spin += [raw(x.text) for x in loader()]
        spin += [raw(f"s_cmp_ge_u32 {self.sSpin}, 0x400000"),
                 raw(f"s_cbranch_scc1 Lgiveup_{name}"),
                 raw("s_waitcnt vmcnt(0)"),
                 raw(f"v_cmp_gt_i32 vcc, {need}, {v}"),
                 raw(f"s_cbranch_vccnz Lspin_{name}"),
                 Label(f"Lgiveup_{name}"),
                 raw("s_waitcnt vmcnt(0)"),
                 raw(f"s_branch Lok_{name}")]
        self.ool += spin
        return [Wait(vm=[v]), I(f"v_cmp_gt_i32 vcc, {need}, {v}", "valu", rd=[v, need]),
                raw(f"s_cbranch_vccnz Lspin_{name}", "branch"), Label(f"Lok_{name}"),
                salu("s_add_u32", need, need, inc)]

    def phase(self, s0, nts, rho, next_rho, stream=(), bar=False, last=False, start=0, end=None, pre_bar=(),
              fixed=(), extra=(), wreg=None, skip_below=0):
        o = self.o
        NS = self.NS
        NT = len(nts)
        L = NT * 16
        mf = []
        gaps = [[] for _ in range(4 * L)]
        fwd = list(range(8))
        wreg = wreg or self.wslot
        for ss in range(4):
            base = ss * L
            for k, nt in enumerate(nts):
                s = s0 + ss * NT + k
                order = fwd if ((ss + k) & 1) == 0 else fwd[::-1]
                for j, bt in enumerate(order):
                    for i in range(2):
                        c = i ^ (j & 1)
                        mf.append(mfma(16, self.acc_tile(nt, bt), wreg(s, c), self.xf(bt, c)))
                g = base + k * 16
                at = self.loads_at.get(s, [])
                for n, sn in enumerate(at):
                    if (last and sn >= 128) or o.now or sn < skip_below:
                        continue
                    ga, gb, gc = g + (14 if n == 0 else 15), g + 15, g + 18
                    if o.wdelay and g + 16 < 4 * L and (o.wdelay == 2 or k == NT - 1):
                        ga, gb, gc = g + 17 + 4 * n, g + 19 + 4 * n, g + 20 + 4 * n
                    elif o.wdelay and g + 16 < 4 * L and len(at) == 1:
                        gb, gc = g + 17, g + 19
                    elif not (g + 18 < 4 * L and n == len(at) - 1):
                        gc = g + 15
                    gaps[ga].append(hoist(self.wload(sn, 1)))
                    gaps[gb].append(hoist(self.wload(sn, 0)))
                    gaps[gc] += self.wstep(sn)
                if k < NT - 1:
                    gaps[g + 15].append(Wait(vm=[wreg(s + 1, 0), wreg(s + 1, 1)]))
                if k == 0:
                    for j in range(o.xw, 8, o.xw):
                        gaps[g + 2 * j - 1].append(
                            Wait(lg=[self.xf(order[jj], c) for jj in range(j, min(8, j + o.xw)) for c in range(2)]))
            nrho, nss = (rho, ss + 1) if ss < 3 else (next_rho, 0)
            gl = base + L - 16
            if ss == 3 and bar:
                gaps[gl - o.bar_lead] += list(pre_bar) + [Wait(all_lg=True), barrier()]
            if nrho is not None:
                for j, bt in enumerate(order):
                    for i in range(2):
                        c = i ^ (j & 1)
                        gaps[gl + 2 * j + i].append(hoist(self.xread(bt, c, nrho, nss)))
                s = s0 + (ss + 1) * NT
                gaps[base + L - 1].append(Wait(vm=[wreg(s, 0), wreg(s, 1)],
                                               lg=[self.xf(order[jj], c) for jj in range(o.xw) for c in range(2)]))
        for gi, inss in fixed:
            gaps[gi] += inss
        hi = end if end is not None else (4 * L - 16 - o.bar_lead if bar else 4 * L - 1)
        for st, lo2, hi2 in extra:
            self.place(gaps, list(st), lo2, hi2)
        self.place(gaps, list(stream), start, hi)
        out = []
        for i, m in enumerate(mf):
            out.append(m)
            gaps[i] = self.merge([], gaps[i])
            out += gaps[i]
        if o.verbose:
            print(f"; phase s0={s0} mfma={len(mf)} modelled excess={sum(self.gap_excess(g) for g in gaps)}", file=sys.stderr)
        return out

    @staticmethod
    def gap_excess(items):
        slots = 0
        ex = 0
        free = 2
        seenv = False
        for x in items:
            k = x.kind
            if k in ("valu", "nop"):
                slots += 1
                seenv = True
                continue
            if k in ("dsr", "vld", "dsw", "vst") and seenv:
                ex += 8
            if k == "dsr":
                slots += 1
            elif k == "vld":
                slots += 1 if x.text.startswith("global") else 2
            elif k == "dsw":
                ex += 12
                free -= 2
            elif k == "vst":
                ex += (20 if x.big else 4) + 4 * slots + (8 if free < 2 else 0)
                free = 4 if x.big else free - 1
            elif k == "barrier":
                ex += 24
        return ex + 4 * max(0, slots - max(free, 0))

    @staticmethod
    def merge(items, fixed):
        k = 0
        lead, rest = [], []
        stop = False
        for x in fixed:
            if not stop and x.kind in ("dsr", "vld") and getattr(x, "note", "") == "hoist":
                lead.append(x)
            else:
                rest.append(x)
                if x.kind not in ("wait",):
                    stop = True
        items = [x for x in items if x.kind != "space"]
        j = 0
        while j < len(items) and items[j].kind in ("salu", "wait"):
            j += 1
        if j < len(items) and items[j].kind == "vst":
            return items[:j + 1] + lead + items[j + 1:] + rest
        return lead + items + rest

    def place(self, gaps, stream, lo, hi):
        if not stream:
            return
        n, G = len(stream), hi - lo
        KMAX = 8
        INF = float("inf")
        dp = [INF] * (n + 1)
        dp[0] = 0.0
        back = []
        NG = len(gaps)
        cnt = lambda g, kind: sum(1 for x in gaps[g] if x.kind == kind) if g < NG else 0
        for g in range(G):
            fixed = gaps[lo + g]
            base = self.gap_excess(self.merge([], fixed))
            wpen = 7 * sum(cnt(lo + g + d, "dsr") for d in (1, 2, 3)) + 4 * cnt(lo + g, "dsr")
            spen = 12 * cnt(lo + g + 1, "vld") + 6 * cnt(lo + g, "vld") + 4 * cnt(lo + g + 2, "vld")
            nd = [INF] * (n + 1)
            bk = [0] * (n + 1)
            tgt = n * (g + 1) / G
            for i in range(n + 1):
                if dp[i] == INF:
                    continue
                for k in range(0, min(KMAX, n - i) + 1):
                    c = dp[i]
                    if k:
                        its = stream[i:i + k]
                        if k > 1 and its[-2].kind == "space":
                            break
                        c += self.gap_excess(self.merge(its, fixed)) - base
                        c += sum(wpen if x.kind == "dsw" else spen if x.kind == "vst" else 0 for x in its)
                    c += self.o.pace * ((i + k - tgt) / max(1.0, n / G)) ** 2 + 0.02 * k * k
                    if c < nd[i + k]:
                        nd[i + k] = c
                        bk[i + k] = k
            dp = nd
            back.append(bk)
        assert dp[n] < INF
        i = n
        for g in range(G - 1, -1, -1):
            k = back[g][i]
            gaps[lo + g] = self.merge(stream[i - k:i], gaps[lo + g])
            i -= k

    def prologue(self):
        o = self.o
        vL = self.vL
        b = []
        b.append(salu("s_cmp_ge_u32", "s2", 256))
        b.append(raw("s_cbranch_scc1 Lend", "branch"))
        b += self.stamp("start")
        if o.stamps:
            b.append(raw("s_memrealtime s[36:37]"))
        b += [sload("s[56:59]", 0, 4), sload("s[60:63]", 16, 4), sload("s[64:67]", 32, 4)]
        b.append(valu("v_lshrrev_b32", "v9", 6, "v0"))
        b.append(valu("v_and_b32", "v10", 63, "v0"))
        b.append(valu("v_readfirstlane_b32", self.sWave, "v9"))
        b.append(valu("v_lshlrev_b32", vL, 4, "v10"))
        if o.cpf:
            b.append(raw("s_getpc_b64 s[4:5]", "salu"))
            b.append(Label("Lpc"))
            b.append(valu("v_lshlrev_b32", "v11", 6, "v0"))
            for i in range(o.cpf):
                b.append(raw(f"v_min_u32 v12, Lend-Lpc, v11", "valu", rd=["v11"], wr=["v12"]))
                b.append(I(f"global_load_dword v{60 + i}, v12, s[4:5]", "vld", rd=["v12"], wr=[f"v{60 + i}"]))
                b.append(valu("v_add_u32", "v11", 16384, "v11"))
        b.append(valu("v_lshrrev_b32", "v11", 7, "v0"))
        b.append(valu("v_and_b32", "v12", 127, "v0"))
        b.append(valu("v_lshlrev_b32", "v12", 3, "v12"))
        b.append(valu("v_lshl_add_u32", "v30", "v11", 11, "v12"))
        b.append(valu("v_lshlrev_b32", "v31", 4, "v0"))
        b.append(valu("v_add_u32", "v31", LDS_BIAS, "v31"))
        b.append(valu("v_add_u32", self.vXr[1], 65536, vL))
        b.append(valu("v_lshl_add_u32", self.vXw, "v9", 15, vL))
        b.append(valu("v_lshl_add_u32", self.vW, "v9", 18, vL))
        b.append(valu("v_lshrrev_b32", "v11", 4, "v10"))
        b.append(valu("v_and_b32", "v12", 15, "v10"))
        b.append(valu("v_xor_b32", "v13", "v11", "v12"))
        b.append(valu("v_lshlrev_b32", "v13", 4, "v13"))
        b.append(valu("v_lshl_add_u32", "v20", "v11", 11, "v13"))
        for i in range(1, 4):
            b.append(valu("v_xor_b32", f"v{20 + i}", 64 * i, "v20"))
        b.append(valu("v_lshl_add_u32", "v24", "v12", 8, "v13"))
        b.append(valu("v_lshl_add_u32", "v24", "v9", 15, "v24"))
        for i in range(1, 4):
            b.append(valu("v_xor_b32", f"v{24 + i}", 64 * i, "v24"))
        b.append(salu("s_and_b32", "s7", "s2", 1))
        b.append(salu("s_lshr_b32", self.sRow, "s2", 1))
        b.append(salu("s_lshl_b32", self.sRow, self.sRow, 18))
        b.append(salu("s_lshl_b32", "s6", "s7", 10))
        b.append(salu("s_add_u32", self.sRow, self.sRow, "s6"))
        b.append(salu("s_lshl_b32", "s6", self.sWave, 8))
        b.append(salu("s_add_u32", self.sRow, self.sRow, "s6"))
        b.append(salu("s_mov_b32", self.sMask, "0xffff0000"))
        b.append(salu("s_lshl_b32", self.sWoff, "s7", 20))
        b.append(salu("s_mov_b32", self.sL, 0))
        b.append(salu("s_mov_b32", self.sSpin, 0))
        b.append(salu("s_mov_b32", self.sFlag, -1 if o.gather else 0))
        b.append(salu("s_mov_b32", self.sNeed, 64))
        b.append(salu("s_mov_b32", self.sPNeed, -1 if o.gather else 1))
        b.append(salu("s_lshl_b32", self.sLds, self.sWave, 15))
        b.append(salu("s_lshl_b32", self.sXs, "s2", 17))
        b.append(salu("s_add_u32", self.sXs, self.sXs, o.xbase * MB))
        b.append(salu("s_xor_b32", self.sXl, self.sXs, 1 << 17))
        b.append(salu("s_lshr_b32", "s4", "s2", 3))
        b.append(salu("s_and_b32", "s5", "s2", 7))
        b.append(salu("s_lshl_b32", self.sRaw, "s4", 16))
        b.append(salu("s_lshl_b32", "s6", "s5", 8))
        b.append(salu("s_add_u32", self.sRaw, self.sRaw, "s6"))
        b.append(salu("s_lshl_b32", "s6", self.sWave, 6))
        b.append(salu("s_add_u32", self.sRaw, self.sRaw, "s6"))
        b.append(salu("s_lshl_b32", self.sDst, "s5", 18))
        b.append(salu("s_and_b32", "s6", "s4", 1))
        b.append(salu("s_lshl_b32", "s6", "s6", 10))
        b.append(salu("s_add_u32", self.sDst, self.sDst, "s6"))
        b.append(salu("s_lshr_b32", "s6", "s4", 4))
        b.append(salu("s_lshr_b32", "s5", "s5", 2))
        b.append(salu("s_xor_b32", "s5", "s5", "s6"))
        b.append(salu("s_bfe_u32", "s6", "s4", "0x10001"))
        b.append(salu("s_lshl_b32", "s3", "s5", 1))
        b.append(salu("s_add_u32", "s3", "s3", "s6"))
        b.append(salu("s_lshl_b32", "s3", "s3", 16))
        b.append(salu("s_add_u32", self.sDst, self.sDst, "s3"))
        b.append(salu("s_bfe_u32", "s4", "s4", "0x20002"))
        b.append(salu("s_xor_b32", "s5", "s5", "s6"))
        b.append(salu("s_lshr_b32", "s3", self.sWave, 1))
        b.append(salu("s_lshl_b32", "s3", "s3", 4))
        b.append(salu("s_lshl_b32", "s6", "s4", 2))
        b.append(salu("s_add_u32", "s3", "s3", "s6"))
        b.append(salu("s_and_b32", "s6", self.sWave, 1))
        b.append(salu("s_lshl_b32", "s6", "s6", 1))
        b.append(salu("s_add_u32", "s3", "s3", "s6"))
        b.append(salu("s_lshl_b32", "s4", "s4", 3))
        b.append(salu("s_lshl_b32", "s6", self.sWave, 1))
        b.append(salu("s_add_u32", "s4", "s4", "s6"))
        b.append(salu("s_cmp_eq_u32", "s5", 0))
        b.append(salu("s_cselect_b32", "s3", "s3", "s4"))
        b.append(salu("s_lshl_b32", "s3", "s3", 11))
        b.append(salu("s_add_u32", self.sDst, self.sDst, "s3"))
        b.append(salu("s_lshl_b32", self.sStage, self.sWave, 11))
        b.append(salu("s_add_u32", self.sStage, self.sStage, LDS_STAGE))
        b.append(salu("s_lshl_b32", self.sBias, self.sWave, 9))
        b.append(salu("s_add_u32", self.sBias, self.sBias, LDS_BIAS))
        b.append(Wait(all_lg=True))
        b += self.stamp("kernarg")
        b += srd(40, "s58", "s59", NL * D * D * 2)
        b += self.prep_load()
        b += srd(20, "s60", "s61", NL * D * 2)
        tb = 32
        b.append(salu("s_lshl_b32", "s3", "s7", 10))
        for m in range(3):
            b.append(bload(R("v", tb + 2 * m, 2), "v30", self.sB, "s3", w="dwordx2"))
            b.append(salu("s_add_u32", "s3", "s3", 4096))
        b += srd(8, "s56", "s57", NB * D * 2)
        b += srd(16, "s62", "s63", NB * D * 2)
        b += srd(12, "s66", "s67", NL * D * D * 2)
        b += srd(32, "s66", "s67", 256 * MB)
        b += srd(44, "s64", "s65", 256)
        b += [salu("s_add_u32", self.sWoff, self.sWoff, 4096), salu("s_add_u32", "s70", "s66", self.sWoff),
              salu("s_addc_u32", "s71", "s67", 0), salu("s_sub_u32", self.sWoff, self.sWoff, 4096)]
        b.append(salu("s_and_b32", "s3", "s2", 3))
        b.append(salu("s_lshl_b32", "s3", "s3", 6))
        b += srd_off(56, "s44", "s45", "s3", 4)
        b.append(salu("s_lshl_b32", "s3", "s2", 2))
        b.append(salu("s_add_u32", "s3", "s3", self.sWave))
        b.append(salu("s_lshl_b32", "s3", "s3", 7))
        b.append(salu("s_add_u32", "s3", "s3", WS_FLAGS))
        b += srd_off(60, "s32", "s33", "s3", 4)
        b.append(salu("s_xor_b32", "s3", "s3", 512))
        b += srd_off(64, "s32", "s33", "s3", 4)
        if o.delay:
            for _ in range(o.delay):
                b.append(raw("s_sleep 127"))
        if o.touch:
            for l in range(6):
                b.append(salu("s_add_u32", "s3", self.sXs, l * 32 * MB))
                if o.touch == 1:
                    b.append(bload(f"v{60 + l}", self.vXw, self.sE, "s3", w="dword"))
                else:
                    b.append(bstore(f"v{60 + l}", self.vXw, self.sE, "s3", w="dword", flags=" sc1"))
            b.append(Wait(all_vm=True))
        def x0dma(lo, hi):
            r = []
            for i in range(lo, hi):
                r.append(raw(f"s_add_u32 m0, {self.sLds}, {i * 1024}", "salu"))
                r.append(salu("s_add_u32", "s3", self.sRow, i * 8192))
                r.append(dma(f"v{20 + (i & 3)}", self.sX, "s3", 0, o.xflags, f"x0_{i >> 2}"))
            return r

        def x0fix(bt):
            r = [Wait(vm=[f"x0_{bt}"])]
            for kbl in range(4):
                r.append(dsread(self.x0reg(kbl, bt), f"v{24 + kbl}", bt * 4096))
            r.append(Wait(all_lg=True))
            for kbl in range(4):
                r.append(dswrite(self.vXw, self.x0reg(kbl, bt), bt * 4096 + kbl * 1024))
            if o.apub:
                r += self.x0pub_stream(0, 2 * bt, 2 * bt + 2)
            return r

        def accinit(pred):
            r = []
            for p in range(2):
                for i in range(128):
                    a = self.acc(p, i)
                    if pred(a):
                        r.append(valu("v_accvgpr_write_b32" if a[0] == "a" else "v_mov_b32", a, "1.0"))
            return r

        if o.early == 1:
            return b + self.prologue_early(accinit, tb)
        late = lambda a: a[0] == "v" and 32 <= int(a[1:]) < 64
        final = lambda a: a[0] == "v" and int(a[1:]) < 32
        na, nb, ahead, npoll = o.x0split
        b.append(valu("v_mov_b32", self.t[2], 0))
        b.append(tagged(bstore(self.t[2], vL, self.sFm, 0, w="dword", flags=" sc1"), "pst"))
        b += x0dma(0, na)
        b += accinit(lambda a: not late(a) and not final(a))
        b += self.prep_store()
        b += self.stamp("stores_issued")
        b += x0dma(na, nb)
        for m in range(3):
            b.append(Wait(vm=[R("v", tb + 2 * m, 2)]))
            for j in range(2):
                src = f"v{tb + 2 * m + j}"
                b.append(valu("v_lshlrev_b32", f"v{40 + 4 * m + 2 * j}", 16, src))
                b.append(valu("v_and_b32", f"v{41 + 4 * m + 2 * j}", self.sMask, src))
            b.append(dswrite("v31", R("v", 40 + 4 * m, 4), m * 4096))
        b.append(Wait(all_lg=True))
        b += accinit(late)
        b += [Wait(vm=["pst"]), barrier()] + self.wsignal()
        b += self.stamp("signalled")
        def wring():
            r = []
            for s in [x for x in range(128) if self.site[x] < 0]:
                r += [self.wload(s, 1), self.wload(s, 0)] + self.wstep(s)
            return r

        def path(name, nb2, npoll, stamps):
            st = self.stamp if stamps else (lambda n: [])
            r = x0dma(nb, nb2)
            issued = max(nb, nb2)
            checked = False
            poll_before = None
            for bt in range(8):
                want = min(32, 4 * (bt + 1 + ahead))
                if bt == npoll:
                    r += self.wpoll_load()
                    poll_before = (issued + 3) // 4 if npoll else 0
                if want > issued and (npoll or checked):
                    r += x0dma(issued, want)
                    issued = want
                if poll_before is not None and not checked and bt >= poll_before:
                    r += st("x0_part")
                    r += self.poll_check(name, self.sNeed, 64, self.wpoll_load)
                    r += st("flag_seen")
                    checked = True
                    if npoll:
                        r += x0dma(issued, 32) + wring()
                        issued = 32
                    else:
                        r += wring() + x0dma(issued, want)
                        issued = max(issued, want)
                r += x0fix(bt)
            assert checked and issued == 32
            return r

        if o.stagger < 0:
            b += path("pro", nb, npoll, True)
        else:
            px = path("prox", nb, npoll, True)
            n0 = self.stampn
            self.stampn -= 2 if o.stamps and not o.pstamps else 0
            self.names = self.names[:self.stampn]
            py = path("proy", o.ynb, 0, True)
            assert self.stampn == n0
            for x in px:
                x.note = "gx"
            for x in py:
                x.note = "gy"
            b += [salu("s_bitcmp1_b32", "s2", o.stagger), raw("s_cbranch_scc1 Lgy", "branch")]
            b += px + [raw("s_branch Lgjoin", "branch"), Label("Lgy")] + py + [Label("Lgjoin")]
        b += accinit(final)
        if o.gather:
            b += [salu("s_xor_b32", self.sXl, self.sRow, 1024), salu("s_mov_b32", "s20", 64),
                  salu("s_mov_b32", "s21", 32768 - 64), salu("s_mov_b32", "s22", hex((128 - 64 - 7 * 32768) & 0xffffffff))]
        b += [Wait(all_lg=True), barrier()]
        for j in range(8):
            for i in range(2):
                b.append(self.xread(j, i ^ (j & 1), 0, 0))
        b.append(Wait(lg=[self.xf(j, c) for j in range(o.xw) for c in range(2)], vm=[self.wslot(0, 0), self.wslot(0, 1)]))
        if o.desync:
            b += [raw("s_lshr_b32 s3, s2, 1"), raw("s_and_b32 s3, s3, 15"), Label("Lds"), raw(f"s_sleep {o.desync}"),
                  raw("s_sub_u32 s3, s3, 1"), raw("s_cbranch_scc0 Lds")]
        b += self.stamp("pro_done")
        return b

    def prologue_early(self, accinit, tb):
        o = self.o
        vL = self.vL
        b = []
        vG, vS = "v20", ["v21", "v22"]
        wbuf = set(r for s in range(16 - self.NS) for c in range(2) for r in regs(self.wreg0(s, c)))
        late = lambda a: a[0] == "v" and 32 <= int(a[1:]) < 64
        final = lambda a: a[0] == "v" and int(a[1:]) < 32
        na, nb, npoll, nB0 = o.x0split
        b.append(valu("v_mov_b32", self.t[2], 0))
        b.append(tagged(bstore(self.t[2], vL, self.sFm, 0, w="dword", flags=" sc1"), "pst"))
        b += self.calc_vG(vG) + self.calc_vS(vS)
        b += self.x0h_dma(0, 0, na, vG)
        b += accinit(lambda a: not late(a) and not final(a) and a not in wbuf)
        b += self.prep_store()
        b += self.stamp("stores_issued")
        b += self.x0h_dma(0, na, nb, vG)
        for m in range(3):
            b.append(Wait(vm=[R("v", tb + 2 * m, 2)]))
            for j in range(2):
                src = f"v{tb + 2 * m + j}"
                b.append(valu("v_lshlrev_b32", f"v{40 + 4 * m + 2 * j}", 16, src))
                b.append(valu("v_and_b32", f"v{41 + 4 * m + 2 * j}", self.sMask, src))
            b.append(dswrite("v31", R("v", 40 + 4 * m, 4), m * 4096))
        b.append(Wait(all_lg=True))
        b += accinit(late)
        b += [Wait(vm=["pst"]), barrier()] + self.wsignal()
        b += self.stamp("signalled")
        b += self.x0h_dma(0, nb, 16, vG)
        for bt in range(8):
            if bt == npoll:
                b += self.wpoll_load() + self.x0h_dma(1, 0, nB0, vG)
            b += self.x0h_read(0, bt, vS)
            if bt:
                b += self.x0h_write(0, bt - 1)
        if npoll >= 8:
            b += self.wpoll_load() + self.x0h_dma(1, 0, nB0, vG)
        b += self.x0h_write(0, 7)
        b += self.stamp("x0_part")
        b += [Wait(all_lg=True), barrier()]
        for j in range(8):
            for i in range(2):
                b.append(self.xread(j, i ^ (j & 1), 0, 0))
        b += self.poll_check("pro", self.sNeed, 64, self.wpoll_load)
        b += self.stamp("flag_seen")
        for s in range(16):
            b += [self.wload(s, 1, self.wreg0(s, 1)), self.wload(s, 0, self.wreg0(s, 0))]
            b += self.wstep(s)
        b += self.x0h_dma(1, nB0, 16, vG)
        b += accinit(final)
        b.append(Wait(lg=[self.xf(j, c) for j in range(o.xw) for c in range(2)], vm=[self.wreg0(0, 0), self.wreg0(0, 1)]))
        b += self.stamp("pro_done")
        return b

    def build(self):
        o = self.o
        A, B, AB = [0, 1, 2, 3], [4, 5, 6, 7], list(range(8))
        e = (lambda s: []) if o.noepi else (lambda s: s)
        unit_end = lambda x: x.kind in ("vst", "dsw") and x.rd & {"v12"}
        safe_bias = lambda x: x.kind == "valu" and "add_f32" in x.text and not x.wr & set(self.t)
        pro = self.prologue()
        PL = o.pstamps - 1
        dA, dB = o.direct
        g0, g1, g2, g3 = o.sg
        ep = o.earlyprep
        if o.gather:
            assert not o.early
            s1a0 = self.phase(0, A, 0, 0, []) + self.stamp("s1a0")
        elif o.early == 2:
            s1a0 = self.phase(0, A, 0, 0, self.x0pub_stream(0), end=o.pub0_end) + self.stamp("s1a0")
            st = insert_at(self.calc_vB() + e(self.bias_stream(0)), o.sig0_at, self.psignal(0), safe_bias)
            st = insert_at(st, o.poll0_at, self.ppoll_load(), safe_bias)
            if o.wsig2:
                st = st + self.prep_load()
            s1a0 += self.phase(16, B, 0, 1, st, bar=True, extra=[(self.x0pub_stream(1), 0, 230)],
                               pre_bar=self.poll_check("pa0", self.sPNeed, 1, self.ppoll_load))
            s1a0 += self.stamp("s1b0")
        elif o.early:
            ini = []
            for s in range(16 - self.NS):
                ini.append(([valu("v_mov_b32", r, "1.0") for c in range(2) for r in regs(self.wreg0(s, c))],
                            16 * s + 18, 16 * s + 30))
            s1a0 = self.phase(0, A, 0, 0, self.x0pub_stream(0), wreg=self.wreg0, skip_below=16, extra=ini,
                              end=o.pub0_end) + self.stamp("s1a0")
            vS = [f"v{self.Q[0]}", f"v{self.Q[0] + 1}"]
            fix = self.calc_vS(vS)
            for bt in range(8):
                fix += self.x0h_read(1, bt, vS)
                if bt:
                    fix += self.x0h_write(1, bt - 1) + self.x0pub_stream(1, 2 * bt - 2, 2 * bt)
                if bt == 1:
                    fix += self.psignal(0)
            fix += self.x0h_write(1, 7) + self.x0pub_stream(1, 14, 16)
            st = insert_at(self.calc_vB() + e(self.bias_stream(0)), 0.6, self.ppoll_load(), safe_bias)
            s1a0 += self.phase(16, B, 0, 1, fix + st, bar=True,
                               pre_bar=self.poll_check("pa0", self.sPNeed, 1, self.ppoll_load))
            s1a0 += self.stamp("s1b0")
        else:
            s1a0 = self.phase(0, A, 0, 0, (self.prep_load() if ep else []) + self.x0pub_stream(0) +
                              self.x0pub_stream(1, 0, dB) + (self.psignal(0) if dA == 16 else [])) + self.stamp("s1a0")
        lp = o.lateprep
        st = (self.prep_store() if ep else [] if lp else self.prep_load()) + self.calc_vB() + e(self.bias_stream(0))
        if o.wsig2:
            st = st + self.prep_load()
        if dA < 16:
            st = insert_at(st, o.siga2_at, self.psignal(0), safe_bias)
        if dB == 16 and not o.early:
            st = insert_at(st, o.sigb_at, self.psignal(1), safe_bias)
        fx2 = [(o.pollb_gap, self.ppoll_load()), (1, self.xnext(self.sXs, 0))]
        if dB < 16 or o.early:
            fx2.append((g3, self.psignal(1)))
        if g0 < 0:
            st = insert_at(st, o.polla_at, self.ppoll_load(), safe_bias)
            pb1 = self.poll_check("pa", self.sPNeed, 1, self.ppoll_load)
            g1 = -1
        else:
            assert not o.early
            pb1 = []
            fx2 += [(g0, self.ppoll_load()), (g1, self.poll_check("pa", self.sPNeed, 1, self.ppoll_load))]
        if ep:
            pb1 = [Wait(vm=["pst"])] + pb1
            fx2.append((3, self.wsignal()))
        s1b = [Label("Ls1b")] + self.phase(16, B, 0, 1, st, bar=True, pre_bar=pb1,
                                            extra=[(self.pub_stream(1, dB, 16), 0, 232)])
        s2 = self.phase(32, AB, 1, 0, self.xch_dma(0) + ([] if ep or lp else self.prep_store()), bar=True, start=g1 + 1, end=g2, fixed=fx2,
                        extra=[(self.prep_store(10) if o.wsig2 else self.prep_load() if lp else [], lp, lp + (30 if o.wsig2 else 12))],
                        pre_bar=[Wait(vm=["xl0", "pst"] if o.wsig2 else ["xl0"])] + self.poll_check("pb", self.sPNeed, 1, self.ppoll_load))
        s3 = self.phase(64, AB, 0, 1, self.xch_dma(1), bar=True, end=o.dma_end, pre_bar=[Wait(vm=["xl1", "pst"])],
                        extra=[(self.wsignal(), 2, 6)] if o.wsig2 else
                        [(self.prep_store(10) if lp else [], o.preps_at, o.preps_at + 30)])
        s1b[1:1] = self.lstamp("pre", PL) if PL > 0 else []
        s1b += self.lstamp("s1b", PL)
        s2 += self.lstamp("s2", PL)
        s3 += self.lstamp("s3", PL)
        s4a = self.phase(96, A, 1, 1, ([] if ep or o.wsig2 else self.wsignal()) + (self.calc_vB() if self.small else []) + e(self.bias_stream(1)))
        if o.gather:
            s4a += self.xch_switch()
        s4a += self.lstamp("s4a", PL)
        s4a += [salu("s_add_u32", self.sBias, self.sBias, 2048), salu("s_add_u32", self.sL, self.sL, 1),
                salu("s_cmp_eq_u32", self.sL, NL), raw("s_cbranch_scc1 Llast", "branch")]
        st = insert_at(e(self.epi_stream(0, dA)), o.pollw_at, self.wpoll_load(), unit_end)
        chk = (self.site[128] - 112) * 16 + 2
        s4b = self.phase(112, B, 1, 0, st, bar=True,
                         fixed=[(chk, self.poll_check("w", self.sNeed, 64, self.wpoll_load))])
        s4b += self.lstamp("s4b", PL + 1)
        st = e(self.epi_stream(1, dB))
        if dA == 16:
            st = insert_at(st, o.siga_at, self.psignal(0), unit_end)
        if ep:
            st = insert_at(st, o.prepl_at, self.prep_load(), unit_end)
        s1a = self.phase(0, A, 0, 0, st, extra=[(self.pub_stream(0, dA, 16), 0, o.puba_end)])
        if o.stamps:
            s1a += [raw(f"s_cmp_eq_u32 s25, {max(1, o.pstamps)}"), raw("s_cbranch_scc0 Lnostamp")] + self.stamp("layer1") + [
                raw("s_memrealtime s[4:5]"), Label("Lnostamp")]
        if o.early:
            assert lp
            s2 = [Label("Lloop")] + s2
            s1b += [raw("s_branch Lloop", "branch")]
        else:
            s1a += [raw("s_branch Ls1b", "branch")]
        s4bl = [Label("Llast")] + self.stamp("4.75layers") + ([raw("s_memrealtime s[6:7]")] if o.stamps else [])
        s4bl += self.phase(112, B, 1, None, self.out_stream(0), last=True)
        tail = self.stamp("s4b_last") + [nop(7)] + [x for x in self.out_stream(1) if x.kind != "space"]
        if o.stamps:
            tail += self.stamp("tail_issued")
            tail += [Wait(all_vm=True)]
            tail += self.stamp("tail_drained")
            tail.append(raw("s_memrealtime s[38:39]"))
            tail.append(raw("s_waitcnt lgkmcnt(0)"))
            tail.append(raw("v_cmp_eq_u32 vcc, 0, v0"))
            tail.append(raw("s_and_saveexec_b64 s[68:69], vcc"))
            tail.append(raw("s_cbranch_execz Lend"))
            if o.dbgout >= 0:
                tail += [raw(f"s_cmp_lg_u32 s2, {o.dbgout}"), raw("s_cbranch_scc1 Lend"), raw("v_mov_b32 v1, 0")]
                tail += [raw("s_sub_u32 s3, s38, s36"), raw("v_mov_b32 v2, s3"),
                         raw("buffer_store_dword v2, v1, s[44:47], 0 offen offset:4"),
                         raw("s_sub_u32 s3, s6, s4"), raw("v_mov_b32 v2, s3"),
                         raw("buffer_store_dword v2, v1, s[44:47], 0 offen offset:8"),
                         raw("v_mov_b32 v2, s53"), raw("buffer_store_dword v2, v1, s[44:47], 0 offen offset:12")]
                for n in range(1, min(self.stampn, 13)):
                    tail += [raw(f"s_sub_u32 s3, s{72 + 2 * n}, s{70 + 2 * n}"), raw("v_mov_b32 v2, s3"),
                             raw(f"buffer_store_dword v2, v1, s[44:47], 0 offen offset:{12 + 4 * n}")]
            else:
                tail.append(raw("s_lshl_b32 s3, s2, 8"))
                tail.append(raw(f"s_add_u32 s3, s3, {WS_STAMP}"))
                tail.append(raw("v_mov_b32 v1, 0"))
                for n, i in enumerate(list(range(36, 40)) + list(range(72, 102)) + [4, 5, 6, 7, 53]):
                    tail.append(raw(f"v_mov_b32 v2, s{i}"))
                    tail.append(raw(f"buffer_store_dword v2, v1, s[32:35], s3 offen offset:{n * 4}"))
        tail += [Label("Lend"), raw("s_endpgm")]
        rest = s1a0 + ([] if o.early else s1b)
        for l in range(NL - 1):
            rest = rest + s2 + s3 + s4a + s4b + s1a + s1b
        rest = rest + s2 + s3 + s4a + s4bl + tail
        traces = [[x for x in pro if x.note != skip] + rest for skip in ("gx", "gy")]
        for tr in traces:
            resolve_waits(tr)
        for tr in traces:
            errs, mv, ml = check(tr)
            if errs and not o.now:
                for x in errs[:20]:
                    print(x, file=sys.stderr)
                raise SystemExit("hazard/dependency errors")
        if o.early:
            prog = pro + s1a0 + s2 + s3 + s4a + s4b + s1a + s1b + s4bl + tail + self.ool
        else:
            prog = pro + s1a0 + s1b + s2 + s3 + s4a + s4b + s1a + s4bl + tail + self.ool
        txt = f".globl {KNAME}\n.p2align 8\n.type {KNAME},@function\n{KNAME}:\n" + emit(prog) + "\n"
        txt = "; stamps: " + " ".join(self.names) + "\n" + txt
        return txt, kd(KNAME, 512, 102, 256)


def main():
    ap = argparse.ArgumentParser()
    ap.add_argument("-o", default="standalone__cross_network_dcn__recsys.s")
    ap.add_argument("--slots", type=int, default=6)
    ap.add_argument("--wflags", default="")
    ap.add_argument("--xflags", default="")
    ap.add_argument("--oflags", default="nt")
    ap.add_argument("--rflags", default="")
    ap.add_argument("--xsflags", default="sc1")
    ap.add_argument("--xlflags", default="sc1")
    ap.add_argument("--bar_lead", type=int, default=6)
    ap.add_argument("--xw", type=int, default=4)
    ap.add_argument("--x0split", type=int, nargs=4, default=[4, 4, 3, 3])
    ap.add_argument("--sigb_at", type=float, default=0.45)
    ap.add_argument("--polla_at", type=float, default=0.6)
    ap.add_argument("--siga_at", type=float, default=0.45)
    ap.add_argument("--pollw_at", type=float, default=0.3)
    ap.add_argument("--pollb_gap", type=int, default=386)
    ap.add_argument("--dma_end", type=int, default=320)
    ap.add_argument("--stamps", action="store_true")
    ap.add_argument("--dbgout", type=int, default=-1)
    ap.add_argument("--tailpk", type=int, default=1)
    ap.add_argument("--gather", type=int, default=1)
    ap.add_argument("--wsig2", type=int, default=0)
    ap.add_argument("--stagger", type=int, default=-1, help="workgroup-id bit selecting the late group")
    ap.add_argument("--ynb", type=int, default=4)
    ap.add_argument("--sig0_at", type=float, default=0.1)
    ap.add_argument("--poll0_at", type=float, default=0.7)
    ap.add_argument("--verbose", action="store_true")
    ap.add_argument("--gload", type=int, default=1)
    ap.add_argument("--pace", type=float, default=0.1)
    ap.add_argument("--early", type=int, default=0)
    ap.add_argument("--pub0_end", type=int, default=250)
    ap.add_argument("--earlyprep", type=int, default=0)
    ap.add_argument("--lateprep", type=int, default=400)
    ap.add_argument("--preps_at", type=int, default=330)
    ap.add_argument("--prepl_at", type=float, default=0.1)
    ap.add_argument("--wdelay", type=int, default=2)
    ap.add_argument("--short_at", type=int, default=72)
    ap.add_argument("--pkmul", type=int, default=0)
    ap.add_argument("--pkadd", type=int, default=0)
    ap.add_argument("--apub", type=int, default=0, help="publish x0's A half in the prologue")
    ap.add_argument("--cpf", type=int, default=4, help="code prefetch loads per wave (16 KB each)")
    ap.add_argument("--desync", type=int, default=0, help="diagnostic")
    ap.add_argument("--direct", type=int, nargs=2, default=[16, 16])
    ap.add_argument("--siga2_at", type=float, default=0.15)
    ap.add_argument("--puba_end", type=int, default=200)
    ap.add_argument("--sg", type=int, nargs=4, default=[-1, 0, 320, 82])
    ap.add_argument("--delay", type=int, default=0, help="diagnostic")
    ap.add_argument("--touch", type=int, default=0, help="diagnostic")
    ap.add_argument("--pstamps", type=int, default=0, help="phase stamps in layer N-1")
    ap.add_argument("--xbase", type=int, default=32)
    ap.add_argument("--xbufs", type=int, default=6)
    ap.add_argument("--now", action="store_true", help="diagnostic: no W loads in the loop")
    ap.add_argument("--noxch", action="store_true", help="diagnostic: no exchange traffic")
    ap.add_argument("--noepi", action="store_true", help="diagnostic: no epilogue/bias in the loop")
    o = ap.parse_args()
    for k in ("wflags", "xflags", "oflags", "rflags", "xsflags", "xlflags"):
        v = getattr(o, k)
        setattr(o, k, (" " + v.replace(",", " ")) if v and v != "none" else "")
    mtxt, mkd = Main(o).build()
    opts = " ".join(a for a in sys.argv[1:] if not a.endswith(".s") and a != "-o")
    s = HEADER.format(opts=opts)
    s += f"; @launch grid=(256,1,1) block=(256,1,1) lds={LDS_TOTAL}\n"
    s += '.amdgcn_target "amdgcn-amd-amdhsa--gfx950"\n.text\n'
    s += mtxt + mkd
    open(o.o, "w").write(s)
    print(o.o, len(s), "bytes")


if __name__ == "__main__":
    main()
```

```python
import argparse
import sys
from asmir import *

KNAME = "standalone__cross_network_dcn__recsys_kernel"
NL = 6
D = 1024
NB = 16384
MB = 1 << 20

HEADER = """; Kernarg layout for this problem (48 bytes, ptrs only, base s[0:1]):
;   offset  40: d_ws      268435456 bytes workspace
; Generated by gen/gen3.py (hand-written generator). Options: {opts}
"""

LDS_BIAS = 131072
LDS_STAGE = LDS_BIAS + NL * 512 * 4
LDS_TOTAL = LDS_STAGE + 8192
WS_FLAGS = 15 * MB
WS_XCH = 32 * MB
WS_STAMP = 16 * MB


def kd(name, vgpr, sgpr, accum):
    return f""".section .rodata,"a"
.p2align 6
.amdhsa_kernel {name}
  .amdhsa_next_free_vgpr {vgpr}
  .amdhsa_next_free_sgpr {sgpr}
  .amdhsa_accum_offset {accum}
  .amdhsa_group_segment_fixed_size 0
  .amdhsa_kernarg_size 48
  .amdhsa_user_sgpr_count 2
  .amdhsa_user_sgpr_kernarg_segment_ptr 1
  .amdhsa_system_sgpr_workgroup_id_x 1
  .amdhsa_float_denorm_mode_32 3
.end_amdhsa_kernel
"""


def srd(base, lo, hi, nbytes):
    return [salu("s_mov_b32", f"s{base}", lo), salu("s_mov_b32", f"s{base + 1}", hi),
            salu("s_mov_b32", f"s{base + 2}", hex(nbytes)), salu("s_mov_b32", f"s{base + 3}", "0x20000")]


def srd_off(base, lo, hi, off, nbytes):
    return [salu("s_add_u32", f"s{base}", lo, off), salu("s_addc_u32", f"s{base + 1}", hi, 0),
            salu("s_mov_b32", f"s{base + 2}", hex(nbytes)), salu("s_mov_b32", f"s{base + 3}", "0x20000")]


def sload(d, off, n=2):
    return I(f"s_load_dwordx{n} {d}, s[0:1], {off}", "smem", wr=[d])


def tagged(ins, tag):
    ins.wr = set(ins.wr) | {tag}
    return ins


def dma(voff, srdn, soff, off, flags, tag):
    o = f" offset:{off}" if off else ""
    return tagged(I(f"buffer_load_dwordx4 {voff}, {srdn}, {soff} offen{o}{flags} lds", "vld", rd=[voff]), tag)


def hoist(ins):
    ins.note = "hoist"
    return ins


def space(n):
    return [I("", "space") for _ in range(n)]


def insert_at(stream, frac, items, ok):
    i = int(len(stream) * frac)
    while 0 < i < len(stream) and not ok(stream[i - 1]):
        i += 1
    return stream[:i] + items + stream[i:]


class Main:
    def __init__(self, o):
        self.o = o
        self.sX, self.sW, self.sO, self.sB = "s[8:11]", "s[12:15]", "s[16:19]", "s[20:23]"
        self.sE, self.sR, self.sD = "s[32:35]", "s[40:43]", "s[44:47]"
        self.sC, self.sFm, self.sFp = "s[56:59]", "s[60:63]", "s[64:67]"
        self.sWoff, self.sL, self.sMask, self.sNeed = "s24", "s25", "s26", "s27"
        self.sRow, self.sXs, self.sXl, self.sFlag = "s28", "s29", "s30", "s31"
        self.sRaw, self.sDst, self.sLds, self.sBias, self.sStage, self.sSpin, self.sWave, self.sPNeed = (
            "s48", "s49", "s50", "s51", "s52", "s53", "s54", "s55")
        self.vW, self.vXw, self.vB = "v0", "v3", "v4"
        self.vXr = ["v1", "v2"]
        self.vL = "v1"
        self.t = ["v5", "v6", "v7"]
        self.Q = [8, 12]
        self.vP, self.vG = "v16", "v17"
        self.vS = ["v18", "v19"]
        self.RQ = [20, 24]
        self.NS = o.slots
        self.aX0 = 0
        self.aXF = 128
        self.aW = 192
        self.aACC = self.aW + 8 * self.NS
        self.nA = 256 - self.aACC
        self.vACC = self.nA
        NS = self.NS
        nshort = (-128) % NS
        nlong = (128 - nshort * (NS - 1)) // NS
        first = min(nlong, o.short_at // NS)
        seq = list(range(NS)) * first + list(range(NS - 1)) * nshort + list(range(NS)) * (nlong - first)
        assert len(seq) == 128
        self.slot = seq
        site = {}
        for s2 in range(-128, 256):
            p = s2 - 1
            while seq[p % 128] != seq[s2 % 128]:
                p -= 1
            site[s2] = max(p, site.get(s2 - 1, -10 ** 9))
        self.site = site
        self.loads_at = {}
        for s2 in range(0, 256):
            self.loads_at.setdefault(site[s2], []).append(s2)
        self.small = self.vACC < 28
        if self.small:
            self.vP = self.vB
            q0 = [int(self.acc_tile(nt, 0, 0, 1)[1:]) for nt in range(4)]
            self.vG, self.vS, self.RQ = f"v{q0[0]}", [f"v{q0[0] + 1}", f"v{q0[0] + 2}"], [q0[1], q0[2]]
        self.stampn = 0
        self.names = []
        self.ool = []

    def acc(self, p, i, n=1):
        h = self.nA // 2
        nv = 128 - h
        if i < nv:
            assert i + n <= nv
            return R("v", self.vACC + p * nv + i, n)
        return R("a", self.aACC + p * h + (i - nv), n)

    def acc_tile(self, nt, bt, r=0, n=4):
        return self.acc(nt >> 2, ((nt & 3) * 8 + bt) * 4 + r, n)

    def x0reg(self, kbl, bt, j=0, n=4):
        return R("a", self.aX0 + (kbl * 8 + bt) * 4 + j, n)

    def xf(self, bt, c):
        return R("a", self.aXF + (bt * 2 + c) * 4, 4)

    def wslot(self, s, c):
        return R("a", self.aW + (self.slot[s % 128] * 2 + c) * 4, 4)

    def wload(self, s, c, dst=None):
        if self.o.gload:
            d = dst or self.wslot(s, c)
            off = (s & 3) * 2048 + c * 1024 - 4096
            return I(f"global_load_dwordx4 {d}, {self.vW}, s[70:71] offset:{off}{self.o.wflags}", "vld",
                     rd=[self.vW, "s[70:71]"], wr=[d])
        return bload(dst or self.wslot(s, c), self.vW, self.sW, self.sWoff, (s & 1) * 2048 + c * 1024, flags=self.o.wflags)

    def wstep(self, s):
        if self.o.gload:
            if (s & 3) != 3:
                return []
            d = 8192 if (s % 128) != 127 else 8192 + 2 * MB - 256 * 1024
            both = I(f"s_add_u32 s70, s70, {d}\n s_addc_u32 s71, s71, 0", "salu", rd=["s[70:71]"], wr=["s[70:71]"])
            both.states = 2
            return [both]
        if not s & 1:
            return []
        return [salu("s_add_u32", self.sWoff, self.sWoff, 4096 if (s % 128) != 127 else 4096 + 2 * MB - 256 * 1024)]

    def xread(self, bt, c, rho, ss):
        return dsread(self.xf(bt, c), self.vXr[ss >> 1], (ss & 1) * 32768 + bt * 4096 + rho * 2048 + c * 1024)

    def stamp(self, name="x"):
        if not self.o.stamps:
            return []
        if self.o.pstamps and name in ("kernarg", "stores_issued", "signalled", "x0_issued", "x0_part", "flag_seen"):
            return []
        n = self.stampn
        self.stampn += 1
        self.names.append(name)
        assert n < 15
        return [raw(f"s_memtime s[{72 + 2 * n}:{73 + 2 * n}]", "other")]

    def lstamp(self, name, lval):
        if not self.o.pstamps:
            return []
        n = self.stampn
        return [raw(f"s_cmp_eq_u32 s25, {lval}"), raw(f"s_cbranch_scc0 Lns{n}")] + self.stamp(name) + [Label(f"Lns{n}")]

    def epi_unit(self, kbl, bt, q, pk=False):
        s = []
        accs = [self.acc_tile(2 * kbl + t, bt, r, 1) for t in range(2) for r in range(4)]
        hi, lo, m = self.t
        for j in range(4):
            a0, a1 = accs[2 * j], accs[2 * j + 1]
            if self.o.pkmul or pk:
                s.append(valu("v_accvgpr_read_b32", "v7", self.x0reg(kbl, bt, j, 1)))
                ap = f"v[{a0[1:]}:{a1[1:]}]"
                if a0[0] == "a":
                    tp = int(self.acc_tile(3, 0, 0, 1)[1:]) if pk else 28
                    s.append(valu("v_accvgpr_read_b32", f"v{tp}", a0))
                    s.append(valu("v_accvgpr_read_b32", f"v{tp + 1}", a1))
                    ap = R("v", tp, 2)
                s.append(valu("v_lshlrev_b32", "v6", 16, "v7"))
                s.append(valu("v_and_b32", "v7", self.sMask, "v7"))
                s.append(valu("v_pk_mul_f32", "v[6:7]", "v[6:7]", ap))
                s.append(valu("v_cvt_pk_bf16_f32", f"v{q + j}", "v6", "v7"))
                continue
            s.append(valu("v_accvgpr_read_b32", hi, self.x0reg(kbl, bt, j, 1)))
            if a0[0] == "a":
                s.append(valu("v_accvgpr_read_b32", m, a0))
                a0 = m
            s.append(valu("v_lshlrev_b32", lo, 16, hi))
            s.append(valu("v_and_b32", hi, self.sMask, hi))
            s.append(valu("v_mul_f32", lo, lo, a0))
            if a1[0] == "a":
                s.append(valu("v_accvgpr_read_b32", m, a1))
                a1 = m
            s.append(valu("v_mul_f32", hi, hi, a1))
            s.append(valu("v_cvt_pk_bf16_f32", f"v{q + j}", lo, hi))
        return s

    def xstore(self, src, p, u, tmp, state):
        if self.o.noxch:
            return []
        s = []
        off = p * 16384 + u * 1024
        if state.get("g") != off >> 12:
            state["g"] = off >> 12
            s.append(salu("s_add_u32", tmp, self.sXs, off & ~4095))
        s.append(tagged(bstore(src, self.vXw, self.sE, tmp, off & 4095, flags=self.o.xsflags), f"xs{p}"))
        return s

    def xnext(self, reg, back):
        n = self.o.xbufs
        if n == 1:
            return [salu("s_sub_u32", reg, reg, back)]
        if n == 2:
            return [salu("s_sub_u32", reg, reg, back), salu("s_xor_b32", reg, reg, hex(32 * MB))]
        return [salu("s_add_u32", reg, reg, hex(32 * MB - back))]

    def epi_stream(self, p, ndirect=16):
        s = []
        st = {}
        for bt in range(8):
            for c in range(2):
                q = self.Q[c]
                s += self.epi_unit(2 * p + c, bt, q)
                s.append(dswrite(self.vXw, R("v", q, 4), bt * 4096 + p * 2048 + c * 1024))
                if bt * 2 + c < ndirect:
                    s += self.xstore(R("v", q, 4), p, bt * 2 + c, "s68", st)
        return s

    def pub_stream(self, p, lo, hi):
        s = []
        st = {}
        if self.o.noxch or lo >= hi:
            return s
        assert not self.small

        def rd(u):
            return dsread(R("v", self.RQ[u & 1], 4), self.vXw, (u >> 1) * 4096 + p * 2048 + (u & 1) * 1024)

        s.append(rd(lo))
        s += space(6)
        for u in range(lo, hi):
            if u + 1 < hi:
                s.append(rd(u + 1))
            s.append(Wait(lg=[R("v", self.RQ[u & 1], 4)]))
            s += self.xstore(R("v", self.RQ[u & 1], 4), p, u, "s69", st)
        return s

    def x0pub_stream(self, p, lo=0, hi=16):
        s = []
        st = {}
        for u in range(lo, hi):
            s += self.xstore(self.x0reg(2 * p + (u & 1), u >> 1), p, u, "s68", st)
        return s

    def xch_dma(self, p):
        if self.o.gather:
            return self.xch_dma_g(p)
        s = [raw(f"s_add_u32 m0, {self.sLds}, {p * 2048}", "salu", rd=[self.sLds])] + space(1)
        for bt in range(8):
            for c in range(2):
                if not self.o.noxch:
                    s.append(dma(self.vXw, self.sE, self.sXl, c * 1024, self.o.xlflags, f"xl{p}"))
            if bt < 7:
                s.append(raw("s_add_u32 m0, m0, 4096", "salu"))
            if bt == 7 and p == 1:
                s += self.xnext(self.sXl, 15 * 2048)
            else:
                s.append(salu("s_add_u32", self.sXl, self.sXl, 2048))
        return s

    def xch_dma_g(self, p):
        t0, t1 = self.t[0], self.t[1]
        vL = self.vL
        self.ool += [Label(f"Lgat{p}"),
                     raw(f"v_and_b32 {t0}, 0xf0, {vL}"), raw(f"v_lshrrev_b32 {t1}, 4, {vL}"),
                     raw(f"v_and_b32 {t1}, 0x30, {t1}"), raw(f"v_lshl_add_u32 {t1}, {t0}, 7, {t1}"),
                     raw(f"s_branch Lgatr{p}")]
        sel = I(f"v_mov_b32 {t1}, {self.vXw}\n s_cmp_eq_u32 {self.sL}, 0\n s_cbranch_scc1 Lgat{p}\nLgatr{p}:", "valu",
                rd=[self.vXw], wr=[t0, t1])
        s = [sel, raw(f"s_add_u32 m0, {self.sLds}, {p * 2048}", "salu", rd=[self.sLds])] + space(1)
        for bt in range(8):
            for c in range(2):
                if not self.o.noxch:
                    s.append(dma(t1, self.sX, self.sXl, 0, self.o.xlflags, f"xl{p}"))
                s.append(raw(f"s_add_u32 m0, m0, {1024 if c == 0 else 3072}", "salu"))
                s.append(salu("s_add_u32", self.sXl, self.sXl, "s20" if c == 0 else "s21" if bt < 7 else "s22"))
            if bt < 7:
                s += space(self.o.dmapair)
        return s

    def xch_switch(self):
        return [salu("s_mov_b32", "s8", "s32"), salu("s_mov_b32", "s9", "s33"), salu("s_mov_b32", "s10", "s34"),
                salu("s_mov_b32", "s20", 1024), salu("s_mov_b32", "s21", 1024), salu("s_mov_b32", "s22", 1024),
                salu("s_xor_b32", self.sXl, self.sXs, 1 << 17)]

    def calc_vG(self, vG):
        t0, t1 = self.t[0], self.t[1]
        return [valu("v_lshrrev_b32", t0, 7, self.vL), valu("v_lshlrev_b32", t1, 4, t0),
                valu("v_xor_b32", t1, t1, self.vL), valu("v_and_b32", t1, 0x70, t1),
                valu("v_lshl_add_u32", vG, t0, 11, t1)]

    def calc_vS(self, vS):
        t0, t1 = self.t[0], self.t[1]
        vL = self.vL
        return [valu("v_lshrrev_b32", t0, 4, vL), valu("v_and_b32", t0, 0x30, t0), valu("v_xor_b32", t0, t0, vL),
                valu("v_and_b32", t0, 0x70, t0), valu("v_and_b32", t1, 0xf0, vL),
                valu("v_lshl_add_u32", t0, t1, 3, t0), valu("v_add_u32", vS[0], self.sLds, t0),
                valu("v_xor_b32", vS[1], 64, vS[0])]

    def out_setup(self):
        return self.calc_vG(self.vG) + self.calc_vS(self.vS)

    def x0h_dma(self, p, lo, hi, vG):
        r = []
        for i in range(lo, hi):
            r.append(raw(f"s_add_u32 m0, {self.sLds}, {(i >> 1) * 4096 + p * 2048 + (i & 1) * 1024}", "salu"))
            r.append(salu("s_add_u32", "s3", self.sRow, i * 16384 + p * 128))
            r.append(dma(vG, self.sX, "s3", 0, self.o.xflags, f"x0_{p}_{i >> 1}"))
        return r

    def x0h_read(self, p, bt, vS):
        return [Wait(vm=[f"x0_{p}_{bt}"])] + [dsread(self.x0reg(2 * p + c, bt), vS[c], bt * 4096 + p * 2048)
                                              for c in range(2)]

    def x0h_write(self, p, bt):
        return [Wait(lg=[self.x0reg(2 * p + c, bt) for c in range(2)])] + [
            dswrite(self.vXw, self.x0reg(2 * p + c, bt), bt * 4096 + p * 2048 + c * 1024) for c in range(2)]

    def wreg0(self, s, c):
        if s < 16 - self.NS:
            return self.acc(1, (s * 2 + c) * 4, 4)
        return self.wslot(s, c)

    def out_stream(self, p):
        s = []
        pend = []
        for bt in range(8):
            for c in range(2):
                q = self.Q[c]
                u = self.epi_unit(2 * p + c, bt, q, pk=(p == 1 and self.o.tailpk))
                if c == 0 and pend:
                    u = u[:12] + pend + u[12:]
                    pend = []
                s += u
                if p == 0 and bt == 0 and c == 0:
                    s += self.out_setup()
                s.append(dswrite(self.vS[c], R("v", q, 4), bt * 4096))
            for i in range(2):
                s.append(dsread(R("v", self.RQ[i], 4), self.vXw, bt * 4096 + i * 1024))
            for i in range(2):
                pend.append(Wait(lg=[R("v", self.RQ[i], 4)]))
                pend.append(salu("s_add_u32", "s3", self.sRow, bt * 32768 + i * 16384))
                pend.append(bstore(R("v", self.RQ[i], 4), self.vG, self.sO, "s3", p * 128, flags=self.o.oflags))
        return s + pend

    def calc_vB(self):
        return [valu("v_lshrrev_b32", self.vB, 8, self.vL),
                valu("v_lshl_add_u32", self.vB, self.vB, 5, self.sBias)]

    def bias_stream(self, p):
        s = []

        def rd(nt):
            return dsread(R("v", self.Q[nt & 1], 4), self.vB, (nt >> 1) * 128 + (nt & 1) * 16)

        s.append(rd(4 * p))
        s += space(8)
        for nt in range(4 * p, 4 * p + 4):
            q = self.Q[nt & 1]
            cnt = 0
            for bt in range(8):
                for r in range(4):
                    if cnt == 0:
                        s.append(Wait(lg=[R("v", q, 4)]))
                    a = self.acc_tile(nt, bt, r, 1)
                    if self.o.pkadd and a[0] == "v":
                        if not r & 1:
                            ap = self.acc_tile(nt, bt, r, 2)
                            s.append(valu("v_pk_add_f32", ap, ap, R("v", q + r, 2)))
                    elif a[0] == "a":
                        t = self.t[cnt & 1]
                        s.append(valu("v_accvgpr_read_b32", t, a))
                        s.append(valu("v_add_f32", t, t, f"v{q + r}"))
                        s.append(valu("v_accvgpr_write_b32", a, t))
                    else:
                        s.append(valu("v_add_f32", a, a, f"v{q + r}"))
                    cnt += 1
                    if cnt == 1 and nt + 1 < 4 * p + 4:
                        s.append(rd(nt + 1))
        return s

    def prep_load(self):
        t0, t1 = self.t[0], self.t[1]
        s = [valu("v_lshrrev_b32", t0, 6, self.vL),
             valu("v_and_b32", t1, 48, self.vL),
             valu("v_lshl_add_u32", t0, t0, 11, t1),
             raw(f"s_mov_b32 m0, {self.sStage}", "salu", rd=[self.sStage]),
             salu("s_add_u32", "s3", self.sRaw, 32768 - 1024)]
        s.append(dma(t0, self.sR, self.sRaw, 0, self.o.rflags, "raw"))
        s.append(dma(t0, self.sR, "s3", 1024, self.o.rflags, "raw"))
        s.append(salu("s_add_u32", self.sRaw, self.sRaw, D * D * 2))
        return s

    def prep_store(self, sp=0):
        t0 = self.t[0]
        s = [valu("v_and_b32", t0, 0x300, self.vL),
             valu("v_add3_u32", t0, t0, self.vL, self.sStage),
             Wait(vm=["raw"])]
        for t in range(2):
            for h in range(2):
                s.append(I(f"ds_read_b64_tr_b16 {R('v', self.Q[t] + 2 * h, 2)}, {t0} offset:{h * 256 + t * 8}", "dsr",
                           rd=[t0], wr=[R("v", self.Q[t] + 2 * h, 2)]))
        s += space(sp)
        for t in range(2):
            s.append(Wait(lg=[R("v", self.Q[t], 4)]))
            s.append(tagged(bstore(R("v", self.Q[t], 4), self.vL, self.sW, self.sDst, t * 2048, flags=" sc1"), "pst"))
        s.append(salu("s_add_u32", self.sDst, self.sDst, D * D * 2))
        return s

    def wsignal(self):
        t = self.t[2]
        return [valu("v_mov_b32", t, 1),
                I(f"buffer_atomic_add {t}, {self.vW}, {self.sC}, 0 offen sc1", "vst", rd=[t, self.vW])]

    def psignal(self, p):
        t = self.t[2]
        return [salu("s_add_u32", self.sFlag, self.sFlag, 1), Wait(vm=[f"xs{p}"]),
                valu("v_mov_b32", t, self.sFlag),
                bstore(t, self.vL, self.sFm, 0, w="dword", flags=" sc1")]

    def wpoll_load(self):
        v = self.vP
        return [valu("v_lshlrev_b32", v, 2, self.vL), valu("v_and_b32", v, 0xc0, v),
                bload(v, v, self.sD, 0, w="dword", flags=" sc1")]

    def ppoll_load(self):
        return [I(f"buffer_load_dword {self.vP}, off, {self.sFp}, 0 sc1", "vld", wr=[self.vP])]

    def poll_check(self, name, need, inc, loader):
        v = self.vP
        spin = [Label(f"Lspin_{name}"), raw(f"s_add_u32 {self.sSpin}, {self.sSpin}, 1")]
        spin += [raw(x.text) for x in loader()]
        spin += [raw(f"s_cmp_ge_u32 {self.sSpin}, 0x400000"),
                 raw(f"s_cbranch_scc1 Lgiveup_{name}"),
                 raw("s_waitcnt vmcnt(0)"),
                 raw(f"v_cmp_gt_i32 vcc, {need}, {v}"),
                 raw(f"s_cbranch_vccnz Lspin_{name}"),
                 Label(f"Lgiveup_{name}"),
                 raw("s_waitcnt vmcnt(0)"),
                 raw(f"s_branch Lok_{name}")]
        self.ool += spin
        return [Wait(vm=[v]), I(f"v_cmp_gt_i32 vcc, {need}, {v}", "valu", rd=[v, need]),
                raw(f"s_cbranch_vccnz Lspin_{name}", "branch"), Label(f"Lok_{name}"),
                salu("s_add_u32", need, need, inc)]

    def phase(self, s0, nts, rho, next_rho, stream=(), bar=False, last=False, start=0, end=None, pre_bar=(),
              fixed=(), extra=(), wreg=None, skip_below=0):
        o = self.o
        NS = self.NS
        NT = len(nts)
        L = NT * 16
        mf = []
        gaps = [[] for _ in range(4 * L)]
        fwd = list(range(8))
        wreg = wreg or self.wslot
        for ss in range(4):
            base = ss * L
            for k, nt in enumerate(nts):
                s = s0 + ss * NT + k
                order = fwd if ((ss + k) & 1) == 0 else fwd[::-1]
                for j, bt in enumerate(order):
                    for i in range(2):
                        c = i ^ (j & 1)
                        mf.append(mfma(16, self.acc_tile(nt, bt), wreg(s, c), self.xf(bt, c)))
                g = base + k * 16
                at = self.loads_at.get(s, [])
                for n, sn in enumerate(at):
                    if (last and sn >= 128) or o.now or sn < skip_below:
                        continue
                    ga, gb, gc = g + (14 if n == 0 else 15), g + 15, g + 18
                    if o.wdelay and g + 16 < 4 * L and (o.wdelay == 2 or k == NT - 1):
                        ga, gb, gc = g + 17 + 4 * n, g + 19 + 4 * n, g + 20 + 4 * n
                    elif o.wdelay and g + 16 < 4 * L and len(at) == 1:
                        gb, gc = g + 17, g + 19
                    elif not (g + 18 < 4 * L and n == len(at) - 1):
                        gc = g + 15
                    gaps[ga].append(hoist(self.wload(sn, 1)))
                    gaps[gb].append(hoist(self.wload(sn, 0)))
                    gaps[gc] += self.wstep(sn)
                if k < NT - 1:
                    gaps[g + 15].append(Wait(vm=[wreg(s + 1, 0), wreg(s + 1, 1)]))
                if k == 0:
                    for j in range(o.xw, 8, o.xw):
                        gaps[g + 2 * j - 1].append(
                            Wait(lg=[self.xf(order[jj], c) for jj in range(j, min(8, j + o.xw)) for c in range(2)]))
            nrho, nss = (rho, ss + 1) if ss < 3 else (next_rho, 0)
            gl = base + L - 16
            if ss == 3 and bar:
                gaps[gl - o.bar_lead] += list(pre_bar) + [Wait(all_lg=True), barrier()]
            if nrho is not None:
                for j, bt in enumerate(order):
                    for i in range(2):
                        c = i ^ (j & 1)
                        gaps[gl + 2 * j + i].append(hoist(self.xread(bt, c, nrho, nss)))
                s = s0 + (ss + 1) * NT
                gaps[base + L - 1].append(Wait(vm=[wreg(s, 0), wreg(s, 1)],
                                               lg=[self.xf(order[jj], c) for jj in range(o.xw) for c in range(2)]))
        for gi, inss in fixed:
            gaps[gi] += inss
        hi = end if end is not None else (4 * L - 16 - o.bar_lead if bar else 4 * L - 1)
        for st, lo2, hi2 in extra:
            self.place(gaps, list(st), lo2, hi2)
        self.place(gaps, list(stream), start, hi)
        out = []
        for i, m in enumerate(mf):
            out.append(m)
            gaps[i] = self.merge([], gaps[i])
            out += gaps[i]
        if o.verbose:
            print(f"; phase s0={s0} mfma={len(mf)} modelled excess={sum(self.gap_excess(g) for g in gaps)}", file=sys.stderr)
        return out

    @staticmethod
    def gap_excess(items):
        slots = 0
        ex = 0
        free = 2
        seenv = False
        for x in items:
            k = x.kind
            if k in ("valu", "nop"):
                slots += 1
                seenv = True
                continue
            if k in ("dsr", "vld", "dsw", "vst") and seenv:
                ex += 8
            if k == "dsr":
                slots += 1
            elif k == "vld":
                slots += 1 if x.text.startswith("global") else 2
            elif k == "dsw":
                ex += 12
                free -= 2
            elif k == "vst":
                ex += (20 if x.big else 4) + 4 * slots + (8 if free < 2 else 0)
                free = 4 if x.big else free - 1
            elif k == "barrier":
                ex += 24
        return ex + 4 * max(0, slots - max(free, 0))

    @staticmethod
    def merge(items, fixed):
        k = 0
        lead, rest = [], []
        stop = False
        for x in fixed:
            if not stop and x.kind in ("dsr", "vld") and getattr(x, "note", "") == "hoist":
                lead.append(x)
            else:
                rest.append(x)
                if x.kind not in ("wait",):
                    stop = True
        items = [x for x in items if x.kind != "space"]
        j = 0
        while j < len(items) and items[j].kind in ("salu", "wait"):
            j += 1
        if j < len(items) and items[j].kind == "vst":
            return items[:j + 1] + lead + items[j + 1:] + rest
        return lead + items + rest

    def place(self, gaps, stream, lo, hi):
        if not stream:
            return
        n, G = len(stream), hi - lo
        KMAX = 8
        INF = float("inf")
        dp = [INF] * (n + 1)
        dp[0] = 0.0
        back = []
        NG = len(gaps)
        cnt = lambda g, kind: sum(1 for x in gaps[g] if x.kind == kind) if g < NG else 0
        for g in range(G):
            fixed = gaps[lo + g]
            base = self.gap_excess(self.merge([], fixed))
            wpen = 7 * sum(cnt(lo + g + d, "dsr") for d in (1, 2, 3)) + 4 * cnt(lo + g, "dsr")
            spen = 12 * cnt(lo + g + 1, "vld") + 6 * cnt(lo + g, "vld") + 4 * cnt(lo + g + 2, "vld")
            nd = [INF] * (n + 1)
            bk = [0] * (n + 1)
            tgt = n * (g + 1) / G
            for i in range(n + 1):
                if dp[i] == INF:
                    continue
                for k in range(0, min(KMAX, n - i) + 1):
                    c = dp[i]
                    if k:
                        its = stream[i:i + k]
                        if k > 1 and its[-2].kind == "space":
                            break
                        c += self.gap_excess(self.merge(its, fixed)) - base
                        c += sum(wpen if x.kind == "dsw" else spen if x.kind == "vst" else 0 for x in its)
                    c += self.o.pace * ((i + k - tgt) / max(1.0, n / G)) ** 2 + 0.02 * k * k
                    if c < nd[i + k]:
                        nd[i + k] = c
                        bk[i + k] = k
            dp = nd
            back.append(bk)
        assert dp[n] < INF
        i = n
        for g in range(G - 1, -1, -1):
            k = back[g][i]
            gaps[lo + g] = self.merge(stream[i - k:i], gaps[lo + g])
            i -= k

    def prologue(self):
        o = self.o
        vL = self.vL
        b = []
        b.append(salu("s_cmp_ge_u32", "s2", 256))
        b.append(raw("s_cbranch_scc1 Lend", "branch"))
        b += self.stamp("start")
        if o.stamps:
            b.append(raw("s_memrealtime s[36:37]"))
        b += [sload("s[56:59]", 0, 4), sload("s[60:63]", 16, 4), sload("s[64:67]", 32, 4)]
        b.append(valu("v_lshrrev_b32", "v9", 6, "v0"))
        b.append(valu("v_and_b32", "v10", 63, "v0"))
        b.append(valu("v_readfirstlane_b32", self.sWave, "v9"))
        b.append(valu("v_lshlrev_b32", vL, 4, "v10"))
        if o.cpf:
            b.append(raw("s_getpc_b64 s[4:5]", "salu"))
            b.append(Label("Lpc"))
            b.append(valu("v_lshlrev_b32", "v11", 6, "v0"))
            for i in range(o.cpf):
                b.append(raw(f"v_min_u32 v12, Lend-Lpc, v11", "valu", rd=["v11"], wr=["v12"]))
                b.append(I(f"global_load_dword v{60 + i}, v12, s[4:5]", "vld", rd=["v12"], wr=[f"v{60 + i}"]))
                b.append(valu("v_add_u32", "v11", 16384, "v11"))
        b.append(valu("v_lshrrev_b32", "v11", 7, "v0"))
        b.append(valu("v_and_b32", "v12", 127, "v0"))
        b.append(valu("v_lshlrev_b32", "v12", 3, "v12"))
        b.append(valu("v_lshl_add_u32", "v30", "v11", 11, "v12"))
        b.append(valu("v_lshlrev_b32", "v31", 4, "v0"))
        b.append(valu("v_add_u32", "v31", LDS_BIAS, "v31"))
        b.append(valu("v_add_u32", self.vXr[1], 65536, vL))
        b.append(valu("v_lshl_add_u32", self.vXw, "v9", 15, vL))
        b.append(valu("v_lshl_add_u32", self.vW, "v9", 18, vL))
        b.append(valu("v_lshrrev_b32", "v11", 4, "v10"))
        b.append(valu("v_and_b32", "v12", 15, "v10"))
        b.append(valu("v_xor_b32", "v13", "v11", "v12"))
        b.append(valu("v_lshlrev_b32", "v13", 4, "v13"))
        b.append(valu("v_lshl_add_u32", "v20", "v11", 11, "v13"))
        for i in range(1, 4):
            b.append(valu("v_xor_b32", f"v{20 + i}", 64 * i, "v20"))
        b.append(valu("v_lshl_add_u32", "v24", "v12", 8, "v13"))
        b.append(valu("v_lshl_add_u32", "v24", "v9", 15, "v24"))
        for i in range(1, 4):
            b.append(valu("v_xor_b32", f"v{24 + i}", 64 * i, "v24"))
        b.append(salu("s_and_b32", "s7", "s2", 1))
        b.append(salu("s_lshr_b32", self.sRow, "s2", 1))
        b.append(salu("s_lshl_b32", self.sRow, self.sRow, 18))
        b.append(salu("s_lshl_b32", "s6", "s7", 10))
        b.append(salu("s_add_u32", self.sRow, self.sRow, "s6"))
        b.append(salu("s_lshl_b32", "s6", self.sWave, 8))
        b.append(salu("s_add_u32", self.sRow, self.sRow, "s6"))
        b.append(salu("s_mov_b32", self.sMask, "0xffff0000"))
        b.append(salu("s_lshl_b32", self.sWoff, "s7", 20))
        b.append(salu("s_mov_b32", self.sL, 0))
        b.append(salu("s_mov_b32", self.sSpin, 0))
        b.append(salu("s_mov_b32", self.sFlag, -1 if o.gather else 0))
        b.append(salu("s_mov_b32", self.sNeed, 64))
        b.append(salu("s_mov_b32", self.sPNeed, -1 if o.gather else 1))
        b.append(salu("s_lshl_b32", self.sLds, self.sWave, 15))
        b.append(salu("s_lshl_b32", self.sXs, "s2", 17))
        b.append(salu("s_add_u32", self.sXs, self.sXs, o.xbase * MB))
        b.append(salu("s_xor_b32", self.sXl, self.sXs, 1 << 17))
        b.append(salu("s_lshr_b32", "s4", "s2", 3))
        b.append(salu("s_and_b32", "s5", "s2", 7))
        b.append(salu("s_lshl_b32", self.sRaw, "s4", 16))
        b.append(salu("s_lshl_b32", "s6", "s5", 8))
        b.append(salu("s_add_u32", self.sRaw, self.sRaw, "s6"))
        b.append(salu("s_lshl_b32", "s6", self.sWave, 6))
        b.append(salu("s_add_u32", self.sRaw, self.sRaw, "s6"))
        b.append(salu("s_lshl_b32", self.sDst, "s5", 18))
        b.append(salu("s_and_b32", "s6", "s4", 1))
        b.append(salu("s_lshl_b32", "s6", "s6", 10))
        b.append(salu("s_add_u32", self.sDst, self.sDst, "s6"))
        b.append(salu("s_lshr_b32", "s6", "s4", 4))
        b.append(salu("s_lshr_b32", "s5", "s5", 2))
        b.append(salu("s_xor_b32", "s5", "s5", "s6"))
        b.append(salu("s_bfe_u32", "s6", "s4", "0x10001"))
        b.append(salu("s_lshl_b32", "s3", "s5", 1))
        b.append(salu("s_add_u32", "s3", "s3", "s6"))
        b.append(salu("s_lshl_b32", "s3", "s3", 16))
        b.append(salu("s_add_u32", self.sDst, self.sDst, "s3"))
        b.append(salu("s_bfe_u32", "s4", "s4", "0x20002"))
        b.append(salu("s_xor_b32", "s5", "s5", "s6"))
        b.append(salu("s_lshr_b32", "s3", self.sWave, 1))
        b.append(salu("s_lshl_b32", "s3", "s3", 4))
        b.append(salu("s_lshl_b32", "s6", "s4", 2))
        b.append(salu("s_add_u32", "s3", "s3", "s6"))
        b.append(salu("s_and_b32", "s6", self.sWave, 1))
        b.append(salu("s_lshl_b32", "s6", "s6", 1))
        b.append(salu("s_add_u32", "s3", "s3", "s6"))
        b.append(salu("s_lshl_b32", "s4", "s4", 3))
        b.append(salu("s_lshl_b32", "s6", self.sWave, 1))
        b.append(salu("s_add_u32", "s4", "s4", "s6"))
        b.append(salu("s_cmp_eq_u32", "s5", 0))
        b.append(salu("s_cselect_b32", "s3", "s3", "s4"))
        b.append(salu("s_lshl_b32", "s3", "s3", 11))
        b.append(salu("s_add_u32", self.sDst, self.sDst, "s3"))
        b.append(salu("s_lshl_b32", self.sStage, self.sWave, 11))
        b.append(salu("s_add_u32", self.sStage, self.sStage, LDS_STAGE))
        b.append(salu("s_lshl_b32", self.sBias, self.sWave, 9))
        b.append(salu("s_add_u32", self.sBias, self.sBias, LDS_BIAS))
        b.append(Wait(all_lg=True))
        b += self.stamp("kernarg")
        b += srd(40, "s58", "s59", NL * D * D * 2)
        b += self.prep_load()
        b += srd(20, "s60", "s61", NL * D * 2)
        tb = 32
        b.append(salu("s_lshl_b32", "s3", "s7", 10))
        for m in range(3):
            b.append(bload(R("v", tb + 2 * m, 2), "v30", self.sB, "s3", w="dwordx2"))
            b.append(salu("s_add_u32", "s3", "s3", 4096))
        b += srd(8, "s56", "s57", NB * D * 2)
        b += srd(16, "s62", "s63", NB * D * 2)
        b += srd(12, "s66", "s67", NL * D * D * 2)
        b += srd(32, "s66", "s67", 256 * MB)
        b += srd(44, "s64", "s65", 256)
        b += [salu("s_add_u32", self.sWoff, self.sWoff, 4096), salu("s_add_u32", "s70", "s66", self.sWoff),
              salu("s_addc_u32", "s71", "s67", 0), salu("s_sub_u32", self.sWoff, self.sWoff, 4096)]
        b.append(salu("s_and_b32", "s3", "s2", 3))
        b.append(salu("s_lshl_b32", "s3", "s3", 6))
        b += srd_off(56, "s44", "s45", "s3", 4)
        b.append(salu("s_lshl_b32", "s3", "s2", 2))
        b.append(salu("s_add_u32", "s3", "s3", self.sWave))
        b.append(salu("s_lshl_b32", "s3", "s3", 7))
        b.append(salu("s_add_u32", "s3", "s3", WS_FLAGS))
        b += srd_off(60, "s32", "s33", "s3", 4)
        b.append(salu("s_xor_b32", "s3", "s3", 512))
        b += srd_off(64, "s32", "s33", "s3", 4)
        if o.delay:
            for _ in range(o.delay):
                b.append(raw("s_sleep 127"))
        if o.touch:
            for l in range(6):
                b.append(salu("s_add_u32", "s3", self.sXs, l * 32 * MB))
                if o.touch == 1:
                    b.append(bload(f"v{60 + l}", self.vXw, self.sE, "s3", w="dword"))
                else:
                    b.append(bstore(f"v{60 + l}", self.vXw, self.sE, "s3", w="dword", flags=" sc1"))
            b.append(Wait(all_vm=True))
        def x0dma(lo, hi):
            r = []
            for i in range(lo, hi):
                r.append(raw(f"s_add_u32 m0, {self.sLds}, {i * 1024}", "salu"))
                r.append(salu("s_add_u32", "s3", self.sRow, i * 8192))
                r.append(dma(f"v{20 + (i & 3)}", self.sX, "s3", 0, o.xflags, f"x0_{i >> 2}"))
            return r

        def x0fix(bt):
            r = [Wait(vm=[f"x0_{bt}"])]
            for kbl in range(4):
                r.append(dsread(self.x0reg(kbl, bt), f"v{24 + kbl}", bt * 4096))
            r.append(Wait(all_lg=True))
            for kbl in range(4):
                r.append(dswrite(self.vXw, self.x0reg(kbl, bt), bt * 4096 + kbl * 1024))
            if o.apub:
                r += self.x0pub_stream(0, 2 * bt, 2 * bt + 2)
            return r

        def accinit(pred):
            r = []
            for p in range(2):
                for i in range(128):
                    a = self.acc(p, i)
                    if pred(a):
                        r.append(valu("v_accvgpr_write_b32" if a[0] == "a" else "v_mov_b32", a, "1.0"))
            return r

        if o.early == 1:
            return b + self.prologue_early(accinit, tb)
        late = lambda a: a[0] == "v" and 32 <= int(a[1:]) < 64
        final = lambda a: a[0] == "v" and int(a[1:]) < 32
        na, nb, ahead, npoll = o.x0split
        b.append(valu("v_mov_b32", self.t[2], 0))
        b.append(tagged(bstore(self.t[2], vL, self.sFm, 0, w="dword", flags=" sc1"), "pst"))
        b += x0dma(0, na)
        b += accinit(lambda a: not late(a) and not final(a))
        b += self.prep_store()
        b += self.stamp("stores_issued")
        b += x0dma(na, nb)
        for m in range(3):
            b.append(Wait(vm=[R("v", tb + 2 * m, 2)]))
            for j in range(2):
                src = f"v{tb + 2 * m + j}"
                b.append(valu("v_lshlrev_b32", f"v{40 + 4 * m + 2 * j}", 16, src))
                b.append(valu("v_and_b32", f"v{41 + 4 * m + 2 * j}", self.sMask, src))
            b.append(dswrite("v31", R("v", 40 + 4 * m, 4), m * 4096))
        b.append(Wait(all_lg=True))
        b += accinit(late)
        b += [Wait(vm=["pst"]), barrier()] + self.wsignal()
        b += self.stamp("signalled")
        def wring():
            r = []
            for s in [x for x in range(128) if self.site[x] < 0]:
                r += [self.wload(s, 1), self.wload(s, 0)] + self.wstep(s)
            return r

        def path(name, nb2, npoll, stamps):
            st = self.stamp if stamps else (lambda n: [])
            r = x0dma(nb, nb2)
            issued = max(nb, nb2)
            checked = False
            poll_before = None
            for bt in range(8):
                want = min(32, 4 * (bt + 1 + ahead))
                if bt == npoll:
                    r += self.wpoll_load()
                    poll_before = (issued + 3) // 4 if npoll else 0
                if want > issued and (npoll or checked):
                    r += x0dma(issued, want)
                    issued = want
                if poll_before is not None and not checked and bt >= poll_before:
                    r += st("x0_part")
                    r += self.poll_check(name, self.sNeed, 64, self.wpoll_load)
                    r += st("flag_seen")
                    checked = True
                    if npoll:
                        r += x0dma(issued, 32) + wring()
                        issued = 32
                    else:
                        r += wring() + x0dma(issued, want)
                        issued = max(issued, want)
                r += x0fix(bt)
            assert checked and issued == 32
            return r

        if o.stagger < 0:
            b += path("pro", nb, npoll, True)
        else:
            px = path("prox", nb, npoll, True)
            n0 = self.stampn
            self.stampn -= 2 if o.stamps and not o.pstamps else 0
            self.names = self.names[:self.stampn]
            py = path("proy", o.ynb, 0, True)
            assert self.stampn == n0
            for x in px:
                x.note = "gx"
            for x in py:
                x.note = "gy"
            b += [salu("s_bitcmp1_b32", "s2", o.stagger), raw("s_cbranch_scc1 Lgy", "branch")]
            b += px + [raw("s_branch Lgjoin", "branch"), Label("Lgy")] + py + [Label("Lgjoin")]
        b += accinit(final)
        if o.gather:
            b += [salu("s_xor_b32", self.sXl, self.sRow, 1024), salu("s_mov_b32", "s20", 64),
                  salu("s_mov_b32", "s21", 32768 - 64), salu("s_mov_b32", "s22", hex((128 - 64 - 7 * 32768) & 0xffffffff))]
        b += [Wait(all_lg=True), barrier()]
        for j in range(8):
            for i in range(2):
                b.append(self.xread(j, i ^ (j & 1), 0, 0))
        b.append(Wait(lg=[self.xf(j, c) for j in range(o.xw) for c in range(2)], vm=[self.wslot(0, 0), self.wslot(0, 1)]))
        if o.desync:
            b += [raw("s_lshr_b32 s3, s2, 1"), raw("s_and_b32 s3, s3, 15"), Label("Lds"), raw(f"s_sleep {o.desync}"),
                  raw("s_sub_u32 s3, s3, 1"), raw("s_cbranch_scc0 Lds")]
        b += self.stamp("pro_done")
        return b

    def prologue_early(self, accinit, tb):
        o = self.o
        vL = self.vL
        b = []
        vG, vS = "v20", ["v21", "v22"]
        wbuf = set(r for s in range(16 - self.NS) for c in range(2) for r in regs(self.wreg0(s, c)))
        late = lambda a: a[0] == "v" and 32 <= int(a[1:]) < 64
        final = lambda a: a[0] == "v" and int(a[1:]) < 32
        na, nb, npoll, nB0 = o.x0split
        b.append(valu("v_mov_b32", self.t[2], 0))
        b.append(tagged(bstore(self.t[2], vL, self.sFm, 0, w="dword", flags=" sc1"), "pst"))
        b += self.calc_vG(vG) + self.calc_vS(vS)
        b += self.x0h_dma(0, 0, na, vG)
        b += accinit(lambda a: not late(a) and not final(a) and a not in wbuf)
        b += self.prep_store()
        b += self.stamp("stores_issued")
        b += self.x0h_dma(0, na, nb, vG)
        for m in range(3):
            b.append(Wait(vm=[R("v", tb + 2 * m, 2)]))
            for j in range(2):
                src = f"v{tb + 2 * m + j}"
                b.append(valu("v_lshlrev_b32", f"v{40 + 4 * m + 2 * j}", 16, src))
                b.append(valu("v_and_b32", f"v{41 + 4 * m + 2 * j}", self.sMask, src))
            b.append(dswrite("v31", R("v", 40 + 4 * m, 4), m * 4096))
        b.append(Wait(all_lg=True))
        b += accinit(late)
        b += [Wait(vm=["pst"]), barrier()] + self.wsignal()
        b += self.stamp("signalled")
        b += self.x0h_dma(0, nb, 16, vG)
        for bt in range(8):
            if bt == npoll:
                b += self.wpoll_load() + self.x0h_dma(1, 0, nB0, vG)
            b += self.x0h_read(0, bt, vS)
            if bt:
                b += self.x0h_write(0, bt - 1)
        if npoll >= 8:
            b += self.wpoll_load() + self.x0h_dma(1, 0, nB0, vG)
        b += self.x0h_write(0, 7)
        b += self.stamp("x0_part")
        b += [Wait(all_lg=True), barrier()]
        for j in range(8):
            for i in range(2):
                b.append(self.xread(j, i ^ (j & 1), 0, 0))
        b += self.poll_check("pro", self.sNeed, 64, self.wpoll_load)
        b += self.stamp("flag_seen")
        for s in range(16):
            b += [self.wload(s, 1, self.wreg0(s, 1)), self.wload(s, 0, self.wreg0(s, 0))]
            b += self.wstep(s)
        b += self.x0h_dma(1, nB0, max(nB0, o.nb_pro) if o.gather else 16, vG)
        b.append(valu("v_mov_b32", "v8", vG))
        b += accinit(final)
        if o.gather:
            b += [salu("s_xor_b32", self.sXl, self.sRow, 1024), salu("s_mov_b32", "s20", 64),
                  salu("s_mov_b32", "s21", 32768 - 64), salu("s_mov_b32", "s22", hex((128 - 64 - 7 * 32768) & 0xffffffff))]
        b.append(Wait(lg=[self.xf(j, c) for j in range(o.xw) for c in range(2)], vm=[self.wreg0(0, 0), self.wreg0(0, 1)]))
        b += self.stamp("pro_done")
        return b

    def build(self):
        o = self.o
        A, B, AB = [0, 1, 2, 3], [4, 5, 6, 7], list(range(8))
        e = (lambda s: []) if o.noepi else (lambda s: s)
        unit_end = lambda x: x.kind in ("vst", "dsw") and x.rd & {"v12"}
        safe_bias = lambda x: x.kind == "valu" and "add_f32" in x.text and not x.wr & set(self.t)
        pro = self.prologue()
        PL = o.pstamps - 1
        dA, dB = o.direct
        g0, g1, g2, g3 = o.sg
        ep = o.earlyprep
        if o.gather and o.early == 1:
            ini = []
            for s in range(16 - self.NS):
                ini.append(([valu("v_mov_b32", r, "1.0") for c in range(2) for r in regs(self.wreg0(s, c))],
                            16 * s + 18, 16 * s + 30))
            nB1 = o.x0split[3]
            late = self.x0h_dma(1, max(nB1, o.nb_pro), 16, "v8")
            s1a0 = self.phase(0, A, 0, 0, late, wreg=self.wreg0, skip_below=16, extra=ini, end=o.pub0_end)
            s1a0 += self.stamp("s1a0")
            vS = [f"v{self.Q[0]}", f"v{self.Q[0] + 1}"]
            fix = self.calc_vS(vS)
            for bt in range(8):
                fix += self.x0h_read(1, bt, vS) + space(3)
                if bt:
                    fix += self.x0h_write(1, bt - 1)
            fix += space(4) + self.x0h_write(1, 7)
            s1a0 += self.phase(16, B, 0, 1, fix + self.calc_vB() + e(self.bias_stream(0)), bar=True,
                               pre_bar=[salu("s_add_u32", self.sPNeed, self.sPNeed, 1)])
            s1a0 += self.stamp("s1b0")
        elif o.gather:
            assert not o.early
            s1a0 = self.phase(0, A, 0, 0, []) + self.stamp("s1a0")
        elif o.early == 2:
            s1a0 = self.phase(0, A, 0, 0, self.x0pub_stream(0), end=o.pub0_end) + self.stamp("s1a0")
            st = insert_at(self.calc_vB() + e(self.bias_stream(0)), o.sig0_at, self.psignal(0), safe_bias)
            st = insert_at(st, o.poll0_at, self.ppoll_load(), safe_bias)
            if o.wsig2:
                st = st + self.prep_load()
            s1a0 += self.phase(16, B, 0, 1, st, bar=True, extra=[(self.x0pub_stream(1), 0, 230)],
                               pre_bar=self.poll_check("pa0", self.sPNeed, 1, self.ppoll_load))
            s1a0 += self.stamp("s1b0")
        elif o.early:
            ini = []
            for s in range(16 - self.NS):
                ini.append(([valu("v_mov_b32", r, "1.0") for c in range(2) for r in regs(self.wreg0(s, c))],
                            16 * s + 18, 16 * s + 30))
            s1a0 = self.phase(0, A, 0, 0, self.x0pub_stream(0), wreg=self.wreg0, skip_below=16, extra=ini,
                              end=o.pub0_end) + self.stamp("s1a0")
            vS = [f"v{self.Q[0]}", f"v{self.Q[0] + 1}"]
            fix = self.calc_vS(vS)
            for bt in range(8):
                fix += self.x0h_read(1, bt, vS)
                if bt:
                    fix += self.x0h_write(1, bt - 1) + self.x0pub_stream(1, 2 * bt - 2, 2 * bt)
                if bt == 1:
                    fix += self.psignal(0)
            fix += self.x0h_write(1, 7) + self.x0pub_stream(1, 14, 16)
            st = insert_at(self.calc_vB() + e(self.bias_stream(0)), 0.6, self.ppoll_load(), safe_bias)
            s1a0 += self.phase(16, B, 0, 1, fix + st, bar=True,
                               pre_bar=self.poll_check("pa0", self.sPNeed, 1, self.ppoll_load))
            s1a0 += self.stamp("s1b0")
        else:
            s1a0 = self.phase(0, A, 0, 0, (self.prep_load() if ep else []) + self.x0pub_stream(0) +
                              self.x0pub_stream(1, 0, dB) + (self.psignal(0) if dA == 16 else [])) + self.stamp("s1a0")
        lp = o.lateprep
        st = (self.prep_store() if ep else [] if lp else self.prep_load()) + self.calc_vB() + e(self.bias_stream(0))
        if o.wsig2:
            st = st + self.prep_load()
        if dA < 16:
            st = insert_at(st, o.siga2_at, self.psignal(0), safe_bias)
        if dB == 16 and not o.early:
            st = insert_at(st, o.sigb_at, self.psignal(1), safe_bias)
        fx2 = [(o.pollb_gap, self.ppoll_load()), (1, self.xnext(self.sXs, 0))]
        if dB < 16 or o.early:
            fx2.append((g3, self.psignal(1)))
        if g0 < 0:
            st = insert_at(st, o.polla_at, self.ppoll_load(), safe_bias)
            pb1 = self.poll_check("pa", self.sPNeed, 1, self.ppoll_load)
            g1 = -1
        else:
            assert not o.early
            pb1 = []
            fx2 += [(g0, self.ppoll_load()), (g1, self.poll_check("pa", self.sPNeed, 1, self.ppoll_load))]
        if ep:
            pb1 = [Wait(vm=["pst"])] + pb1
            fx2.append((3, self.wsignal()))
        s1b = [Label("Ls1b")] + self.phase(16, B, 0, 1, st, bar=True, pre_bar=pb1,
                                            extra=[(self.pub_stream(1, dB, 16), 0, 232)])
        s2 = self.phase(32, AB, 1, 0, self.xch_dma(0) + ([] if ep or lp else self.prep_store()), bar=True, start=g1 + 1, end=g2, fixed=fx2,
                        extra=[(self.prep_store(10) if o.wsig2 else self.prep_load() if lp else [], lp, lp + (30 if o.wsig2 else 12))],
                        pre_bar=[Wait(vm=["xl0", "pst"] if o.wsig2 else ["xl0"])] + self.poll_check("pb", self.sPNeed, 1, self.ppoll_load))
        s3 = self.phase(64, AB, 0, 1, self.xch_dma(1), bar=True, end=o.dma_end, pre_bar=[Wait(vm=["xl1", "pst"])],
                        extra=[(self.wsignal(), 2, 6)] if o.wsig2 else
                        [(self.prep_store(10) if lp else [], o.preps_at, o.preps_at + 30)])
        s1b[1:1] = self.lstamp("pre", PL) if PL > 0 else []
        s1b += self.lstamp("s1b", PL)
        s2 += self.lstamp("s2", PL)
        s3 += self.lstamp("s3", PL)
        s4a = self.phase(96, A, 1, 1, ([] if ep or o.wsig2 else self.wsignal()) + (self.calc_vB() if self.small else []) + e(self.bias_stream(1)))
        if o.gather:
            s4a += self.xch_switch()
        s4a += self.lstamp("s4a", PL)
        s4a += [salu("s_add_u32", self.sBias, self.sBias, 2048), salu("s_add_u32", self.sL, self.sL, 1),
                salu("s_cmp_eq_u32", self.sL, NL), raw("s_cbranch_scc1 Llast", "branch")]
        st = insert_at(e(self.epi_stream(0, dA)), o.pollw_at, self.wpoll_load(), unit_end)
        chk = (self.site[128] - 112) * 16 + 2
        s4b = self.phase(112, B, 1, 0, st, bar=True,
                         fixed=[(chk, self.poll_check("w", self.sNeed, 64, self.wpoll_load))])
        s4b += self.lstamp("s4b", PL + 1)
        st = e(self.epi_stream(1, dB))
        if dA == 16:
            st = insert_at(st, o.siga_at, self.psignal(0), unit_end)
        if ep:
            st = insert_at(st, o.prepl_at, self.prep_load(), unit_end)
        s1a = self.phase(0, A, 0, 0, st, extra=[(self.pub_stream(0, dA, 16), 0, o.puba_end)])
        if o.stamps:
            s1a += [raw(f"s_cmp_eq_u32 s25, {max(1, o.pstamps)}"), raw("s_cbranch_scc0 Lnostamp")] + self.stamp("layer1") + [
                raw("s_memrealtime s[4:5]"), Label("Lnostamp")]
        if o.early:
            assert lp
            s2 = [Label("Lloop")] + s2
            s1b += [raw("s_branch Lloop", "branch")]
        else:
            s1a += [raw("s_branch Ls1b", "branch")]
        s4bl = [Label("Llast")] + self.stamp("4.75layers") + ([raw("s_memrealtime s[6:7]")] if o.stamps else [])
        s4bl += self.phase(112, B, 1, None, self.out_stream(0), last=True)
        tail = self.stamp("s4b_last") + [nop(7)] + [x for x in self.out_stream(1) if x.kind != "space"]
        if o.stamps:
            tail += self.stamp("tail_issued")
            tail += [Wait(all_vm=True)]
            tail += self.stamp("tail_drained")
            tail.append(raw("s_memrealtime s[38:39]"))
            tail.append(raw("s_waitcnt lgkmcnt(0)"))
            tail.append(raw("v_cmp_eq_u32 vcc, 0, v0"))
            tail.append(raw("s_and_saveexec_b64 s[68:69], vcc"))
            tail.append(raw("s_cbranch_execz Lend"))
            if o.dbgout >= 0:
                tail += [raw(f"s_cmp_lg_u32 s2, {o.dbgout}"), raw("s_cbranch_scc1 Lend"), raw("v_mov_b32 v1, 0")]
                tail += [raw("s_sub_u32 s3, s38, s36"), raw("v_mov_b32 v2, s3"),
                         raw("buffer_store_dword v2, v1, s[44:47], 0 offen offset:4"),
                         raw("s_sub_u32 s3, s6, s4"), raw("v_mov_b32 v2, s3"),
                         raw("buffer_store_dword v2, v1, s[44:47], 0 offen offset:8"),
                         raw("v_mov_b32 v2, s53"), raw("buffer_store_dword v2, v1, s[44:47], 0 offen offset:12")]
                for n in range(1, min(self.stampn, 13)):
                    tail += [raw(f"s_sub_u32 s3, s{72 + 2 * n}, s{70 + 2 * n}"), raw("v_mov_b32 v2, s3"),
                             raw(f"buffer_store_dword v2, v1, s[44:47], 0 offen offset:{12 + 4 * n}")]
            else:
                tail.append(raw("s_lshl_b32 s3, s2, 8"))
                tail.append(raw(f"s_add_u32 s3, s3, {WS_STAMP}"))
                tail.append(raw("v_mov_b32 v1, 0"))
                for n, i in enumerate(list(range(36, 40)) + list(range(72, 102)) + [4, 5, 6, 7, 53]):
                    tail.append(raw(f"v_mov_b32 v2, s{i}"))
                    tail.append(raw(f"buffer_store_dword v2, v1, s[32:35], s3 offen offset:{n * 4}"))
        tail += [Label("Lend"), raw("s_endpgm")]
        rest = s1a0 + ([] if o.early else s1b)
        for l in range(NL - 1):
            rest = rest + s2 + s3 + s4a + s4b + s1a + s1b
        rest = rest + s2 + s3 + s4a + s4bl + tail
        traces = [[x for x in pro if x.note != skip] + rest for skip in ("gx", "gy")]
        for tr in traces:
            resolve_waits(tr)
        for tr in traces:
            errs, mv, ml = check(tr)
            if errs and not o.now:
                for x in errs[:20]:
                    print(x, file=sys.stderr)
                raise SystemExit("hazard/dependency errors")
        if o.early:
            prog = pro + s1a0 + s2 + s3 + s4a + s4b + s1a + s1b + s4bl + tail + self.ool
        else:
            prog = pro + s1a0 + s1b + s2 + s3 + s4a + s4b + s1a + s4bl + tail + self.ool
        txt = f".globl {KNAME}\n.p2align 8\n.type {KNAME},@function\n{KNAME}:\n" + emit(prog) + "\n"
        txt = "; stamps: " + " ".join(self.names) + "\n" + txt
        return txt, kd(KNAME, 512, 102, 256)


def main():
    ap = argparse.ArgumentParser()
    ap.add_argument("-o", default="standalone__cross_network_dcn__recsys.s")
    ap.add_argument("--slots", type=int, default=6)
    ap.add_argument("--wflags", default="")
    ap.add_argument("--xflags", default="")
    ap.add_argument("--oflags", default="nt")
    ap.add_argument("--rflags", default="")
    ap.add_argument("--xsflags", default="sc1")
    ap.add_argument("--xlflags", default="")
    ap.add_argument("--bar_lead", type=int, default=6)
    ap.add_argument("--xw", type=int, default=4)
    ap.add_argument("--x0split", type=int, nargs=4, default=[4, 4, 3, 3])
    ap.add_argument("--sigb_at", type=float, default=0.45)
    ap.add_argument("--polla_at", type=float, default=0.6)
    ap.add_argument("--siga_at", type=float, default=0.45)
    ap.add_argument("--pollw_at", type=float, default=0.3)
    ap.add_argument("--pollb_gap", type=int, default=386)
    ap.add_argument("--dma_end", type=int, default=400)
    ap.add_argument("--stamps", action="store_true")
    ap.add_argument("--nb_pro", type=int, default=16, help="early mode: x0 B-half DMAs issued before the first MFMA")
    ap.add_argument("--dmapair", type=int, default=30)
    ap.add_argument("--dbgout", type=int, default=-1)
    ap.add_argument("--tailpk", type=int, default=1)
    ap.add_argument("--gather", type=int, default=1)
    ap.add_argument("--wsig2", type=int, default=0)
    ap.add_argument("--stagger", type=int, default=-1, help="workgroup-id bit selecting the late group")
    ap.add_argument("--ynb", type=int, default=4)
    ap.add_argument("--sig0_at", type=float, default=0.1)
    ap.add_argument("--poll0_at", type=float, default=0.7)
    ap.add_argument("--verbose", action="store_true")
    ap.add_argument("--gload", type=int, default=1)
    ap.add_argument("--pace", type=float, default=0.1)
    ap.add_argument("--early", type=int, default=0)
    ap.add_argument("--pub0_end", type=int, default=250)
    ap.add_argument("--earlyprep", type=int, default=0)
    ap.add_argument("--lateprep", type=int, default=400)
    ap.add_argument("--preps_at", type=int, default=330)
    ap.add_argument("--prepl_at", type=float, default=0.1)
    ap.add_argument("--wdelay", type=int, default=2)
    ap.add_argument("--short_at", type=int, default=72)
    ap.add_argument("--pkmul", type=int, default=0)
    ap.add_argument("--pkadd", type=int, default=0)
    ap.add_argument("--apub", type=int, default=0, help="publish x0's A half in the prologue")
    ap.add_argument("--cpf", type=int, default=4, help="code prefetch loads per wave (16 KB each)")
    ap.add_argument("--desync", type=int, default=0, help="diagnostic")
    ap.add_argument("--direct", type=int, nargs=2, default=[16, 16])
    ap.add_argument("--siga2_at", type=float, default=0.15)
    ap.add_argument("--puba_end", type=int, default=200)
    ap.add_argument("--sg", type=int, nargs=4, default=[-1, 0, 390, 82])
    ap.add_argument("--delay", type=int, default=0, help="diagnostic")
    ap.add_argument("--touch", type=int, default=0, help="diagnostic")
    ap.add_argument("--pstamps", type=int, default=0, help="phase stamps in layer N-1")
    ap.add_argument("--xbase", type=int, default=32)
    ap.add_argument("--xbufs", type=int, default=6)
    ap.add_argument("--now", action="store_true", help="diagnostic: no W loads in the loop")
    ap.add_argument("--noxch", action="store_true", help="diagnostic: no exchange traffic")
    ap.add_argument("--noepi", action="store_true", help="diagnostic: no epilogue/bias in the loop")
    o = ap.parse_args()
    for k in ("wflags", "xflags", "oflags", "rflags", "xsflags", "xlflags"):
        v = getattr(o, k)
        setattr(o, k, (" " + v.replace(",", " ")) if v and v != "none" else "")
    mtxt, mkd = Main(o).build()
    opts = " ".join(a for a in sys.argv[1:] if not a.endswith(".s") and a != "-o")
    s = HEADER.format(opts=opts)
    s += f"; @launch grid=(256,1,1) block=(256,1,1) lds={LDS_TOTAL}\n"
    s += '.amdgcn_target "amdgcn-amd-amdhsa--gfx950"\n.text\n'
    s += mtxt + mkd
    open(o.o, "w").write(s)
    print(o.o, len(s), "bytes")


if __name__ == "__main__":
    main()
```

```python
import argparse
import sys
from asmir import *

KNAME = "standalone__cross_network_dcn__recsys_kernel"
NL = 6
D = 1024
NB = 16384
MB = 1 << 20

HEADER = """; Kernarg layout for this problem (48 bytes, ptrs only, base s[0:1]):
;   offset  40: d_ws      268435456 bytes workspace
; Generated by gen/gen3.py (hand-written generator). Options: {opts}
"""

LDS_BIAS = 131072
LDS_STAGE = LDS_BIAS + NL * 512 * 4
LDS_TOTAL = LDS_STAGE + 8192
WS_FLAGS = 15 * MB
WS_XCH = 32 * MB
WS_STAMP = 16 * MB


def kd(name, vgpr, sgpr, accum):
    return f""".section .rodata,"a"
.p2align 6
.amdhsa_kernel {name}
  .amdhsa_next_free_vgpr {vgpr}
  .amdhsa_next_free_sgpr {sgpr}
  .amdhsa_accum_offset {accum}
  .amdhsa_group_segment_fixed_size 0
  .amdhsa_kernarg_size 48
  .amdhsa_user_sgpr_count 2
  .amdhsa_user_sgpr_kernarg_segment_ptr 1
  .amdhsa_system_sgpr_workgroup_id_x 1
  .amdhsa_float_denorm_mode_32 3
.end_amdhsa_kernel
"""


def srd(base, lo, hi, nbytes):
    return [salu("s_mov_b32", f"s{base}", lo), salu("s_mov_b32", f"s{base + 1}", hi),
            salu("s_mov_b32", f"s{base + 2}", hex(nbytes)), salu("s_mov_b32", f"s{base + 3}", "0x20000")]


def srd_off(base, lo, hi, off, nbytes):
    return [salu("s_add_u32", f"s{base}", lo, off), salu("s_addc_u32", f"s{base + 1}", hi, 0),
            salu("s_mov_b32", f"s{base + 2}", hex(nbytes)), salu("s_mov_b32", f"s{base + 3}", "0x20000")]


def sload(d, off, n=2):
    return I(f"s_load_dwordx{n} {d}, s[0:1], {off}", "smem", wr=[d])


def tagged(ins, tag):
    ins.wr = set(ins.wr) | {tag}
    return ins


def dma(voff, srdn, soff, off, flags, tag):
    o = f" offset:{off}" if off else ""
    return tagged(I(f"buffer_load_dwordx4 {voff}, {srdn}, {soff} offen{o}{flags} lds", "vld", rd=[voff]), tag)


def hoist(ins):
    ins.note = "hoist"
    return ins


def space(n):
    return [I("", "space") for _ in range(n)]


def insert_at(stream, frac, items, ok):
    i = int(len(stream) * frac)
    while 0 < i < len(stream) and not ok(stream[i - 1]):
        i += 1
    return stream[:i] + items + stream[i:]


class Main:
    def __init__(self, o):
        self.o = o
        self.sX, self.sW, self.sO, self.sB = "s[8:11]", "s[12:15]", "s[16:19]", "s[20:23]"
        self.sE, self.sR, self.sD = "s[32:35]", "s[40:43]", "s[44:47]"
        self.sC, self.sFm, self.sFp = "s[56:59]", "s[60:63]", "s[64:67]"
        self.sWoff, self.sL, self.sMask, self.sNeed = "s24", "s25", "s26", "s27"
        self.sRow, self.sXs, self.sXl, self.sFlag = "s28", "s29", "s30", "s31"
        self.sRaw, self.sDst, self.sLds, self.sBias, self.sStage, self.sSpin, self.sWave, self.sPNeed = (
            "s48", "s49", "s50", "s51", "s52", "s53", "s54", "s55")
        self.vW, self.vXw, self.vB = "v0", "v3", "v4"
        self.vXr = ["v1", "v2"]
        self.vL = "v1"
        self.t = ["v5", "v6", "v7"]
        self.Q = [8, 12]
        self.vP, self.vG = "v16", "v17"
        self.vS = ["v18", "v19"]
        self.RQ = [20, 24]
        self.NS = o.slots
        self.aX0 = 0
        self.aXF = 128
        self.aW = 192
        self.aACC = self.aW + 8 * self.NS
        self.nA = 256 - self.aACC
        self.vACC = self.nA
        NS = self.NS
        nshort = (-128) % NS
        nlong = (128 - nshort * (NS - 1)) // NS
        first = min(nlong, o.short_at // NS)
        seq = list(range(NS)) * first + list(range(NS - 1)) * nshort + list(range(NS)) * (nlong - first)
        assert len(seq) == 128
        self.slot = seq
        site = {}
        for s2 in range(-128, 256):
            p = s2 - 1
            while seq[p % 128] != seq[s2 % 128]:
                p -= 1
            site[s2] = max(p, site.get(s2 - 1, -10 ** 9))
        self.site = site
        self.loads_at = {}
        for s2 in range(0, 256):
            self.loads_at.setdefault(site[s2], []).append(s2)
        self.small = self.vACC < 28
        if self.small:
            self.vP = self.vB
            q0 = [int(self.acc_tile(nt, 0, 0, 1)[1:]) for nt in range(4)]
            self.vG, self.vS, self.RQ = f"v{q0[0]}", [f"v{q0[0] + 1}", f"v{q0[0] + 2}"], [q0[1], q0[2]]
        self.stampn = 0
        self.names = []
        self.ool = []

    def acc(self, p, i, n=1):
        h = self.nA // 2
        nv = 128 - h
        if i < nv:
            assert i + n <= nv
            return R("v", self.vACC + p * nv + i, n)
        return R("a", self.aACC + p * h + (i - nv), n)

    def acc_tile(self, nt, bt, r=0, n=4):
        return self.acc(nt >> 2, ((nt & 3) * 8 + bt) * 4 + r, n)

    def x0reg(self, kbl, bt, j=0, n=4):
        return R("a", self.aX0 + (kbl * 8 + bt) * 4 + j, n)

    def xf(self, bt, c):
        return R("a", self.aXF + (bt * 2 + c) * 4, 4)

    def wslot(self, s, c):
        return R("a", self.aW + (self.slot[s % 128] * 2 + c) * 4, 4)

    def wload(self, s, c, dst=None):
        if self.o.gload:
            d = dst or self.wslot(s, c)
            off = (s & 3) * 2048 + c * 1024 - 4096
            return I(f"global_load_dwordx4 {d}, {self.vW}, s[70:71] offset:{off}{self.o.wflags}", "vld",
                     rd=[self.vW, "s[70:71]"], wr=[d])
        return bload(dst or self.wslot(s, c), self.vW, self.sW, self.sWoff, (s & 1) * 2048 + c * 1024, flags=self.o.wflags)

    def wstep(self, s):
        if self.o.gload:
            if (s & 3) != 3:
                return []
            d = 8192 if (s % 128) != 127 else 8192 + 2 * MB - 256 * 1024
            both = I(f"s_add_u32 s70, s70, {d}\n s_addc_u32 s71, s71, 0", "salu", rd=["s[70:71]"], wr=["s[70:71]"])
            both.states = 2
            return [both]
        if not s & 1:
            return []
        return [salu("s_add_u32", self.sWoff, self.sWoff, 4096 if (s % 128) != 127 else 4096 + 2 * MB - 256 * 1024)]

    def xread(self, bt, c, rho, ss):
        return dsread(self.xf(bt, c), self.vXr[ss >> 1], (ss & 1) * 32768 + bt * 4096 + rho * 2048 + c * 1024)

    def stamp(self, name="x"):
        if not self.o.stamps:
            return []
        if self.o.pstamps and name in ("kernarg", "stores_issued", "signalled", "x0_issued", "x0_part", "flag_seen"):
            return []
        n = self.stampn
        self.stampn += 1
        self.names.append(name)
        assert n < 15
        return [raw(f"s_memtime s[{72 + 2 * n}:{73 + 2 * n}]", "other")]

    def lstamp(self, name, lval):
        if not self.o.pstamps:
            return []
        n = self.stampn
        return [raw(f"s_cmp_eq_u32 s25, {lval}"), raw(f"s_cbranch_scc0 Lns{n}")] + self.stamp(name) + [Label(f"Lns{n}")]

    def epi_unit(self, kbl, bt, q, pk=False):
        s = []
        accs = [self.acc_tile(2 * kbl + t, bt, r, 1) for t in range(2) for r in range(4)]
        hi, lo, m = self.t
        for j in range(4):
            a0, a1 = accs[2 * j], accs[2 * j + 1]
            if self.o.pkmul or pk:
                s.append(valu("v_accvgpr_read_b32", "v7", self.x0reg(kbl, bt, j, 1)))
                ap = f"v[{a0[1:]}:{a1[1:]}]"
                if a0[0] == "a":
                    tp = int(self.acc_tile(3, 0, 0, 1)[1:]) if pk else 28
                    s.append(valu("v_accvgpr_read_b32", f"v{tp}", a0))
                    s.append(valu("v_accvgpr_read_b32", f"v{tp + 1}", a1))
                    ap = R("v", tp, 2)
                s.append(valu("v_lshlrev_b32", "v6", 16, "v7"))
                s.append(valu("v_and_b32", "v7", self.sMask, "v7"))
                s.append(valu("v_pk_mul_f32", "v[6:7]", "v[6:7]", ap))
                s.append(valu("v_cvt_pk_bf16_f32", f"v{q + j}", "v6", "v7"))
                continue
            s.append(valu("v_accvgpr_read_b32", hi, self.x0reg(kbl, bt, j, 1)))
            if a0[0] == "a":
                s.append(valu("v_accvgpr_read_b32", m, a0))
                a0 = m
            s.append(valu("v_lshlrev_b32", lo, 16, hi))
            s.append(valu("v_and_b32", hi, self.sMask, hi))
            s.append(valu("v_mul_f32", lo, lo, a0))
            if a1[0] == "a":
                s.append(valu("v_accvgpr_read_b32", m, a1))
                a1 = m
            s.append(valu("v_mul_f32", hi, hi, a1))
            s.append(valu("v_cvt_pk_bf16_f32", f"v{q + j}", lo, hi))
        return s

    def xstore(self, src, p, u, tmp, state):
        if self.o.noxch:
            return []
        s = []
        off = p * 16384 + u * 1024
        if state.get("g") != off >> 12:
            state["g"] = off >> 12
            s.append(salu("s_add_u32", tmp, self.sXs, off & ~4095))
        s.append(tagged(bstore(src, self.vXw, self.sE, tmp, off & 4095, flags=self.o.xsflags), f"xs{p}"))
        return s

    def xnext(self, reg, back):
        n = self.o.xbufs
        if n == 1:
            return [salu("s_sub_u32", reg, reg, back)]
        if n == 2:
            return [salu("s_sub_u32", reg, reg, back), salu("s_xor_b32", reg, reg, hex(32 * MB))]
        return [salu("s_add_u32", reg, reg, hex(32 * MB - back))]

    def epi_stream(self, p, ndirect=16):
        s = []
        st = {}
        for bt in range(8):
            for c in range(2):
                q = self.Q[c]
                s += self.epi_unit(2 * p + c, bt, q)
                s.append(dswrite(self.vXw, R("v", q, 4), bt * 4096 + p * 2048 + c * 1024))
                if bt * 2 + c < ndirect:
                    s += self.xstore(R("v", q, 4), p, bt * 2 + c, "s68", st)
        return s

    def pub_stream(self, p, lo, hi):
        s = []
        st = {}
        if self.o.noxch or lo >= hi:
            return s
        assert not self.small

        def rd(u):
            return dsread(R("v", self.RQ[u & 1], 4), self.vXw, (u >> 1) * 4096 + p * 2048 + (u & 1) * 1024)

        s.append(rd(lo))
        s += space(6)
        for u in range(lo, hi):
            if u + 1 < hi:
                s.append(rd(u + 1))
            s.append(Wait(lg=[R("v", self.RQ[u & 1], 4)]))
            s += self.xstore(R("v", self.RQ[u & 1], 4), p, u, "s69", st)
        return s

    def x0pub_stream(self, p, lo=0, hi=16):
        s = []
        st = {}
        for u in range(lo, hi):
            s += self.xstore(self.x0reg(2 * p + (u & 1), u >> 1), p, u, "s68", st)
        return s

    def xch_dma(self, p):
        if self.o.gather:
            return self.xch_dma_g(p)
        s = [raw(f"s_add_u32 m0, {self.sLds}, {p * 2048}", "salu", rd=[self.sLds])] + space(1)
        for bt in range(8):
            for c in range(2):
                if not self.o.noxch:
                    s.append(dma(self.vXw, self.sE, self.sXl, c * 1024, self.o.xlflags, f"xl{p}"))
            if bt < 7:
                s.append(raw("s_add_u32 m0, m0, 4096", "salu"))
            if bt == 7 and p == 1:
                s += self.xnext(self.sXl, 15 * 2048)
            else:
                s.append(salu("s_add_u32", self.sXl, self.sXl, 2048))
        return s

    def xch_dma_g(self, p):
        t0, t1 = self.t[0], self.t[1]
        vL = self.vL
        self.ool += [Label(f"Lgat{p}"),
                     raw(f"v_and_b32 {t0}, 0xf0, {vL}"), raw(f"v_lshrrev_b32 {t1}, 4, {vL}"),
                     raw(f"v_and_b32 {t1}, 0x30, {t1}"), raw(f"v_lshl_add_u32 {t1}, {t0}, 7, {t1}"),
                     raw(f"s_branch Lgatr{p}")]
        sel = I(f"v_mov_b32 {t1}, {self.vXw}\n s_cmp_eq_u32 {self.sL}, 0\n s_cbranch_scc1 Lgat{p}\nLgatr{p}:", "valu",
                rd=[self.vXw], wr=[t0, t1])
        s = [sel, raw(f"s_add_u32 m0, {self.sLds}, {p * 2048}", "salu", rd=[self.sLds])] + space(1)
        for bt in range(8):
            for c in range(2):
                if not self.o.noxch:
                    s.append(dma(t1, self.sX, self.sXl, 0, self.o.xlflags, f"xl{p}"))
                s.append(raw(f"s_add_u32 m0, m0, {1024 if c == 0 else 3072}", "salu"))
                s.append(salu("s_add_u32", self.sXl, self.sXl, "s20" if c == 0 else "s21" if bt < 7 else "s22"))
            if bt < 7:
                s += space(self.o.dmapair)
        return s

    def xch_switch(self):
        return [salu("s_mov_b32", "s8", "s32"), salu("s_mov_b32", "s9", "s33"), salu("s_mov_b32", "s10", "s34"),
                salu("s_mov_b32", "s20", 1024), salu("s_mov_b32", "s21", 1024), salu("s_mov_b32", "s22", 1024),
                salu("s_xor_b32", self.sXl, self.sXs, 1 << 17)]

    def calc_vG(self, vG):
        t0, t1 = self.t[0], self.t[1]
        return [valu("v_lshrrev_b32", t0, 7, self.vL), valu("v_lshlrev_b32", t1, 4, t0),
                valu("v_xor_b32", t1, t1, self.vL), valu("v_and_b32", t1, 0x70, t1),
                valu("v_lshl_add_u32", vG, t0, 11, t1)]

    def calc_vS(self, vS):
        t0, t1 = self.t[0], self.t[1]
        vL = self.vL
        return [valu("v_lshrrev_b32", t0, 4, vL), valu("v_and_b32", t0, 0x30, t0), valu("v_xor_b32", t0, t0, vL),
                valu("v_and_b32", t0, 0x70, t0), valu("v_and_b32", t1, 0xf0, vL),
                valu("v_lshl_add_u32", t0, t1, 3, t0), valu("v_add_u32", vS[0], self.sLds, t0),
                valu("v_xor_b32", vS[1], 64, vS[0])]

    def out_setup(self):
        return self.calc_vG(self.vG) + self.calc_vS(self.vS)

    def x0h_dma(self, p, lo, hi, vG):
        r = []
        for i in range(lo, hi):
            r.append(raw(f"s_add_u32 m0, {self.sLds}, {(i >> 1) * 4096 + p * 2048 + (i & 1) * 1024}", "salu"))
            r.append(salu("s_add_u32", "s3", self.sRow, i * 16384 + p * 128))
            r.append(dma(vG, self.sX, "s3", 0, self.o.xflags, f"x0_{p}_{i >> 1}"))
        return r

    def x0h_read(self, p, bt, vS):
        return [Wait(vm=[f"x0_{p}_{bt}"])] + [dsread(self.x0reg(2 * p + c, bt), vS[c], bt * 4096 + p * 2048)
                                              for c in range(2)]

    def x0h_write(self, p, bt):
        return [Wait(lg=[self.x0reg(2 * p + c, bt) for c in range(2)])] + [
            dswrite(self.vXw, self.x0reg(2 * p + c, bt), bt * 4096 + p * 2048 + c * 1024) for c in range(2)]

    def wreg0(self, s, c):
        if s < 16 - self.NS:
            return self.acc(1, (s * 2 + c) * 4, 4)
        return self.wslot(s, c)

    def out_stream(self, p):
        s = []
        pend = []
        for bt in range(8):
            for c in range(2):
                q = self.Q[c]
                u = self.epi_unit(2 * p + c, bt, q, pk=(p == 1 and self.o.tailpk))
                if c == 0 and pend:
                    u = u[:12] + pend + u[12:]
                    pend = []
                s += u
                if p == 0 and bt == 0 and c == 0:
                    s += self.out_setup()
                s.append(dswrite(self.vS[c], R("v", q, 4), bt * 4096))
            for i in range(2):
                s.append(dsread(R("v", self.RQ[i], 4), self.vXw, bt * 4096 + i * 1024))
            for i in range(2):
                pend.append(Wait(lg=[R("v", self.RQ[i], 4)]))
                pend.append(salu("s_add_u32", "s3", self.sRow, bt * 32768 + i * 16384))
                pend.append(bstore(R("v", self.RQ[i], 4), self.vG, self.sO, "s3", p * 128, flags=self.o.oflags))
        return s + pend

    def calc_vB(self):
        return [valu("v_lshrrev_b32", self.vB, 8, self.vL),
                valu("v_lshl_add_u32", self.vB, self.vB, 5, self.sBias)]

    def bias_stream(self, p):
        s = []

        def rd(nt):
            return dsread(R("v", self.Q[nt & 1], 4), self.vB, (nt >> 1) * 128 + (nt & 1) * 16)

        s.append(rd(4 * p))
        s += space(8)
        for nt in range(4 * p, 4 * p + 4):
            q = self.Q[nt & 1]
            cnt = 0
            for bt in range(8):
                for r in range(4):
                    if cnt == 0:
                        s.append(Wait(lg=[R("v", q, 4)]))
                    a = self.acc_tile(nt, bt, r, 1)
                    if self.o.pkadd and a[0] == "v":
                        if not r & 1:
                            ap = self.acc_tile(nt, bt, r, 2)
                            s.append(valu("v_pk_add_f32", ap, ap, R("v", q + r, 2)))
                    elif a[0] == "a":
                        t = self.t[cnt & 1]
                        s.append(valu("v_accvgpr_read_b32", t, a))
                        s.append(valu("v_add_f32", t, t, f"v{q + r}"))
                        s.append(valu("v_accvgpr_write_b32", a, t))
                    else:
                        s.append(valu("v_add_f32", a, a, f"v{q + r}"))
                    cnt += 1
                    if cnt == 1 and nt + 1 < 4 * p + 4:
                        s.append(rd(nt + 1))
        return s

    def prep_load(self):
        t0, t1 = self.t[0], self.t[1]
        s = [valu("v_lshrrev_b32", t0, 6, self.vL),
             valu("v_and_b32", t1, 48, self.vL),
             valu("v_lshl_add_u32", t0, t0, 11, t1),
             raw(f"s_mov_b32 m0, {self.sStage}", "salu", rd=[self.sStage]),
             salu("s_add_u32", "s3", self.sRaw, 32768 - 1024)]
        s.append(dma(t0, self.sR, self.sRaw, 0, self.o.rflags, "raw"))
        s.append(dma(t0, self.sR, "s3", 1024, self.o.rflags, "raw"))
        s.append(salu("s_add_u32", self.sRaw, self.sRaw, D * D * 2))
        return s

    def prep_store(self, sp=0):
        t0 = self.t[0]
        s = [valu("v_and_b32", t0, 0x300, self.vL),
             valu("v_add3_u32", t0, t0, self.vL, self.sStage),
             Wait(vm=["raw"])]
        for t in range(2):
            for h in range(2):
                s.append(I(f"ds_read_b64_tr_b16 {R('v', self.Q[t] + 2 * h, 2)}, {t0} offset:{h * 256 + t * 8}", "dsr",
                           rd=[t0], wr=[R("v", self.Q[t] + 2 * h, 2)]))
        s += space(sp)
        for t in range(2):
            s.append(Wait(lg=[R("v", self.Q[t], 4)]))
            s.append(tagged(bstore(R("v", self.Q[t], 4), self.vL, self.sW, self.sDst, t * 2048, flags=" sc1"), "pst"))
        s.append(salu("s_add_u32", self.sDst, self.sDst, D * D * 2))
        return s

    def wsignal(self):
        t = self.t[2]
        return [valu("v_mov_b32", t, 1),
                I(f"buffer_atomic_add {t}, {self.vW}, {self.sC}, 0 offen sc1", "vst", rd=[t, self.vW])]

    def psignal(self, p):
        t = self.t[2]
        return [salu("s_add_u32", self.sFlag, self.sFlag, 1), Wait(vm=[f"xs{p}"]),
                valu("v_mov_b32", t, self.sFlag),
                bstore(t, self.vL, self.sFm, 0, w="dword", flags=" sc1")]

    def wpoll_load(self):
        v = self.vP
        return [valu("v_lshlrev_b32", v, 2, self.vL), valu("v_and_b32", v, 0xc0, v),
                bload(v, v, self.sD, 0, w="dword", flags=" sc1")]

    def ppoll_load(self):
        return [I(f"buffer_load_dword {self.vP}, off, {self.sFp}, 0 sc1", "vld", wr=[self.vP])]

    def poll_check(self, name, need, inc, loader):
        v = self.vP
        spin = [Label(f"Lspin_{name}"), raw(f"s_add_u32 {self.sSpin}, {self.sSpin}, 1")]
        if self.o.backoff:
            spin.append(raw(f"s_sleep {self.o.backoff}"))
        spin += [raw(x.text) for x in loader()]
        spin += [raw(f"s_cmp_ge_u32 {self.sSpin}, 0x100000"),
                 raw(f"s_cbranch_scc1 Lgiveup_{name}"),
                 raw("s_waitcnt vmcnt(0)"),
                 raw(f"v_cmp_gt_i32 vcc, {need}, {v}"),
                 raw(f"s_cbranch_vccnz Lspin_{name}"),
                 Label(f"Lgiveup_{name}"),
                 raw("s_waitcnt vmcnt(0)"),
                 raw(f"s_branch Lok_{name}")]
        self.ool += spin
        return [Wait(vm=[v]), I(f"v_cmp_gt_i32 vcc, {need}, {v}", "valu", rd=[v, need]),
                raw(f"s_cbranch_vccnz Lspin_{name}", "branch"), Label(f"Lok_{name}"),
                salu("s_add_u32", need, need, inc)]

    def phase(self, s0, nts, rho, next_rho, stream=(), bar=False, last=False, start=0, end=None, pre_bar=(),
              fixed=(), extra=(), wreg=None, skip_below=0):
        o = self.o
        NS = self.NS
        NT = len(nts)
        L = NT * 16
        mf = []
        gaps = [[] for _ in range(4 * L)]
        fwd = list(range(8))
        wreg = wreg or self.wslot
        for ss in range(4):
            base = ss * L
            for k, nt in enumerate(nts):
                s = s0 + ss * NT + k
                order = fwd if ((ss + k) & 1) == 0 else fwd[::-1]
                for j, bt in enumerate(order):
                    for i in range(2):
                        c = i ^ (j & 1)
                        mf.append(mfma(16, self.acc_tile(nt, bt), wreg(s, c), self.xf(bt, c)))
                g = base + k * 16
                at = self.loads_at.get(s, [])
                for n, sn in enumerate(at):
                    if (last and sn >= 128) or o.now or sn < skip_below:
                        continue
                    ga, gb, gc = g + (14 if n == 0 else 15), g + 15, g + 18
                    if o.wdelay and g + 16 < 4 * L and (o.wdelay == 2 or k == NT - 1):
                        ga, gb, gc = g + 17 + 4 * n, g + 19 + 4 * n, g + 20 + 4 * n
                    elif o.wdelay and g + 16 < 4 * L and len(at) == 1:
                        gb, gc = g + 17, g + 19
                    elif not (g + 18 < 4 * L and n == len(at) - 1):
                        gc = g + 15
                    gaps[ga].append(hoist(self.wload(sn, 1)))
                    gaps[gb].append(hoist(self.wload(sn, 0)))
                    gaps[gc] += self.wstep(sn)
                if k < NT - 1:
                    gaps[g + 15].append(Wait(vm=[wreg(s + 1, 0), wreg(s + 1, 1)]))
                if k == 0:
                    for j in range(o.xw, 8, o.xw):
                        gaps[g + 2 * j - 1].append(
                            Wait(lg=[self.xf(order[jj], c) for jj in range(j, min(8, j + o.xw)) for c in range(2)]))
            nrho, nss = (rho, ss + 1) if ss < 3 else (next_rho, 0)
            gl = base + L - 16
            if ss == 3 and bar:
                gaps[gl - o.bar_lead] += list(pre_bar) + [Wait(all_lg=True), barrier()]
            if nrho is not None:
                for j, bt in enumerate(order):
                    for i in range(2):
                        c = i ^ (j & 1)
                        gaps[gl + 2 * j + i].append(hoist(self.xread(bt, c, nrho, nss)))
                s = s0 + (ss + 1) * NT
                gaps[base + L - 1].append(Wait(vm=[wreg(s, 0), wreg(s, 1)],
                                               lg=[self.xf(order[jj], c) for jj in range(o.xw) for c in range(2)]))
        for gi, inss in fixed:
            gaps[gi] += inss
        hi = end if end is not None else (4 * L - 16 - o.bar_lead if bar else 4 * L - 1)
        for st, lo2, hi2 in extra:
            self.place(gaps, list(st), lo2, hi2)
        self.place(gaps, list(stream), start, hi)
        out = []
        for i, m in enumerate(mf):
            out.append(m)
            gaps[i] = self.merge([], gaps[i])
            out += gaps[i]
        if o.verbose:
            print(f"; phase s0={s0} mfma={len(mf)} modelled excess={sum(self.gap_excess(g) for g in gaps)}", file=sys.stderr)
        return out

    @staticmethod
    def gap_excess(items):
        slots = 0
        ex = 0
        free = 2
        seenv = False
        for x in items:
            k = x.kind
            if k in ("valu", "nop"):
                slots += 1
                seenv = True
                continue
            if k in ("dsr", "vld", "dsw", "vst") and seenv:
                ex += 8
            if k == "dsr":
                slots += 1
            elif k == "vld":
                slots += 1 if x.text.startswith("global") else 2
            elif k == "dsw":
                ex += 12
                free -= 2
            elif k == "vst":
                ex += (20 if x.big else 4) + 4 * slots + (8 if free < 2 else 0)
                free = 4 if x.big else free - 1
            elif k == "barrier":
                ex += 24
        return ex + 4 * max(0, slots - max(free, 0))

    @staticmethod
    def merge(items, fixed):
        k = 0
        lead, rest = [], []
        stop = False
        for x in fixed:
            if not stop and x.kind in ("dsr", "vld") and getattr(x, "note", "") == "hoist":
                lead.append(x)
            else:
                rest.append(x)
                if x.kind not in ("wait",):
                    stop = True
        items = [x for x in items if x.kind != "space"]
        j = 0
        while j < len(items) and items[j].kind in ("salu", "wait"):
            j += 1
        if j < len(items) and items[j].kind == "vst":
            return items[:j + 1] + lead + items[j + 1:] + rest
        return lead + items + rest

    def place(self, gaps, stream, lo, hi):
        if not stream:
            return
        n, G = len(stream), hi - lo
        KMAX = 8
        INF = float("inf")
        dp = [INF] * (n + 1)
        dp[0] = 0.0
        back = []
        NG = len(gaps)
        cnt = lambda g, kind: sum(1 for x in gaps[g] if x.kind == kind) if g < NG else 0
        for g in range(G):
            fixed = gaps[lo + g]
            base = self.gap_excess(self.merge([], fixed))
            wpen = 7 * sum(cnt(lo + g + d, "dsr") for d in (1, 2, 3)) + 4 * cnt(lo + g, "dsr")
            spen = 12 * cnt(lo + g + 1, "vld") + 6 * cnt(lo + g, "vld") + 4 * cnt(lo + g + 2, "vld")
            nd = [INF] * (n + 1)
            bk = [0] * (n + 1)
            tgt = n * (g + 1) / G
            for i in range(n + 1):
                if dp[i] == INF:
                    continue
                for k in range(0, min(KMAX, n - i) + 1):
                    c = dp[i]
                    if k:
                        its = stream[i:i + k]
                        if k > 1 and its[-2].kind == "space":
                            break
                        c += self.gap_excess(self.merge(its, fixed)) - base
                        c += sum(wpen if x.kind == "dsw" else spen if x.kind == "vst" else 0 for x in its)
                    c += self.o.pace * ((i + k - tgt) / max(1.0, n / G)) ** 2 + 0.02 * k * k
                    if c < nd[i + k]:
                        nd[i + k] = c
                        bk[i + k] = k
            dp = nd
            back.append(bk)
        assert dp[n] < INF
        i = n
        for g in range(G - 1, -1, -1):
            k = back[g][i]
            gaps[lo + g] = self.merge(stream[i - k:i], gaps[lo + g])
            i -= k

    def prologue(self):
        o = self.o
        vL = self.vL
        b = []
        b.append(salu("s_cmp_ge_u32", "s2", 256))
        b.append(raw("s_cbranch_scc1 Lend", "branch"))
        b += self.stamp("start")
        if o.stamps:
            b.append(raw("s_memrealtime s[36:37]"))
        b += [sload("s[56:59]", 0, 4), sload("s[60:63]", 16, 4), sload("s[64:67]", 32, 4)]
        b.append(valu("v_lshrrev_b32", "v9", 6, "v0"))
        b.append(valu("v_and_b32", "v10", 63, "v0"))
        b.append(valu("v_readfirstlane_b32", self.sWave, "v9"))
        b.append(valu("v_lshlrev_b32", vL, 4, "v10"))
        if o.cpf:
            b.append(raw("s_getpc_b64 s[4:5]", "salu"))
            b.append(Label("Lpc"))
            b.append(valu("v_lshlrev_b32", "v11", 6, "v0"))
            for i in range(o.cpf):
                b.append(raw(f"v_min_u32 v12, Lend-Lpc, v11", "valu", rd=["v11"], wr=["v12"]))
                b.append(I(f"global_load_dword v{60 + i}, v12, s[4:5]", "vld", rd=["v12"], wr=[f"v{60 + i}"]))
                b.append(valu("v_add_u32", "v11", 16384, "v11"))
        b.append(valu("v_lshrrev_b32", "v11", 7, "v0"))
        b.append(valu("v_and_b32", "v12", 127, "v0"))
        b.append(valu("v_lshlrev_b32", "v12", 3, "v12"))
        b.append(valu("v_lshl_add_u32", "v30", "v11", 11, "v12"))
        b.append(valu("v_lshlrev_b32", "v31", 4, "v0"))
        b.append(valu("v_add_u32", "v31", LDS_BIAS, "v31"))
        b.append(valu("v_add_u32", self.vXr[1], 65536, vL))
        b.append(valu("v_lshl_add_u32", self.vXw, "v9", 15, vL))
        b.append(valu("v_lshl_add_u32", self.vW, "v9", 18, vL))
        b.append(valu("v_lshrrev_b32", "v11", 4, "v10"))
        b.append(valu("v_and_b32", "v12", 15, "v10"))
        b.append(valu("v_xor_b32", "v13", "v11", "v12"))
        b.append(valu("v_lshlrev_b32", "v13", 4, "v13"))
        b.append(valu("v_lshl_add_u32", "v20", "v11", 11, "v13"))
        for i in range(1, 4):
            b.append(valu("v_xor_b32", f"v{20 + i}", 64 * i, "v20"))
        b.append(valu("v_lshl_add_u32", "v24", "v12", 8, "v13"))
        b.append(valu("v_lshl_add_u32", "v24", "v9", 15, "v24"))
        for i in range(1, 4):
            b.append(valu("v_xor_b32", f"v{24 + i}", 64 * i, "v24"))
        b.append(salu("s_and_b32", "s7", "s2", 1))
        b.append(salu("s_lshr_b32", self.sRow, "s2", 1))
        b.append(salu("s_lshl_b32", self.sRow, self.sRow, 18))
        b.append(salu("s_lshl_b32", "s6", "s7", 10))
        b.append(salu("s_add_u32", self.sRow, self.sRow, "s6"))
        b.append(salu("s_lshl_b32", "s6", self.sWave, 8))
        b.append(salu("s_add_u32", self.sRow, self.sRow, "s6"))
        b.append(salu("s_mov_b32", self.sMask, "0xffff0000"))
        b.append(salu("s_lshl_b32", self.sWoff, "s7", 20))
        b.append(salu("s_mov_b32", self.sL, 0))
        b.append(salu("s_mov_b32", self.sSpin, 0))
        b.append(salu("s_mov_b32", self.sFlag, -1 if o.gather else 0))
        b.append(salu("s_mov_b32", self.sNeed, 64))
        b.append(salu("s_mov_b32", self.sPNeed, -1 if o.gather else 1))
        b.append(salu("s_lshl_b32", self.sLds, self.sWave, 15))
        b.append(salu("s_lshl_b32", self.sXs, "s2", 17))
        b.append(salu("s_add_u32", self.sXs, self.sXs, o.xbase * MB))
        b.append(salu("s_xor_b32", self.sXl, self.sXs, 1 << 17))
        b.append(salu("s_lshr_b32", "s4", "s2", 3))
        b.append(salu("s_and_b32", "s5", "s2", 7))
        b.append(salu("s_lshl_b32", self.sRaw, "s4", 16))
        b.append(salu("s_lshl_b32", "s6", "s5", 8))
        b.append(salu("s_add_u32", self.sRaw, self.sRaw, "s6"))
        b.append(salu("s_lshl_b32", "s6", self.sWave, 6))
        b.append(salu("s_add_u32", self.sRaw, self.sRaw, "s6"))
        b.append(salu("s_lshl_b32", self.sDst, "s5", 18))
        b.append(salu("s_and_b32", "s6", "s4", 1))
        b.append(salu("s_lshl_b32", "s6", "s6", 10))
        b.append(salu("s_add_u32", self.sDst, self.sDst, "s6"))
        b.append(salu("s_lshr_b32", "s6", "s4", 4))
        b.append(salu("s_lshr_b32", "s5", "s5", 2))
        b.append(salu("s_xor_b32", "s5", "s5", "s6"))
        b.append(salu("s_bfe_u32", "s6", "s4", "0x10001"))
        b.append(salu("s_lshl_b32", "s3", "s5", 1))
        b.append(salu("s_add_u32", "s3", "s3", "s6"))
        b.append(salu("s_lshl_b32", "s3", "s3", 16))
        b.append(salu("s_add_u32", self.sDst, self.sDst, "s3"))
        b.append(salu("s_bfe_u32", "s4", "s4", "0x20002"))
        b.append(salu("s_xor_b32", "s5", "s5", "s6"))
        b.append(salu("s_lshr_b32", "s3", self.sWave, 1))
        b.append(salu("s_lshl_b32", "s3", "s3", 4))
        b.append(salu("s_lshl_b32", "s6", "s4", 2))
        b.append(salu("s_add_u32", "s3", "s3", "s6"))
        b.append(salu("s_and_b32", "s6", self.sWave, 1))
        b.append(salu("s_lshl_b32", "s6", "s6", 1))
        b.append(salu("s_add_u32", "s3", "s3", "s6"))
        b.append(salu("s_lshl_b32", "s4", "s4", 3))
        b.append(salu("s_lshl_b32", "s6", self.sWave, 1))
        b.append(salu("s_add_u32", "s4", "s4", "s6"))
        b.append(salu("s_cmp_eq_u32", "s5", 0))
        b.append(salu("s_cselect_b32", "s3", "s3", "s4"))
        b.append(salu("s_lshl_b32", "s3", "s3", 11))
        b.append(salu("s_add_u32", self.sDst, self.sDst, "s3"))
        b.append(salu("s_lshl_b32", self.sStage, self.sWave, 11))
        b.append(salu("s_add_u32", self.sStage, self.sStage, LDS_STAGE))
        b.append(salu("s_lshl_b32", self.sBias, self.sWave, 9))
        b.append(salu("s_add_u32", self.sBias, self.sBias, LDS_BIAS))
        b.append(Wait(all_lg=True))
        b += self.stamp("kernarg")
        b += srd(40, "s58", "s59", NL * D * D * 2)

        def only(ins, w0):
            n = self.nseg = getattr(self, "nseg", 0) + 1
            for x in ins:
                x.note = "gy" if w0 else "gx"
            return [salu("s_cmp_eq_u32", self.sWave, 0), raw(f"s_cbranch_scc{0 if w0 else 1} Lseg{n}", "branch")] + \
                ins + [Label(f"Lseg{n}")]

        if o.w0prep:
            t0, t1 = self.t[0], self.t[1]
            r = [valu("v_lshrrev_b32", t0, 6, vL), valu("v_and_b32", t1, 48, vL), valu("v_lshl_add_u32", t0, t0, 11, t1)]
            for q in range(4):
                r += [raw(f"s_mov_b32 m0, {LDS_STAGE + q * 2048}", "salu"), salu("s_add_u32", "s3", self.sRaw, q * 64),
                      dma(t0, self.sR, "s3", 0, o.rflags, f"raw{q}"),
                      salu("s_add_u32", "s3", self.sRaw, q * 64 + 32768 - 1024),
                      dma(t0, self.sR, "s3", 1024, o.rflags, f"raw{q}")]
            b += only(r, True)
            b.append(salu("s_add_u32", self.sRaw, self.sRaw, D * D * 2))
        else:
            b += self.prep_load()
        b += srd(20, "s60", "s61", NL * D * 2)
        tb = 32
        b.append(salu("s_lshl_b32", "s3", "s7", 10))
        for m in range(3):
            b.append(bload(R("v", tb + 2 * m, 2), "v30", self.sB, "s3", w="dwordx2"))
            b.append(salu("s_add_u32", "s3", "s3", 4096))
        b += srd(8, "s56", "s57", NB * D * 2)
        b += srd(16, "s62", "s63", NB * D * 2)
        b += srd(12, "s66", "s67", NL * D * D * 2)
        b += srd(32, "s66", "s67", 256 * MB)
        b += srd(44, "s64", "s65", 256)
        b += [salu("s_add_u32", self.sWoff, self.sWoff, 4096), salu("s_add_u32", "s70", "s66", self.sWoff),
              salu("s_addc_u32", "s71", "s67", 0), salu("s_sub_u32", self.sWoff, self.sWoff, 4096)]
        b.append(salu("s_and_b32", "s3", "s2", 3))
        b.append(salu("s_lshl_b32", "s3", "s3", 6))
        b += srd_off(56, "s44", "s45", "s3", 4)
        b.append(salu("s_lshl_b32", "s3", "s2", 2))
        b.append(salu("s_add_u32", "s3", "s3", self.sWave))
        b.append(salu("s_lshl_b32", "s3", "s3", 7))
        b.append(salu("s_add_u32", "s3", "s3", WS_FLAGS))
        b += srd_off(60, "s32", "s33", "s3", 4)
        b.append(salu("s_xor_b32", "s3", "s3", 512))
        b += srd_off(64, "s32", "s33", "s3", 4)
        if o.delay:
            for _ in range(o.delay):
                b.append(raw("s_sleep 127"))
        if o.touch:
            for l in range(6):
                b.append(salu("s_add_u32", "s3", self.sXs, l * 32 * MB))
                if o.touch == 1:
                    b.append(bload(f"v{60 + l}", self.vXw, self.sE, "s3", w="dword"))
                else:
                    b.append(bstore(f"v{60 + l}", self.vXw, self.sE, "s3", w="dword", flags=" sc1"))
            b.append(Wait(all_vm=True))
        def x0dma(lo, hi):
            r = []
            for i in range(lo, hi):
                r.append(raw(f"s_add_u32 m0, {self.sLds}, {i * 1024}", "salu"))
                r.append(salu("s_add_u32", "s3", self.sRow, i * 8192))
                r.append(dma(f"v{20 + (i & 3)}", self.sX, "s3", 0, o.xflags, f"x0_{i >> 2}"))
            return r

        def x0fix(bt):
            r = [Wait(vm=[f"x0_{bt}"])]
            for kbl in range(4):
                r.append(dsread(self.x0reg(kbl, bt), f"v{24 + kbl}", bt * 4096))
            r.append(Wait(all_lg=True))
            for kbl in range(4):
                r.append(dswrite(self.vXw, self.x0reg(kbl, bt), bt * 4096 + kbl * 1024))
            if o.apub:
                r += self.x0pub_stream(0, 2 * bt, 2 * bt + 2)
            return r

        def accinit(pred):
            r = []
            for p in range(2):
                for i in range(128):
                    a = self.acc(p, i)
                    if pred(a):
                        r.append(valu("v_accvgpr_write_b32" if a[0] == "a" else "v_mov_b32", a, "1.0"))
            return r

        if o.early == 1:
            return b + self.prologue_early(accinit, tb)
        late = lambda a: a[0] == "v" and 32 <= int(a[1:]) < 72
        final = lambda a: a[0] == "v" and int(a[1:]) < 32
        na, nb, ahead, npoll = o.x0split

        def biascvt():
            r = []
            for m in range(3):
                r.append(Wait(vm=[R("v", tb + 2 * m, 2)]))
                for j in range(2):
                    src = f"v{tb + 2 * m + j}"
                    r.append(valu("v_lshlrev_b32", f"v{40 + 4 * m + 2 * j}", 16, src))
                    r.append(valu("v_and_b32", f"v{41 + 4 * m + 2 * j}", self.sMask, src))
                r.append(dswrite("v31", R("v", 40 + 4 * m, 4), m * 4096))
            return r + [Wait(all_lg=True)]

        if o.w0prep:
            t0, t1, t2 = self.t
            r = [valu("v_lshlrev_b32", t1, 3, vL), valu("v_mov_b32", t2, 0), salu("s_mov_b32", "s62", 512),
                 tagged(bstore(t2, t1, self.sFm, 0, w="dword", flags=" sc1"), "pst"), salu("s_mov_b32", "s62", 4)]
            b += only(r, True)
            b += only(x0dma(0, nb), False)
            b += accinit(lambda a: not late(a) and not final(a))
            r = [valu("v_and_b32", t0, 0x300, vL), valu("v_add3_u32", t0, t0, vL, self.sStage)]
            qs = [8, 40, 48, 64]
            for q in range(4):
                r.append(Wait(vm=[f"raw{q}"]))
                for t in range(2):
                    for h in range(2):
                        d = R("v", qs[q] + 4 * t + 2 * h, 2)
                        r.append(I(f"ds_read_b64_tr_b16 {d}, {t0} offset:{q * 2048 + h * 256 + t * 8}", "dsr", rd=[t0], wr=[d]))
            for q in range(4):
                r += [salu("s_cmp_eq_u32", "s5", 0),
                      salu("s_cselect_b32", "s3", ((q >> 1) * 16 + 2 * (q & 1)) * 2048, "s6") if q > 1 else
                      salu("s_mov_b32", "s3", 2 * q * 2048),
                      salu("s_add_u32", "s3", "s3", self.sDst), salu("s_mov_b32", "s6", 2 * (q + 1) * 2048)]
                for t in range(2):
                    r.append(Wait(lg=[R("v", qs[q] + 4 * t, 4)]))
                    r.append(tagged(bstore(R("v", qs[q] + 4 * t, 4), vL, self.sW, "s3", t * 2048, flags=" sc1"), "pst"))
            r += x0dma(0, na) + [Wait(vm=["pst"])] + self.wsignal() + x0dma(na, nb)
            b += only(r, True)
            b.append(salu("s_add_u32", self.sDst, self.sDst, D * D * 2))
            b += self.stamp("signalled")
            b += biascvt() + accinit(late)
        else:
            b.append(valu("v_mov_b32", self.t[2], 0))
            b.append(tagged(bstore(self.t[2], vL, self.sFm, 0, w="dword", flags=" sc1"), "pst"))
            b += x0dma(0, na)
            b += accinit(lambda a: not late(a) and not final(a))
            b += self.prep_store()
            b += self.stamp("stores_issued")
            b += x0dma(na, nb)
            b += biascvt() + accinit(late)
            b += [Wait(vm=["pst"]), barrier()] + self.wsignal()
            b += self.stamp("signalled")
        def wring():
            r = []
            for s in [x for x in range(128) if self.site[x] < 0]:
                r += [self.wload(s, 1), self.wload(s, 0)] + self.wstep(s)
            return r

        def path(name, nb2, npoll, stamps):
            st = self.stamp if stamps else (lambda n: [])
            r = x0dma(nb, nb2)
            issued = max(nb, nb2)
            checked = False
            poll_before = None
            for bt in range(8):
                want = min(32, 4 * (bt + 1 + ahead))
                if bt == npoll:
                    r += self.wpoll_load()
                    poll_before = (issued + 3) // 4 if npoll else 0
                if want > issued and (npoll or checked):
                    r += x0dma(issued, want)
                    issued = want
                if poll_before is not None and not checked and bt >= poll_before:
                    r += st("x0_part")
                    r += self.poll_check(name, self.sNeed, 64, self.wpoll_load)
                    r += st("flag_seen")
                    checked = True
                    if npoll:
                        r += x0dma(issued, 32) + wring()
                        issued = 32
                    else:
                        r += wring() + x0dma(issued, want)
                        issued = max(issued, want)
                r += x0fix(bt)
            assert checked and issued == 32
            return r

        if o.stagger < 0:
            b += path("pro", nb, npoll, True)
        else:
            px = path("prox", nb, npoll, True)
            n0 = self.stampn
            self.stampn -= 2 if o.stamps and not o.pstamps else 0
            self.names = self.names[:self.stampn]
            py = path("proy", o.ynb, 0, True)
            assert self.stampn == n0
            for x in px:
                x.note = "gx"
            for x in py:
                x.note = "gy"
            b += [salu("s_bitcmp1_b32", "s2", o.stagger), raw("s_cbranch_scc1 Lgy", "branch")]
            b += px + [raw("s_branch Lgjoin", "branch"), Label("Lgy")] + py + [Label("Lgjoin")]
        b += accinit(final)
        if o.gather:
            b += [salu("s_xor_b32", self.sXl, self.sRow, 1024), salu("s_mov_b32", "s20", 64),
                  salu("s_mov_b32", "s21", 32768 - 64), salu("s_mov_b32", "s22", hex((128 - 64 - 7 * 32768) & 0xffffffff))]
        b += [Wait(all_lg=True), barrier()]
        for j in range(8):
            for i in range(2):
                b.append(self.xread(j, i ^ (j & 1), 0, 0))
        b.append(Wait(lg=[self.xf(j, c) for j in range(o.xw) for c in range(2)], vm=[self.wslot(0, 0), self.wslot(0, 1)]))
        if o.desync:
            b += [raw("s_lshr_b32 s3, s2, 1"), raw("s_and_b32 s3, s3, 15"), Label("Lds"), raw(f"s_sleep {o.desync}"),
                  raw("s_sub_u32 s3, s3, 1"), raw("s_cbranch_scc0 Lds")]
        b += self.stamp("pro_done")
        return b

    def prologue_early(self, accinit, tb):
        o = self.o
        vL = self.vL
        b = []
        vG, vS = "v20", ["v21", "v22"]
        wbuf = set(r for s in range(16 - self.NS) for c in range(2) for r in regs(self.wreg0(s, c)))
        late = lambda a: a[0] == "v" and 32 <= int(a[1:]) < 64
        final = lambda a: a[0] == "v" and int(a[1:]) < 32
        na, nb, npoll, nB0 = o.x0split
        b.append(valu("v_mov_b32", self.t[2], 0))
        b.append(tagged(bstore(self.t[2], vL, self.sFm, 0, w="dword", flags=" sc1"), "pst"))
        b += self.calc_vG(vG) + self.calc_vS(vS)
        b += self.x0h_dma(0, 0, na, vG)
        b += accinit(lambda a: not late(a) and not final(a) and a not in wbuf)
        b += self.prep_store()
        b += self.stamp("stores_issued")
        b += self.x0h_dma(0, na, nb, vG)
        for m in range(3):
            b.append(Wait(vm=[R("v", tb + 2 * m, 2)]))
            for j in range(2):
                src = f"v{tb + 2 * m + j}"
                b.append(valu("v_lshlrev_b32", f"v{40 + 4 * m + 2 * j}", 16, src))
                b.append(valu("v_and_b32", f"v{41 + 4 * m + 2 * j}", self.sMask, src))
            b.append(dswrite("v31", R("v", 40 + 4 * m, 4), m * 4096))
        b.append(Wait(all_lg=True))
        b += accinit(late)
        b += [Wait(vm=["pst"]), barrier()] + self.wsignal()
        b += self.stamp("signalled")
        b += self.x0h_dma(0, nb, 16, vG)
        for bt in range(8):
            if bt == npoll:
                b += self.wpoll_load() + self.x0h_dma(1, 0, nB0, vG)
            b += self.x0h_read(0, bt, vS)
            if bt:
                b += self.x0h_write(0, bt - 1)
        if npoll >= 8:
            b += self.wpoll_load() + self.x0h_dma(1, 0, nB0, vG)
        b += self.x0h_write(0, 7)
        b += self.stamp("x0_part")
        b += [Wait(all_lg=True), barrier()]
        for j in range(8):
            for i in range(2):
                b.append(self.xread(j, i ^ (j & 1), 0, 0))
        b += self.poll_check("pro", self.sNeed, 64, self.wpoll_load)
        b += self.stamp("flag_seen")
        for s in range(16):
            b += [self.wload(s, 1, self.wreg0(s, 1)), self.wload(s, 0, self.wreg0(s, 0))]
            b += self.wstep(s)
        b += self.x0h_dma(1, nB0, max(nB0, o.nb_pro) if o.gather else 16, vG)
        b.append(valu("v_mov_b32", "v8", vG))
        b += accinit(final)
        if o.gather:
            b += [salu("s_xor_b32", self.sXl, self.sRow, 1024), salu("s_mov_b32", "s20", 64),
                  salu("s_mov_b32", "s21", 32768 - 64), salu("s_mov_b32", "s22", hex((128 - 64 - 7 * 32768) & 0xffffffff))]
        b.append(Wait(lg=[self.xf(j, c) for j in range(o.xw) for c in range(2)], vm=[self.wreg0(0, 0), self.wreg0(0, 1)]))
        b += self.stamp("pro_done")
        return b

    def build(self):
        o = self.o
        A, B, AB = [0, 1, 2, 3], [4, 5, 6, 7], list(range(8))
        e = (lambda s: []) if o.noepi else (lambda s: s)
        unit_end = lambda x: x.kind in ("vst", "dsw") and x.rd & {"v12"}
        safe_bias = lambda x: x.kind == "valu" and "add_f32" in x.text and not x.wr & set(self.t)
        pro = self.prologue()
        PL = o.pstamps - 1
        dA, dB = o.direct
        g0, g1, g2, g3 = o.sg
        ep = o.earlyprep
        if o.gather and o.early == 1:
            ini = []
            for s in range(16 - self.NS):
                ini.append(([valu("v_mov_b32", r, "1.0") for c in range(2) for r in regs(self.wreg0(s, c))],
                            16 * s + 18, 16 * s + 30))
            nB1 = o.x0split[3]
            late = self.x0h_dma(1, max(nB1, o.nb_pro), 16, "v8")
            s1a0 = self.phase(0, A, 0, 0, late, wreg=self.wreg0, skip_below=16, extra=ini, end=o.pub0_end)
            s1a0 += self.stamp("s1a0")
            vS = [f"v{self.Q[0]}", f"v{self.Q[0] + 1}"]
            fix = self.calc_vS(vS)
            for bt in range(8):
                fix += self.x0h_read(1, bt, vS) + space(3)
                if bt:
                    fix += self.x0h_write(1, bt - 1)
            fix += space(4) + self.x0h_write(1, 7)
            s1a0 += self.phase(16, B, 0, 1, fix + self.calc_vB() + e(self.bias_stream(0)), bar=True,
                               pre_bar=[salu("s_add_u32", self.sPNeed, self.sPNeed, 1)])
            s1a0 += self.stamp("s1b0")
        elif o.gather:
            assert not o.early
            s1a0 = self.phase(0, A, 0, 0, []) + self.stamp("s1a0")
        elif o.early == 2:
            s1a0 = self.phase(0, A, 0, 0, self.x0pub_stream(0), end=o.pub0_end) + self.stamp("s1a0")
            st = insert_at(self.calc_vB() + e(self.bias_stream(0)), o.sig0_at, self.psignal(0), safe_bias)
            st = insert_at(st, o.poll0_at, self.ppoll_load(), safe_bias)
            if o.wsig2:
                st = st + self.prep_load()
            s1a0 += self.phase(16, B, 0, 1, st, bar=True, extra=[(self.x0pub_stream(1), 0, 230)],
                               pre_bar=self.poll_check("pa0", self.sPNeed, 1, self.ppoll_load))
            s1a0 += self.stamp("s1b0")
        elif o.early:
            ini = []
            for s in range(16 - self.NS):
                ini.append(([valu("v_mov_b32", r, "1.0") for c in range(2) for r in regs(self.wreg0(s, c))],
                            16 * s + 18, 16 * s + 30))
            s1a0 = self.phase(0, A, 0, 0, self.x0pub_stream(0), wreg=self.wreg0, skip_below=16, extra=ini,
                              end=o.pub0_end) + self.stamp("s1a0")
            vS = [f"v{self.Q[0]}", f"v{self.Q[0] + 1}"]
            fix = self.calc_vS(vS)
            for bt in range(8):
                fix += self.x0h_read(1, bt, vS)
                if bt:
                    fix += self.x0h_write(1, bt - 1) + self.x0pub_stream(1, 2 * bt - 2, 2 * bt)
                if bt == 1:
                    fix += self.psignal(0)
            fix += self.x0h_write(1, 7) + self.x0pub_stream(1, 14, 16)
            st = insert_at(self.calc_vB() + e(self.bias_stream(0)), 0.6, self.ppoll_load(), safe_bias)
            s1a0 += self.phase(16, B, 0, 1, fix + st, bar=True,
                               pre_bar=self.poll_check("pa0", self.sPNeed, 1, self.ppoll_load))
            s1a0 += self.stamp("s1b0")
        else:
            s1a0 = self.phase(0, A, 0, 0, (self.prep_load() if ep else []) + self.x0pub_stream(0) +
                              self.x0pub_stream(1, 0, dB) + (self.psignal(0) if dA == 16 else [])) + self.stamp("s1a0")
        lp = o.lateprep
        st = (self.prep_store() if ep else [] if lp else self.prep_load()) + self.calc_vB() + e(self.bias_stream(0))
        if o.wsig2:
            st = st + self.prep_load()
        if dA < 16:
            st = insert_at(st, o.siga2_at, self.psignal(0), safe_bias)
        if dB == 16 and not o.early:
            st = insert_at(st, o.sigb_at, self.psignal(1), safe_bias)
        fx2 = [(o.pollb_gap, self.ppoll_load()), (1, self.xnext(self.sXs, 0))]
        if dB < 16 or o.early:
            fx2.append((g3, self.psignal(1)))
        if g0 < 0:
            st = insert_at(st, o.polla_at, self.ppoll_load(), safe_bias)
            pb1 = self.poll_check("pa", self.sPNeed, 1, self.ppoll_load)
            g1 = -1
        else:
            assert not o.early
            pb1 = []
            fx2 += [(g0, self.ppoll_load()), (g1, self.poll_check("pa", self.sPNeed, 1, self.ppoll_load))]
        if ep:
            pb1 = [Wait(vm=["pst"])] + pb1
            fx2.append((3, self.wsignal()))
        s1b = [Label("Ls1b")] + self.phase(16, B, 0, 1, st, bar=True, pre_bar=pb1,
                                            extra=[(self.pub_stream(1, dB, 16), 0, 232)])
        s2 = self.phase(32, AB, 1, 0, self.xch_dma(0) + ([] if ep or lp else self.prep_store()), bar=True, start=g1 + 1, end=g2, fixed=fx2,
                        extra=[(self.prep_store(10) if o.wsig2 else self.prep_load() if lp else [], lp, lp + (30 if o.wsig2 else 12))],
                        pre_bar=[Wait(vm=["xl0", "pst"] if o.wsig2 else ["xl0"])] + self.poll_check("pb", self.sPNeed, 1, self.ppoll_load))
        s3 = self.phase(64, AB, 0, 1, self.xch_dma(1), bar=True, end=o.dma_end, pre_bar=[Wait(vm=["xl1", "pst"])],
                        extra=[(self.wsignal(), 2, 6)] if o.wsig2 else
                        [(self.prep_store(10) if lp else [], o.preps_at, o.preps_at + 30)])
        s1b[1:1] = self.lstamp("pre", PL) if PL > 0 else []
        s1b += self.lstamp("s1b", PL)
        s2 += self.lstamp("s2", PL)
        s3 += self.lstamp("s3", PL)
        s4a = self.phase(96, A, 1, 1, ([] if ep or o.wsig2 else self.wsignal()) + (self.calc_vB() if self.small else []) + e(self.bias_stream(1)))
        if o.gather:
            s4a += self.xch_switch()
        s4a += self.lstamp("s4a", PL)
        s4a += [salu("s_add_u32", self.sBias, self.sBias, 2048), salu("s_add_u32", self.sL, self.sL, 1),
                salu("s_cmp_eq_u32", self.sL, NL), raw("s_cbranch_scc1 Llast", "branch")]
        st = insert_at(e(self.epi_stream(0, dA)), o.pollw_at, self.wpoll_load(), unit_end)
        chk = (self.site[128] - 112) * 16 + 2
        s4b = self.phase(112, B, 1, 0, st, bar=True,
                         fixed=[(chk, self.poll_check("w", self.sNeed, 64, self.wpoll_load))])
        s4b += self.lstamp("s4b", PL + 1)
        st = e(self.epi_stream(1, dB))
        if dA == 16:
            st = insert_at(st, o.siga_at, self.psignal(0), unit_end)
        if ep:
            st = insert_at(st, o.prepl_at, self.prep_load(), unit_end)
        s1a = self.phase(0, A, 0, 0, st, extra=[(self.pub_stream(0, dA, 16), 0, o.puba_end)])
        if o.stamps:
            s1a += [raw(f"s_cmp_eq_u32 s25, {max(1, o.pstamps)}"), raw("s_cbranch_scc0 Lnostamp")] + self.stamp("layer1") + [
                raw("s_memrealtime s[4:5]"), Label("Lnostamp")]
        if o.early:
            assert lp
            s2 = [Label("Lloop")] + s2
            s1b += [raw("s_branch Lloop", "branch")]
        else:
            s1a += [raw("s_branch Ls1b", "branch")]
        s4bl = [Label("Llast")] + self.stamp("4.75layers") + ([raw("s_memrealtime s[6:7]")] if o.stamps else [])
        s4bl += self.phase(112, B, 1, None, self.out_stream(0), last=True)
        tail = self.stamp("s4b_last") + [nop(7)] + [x for x in self.out_stream(1) if x.kind != "space"]
        if o.stamps:
            tail += self.stamp("tail_issued")
            tail += [Wait(all_vm=True)]
            tail += self.stamp("tail_drained")
            tail.append(raw("s_memrealtime s[38:39]"))
            tail.append(raw("s_waitcnt lgkmcnt(0)"))
            tail.append(raw("v_cmp_eq_u32 vcc, 0, v0"))
            tail.append(raw("s_and_saveexec_b64 s[68:69], vcc"))
            tail.append(raw("s_cbranch_execz Lend"))
            if o.dbgout >= 0:
                tail += [raw(f"s_cmp_lg_u32 s2, {o.dbgout}"), raw("s_cbranch_scc1 Lend"), raw("v_mov_b32 v1, 0")]
                tail += [raw("s_sub_u32 s3, s38, s36"), raw("v_mov_b32 v2, s3"),
                         raw("buffer_store_dword v2, v1, s[44:47], 0 offen offset:4"),
                         raw("s_sub_u32 s3, s6, s4"), raw("v_mov_b32 v2, s3"),
                         raw("buffer_store_dword v2, v1, s[44:47], 0 offen offset:8"),
                         raw("v_mov_b32 v2, s53"), raw("buffer_store_dword v2, v1, s[44:47], 0 offen offset:12")]
                for n in range(1, min(self.stampn, 13)):
                    tail += [raw(f"s_sub_u32 s3, s{72 + 2 * n}, s{70 + 2 * n}"), raw("v_mov_b32 v2, s3"),
                             raw(f"buffer_store_dword v2, v1, s[44:47], 0 offen offset:{12 + 4 * n}")]
            else:
                tail.append(raw("s_lshl_b32 s3, s2, 8"))
                tail.append(raw(f"s_add_u32 s3, s3, {WS_STAMP}"))
                tail.append(raw("v_mov_b32 v1, 0"))
                for n, i in enumerate(list(range(36, 40)) + list(range(72, 102)) + [4, 5, 6, 7, 53]):
                    tail.append(raw(f"v_mov_b32 v2, s{i}"))
                    tail.append(raw(f"buffer_store_dword v2, v1, s[32:35], s3 offen offset:{n * 4}"))
        tail += [Label("Lend"), raw("s_endpgm")]
        rest = s1a0 + ([] if o.early else s1b)
        for l in range(NL - 1):
            rest = rest + s2 + s3 + s4a + s4b + s1a + s1b
        rest = rest + s2 + s3 + s4a + s4bl + tail
        traces = [[x for x in pro if x.note != skip] + rest for skip in ("gx", "gy")]
        for tr in traces:
            resolve_waits(tr)
        for tr in traces:
            errs, mv, ml = check(tr)
            if errs and not o.now:
                for x in errs[:20]:
                    print(x, file=sys.stderr)
                raise SystemExit("hazard/dependency errors")
        if o.early:
            prog = pro + s1a0 + s2 + s3 + s4a + s4b + s1a + s1b + s4bl + tail + self.ool
        else:
            prog = pro + s1a0 + s1b + s2 + s3 + s4a + s4b + s1a + s4bl + tail + self.ool
        txt = f".globl {KNAME}\n.p2align 8\n.type {KNAME},@function\n{KNAME}:\n" + emit(prog) + "\n"
        txt = "; stamps: " + " ".join(self.names) + "\n" + txt
        return txt, kd(KNAME, 512, 102, 256)


def main():
    ap = argparse.ArgumentParser()
    ap.add_argument("-o", default="standalone__cross_network_dcn__recsys.s")
    ap.add_argument("--slots", type=int, default=6)
    ap.add_argument("--wflags", default="sc1")
    ap.add_argument("--xflags", default="")
    ap.add_argument("--oflags", default="nt")
    ap.add_argument("--rflags", default="")
    ap.add_argument("--xsflags", default="sc1")
    ap.add_argument("--xlflags", default="")
    ap.add_argument("--bar_lead", type=int, default=6)
    ap.add_argument("--xw", type=int, default=4)
    ap.add_argument("--x0split", type=int, nargs=4, default=[4, 8, 3, 3])
    ap.add_argument("--sigb_at", type=float, default=0.45)
    ap.add_argument("--polla_at", type=float, default=0.6)
    ap.add_argument("--siga_at", type=float, default=0.45)
    ap.add_argument("--pollw_at", type=float, default=0.3)
    ap.add_argument("--pollb_gap", type=int, default=386)
    ap.add_argument("--dma_end", type=int, default=400)
    ap.add_argument("--stamps", action="store_true")
    ap.add_argument("--backoff", type=int, default=0)
    ap.add_argument("--w0prep", type=int, default=0)
    ap.add_argument("--nb_pro", type=int, default=16, help="early mode: x0 B-half DMAs issued before the first MFMA")
    ap.add_argument("--dmapair", type=int, default=30)
    ap.add_argument("--dbgout", type=int, default=-1)
    ap.add_argument("--tailpk", type=int, default=1)
    ap.add_argument("--gather", type=int, default=1)
    ap.add_argument("--wsig2", type=int, default=0)
    ap.add_argument("--stagger", type=int, default=-1, help="workgroup-id bit selecting the late group")
    ap.add_argument("--ynb", type=int, default=4)
    ap.add_argument("--sig0_at", type=float, default=0.1)
    ap.add_argument("--poll0_at", type=float, default=0.7)
    ap.add_argument("--verbose", action="store_true")
    ap.add_argument("--gload", type=int, default=1)
    ap.add_argument("--pace", type=float, default=0.1)
    ap.add_argument("--early", type=int, default=0)
    ap.add_argument("--pub0_end", type=int, default=250)
    ap.add_argument("--earlyprep", type=int, default=0)
    ap.add_argument("--lateprep", type=int, default=400)
    ap.add_argument("--preps_at", type=int, default=330)
    ap.add_argument("--prepl_at", type=float, default=0.1)
    ap.add_argument("--wdelay", type=int, default=2)
    ap.add_argument("--short_at", type=int, default=72)
    ap.add_argument("--pkmul", type=int, default=0)
    ap.add_argument("--pkadd", type=int, default=0)
    ap.add_argument("--apub", type=int, default=0, help="publish x0's A half in the prologue")
    ap.add_argument("--cpf", type=int, default=4, help="code prefetch loads per wave (16 KB each)")
    ap.add_argument("--desync", type=int, default=0, help="diagnostic")
    ap.add_argument("--direct", type=int, nargs=2, default=[16, 16])
    ap.add_argument("--siga2_at", type=float, default=0.15)
    ap.add_argument("--puba_end", type=int, default=200)
    ap.add_argument("--sg", type=int, nargs=4, default=[-1, 0, 390, 82])
    ap.add_argument("--delay", type=int, default=0, help="diagnostic")
    ap.add_argument("--touch", type=int, default=0, help="diagnostic")
    ap.add_argument("--pstamps", type=int, default=0, help="phase stamps in layer N-1")
    ap.add_argument("--xbase", type=int, default=32)
    ap.add_argument("--xbufs", type=int, default=6)
    ap.add_argument("--now", action="store_true", help="diagnostic: no W loads in the loop")
    ap.add_argument("--noxch", action="store_true", help="diagnostic: no exchange traffic")
    ap.add_argument("--noepi", action="store_true", help="diagnostic: no epilogue/bias in the loop")
    o = ap.parse_args()
    for k in ("wflags", "xflags", "oflags", "rflags", "xsflags", "xlflags"):
        v = getattr(o, k)
        setattr(o, k, (" " + v.replace(",", " ")) if v and v != "none" else "")
    mtxt, mkd = Main(o).build()
    opts = " ".join(a for a in sys.argv[1:] if not a.endswith(".s") and a != "-o")
    s = HEADER.format(opts=opts)
    s += f"; @launch grid=(256,1,1) block=(256,1,1) lds={LDS_TOTAL}\n"
    s += '.amdgcn_target "amdgcn-amd-amdhsa--gfx950"\n.text\n'
    s += mtxt + mkd
    open(o.o, "w").write(s)
    print(o.o, len(s), "bytes")


if __name__ == "__main__":
    main()
```

```python
import argparse
import sys
from asmir import *

KNAME = "standalone__cross_network_dcn__recsys_kernel"
NL = 6
D = 1024
NB = 16384
MB = 1 << 20

HEADER = """; Kernarg layout for this problem (48 bytes, ptrs only, base s[0:1]):
;   offset  40: d_ws      268435456 bytes workspace
; Generated by gen/gen3.py (hand-written generator). Options: {opts}
"""

LDS_BIAS = 131072
LDS_STAGE = LDS_BIAS + NL * 512 * 4
LDS_TOTAL = LDS_STAGE + 8192
WS_FLAGS = 15 * MB
WS_XCH = 32 * MB
WS_STAMP = 16 * MB


def kd(name, vgpr, sgpr, accum):
    return f""".section .rodata,"a"
.p2align 6
.amdhsa_kernel {name}
  .amdhsa_next_free_vgpr {vgpr}
  .amdhsa_next_free_sgpr {sgpr}
  .amdhsa_accum_offset {accum}
  .amdhsa_group_segment_fixed_size 0
  .amdhsa_kernarg_size 48
  .amdhsa_user_sgpr_count 2
  .amdhsa_user_sgpr_kernarg_segment_ptr 1
  .amdhsa_system_sgpr_workgroup_id_x 1
  .amdhsa_float_denorm_mode_32 3
.end_amdhsa_kernel
"""


def srd(base, lo, hi, nbytes):
    return [salu("s_mov_b32", f"s{base}", lo), salu("s_mov_b32", f"s{base + 1}", hi),
            salu("s_mov_b32", f"s{base + 2}", hex(nbytes)), salu("s_mov_b32", f"s{base + 3}", "0x20000")]


def srd_off(base, lo, hi, off, nbytes):
    return [salu("s_add_u32", f"s{base}", lo, off), salu("s_addc_u32", f"s{base + 1}", hi, 0),
            salu("s_mov_b32", f"s{base + 2}", hex(nbytes)), salu("s_mov_b32", f"s{base + 3}", "0x20000")]


def sload(d, off, n=2):
    return I(f"s_load_dwordx{n} {d}, s[0:1], {off}", "smem", wr=[d])


def tagged(ins, tag):
    ins.wr = set(ins.wr) | {tag}
    return ins


def dma(voff, srdn, soff, off, flags, tag):
    o = f" offset:{off}" if off else ""
    return tagged(I(f"buffer_load_dwordx4 {voff}, {srdn}, {soff} offen{o}{flags} lds", "vld", rd=[voff]), tag)


def hoist(ins):
    ins.note = "hoist"
    return ins


def space(n):
    return [I("", "space") for _ in range(n)]


def insert_at(stream, frac, items, ok):
    i = int(len(stream) * frac)
    while 0 < i < len(stream) and not ok(stream[i - 1]):
        i += 1
    return stream[:i] + items + stream[i:]


class Main:
    def __init__(self, o):
        self.o = o
        self.sX, self.sW, self.sO, self.sB = "s[8:11]", "s[12:15]", "s[16:19]", "s[20:23]"
        self.sE, self.sR, self.sD = "s[32:35]", "s[40:43]", "s[44:47]"
        self.sC, self.sFm, self.sFp = "s[56:59]", "s[60:63]", "s[64:67]"
        self.sWoff, self.sL, self.sMask, self.sNeed = "s24", "s25", "s26", "s27"
        self.sRow, self.sXs, self.sXl, self.sFlag = "s28", "s29", "s30", "s31"
        self.sRaw, self.sDst, self.sLds, self.sBias, self.sStage, self.sSpin, self.sWave, self.sPNeed = (
            "s48", "s49", "s50", "s51", "s52", "s53", "s54", "s55")
        self.vW, self.vXw, self.vB = "v0", "v3", "v4"
        self.vXr = ["v1", "v2"]
        self.vL = "v1"
        self.t = ["v5", "v6", "v7"]
        self.Q = [8, 12]
        self.vP, self.vG = "v16", "v17"
        self.vS = ["v18", "v19"]
        self.RQ = [20, 24]
        self.NS = o.slots
        self.aX0 = 0
        self.aXF = 128
        self.aW = 192
        self.aACC = self.aW + 8 * self.NS
        self.nA = 256 - self.aACC
        self.vACC = self.nA
        NS = self.NS
        nshort = (-128) % NS
        nlong = (128 - nshort * (NS - 1)) // NS
        first = min(nlong, o.short_at // NS)
        seq = list(range(NS)) * first + list(range(NS - 1)) * nshort + list(range(NS)) * (nlong - first)
        assert len(seq) == 128
        self.slot = seq
        site = {}
        for s2 in range(-128, 256):
            p = s2 - 1
            while seq[p % 128] != seq[s2 % 128]:
                p -= 1
            site[s2] = max(p, site.get(s2 - 1, -10 ** 9))
        self.site = site
        self.loads_at = {}
        for s2 in range(0, 256):
            self.loads_at.setdefault(site[s2], []).append(s2)
        self.small = self.vACC < 28
        if self.small:
            self.vP = self.vB
            q0 = [int(self.acc_tile(nt, 0, 0, 1)[1:]) for nt in range(4)]
            self.vG, self.vS, self.RQ = f"v{q0[0]}", [f"v{q0[0] + 1}", f"v{q0[0] + 2}"], [q0[1], q0[2]]
        self.stampn = 0
        self.names = []
        self.ool = []

    def acc(self, p, i, n=1):
        h = self.nA // 2
        nv = 128 - h
        if i < nv:
            assert i + n <= nv
            return R("v", self.vACC + p * nv + i, n)
        return R("a", self.aACC + p * h + (i - nv), n)

    def acc_tile(self, nt, bt, r=0, n=4):
        return self.acc(nt >> 2, ((nt & 3) * 8 + bt) * 4 + r, n)

    def x0reg(self, kbl, bt, j=0, n=4):
        return R("a", self.aX0 + (kbl * 8 + bt) * 4 + j, n)

    def xf(self, bt, c):
        return R("a", self.aXF + (bt * 2 + c) * 4, 4)

    def wslot(self, s, c):
        return R("a", self.aW + (self.slot[s % 128] * 2 + c) * 4, 4)

    def wload(self, s, c, dst=None):
        if self.o.gload:
            d = dst or self.wslot(s, c)
            off = (s & 3) * 2048 + c * 1024 - 4096
            return I(f"global_load_dwordx4 {d}, {self.vW}, s[70:71] offset:{off}{self.o.wflags}", "vld",
                     rd=[self.vW, "s[70:71]"], wr=[d])
        return bload(dst or self.wslot(s, c), self.vW, self.sW, self.sWoff, (s & 1) * 2048 + c * 1024, flags=self.o.wflags)

    def wstep(self, s):
        if self.o.gload:
            if (s & 3) != 3:
                return []
            d = 8192 if (s % 128) != 127 else 8192 + 2 * MB - 256 * 1024
            both = I(f"s_add_u32 s70, s70, {d}\n s_addc_u32 s71, s71, 0", "salu", rd=["s[70:71]"], wr=["s[70:71]"])
            both.states = 2
            return [both]
        if not s & 1:
            return []
        return [salu("s_add_u32", self.sWoff, self.sWoff, 4096 if (s % 128) != 127 else 4096 + 2 * MB - 256 * 1024)]

    def xread(self, bt, c, rho, ss):
        return dsread(self.xf(bt, c), self.vXr[ss >> 1], (ss & 1) * 32768 + bt * 4096 + rho * 2048 + c * 1024)

    def stamp(self, name="x"):
        if not self.o.stamps:
            return []
        if self.o.pstamps and name in ("kernarg", "stores_issued", "signalled", "x0_issued", "x0_part", "flag_seen"):
            return []
        n = self.stampn
        self.stampn += 1
        self.names.append(name)
        assert n < 15
        return [raw(f"s_memtime s[{72 + 2 * n}:{73 + 2 * n}]", "other")]

    def lstamp(self, name, lval):
        if not self.o.pstamps:
            return []
        n = self.stampn
        return [raw(f"s_cmp_eq_u32 s25, {lval}"), raw(f"s_cbranch_scc0 Lns{n}")] + self.stamp(name) + [Label(f"Lns{n}")]

    def epi_unit(self, kbl, bt, q, pk=False):
        s = []
        accs = [self.acc_tile(2 * kbl + t, bt, r, 1) for t in range(2) for r in range(4)]
        hi, lo, m = self.t
        for j in range(4):
            a0, a1 = accs[2 * j], accs[2 * j + 1]
            if self.o.pkmul or pk:
                s.append(valu("v_accvgpr_read_b32", "v7", self.x0reg(kbl, bt, j, 1)))
                ap = f"v[{a0[1:]}:{a1[1:]}]"
                if a0[0] == "a":
                    tp = int(self.acc_tile(3, 0, 0, 1)[1:]) if pk else 28
                    s.append(valu("v_accvgpr_read_b32", f"v{tp}", a0))
                    s.append(valu("v_accvgpr_read_b32", f"v{tp + 1}", a1))
                    ap = R("v", tp, 2)
                s.append(valu("v_lshlrev_b32", "v6", 16, "v7"))
                s.append(valu("v_and_b32", "v7", self.sMask, "v7"))
                s.append(valu("v_pk_mul_f32", "v[6:7]", "v[6:7]", ap))
                s.append(valu("v_cvt_pk_bf16_f32", f"v{q + j}", "v6", "v7"))
                continue
            s.append(valu("v_accvgpr_read_b32", hi, self.x0reg(kbl, bt, j, 1)))
            if a0[0] == "a":
                s.append(valu("v_accvgpr_read_b32", m, a0))
                a0 = m
            s.append(valu("v_lshlrev_b32", lo, 16, hi))
            s.append(valu("v_and_b32", hi, self.sMask, hi))
            s.append(valu("v_mul_f32", lo, lo, a0))
            if a1[0] == "a":
                s.append(valu("v_accvgpr_read_b32", m, a1))
                a1 = m
            s.append(valu("v_mul_f32", hi, hi, a1))
            s.append(valu("v_cvt_pk_bf16_f32", f"v{q + j}", lo, hi))
        return s

    def xstore(self, src, p, u, tmp, state):
        if self.o.noxch:
            return []
        s = []
        off = p * 16384 + u * 1024
        if state.get("g") != off >> 12:
            state["g"] = off >> 12
            s.append(salu("s_add_u32", tmp, self.sXs, off & ~4095))
        s.append(tagged(bstore(src, self.vXw, self.sE, tmp, off & 4095, flags=self.o.xsflags), f"xs{p}"))
        return s

    def xnext(self, reg, back):
        n = self.o.xbufs
        if n == 1:
            return [salu("s_sub_u32", reg, reg, back)]
        if n == 2:
            return [salu("s_sub_u32", reg, reg, back), salu("s_xor_b32", reg, reg, hex(32 * MB))]
        return [salu("s_add_u32", reg, reg, hex(32 * MB - back))]

    def epi_stream(self, p, ndirect=16):
        s = []
        st = {}
        for bt in range(8):
            for c in range(2):
                q = self.Q[c]
                s += self.epi_unit(2 * p + c, bt, q)
                s.append(dswrite(self.vXw, R("v", q, 4), bt * 4096 + p * 2048 + c * 1024))
                if bt * 2 + c < ndirect:
                    s += self.xstore(R("v", q, 4), p, bt * 2 + c, "s68", st)
        return s

    def pub_stream(self, p, lo, hi):
        s = []
        st = {}
        if self.o.noxch or lo >= hi:
            return s
        assert not self.small

        def rd(u):
            return dsread(R("v", self.RQ[u & 1], 4), self.vXw, (u >> 1) * 4096 + p * 2048 + (u & 1) * 1024)

        s.append(rd(lo))
        s += space(6)
        for u in range(lo, hi):
            if u + 1 < hi:
                s.append(rd(u + 1))
            s.append(Wait(lg=[R("v", self.RQ[u & 1], 4)]))
            s += self.xstore(R("v", self.RQ[u & 1], 4), p, u, "s69", st)
        return s

    def x0pub_stream(self, p, lo=0, hi=16):
        s = []
        st = {}
        for u in range(lo, hi):
            s += self.xstore(self.x0reg(2 * p + (u & 1), u >> 1), p, u, "s68", st)
        return s

    def xch_dma(self, p):
        if self.o.gather:
            return self.xch_dma_g(p)
        s = [raw(f"s_add_u32 m0, {self.sLds}, {p * 2048}", "salu", rd=[self.sLds])] + space(1)
        for bt in range(8):
            for c in range(2):
                if not self.o.noxch:
                    s.append(dma(self.vXw, self.sE, self.sXl, c * 1024, self.o.xlflags, f"xl{p}"))
            if bt < 7:
                s.append(raw("s_add_u32 m0, m0, 4096", "salu"))
            if bt == 7 and p == 1:
                s += self.xnext(self.sXl, 15 * 2048)
            else:
                s.append(salu("s_add_u32", self.sXl, self.sXl, 2048))
        return s

    def xch_dma_g(self, p):
        t0, t1 = self.t[0], self.t[1]
        vL = self.vL
        self.ool += [Label(f"Lgat{p}"),
                     raw(f"v_and_b32 {t0}, 0xf0, {vL}"), raw(f"v_lshrrev_b32 {t1}, 4, {vL}"),
                     raw(f"v_and_b32 {t1}, 0x30, {t1}"), raw(f"v_lshl_add_u32 {t1}, {t0}, 7, {t1}"),
                     raw(f"s_branch Lgatr{p}")]
        sel = I(f"v_mov_b32 {t1}, {self.vXw}\n s_cmp_eq_u32 {self.sL}, 0\n s_cbranch_scc1 Lgat{p}\nLgatr{p}:", "valu",
                rd=[self.vXw], wr=[t0, t1])
        s = [sel, raw(f"s_add_u32 m0, {self.sLds}, {p * 2048}", "salu", rd=[self.sLds])] + space(1)
        for bt in range(8):
            for c in range(2):
                if not self.o.noxch:
                    s.append(dma(t1, self.sX, self.sXl, 0, self.o.xlflags, f"xl{p}"))
                s.append(raw(f"s_add_u32 m0, m0, {1024 if c == 0 else 3072}", "salu"))
                s.append(salu("s_add_u32", self.sXl, self.sXl, "s20" if c == 0 else "s21" if bt < 7 else "s22"))
            if bt < 7:
                s += space(self.o.dmapair)
        return s

    def xch_switch(self):
        return [salu("s_mov_b32", "s8", "s32"), salu("s_mov_b32", "s9", "s33"), salu("s_mov_b32", "s10", "s34"),
                salu("s_mov_b32", "s20", 1024), salu("s_mov_b32", "s21", 1024), salu("s_mov_b32", "s22", 1024),
                salu("s_xor_b32", self.sXl, self.sXs, 1 << 17)]

    def calc_vG(self, vG):
        t0, t1 = self.t[0], self.t[1]
        return [valu("v_lshrrev_b32", t0, 7, self.vL), valu("v_lshlrev_b32", t1, 4, t0),
                valu("v_xor_b32", t1, t1, self.vL), valu("v_and_b32", t1, 0x70, t1),
                valu("v_lshl_add_u32", vG, t0, 11, t1)]

    def calc_vS(self, vS):
        t0, t1 = self.t[0], self.t[1]
        vL = self.vL
        return [valu("v_lshrrev_b32", t0, 4, vL), valu("v_and_b32", t0, 0x30, t0), valu("v_xor_b32", t0, t0, vL),
                valu("v_and_b32", t0, 0x70, t0), valu("v_and_b32", t1, 0xf0, vL),
                valu("v_lshl_add_u32", t0, t1, 3, t0), valu("v_add_u32", vS[0], self.sLds, t0),
                valu("v_xor_b32", vS[1], 64, vS[0])]

    def out_setup(self):
        return self.calc_vG(self.vG) + self.calc_vS(self.vS)

    def x0h_dma(self, p, lo, hi, vG):
        r = []
        for i in range(lo, hi):
            r.append(raw(f"s_add_u32 m0, {self.sLds}, {(i >> 1) * 4096 + p * 2048 + (i & 1) * 1024}", "salu"))
            r.append(salu("s_add_u32", "s3", self.sRow, i * 16384 + p * 128))
            r.append(dma(vG, self.sX, "s3", 0, self.o.xflags, f"x0_{p}_{i >> 1}"))
        return r

    def x0h_read(self, p, bt, vS):
        return [Wait(vm=[f"x0_{p}_{bt}"])] + [dsread(self.x0reg(2 * p + c, bt), vS[c], bt * 4096 + p * 2048)
                                              for c in range(2)]

    def x0h_write(self, p, bt):
        return [Wait(lg=[self.x0reg(2 * p + c, bt) for c in range(2)])] + [
            dswrite(self.vXw, self.x0reg(2 * p + c, bt), bt * 4096 + p * 2048 + c * 1024) for c in range(2)]

    def wreg0(self, s, c):
        if s < 16 - self.NS:
            return self.acc(1, (s * 2 + c) * 4, 4)
        return self.wslot(s, c)

    def out_stream(self, p):
        s = []
        pend = []
        for bt in range(8):
            for c in range(2):
                q = self.Q[c]
                u = self.epi_unit(2 * p + c, bt, q, pk=(p == 1 and self.o.tailpk))
                if c == 0 and pend:
                    u = u[:12] + pend + u[12:]
                    pend = []
                s += u
                if p == 0 and bt == 0 and c == 0:
                    s += self.out_setup()
                s.append(dswrite(self.vS[c], R("v", q, 4), bt * 4096))
            for i in range(2):
                s.append(dsread(R("v", self.RQ[i], 4), self.vXw, bt * 4096 + i * 1024))
            for i in range(2):
                pend.append(Wait(lg=[R("v", self.RQ[i], 4)]))
                pend.append(salu("s_add_u32", "s3", self.sRow, bt * 32768 + i * 16384))
                pend.append(bstore(R("v", self.RQ[i], 4), self.vG, self.sO, "s3", p * 128, flags=self.o.oflags))
        return s + pend

    def calc_vB(self):
        return [valu("v_lshrrev_b32", self.vB, 8, self.vL),
                valu("v_lshl_add_u32", self.vB, self.vB, 5, self.sBias)]

    def bias_stream(self, p):
        s = []

        def rd(nt):
            return dsread(R("v", self.Q[nt & 1], 4), self.vB, (nt >> 1) * 128 + (nt & 1) * 16)

        s.append(rd(4 * p))
        s += space(8)
        for nt in range(4 * p, 4 * p + 4):
            q = self.Q[nt & 1]
            cnt = 0
            for bt in range(8):
                for r in range(4):
                    if cnt == 0:
                        s.append(Wait(lg=[R("v", q, 4)]))
                    a = self.acc_tile(nt, bt, r, 1)
                    if self.o.pkadd and a[0] == "v":
                        if not r & 1:
                            ap = self.acc_tile(nt, bt, r, 2)
                            s.append(valu("v_pk_add_f32", ap, ap, R("v", q + r, 2)))
                    elif a[0] == "a":
                        t = self.t[cnt & 1]
                        s.append(valu("v_accvgpr_read_b32", t, a))
                        s.append(valu("v_add_f32", t, t, f"v{q + r}"))
                        s.append(valu("v_accvgpr_write_b32", a, t))
                    else:
                        s.append(valu("v_add_f32", a, a, f"v{q + r}"))
                    cnt += 1
                    if cnt == 1 and nt + 1 < 4 * p + 4:
                        s.append(rd(nt + 1))
        return s

    def prep_load(self):
        t0, t1 = self.t[0], self.t[1]
        s = [valu("v_lshrrev_b32", t0, 6, self.vL),
             valu("v_and_b32", t1, 48, self.vL),
             valu("v_lshl_add_u32", t0, t0, 11, t1),
             raw(f"s_mov_b32 m0, {self.sStage}", "salu", rd=[self.sStage]),
             salu("s_add_u32", "s3", self.sRaw, 32768 - 1024)]
        s.append(dma(t0, self.sR, self.sRaw, 0, self.o.rflags, "raw"))
        s.append(dma(t0, self.sR, "s3", 1024, self.o.rflags, "raw"))
        s.append(salu("s_add_u32", self.sRaw, self.sRaw, D * D * 2))
        return s

    def prep_store(self, sp=0):
        t0 = self.t[0]
        s = [valu("v_and_b32", t0, 0x300, self.vL),
             valu("v_add3_u32", t0, t0, self.vL, self.sStage),
             Wait(vm=["raw"])]
        for t in range(2):
            for h in range(2):
                s.append(I(f"ds_read_b64_tr_b16 {R('v', self.Q[t] + 2 * h, 2)}, {t0} offset:{h * 256 + t * 8}", "dsr",
                           rd=[t0], wr=[R("v", self.Q[t] + 2 * h, 2)]))
        s += space(sp)
        for t in range(2):
            s.append(Wait(lg=[R("v", self.Q[t], 4)]))
            s.append(tagged(bstore(R("v", self.Q[t], 4), self.vL, self.sW, self.sDst, t * 2048, flags=" sc1"), "pst"))
        s.append(salu("s_add_u32", self.sDst, self.sDst, D * D * 2))
        return s

    def wsignal(self):
        t = self.t[2]
        return [valu("v_mov_b32", t, 1),
                I(f"buffer_atomic_add {t}, {self.vW}, {self.sC}, 0 offen sc1", "vst", rd=[t, self.vW])]

    def psignal(self, p):
        t = self.t[2]
        return [salu("s_add_u32", self.sFlag, self.sFlag, 1), Wait(vm=[f"xs{p}"]),
                valu("v_mov_b32", t, self.sFlag),
                bstore(t, self.vL, self.sFm, 0, w="dword", flags=" sc1")]

    def wpoll_load(self):
        v = self.vP
        return [valu("v_lshlrev_b32", v, 2, self.vL), valu("v_and_b32", v, 0xc0, v),
                bload(v, v, self.sD, 0, w="dword", flags=" sc1")]

    def ppoll_load(self):
        return [I(f"buffer_load_dword {self.vP}, off, {self.sFp}, 0 sc1", "vld", wr=[self.vP])]

    def poll_check(self, name, need, inc, loader):
        v = self.vP
        spin = [Label(f"Lspin_{name}"), raw(f"s_add_u32 {self.sSpin}, {self.sSpin}, 1")]
        if self.o.backoff:
            spin.append(raw(f"s_sleep {self.o.backoff}"))
        spin += [raw(x.text) for x in loader()]
        spin += [raw(f"s_cmp_ge_u32 {self.sSpin}, 0x100000"),
                 raw(f"s_cbranch_scc1 Lgiveup_{name}"),
                 raw("s_waitcnt vmcnt(0)"),
                 raw(f"v_cmp_gt_i32 vcc, {need}, {v}"),
                 raw(f"s_cbranch_vccnz Lspin_{name}"),
                 Label(f"Lgiveup_{name}"),
                 raw("s_waitcnt vmcnt(0)"),
                 raw(f"s_branch Lok_{name}")]
        self.ool += spin
        return [Wait(vm=[v]), I(f"v_cmp_gt_i32 vcc, {need}, {v}", "valu", rd=[v, need]),
                raw(f"s_cbranch_vccnz Lspin_{name}", "branch"), Label(f"Lok_{name}"),
                salu("s_add_u32", need, need, inc)]

    def phase(self, s0, nts, rho, next_rho, stream=(), bar=False, last=False, start=0, end=None, pre_bar=(),
              fixed=(), extra=(), wreg=None, skip_below=0):
        o = self.o
        NS = self.NS
        NT = len(nts)
        L = NT * 16
        mf = []
        gaps = [[] for _ in range(4 * L)]
        fwd = list(range(8))
        wreg = wreg or self.wslot
        for ss in range(4):
            base = ss * L
            for k, nt in enumerate(nts):
                s = s0 + ss * NT + k
                order = fwd if ((ss + k) & 1) == 0 else fwd[::-1]
                for j, bt in enumerate(order):
                    for i in range(2):
                        c = i ^ (j & 1)
                        mf.append(mfma(16, self.acc_tile(nt, bt), wreg(s, c), self.xf(bt, c)))
                g = base + k * 16
                at = self.loads_at.get(s, [])
                for n, sn in enumerate(at):
                    if (last and sn >= 128) or o.now or sn < skip_below:
                        continue
                    ga, gb, gc = g + (14 if n == 0 else 15), g + 15, g + 18
                    if o.wdelay and g + 16 < 4 * L and (o.wdelay == 2 or k == NT - 1):
                        ga, gb, gc = g + 17 + 4 * n, g + 19 + 4 * n, g + 20 + 4 * n
                    elif o.wdelay and g + 16 < 4 * L and len(at) == 1:
                        gb, gc = g + 17, g + 19
                    elif not (g + 18 < 4 * L and n == len(at) - 1):
                        gc = g + 15
                    gaps[ga].append(hoist(self.wload(sn, 1)))
                    gaps[gb].append(hoist(self.wload(sn, 0)))
                    gaps[gc] += self.wstep(sn)
                if k < NT - 1:
                    gaps[g + 15].append(Wait(vm=[wreg(s + 1, 0), wreg(s + 1, 1)]))
                if k == 0:
                    for j in range(o.xw, 8, o.xw):
                        gaps[g + 2 * j - 1].append(
                            Wait(lg=[self.xf(order[jj], c) for jj in range(j, min(8, j + o.xw)) for c in range(2)]))
            nrho, nss = (rho, ss + 1) if ss < 3 else (next_rho, 0)
            gl = base + L - 16
            if ss == 3 and bar:
                gaps[gl - o.bar_lead] += list(pre_bar) + [Wait(all_lg=True), barrier()]
            if nrho is not None:
                for j, bt in enumerate(order):
                    for i in range(2):
                        c = i ^ (j & 1)
                        gaps[gl + 2 * j + i].append(hoist(self.xread(bt, c, nrho, nss)))
                s = s0 + (ss + 1) * NT
                gaps[base + L - 1].append(Wait(vm=[wreg(s, 0), wreg(s, 1)],
                                               lg=[self.xf(order[jj], c) for jj in range(o.xw) for c in range(2)]))
        for gi, inss in fixed:
            gaps[gi] += inss
        hi = end if end is not None else (4 * L - 16 - o.bar_lead if bar else 4 * L - 1)
        for st, lo2, hi2 in extra:
            self.place(gaps, list(st), lo2, hi2)
        self.place(gaps, list(stream), start, hi)
        out = []
        for i, m in enumerate(mf):
            out.append(m)
            gaps[i] = self.merge([], gaps[i])
            out += gaps[i]
        if o.verbose:
            print(f"; phase s0={s0} mfma={len(mf)} modelled excess={sum(self.gap_excess(g) for g in gaps)}", file=sys.stderr)
        return out

    @staticmethod
    def gap_excess(items):
        slots = 0
        ex = 0
        free = 2
        seenv = False
        for x in items:
            k = x.kind
            if k in ("valu", "nop"):
                slots += 1
                seenv = True
                continue
            if k in ("dsr", "vld", "dsw", "vst") and seenv:
                ex += 8
            if k == "dsr":
                slots += 1
            elif k == "vld":
                slots += 1 if x.text.startswith("global") else 2
            elif k == "dsw":
                ex += 12
                free -= 2
            elif k == "vst":
                ex += (20 if x.big else 4) + 4 * slots + (8 if free < 2 else 0)
                free = 4 if x.big else free - 1
            elif k == "barrier":
                ex += 24
        return ex + 4 * max(0, slots - max(free, 0))

    @staticmethod
    def merge(items, fixed):
        k = 0
        lead, rest = [], []
        stop = False
        for x in fixed:
            if not stop and x.kind in ("dsr", "vld") and getattr(x, "note", "") == "hoist":
                lead.append(x)
            else:
                rest.append(x)
                if x.kind not in ("wait",):
                    stop = True
        items = [x for x in items if x.kind != "space"]
        j = 0
        while j < len(items) and items[j].kind in ("salu", "wait"):
            j += 1
        if j < len(items) and items[j].kind == "vst":
            return items[:j + 1] + lead + items[j + 1:] + rest
        return lead + items + rest

    def place(self, gaps, stream, lo, hi):
        if not stream:
            return
        n, G = len(stream), hi - lo
        KMAX = 8
        INF = float("inf")
        dp = [INF] * (n + 1)
        dp[0] = 0.0
        back = []
        NG = len(gaps)
        cnt = lambda g, kind: sum(1 for x in gaps[g] if x.kind == kind) if g < NG else 0
        for g in range(G):
            fixed = gaps[lo + g]
            base = self.gap_excess(self.merge([], fixed))
            wpen = 7 * sum(cnt(lo + g + d, "dsr") for d in (1, 2, 3)) + 4 * cnt(lo + g, "dsr")
            spen = 12 * cnt(lo + g + 1, "vld") + 6 * cnt(lo + g, "vld") + 4 * cnt(lo + g + 2, "vld")
            nd = [INF] * (n + 1)
            bk = [0] * (n + 1)
            tgt = n * (g + 1) / G
            for i in range(n + 1):
                if dp[i] == INF:
                    continue
                for k in range(0, min(KMAX, n - i) + 1):
                    c = dp[i]
                    if k:
                        its = stream[i:i + k]
                        if k > 1 and its[-2].kind == "space":
                            break
                        c += self.gap_excess(self.merge(its, fixed)) - base
                        c += sum(wpen if x.kind == "dsw" else spen if x.kind == "vst" else 0 for x in its)
                    c += self.o.pace * ((i + k - tgt) / max(1.0, n / G)) ** 2 + 0.02 * k * k
                    if c < nd[i + k]:
                        nd[i + k] = c
                        bk[i + k] = k
            dp = nd
            back.append(bk)
        assert dp[n] < INF
        i = n
        for g in range(G - 1, -1, -1):
            k = back[g][i]
            gaps[lo + g] = self.merge(stream[i - k:i], gaps[lo + g])
            i -= k

    def prologue(self):
        o = self.o
        vL = self.vL
        b = []
        b.append(salu("s_cmp_ge_u32", "s2", 256))
        b.append(raw("s_cbranch_scc1 Lend", "branch"))
        b += self.stamp("start")
        if o.stamps:
            b.append(raw("s_memrealtime s[36:37]"))
        b += [nop(0) for _ in range(o.shift)]
        b += [sload("s[56:59]", 0, 4), sload("s[60:63]", 16, 4), sload("s[64:67]", 32, 4)]
        b.append(valu("v_lshrrev_b32", "v9", 6, "v0"))
        b.append(valu("v_and_b32", "v10", 63, "v0"))
        b.append(valu("v_readfirstlane_b32", self.sWave, "v9"))
        b.append(valu("v_lshlrev_b32", vL, 4, "v10"))
        if o.cpf:
            b.append(raw("s_getpc_b64 s[4:5]", "salu"))
            b.append(Label("Lpc"))
            b.append(valu("v_lshlrev_b32", "v11", 6, "v0"))
            if o.cpfsplit:
                b += [salu("s_bfe_u32", "s3", "s2", "0x20003"), salu("s_lshl_b32", "s3", "s3", 14),
                      valu("v_add_u32", "v11", "s3", "v11")]
            for i in range(1 if o.cpfsplit else o.cpf):
                b.append(raw(f"v_min_u32 v12, Lend-Lpc, v11", "valu", rd=["v11"], wr=["v12"]))
                b.append(I(f"global_load_dword v{60 + i}, v12, s[4:5]", "vld", rd=["v12"], wr=[f"v{60 + i}"]))
                b.append(valu("v_add_u32", "v11", 16384, "v11"))
        b.append(valu("v_lshrrev_b32", "v11", 7, "v0"))
        b.append(valu("v_and_b32", "v12", 127, "v0"))
        b.append(valu("v_lshlrev_b32", "v12", 3, "v12"))
        b.append(valu("v_lshl_add_u32", "v30", "v11", 11, "v12"))
        b.append(valu("v_lshlrev_b32", "v31", 4, "v0"))
        b.append(valu("v_add_u32", "v31", LDS_BIAS, "v31"))
        b.append(valu("v_add_u32", self.vXr[1], 65536, vL))
        b.append(valu("v_lshl_add_u32", self.vXw, "v9", 15, vL))
        b.append(valu("v_lshl_add_u32", self.vW, "v9", 18, vL))
        nb0 = len(b)
        b.append(valu("v_lshrrev_b32", "v11", 4, "v10"))
        b.append(valu("v_and_b32", "v12", 15, "v10"))
        b.append(valu("v_xor_b32", "v13", "v11", "v12"))
        b.append(valu("v_lshlrev_b32", "v13", 4, "v13"))
        b.append(valu("v_lshl_add_u32", "v20", "v11", 11, "v13"))
        for i in range(1, 4):
            b.append(valu("v_xor_b32", f"v{20 + i}", 64 * i, "v20"))
        b.append(valu("v_lshl_add_u32", "v24", "v12", 8, "v13"))
        b.append(valu("v_lshl_add_u32", "v24", "v9", 15, "v24"))
        for i in range(1, 4):
            b.append(valu("v_xor_b32", f"v{24 + i}", 64 * i, "v24"))
        if o.early == 1:
            del b[nb0:]
        b.append(salu("s_and_b32", "s7", "s2", 1))
        b.append(salu("s_lshr_b32", self.sRow, "s2", 1))
        b.append(salu("s_lshl_b32", self.sRow, self.sRow, 18))
        b.append(salu("s_lshl_b32", "s6", "s7", 10))
        b.append(salu("s_add_u32", self.sRow, self.sRow, "s6"))
        b.append(salu("s_lshl_b32", "s6", self.sWave, 8))
        b.append(salu("s_add_u32", self.sRow, self.sRow, "s6"))
        b.append(salu("s_mov_b32", self.sMask, "0xffff0000"))
        b.append(salu("s_lshl_b32", self.sWoff, "s7", 20))
        b.append(salu("s_mov_b32", self.sL, 0))
        b.append(salu("s_mov_b32", self.sSpin, 0))
        b.append(salu("s_mov_b32", self.sFlag, -1 if o.gather else 0))
        b.append(salu("s_mov_b32", self.sNeed, 64))
        b.append(salu("s_mov_b32", self.sPNeed, -1 if o.gather else 1))
        b.append(salu("s_lshl_b32", self.sLds, self.sWave, 15))
        b.append(salu("s_lshl_b32", self.sXs, "s2", 17))
        b.append(salu("s_add_u32", self.sXs, self.sXs, o.xbase * MB))
        b.append(salu("s_xor_b32", self.sXl, self.sXs, 1 << 17))
        b.append(salu("s_lshr_b32", "s4", "s2", 3))
        b.append(salu("s_and_b32", "s5", "s2", 7))
        b.append(salu("s_lshl_b32", self.sRaw, "s4", 16))
        b.append(salu("s_lshl_b32", "s6", "s5", 8))
        b.append(salu("s_add_u32", self.sRaw, self.sRaw, "s6"))
        b.append(salu("s_lshl_b32", "s6", self.sWave, 6))
        b.append(salu("s_add_u32", self.sRaw, self.sRaw, "s6"))
        b.append(salu("s_lshl_b32", self.sDst, "s5", 18))
        b.append(salu("s_and_b32", "s6", "s4", 1))
        b.append(salu("s_lshl_b32", "s6", "s6", 10))
        b.append(salu("s_add_u32", self.sDst, self.sDst, "s6"))
        b.append(salu("s_lshr_b32", "s6", "s4", 4))
        b.append(salu("s_lshr_b32", "s5", "s5", 2))
        b.append(salu("s_xor_b32", "s5", "s5", "s6"))
        b.append(salu("s_bfe_u32", "s6", "s4", "0x10001"))
        b.append(salu("s_lshl_b32", "s3", "s5", 1))
        b.append(salu("s_add_u32", "s3", "s3", "s6"))
        b.append(salu("s_lshl_b32", "s3", "s3", 16))
        b.append(salu("s_add_u32", self.sDst, self.sDst, "s3"))
        b.append(salu("s_bfe_u32", "s4", "s4", "0x20002"))
        b.append(salu("s_xor_b32", "s5", "s5", "s6"))
        b.append(salu("s_lshr_b32", "s3", self.sWave, 1))
        b.append(salu("s_lshl_b32", "s3", "s3", 4))
        b.append(salu("s_lshl_b32", "s6", "s4", 2))
        b.append(salu("s_add_u32", "s3", "s3", "s6"))
        b.append(salu("s_and_b32", "s6", self.sWave, 1))
        b.append(salu("s_lshl_b32", "s6", "s6", 1))
        b.append(salu("s_add_u32", "s3", "s3", "s6"))
        b.append(salu("s_lshl_b32", "s4", "s4", 3))
        b.append(salu("s_lshl_b32", "s6", self.sWave, 1))
        b.append(salu("s_add_u32", "s4", "s4", "s6"))
        b.append(salu("s_cmp_eq_u32", "s5", 0))
        b.append(salu("s_cselect_b32", "s3", "s3", "s4"))
        b.append(salu("s_lshl_b32", "s3", "s3", 11))
        b.append(salu("s_add_u32", self.sDst, self.sDst, "s3"))
        b.append(salu("s_lshl_b32", self.sStage, self.sWave, 11))
        b.append(salu("s_add_u32", self.sStage, self.sStage, LDS_STAGE))
        b.append(salu("s_lshl_b32", self.sBias, self.sWave, 9))
        b.append(salu("s_add_u32", self.sBias, self.sBias, LDS_BIAS))
        b.append(Wait(all_lg=True))
        b += self.stamp("kernarg")
        b += srd(40, "s58", "s59", NL * D * D * 2)

        def only(ins, w0):
            n = self.nseg = getattr(self, "nseg", 0) + 1
            for x in ins:
                x.note = "gy" if w0 else "gx"
            return [salu("s_cmp_eq_u32", self.sWave, 0), raw(f"s_cbranch_scc{0 if w0 else 1} Lseg{n}", "branch")] + \
                ins + [Label(f"Lseg{n}")]

        if o.w0prep:
            t0, t1 = self.t[0], self.t[1]
            r = [valu("v_lshrrev_b32", t0, 6, vL), valu("v_and_b32", t1, 48, vL), valu("v_lshl_add_u32", t0, t0, 11, t1)]
            for q in range(4):
                r += [raw(f"s_mov_b32 m0, {LDS_STAGE + q * 2048}", "salu"), salu("s_add_u32", "s3", self.sRaw, q * 64),
                      dma(t0, self.sR, "s3", 0, o.rflags, f"raw{q}"),
                      salu("s_add_u32", "s3", self.sRaw, q * 64 + 32768 - 1024),
                      dma(t0, self.sR, "s3", 1024, o.rflags, f"raw{q}")]
            b += only(r, True)
            b.append(salu("s_add_u32", self.sRaw, self.sRaw, D * D * 2))
        else:
            b += self.prep_load()
        b += srd(20, "s60", "s61", NL * D * 2)
        tb = 32
        b.append(salu("s_lshl_b32", "s3", "s7", 10))
        for m in range(3):
            b.append(bload(R("v", tb + 2 * m, 2), "v30", self.sB, "s3", w="dwordx2"))
            b.append(salu("s_add_u32", "s3", "s3", 4096))
        b += srd(8, "s56", "s57", NB * D * 2)
        b += srd(16, "s62", "s63", NB * D * 2)
        b += srd(12, "s66", "s67", NL * D * D * 2)
        b += srd(32, "s66", "s67", 256 * MB)
        b += srd(44, "s64", "s65", 256)
        b += [salu("s_add_u32", self.sWoff, self.sWoff, 4096), salu("s_add_u32", "s70", "s66", self.sWoff),
              salu("s_addc_u32", "s71", "s67", 0), salu("s_sub_u32", self.sWoff, self.sWoff, 4096)]
        b.append(salu("s_and_b32", "s3", "s2", 3))
        b.append(salu("s_lshl_b32", "s3", "s3", 6))
        b += srd_off(56, "s44", "s45", "s3", 4)
        b.append(salu("s_lshl_b32", "s3", "s2", 2))
        b.append(salu("s_add_u32", "s3", "s3", self.sWave))
        b.append(salu("s_lshl_b32", "s3", "s3", 7))
        b.append(salu("s_add_u32", "s3", "s3", WS_FLAGS))
        b += srd_off(60, "s32", "s33", "s3", 4)
        b.append(salu("s_xor_b32", "s3", "s3", 512))
        b += srd_off(64, "s32", "s33", "s3", 4)
        if o.delay:
            for _ in range(o.delay):
                b.append(raw("s_sleep 127"))
        if o.touch:
            for l in range(6):
                b.append(salu("s_add_u32", "s3", self.sXs, l * 32 * MB))
                if o.touch == 1:
                    b.append(bload(f"v{60 + l}", self.vXw, self.sE, "s3", w="dword"))
                else:
                    b.append(bstore(f"v{60 + l}", self.vXw, self.sE, "s3", w="dword", flags=" sc1"))
            b.append(Wait(all_vm=True))
        def x0dma(lo, hi):
            r = []
            for i in range(lo, hi):
                r.append(raw(f"s_add_u32 m0, {self.sLds}, {i * 1024}", "salu"))
                r.append(salu("s_add_u32", "s3", self.sRow, i * 8192))
                r.append(dma(f"v{20 + (i & 3)}", self.sX, "s3", 0, o.xflags, f"x0_{i >> 2}"))
            return r

        def x0fix(bt):
            r = [Wait(vm=[f"x0_{bt}"])]
            for kbl in range(4):
                r.append(dsread(self.x0reg(kbl, bt), f"v{24 + kbl}", bt * 4096))
            r.append(Wait(all_lg=True))
            for kbl in range(4):
                r.append(dswrite(self.vXw, self.x0reg(kbl, bt), bt * 4096 + kbl * 1024))
            if o.apub:
                r += self.x0pub_stream(0, 2 * bt, 2 * bt + 2)
            return r

        def accinit(pred):
            r = []
            for p in range(2):
                for i in range(128):
                    a = self.acc(p, i)
                    if pred(a):
                        r.append(valu("v_accvgpr_write_b32" if a[0] == "a" else "v_mov_b32", a, "1.0"))
            return r

        if o.early == 1:
            return b + self.prologue_early(accinit, tb)
        late = lambda a: a[0] == "v" and 32 <= int(a[1:]) < 72
        final = lambda a: a[0] == "v" and int(a[1:]) < 32
        na, nb, ahead, npoll = o.x0split

        def biascvt():
            r = []
            for m in range(3):
                r.append(Wait(vm=[R("v", tb + 2 * m, 2)]))
                for j in range(2):
                    src = f"v{tb + 2 * m + j}"
                    r.append(valu("v_lshlrev_b32", f"v{40 + 4 * m + 2 * j}", 16, src))
                    r.append(valu("v_and_b32", f"v{41 + 4 * m + 2 * j}", self.sMask, src))
                r.append(dswrite("v31", R("v", 40 + 4 * m, 4), m * 4096))
            return r + [Wait(all_lg=True)]

        if o.w0prep:
            t0, t1, t2 = self.t
            r = [valu("v_lshlrev_b32", t1, 3, vL), valu("v_mov_b32", t2, 0), salu("s_mov_b32", "s62", 512),
                 tagged(bstore(t2, t1, self.sFm, 0, w="dword", flags=" sc1"), "pst"), salu("s_mov_b32", "s62", 4)]
            b += only(r, True)
            b += only(x0dma(0, nb), False)
            b += accinit(lambda a: not late(a) and not final(a))
            r = [valu("v_and_b32", t0, 0x300, vL), valu("v_add3_u32", t0, t0, vL, self.sStage)]
            qs = [8, 40, 48, 64]
            for q in range(4):
                r.append(Wait(vm=[f"raw{q}"]))
                for t in range(2):
                    for h in range(2):
                        d = R("v", qs[q] + 4 * t + 2 * h, 2)
                        r.append(I(f"ds_read_b64_tr_b16 {d}, {t0} offset:{q * 2048 + h * 256 + t * 8}", "dsr", rd=[t0], wr=[d]))
            for q in range(4):
                r += [salu("s_cmp_eq_u32", "s5", 0),
                      salu("s_cselect_b32", "s3", ((q >> 1) * 16 + 2 * (q & 1)) * 2048, "s6") if q > 1 else
                      salu("s_mov_b32", "s3", 2 * q * 2048),
                      salu("s_add_u32", "s3", "s3", self.sDst), salu("s_mov_b32", "s6", 2 * (q + 1) * 2048)]
                for t in range(2):
                    r.append(Wait(lg=[R("v", qs[q] + 4 * t, 4)]))
                    r.append(tagged(bstore(R("v", qs[q] + 4 * t, 4), vL, self.sW, "s3", t * 2048, flags=" sc1"), "pst"))
            r += x0dma(0, na) + [Wait(vm=["pst"])] + self.wsignal() + x0dma(na, nb)
            b += only(r, True)
            b.append(salu("s_add_u32", self.sDst, self.sDst, D * D * 2))
            b += self.stamp("signalled")
            b += biascvt() + accinit(late)
        else:
            b.append(valu("v_mov_b32", self.t[2], 0))
            b.append(tagged(bstore(self.t[2], vL, self.sFm, 0, w="dword", flags=" sc1"), "pst"))
            b += x0dma(0, na)
            b += accinit(lambda a: not late(a) and not final(a))
            b += self.prep_store()
            b += self.stamp("stores_issued")
            b += x0dma(na, nb)
            b += biascvt() + accinit(late)
            b += [Wait(vm=["pst"]), barrier()] + self.wsignal()
            b += self.stamp("signalled")
        def wring():
            r = []
            for s in [x for x in range(128) if self.site[x] < 0]:
                r += [self.wload(s, 1), self.wload(s, 0)] + self.wstep(s)
            return r

        def path(name, nb2, npoll, stamps):
            st = self.stamp if stamps else (lambda n: [])
            r = x0dma(nb, nb2)
            issued = max(nb, nb2)
            checked = False
            poll_before = None
            for bt in range(8):
                want = min(32, 4 * (bt + 1 + ahead))
                if bt == npoll:
                    r += self.wpoll_load()
                    poll_before = (issued + 3) // 4 if npoll else 0
                if want > issued and (npoll or checked):
                    r += x0dma(issued, want)
                    issued = want
                if poll_before is not None and not checked and bt >= poll_before:
                    r += st("x0_part")
                    r += self.poll_check(name, self.sNeed, 64, self.wpoll_load)
                    r += st("flag_seen")
                    checked = True
                    if npoll:
                        r += x0dma(issued, 32) + wring()
                        issued = 32
                    else:
                        r += wring() + x0dma(issued, want)
                        issued = max(issued, want)
                r += x0fix(bt)
            assert checked and issued == 32
            return r

        if o.stagger < 0:
            b += path("pro", nb, npoll, True)
        else:
            px = path("prox", nb, npoll, True)
            n0 = self.stampn
            self.stampn -= 2 if o.stamps and not o.pstamps else 0
            self.names = self.names[:self.stampn]
            py = path("proy", o.ynb, 0, True)
            assert self.stampn == n0
            for x in px:
                x.note = "gx"
            for x in py:
                x.note = "gy"
            b += [salu("s_bitcmp1_b32", "s2", o.stagger), raw("s_cbranch_scc1 Lgy", "branch")]
            b += px + [raw("s_branch Lgjoin", "branch"), Label("Lgy")] + py + [Label("Lgjoin")]
        b += accinit(final)
        if o.gather:
            b += [salu("s_xor_b32", self.sXl, self.sRow, 1024), salu("s_mov_b32", "s20", 64),
                  salu("s_mov_b32", "s21", 32768 - 64), salu("s_mov_b32", "s22", hex((128 - 64 - 7 * 32768) & 0xffffffff))]
        b += [Wait(all_lg=True), barrier()]
        for j in range(8):
            for i in range(2):
                b.append(self.xread(j, i ^ (j & 1), 0, 0))
        b.append(Wait(lg=[self.xf(j, c) for j in range(o.xw) for c in range(2)], vm=[self.wslot(0, 0), self.wslot(0, 1)]))
        if o.desync:
            b += [raw("s_lshr_b32 s3, s2, 1"), raw("s_and_b32 s3, s3, 15"), Label("Lds"), raw(f"s_sleep {o.desync}"),
                  raw("s_sub_u32 s3, s3, 1"), raw("s_cbranch_scc0 Lds")]
        b += self.stamp("pro_done")
        return b

    def prologue_early(self, accinit, tb):
        o = self.o
        vL = self.vL
        b = []
        vG, vS = "v20", ["v21", "v22"]
        wbuf = set(r for s in range(16 - self.NS) for c in range(2) for r in regs(self.wreg0(s, c)))
        late = lambda a: a[0] == "v" and 32 <= int(a[1:]) < 64
        final = lambda a: a[0] == "v" and int(a[1:]) < 32
        na, nb, npoll, nB0 = o.x0split
        b.append(valu("v_mov_b32", self.t[2], 0))
        b.append(tagged(bstore(self.t[2], vL, self.sFm, 0, w="dword", flags=" sc1"), "pst"))
        b += self.calc_vG(vG) + self.calc_vS(vS)
        b += self.x0h_dma(0, 0, na, vG)
        b += accinit(lambda a: not late(a) and not final(a) and a not in wbuf)
        b += self.prep_store()
        b += self.stamp("stores_issued")
        b += self.x0h_dma(0, na, nb, vG)
        for m in range(3):
            b.append(Wait(vm=[R("v", tb + 2 * m, 2)]))
            for j in range(2):
                src = f"v{tb + 2 * m + j}"
                b.append(valu("v_lshlrev_b32", f"v{40 + 4 * m + 2 * j}", 16, src))
                b.append(valu("v_and_b32", f"v{41 + 4 * m + 2 * j}", self.sMask, src))
            b.append(dswrite("v31", R("v", 40 + 4 * m, 4), m * 4096))
        b.append(Wait(all_lg=True))
        b += accinit(late)
        b += [Wait(vm=["pst"]), barrier()] + self.wsignal()
        b += self.stamp("signalled")
        b += self.x0h_dma(0, nb, 16, vG)
        for bt in range(8):
            if bt == npoll:
                b += self.wpoll_load() + self.x0h_dma(1, 0, nB0, vG)
            b += self.x0h_read(0, bt, vS)
            if bt:
                b += self.x0h_write(0, bt - 1)
        if npoll >= 8:
            b += self.wpoll_load() + self.x0h_dma(1, 0, nB0, vG)
        b += self.x0h_write(0, 7)
        b += self.stamp("x0_part")
        b += [Wait(all_lg=True), barrier()]
        for j in range(8):
            for i in range(2):
                b.append(self.xread(j, i ^ (j & 1), 0, 0))
        b += self.poll_check("pro", self.sNeed, 64, self.wpoll_load)
        b += self.stamp("flag_seen")
        for s in range(16):
            b += [self.wload(s, 1, self.wreg0(s, 1)), self.wload(s, 0, self.wreg0(s, 0))]
            b += self.wstep(s)
        b += self.x0h_dma(1, nB0, max(nB0, o.nb_pro) if o.gather else 16, vG)
        b.append(valu("v_mov_b32", "v8", vG))
        b += accinit(final)
        if o.gather:
            b += [salu("s_xor_b32", self.sXl, self.sRow, 1024), salu("s_mov_b32", "s20", 64),
                  salu("s_mov_b32", "s21", 32768 - 64), salu("s_mov_b32", "s22", hex((128 - 64 - 7 * 32768) & 0xffffffff))]
        b.append(Wait(lg=[self.xf(j, c) for j in range(o.xw) for c in range(2)], vm=[self.wreg0(0, 0), self.wreg0(0, 1)]))
        b += self.stamp("pro_done")
        return b

    def build(self):
        o = self.o
        A, B, AB = [0, 1, 2, 3], [4, 5, 6, 7], list(range(8))
        e = (lambda s: []) if o.noepi else (lambda s: s)
        unit_end = lambda x: x.kind in ("vst", "dsw") and x.rd & {"v12"}
        safe_bias = lambda x: x.kind == "valu" and "add_f32" in x.text and not x.wr & set(self.t)
        pro = self.prologue()
        PL = o.pstamps - 1
        dA, dB = o.direct
        g0, g1, g2, g3 = o.sg
        ep = o.earlyprep
        if o.gather and o.early == 1:
            ini = []
            for s in range(16 - self.NS):
                ini.append(([valu("v_mov_b32", r, "1.0") for c in range(2) for r in regs(self.wreg0(s, c))],
                            16 * s + 18, 16 * s + 30))
            nB1 = o.x0split[3]
            late = self.x0h_dma(1, max(nB1, o.nb_pro), 16, "v8")
            s1a0 = self.phase(0, A, 0, 0, late, wreg=self.wreg0, skip_below=16, extra=ini, end=o.pub0_end)
            s1a0 += self.stamp("s1a0")
            vS = [f"v{self.Q[0]}", f"v{self.Q[0] + 1}"]
            fix = self.calc_vS(vS)
            for bt in range(8):
                fix += self.x0h_read(1, bt, vS) + space(3)
                if bt:
                    fix += self.x0h_write(1, bt - 1)
            fix += space(4) + self.x0h_write(1, 7)
            s1a0 += self.phase(16, B, 0, 1, fix + self.calc_vB() + e(self.bias_stream(0)), bar=True,
                               pre_bar=[salu("s_add_u32", self.sPNeed, self.sPNeed, 1)])
            s1a0 += self.stamp("s1b0")
        elif o.gather:
            assert not o.early
            s1a0 = self.phase(0, A, 0, 0, []) + self.stamp("s1a0")
        elif o.early == 2:
            s1a0 = self.phase(0, A, 0, 0, self.x0pub_stream(0), end=o.pub0_end) + self.stamp("s1a0")
            st = insert_at(self.calc_vB() + e(self.bias_stream(0)), o.sig0_at, self.psignal(0), safe_bias)
            st = insert_at(st, o.poll0_at, self.ppoll_load(), safe_bias)
            if o.wsig2:
                st = st + self.prep_load()
            s1a0 += self.phase(16, B, 0, 1, st, bar=True, extra=[(self.x0pub_stream(1), 0, 230)],
                               pre_bar=self.poll_check("pa0", self.sPNeed, 1, self.ppoll_load))
            s1a0 += self.stamp("s1b0")
        elif o.early:
            ini = []
            for s in range(16 - self.NS):
                ini.append(([valu("v_mov_b32", r, "1.0") for c in range(2) for r in regs(self.wreg0(s, c))],
                            16 * s + 18, 16 * s + 30))
            s1a0 = self.phase(0, A, 0, 0, self.x0pub_stream(0), wreg=self.wreg0, skip_below=16, extra=ini,
                              end=o.pub0_end) + self.stamp("s1a0")
            vS = [f"v{self.Q[0]}", f"v{self.Q[0] + 1}"]
            fix = self.calc_vS(vS)
            for bt in range(8):
                fix += self.x0h_read(1, bt, vS)
                if bt:
                    fix += self.x0h_write(1, bt - 1) + self.x0pub_stream(1, 2 * bt - 2, 2 * bt)
                if bt == 1:
                    fix += self.psignal(0)
            fix += self.x0h_write(1, 7) + self.x0pub_stream(1, 14, 16)
            st = insert_at(self.calc_vB() + e(self.bias_stream(0)), 0.6, self.ppoll_load(), safe_bias)
            s1a0 += self.phase(16, B, 0, 1, fix + st, bar=True,
                               pre_bar=self.poll_check("pa0", self.sPNeed, 1, self.ppoll_load))
            s1a0 += self.stamp("s1b0")
        else:
            s1a0 = self.phase(0, A, 0, 0, (self.prep_load() if ep else []) + self.x0pub_stream(0) +
                              self.x0pub_stream(1, 0, dB) + (self.psignal(0) if dA == 16 else [])) + self.stamp("s1a0")
        lp = o.lateprep
        st = (self.prep_store() if ep else [] if lp else self.prep_load()) + self.calc_vB() + e(self.bias_stream(0))
        if o.wsig2:
            st = st + self.prep_load()
        if dA < 16:
            st = insert_at(st, o.siga2_at, self.psignal(0), safe_bias)
        if dB == 16 and not o.early:
            st = insert_at(st, o.sigb_at, self.psignal(1), safe_bias)
        fx2 = [(o.pollb_gap, self.ppoll_load()), (1, self.xnext(self.sXs, 0))]
        if dB < 16 or o.early:
            fx2.append((g3, self.psignal(1)))
        if g0 < 0:
            st = insert_at(st, o.polla_at, self.ppoll_load(), safe_bias)
            pb1 = self.poll_check("pa", self.sPNeed, 1, self.ppoll_load)
            g1 = -1
        else:
            assert not o.early
            pb1 = []
            fx2 += [(g0, self.ppoll_load()), (g1, self.poll_check("pa", self.sPNeed, 1, self.ppoll_load))]
        if ep:
            pb1 = [Wait(vm=["pst"])] + pb1
            fx2.append((3, self.wsignal()))
        s1b = [Label("Ls1b")] + self.phase(16, B, 0, 1, st, bar=True, pre_bar=pb1,
                                            extra=[(self.pub_stream(1, dB, 16), 0, 232)])
        s2 = self.phase(32, AB, 1, 0, self.xch_dma(0) + ([] if ep or lp else self.prep_store()), bar=True, start=g1 + 1, end=g2, fixed=fx2,
                        extra=[(self.prep_store(10) if o.wsig2 else self.prep_load() if lp else [], lp, lp + (30 if o.wsig2 else 12))],
                        pre_bar=[Wait(vm=["xl0", "pst"] if o.wsig2 else ["xl0"])] + self.poll_check("pb", self.sPNeed, 1, self.ppoll_load))
        s3 = self.phase(64, AB, 0, 1, self.xch_dma(1), bar=True, end=o.dma_end, pre_bar=[Wait(vm=["xl1", "pst"])],
                        extra=[(self.wsignal(), 2, 6)] if o.wsig2 else
                        [(self.prep_store(10) if lp else [], o.preps_at, o.preps_at + 30)])
        s1b[1:1] = self.lstamp("pre", PL) if PL > 0 else []
        s1b += self.lstamp("s1b", PL)
        s2 += self.lstamp("s2", PL)
        s3 += self.lstamp("s3", PL)
        s4a = self.phase(96, A, 1, 1, ([] if ep or o.wsig2 else self.wsignal()) + (self.calc_vB() if self.small else []) + e(self.bias_stream(1)))
        if o.gather:
            s4a += self.xch_switch()
        s4a += self.lstamp("s4a", PL)
        s4a += [salu("s_add_u32", self.sBias, self.sBias, 2048), salu("s_add_u32", self.sL, self.sL, 1),
                salu("s_cmp_eq_u32", self.sL, NL), raw("s_cbranch_scc1 Llast", "branch")]
        st = insert_at(e(self.epi_stream(0, dA)), o.pollw_at, self.wpoll_load(), unit_end)
        chk = (self.site[128] - 112) * 16 + 2
        s4b = self.phase(112, B, 1, 0, st, bar=True,
                         fixed=[(chk, self.poll_check("w", self.sNeed, 64, self.wpoll_load))])
        s4b += self.lstamp("s4b", PL + 1)
        st = e(self.epi_stream(1, dB))
        if dA == 16:
            st = insert_at(st, o.siga_at, self.psignal(0), unit_end)
        if ep:
            st = insert_at(st, o.prepl_at, self.prep_load(), unit_end)
        s1a = self.phase(0, A, 0, 0, st, extra=[(self.pub_stream(0, dA, 16), 0, o.puba_end)])
        if o.stamps:
            s1a += [raw(f"s_cmp_eq_u32 s25, {max(1, o.pstamps)}"), raw("s_cbranch_scc0 Lnostamp")] + self.stamp("layer1") + [
                raw("s_memrealtime s[4:5]"), Label("Lnostamp")]
        if o.early:
            assert lp
            s2 = [Label("Lloop")] + s2
            s1b += [raw("s_branch Lloop", "branch")]
        else:
            s1a += [raw("s_branch Ls1b", "branch")]
        s4bl = [Label("Llast")] + self.stamp("4.75layers") + ([raw("s_memrealtime s[6:7]")] if o.stamps else [])
        s4bl += self.phase(112, B, 1, None, self.out_stream(0), last=True)
        tail = self.stamp("s4b_last") + [nop(7)] + [x for x in self.out_stream(1) if x.kind != "space"]
        if o.stamps:
            tail += self.stamp("tail_issued")
            tail += [Wait(all_vm=True)]
            tail += self.stamp("tail_drained")
            tail.append(raw("s_memrealtime s[38:39]"))
            tail.append(raw("s_waitcnt lgkmcnt(0)"))
            tail.append(raw("v_cmp_eq_u32 vcc, 0, v0"))
            tail.append(raw("s_and_saveexec_b64 s[68:69], vcc"))
            tail.append(raw("s_cbranch_execz Lend"))
            if o.dbgout >= 0:
                tail += [raw(f"s_cmp_lg_u32 s2, {o.dbgout}"), raw("s_cbranch_scc1 Lend"), raw("v_mov_b32 v1, 0")]
                tail += [raw("s_sub_u32 s3, s38, s36"), raw("v_mov_b32 v2, s3"),
                         raw("buffer_store_dword v2, v1, s[44:47], 0 offen offset:4"),
                         raw("s_sub_u32 s3, s6, s4"), raw("v_mov_b32 v2, s3"),
                         raw("buffer_store_dword v2, v1, s[44:47], 0 offen offset:8"),
                         raw("v_mov_b32 v2, s53"), raw("buffer_store_dword v2, v1, s[44:47], 0 offen offset:12")]
                for n in range(1, min(self.stampn, 13)):
                    tail += [raw(f"s_sub_u32 s3, s{72 + 2 * n}, s{70 + 2 * n}"), raw("v_mov_b32 v2, s3"),
                             raw(f"buffer_store_dword v2, v1, s[44:47], 0 offen offset:{12 + 4 * n}")]
            else:
                tail.append(raw("s_lshl_b32 s3, s2, 8"))
                tail.append(raw(f"s_add_u32 s3, s3, {WS_STAMP}"))
                tail.append(raw("v_mov_b32 v1, 0"))
                for n, i in enumerate(list(range(36, 40)) + list(range(72, 102)) + [4, 5, 6, 7, 53]):
                    tail.append(raw(f"v_mov_b32 v2, s{i}"))
                    tail.append(raw(f"buffer_store_dword v2, v1, s[32:35], s3 offen offset:{n * 4}"))
        tail += [Label("Lend"), raw("s_endpgm")]
        rest = s1a0 + ([] if o.early else s1b)
        for l in range(NL - 1):
            rest = rest + s2 + s3 + s4a + s4b + s1a + s1b
        rest = rest + s2 + s3 + s4a + s4bl + tail
        traces = [[x for x in pro if x.note != skip] + rest for skip in ("gx", "gy")]
        for tr in traces:
            resolve_waits(tr)
        for tr in traces:
            errs, mv, ml = check(tr)
            if errs and not o.now:
                for x in errs[:20]:
                    print(x, file=sys.stderr)
                raise SystemExit("hazard/dependency errors")
        if o.early:
            prog = pro + s1a0 + s2 + s3 + s4a + s4b + s1a + s1b + s4bl + tail + self.ool
        else:
            prog = pro + s1a0 + s1b + s2 + s3 + s4a + s4b + s1a + s4bl + tail + self.ool
        txt = f".globl {KNAME}\n.p2align 8\n.type {KNAME},@function\n{KNAME}:\n" + emit(prog) + "\n"
        txt = "; stamps: " + " ".join(self.names) + "\n" + txt
        return txt, kd(KNAME, 512, 102, 256)


def main():
    ap = argparse.ArgumentParser()
    ap.add_argument("-o", default="standalone__cross_network_dcn__recsys.s")
    ap.add_argument("--slots", type=int, default=6)
    ap.add_argument("--wflags", default="sc1")
    ap.add_argument("--xflags", default="")
    ap.add_argument("--oflags", default="nt")
    ap.add_argument("--rflags", default="")
    ap.add_argument("--xsflags", default="sc1")
    ap.add_argument("--xlflags", default="")
    ap.add_argument("--bar_lead", type=int, default=6)
    ap.add_argument("--xw", type=int, default=4)
    ap.add_argument("--x0split", type=int, nargs=4, default=[4, 4, 8, 0])
    ap.add_argument("--sigb_at", type=float, default=0.45)
    ap.add_argument("--polla_at", type=float, default=0.6)
    ap.add_argument("--siga_at", type=float, default=0.45)
    ap.add_argument("--pollw_at", type=float, default=0.3)
    ap.add_argument("--pollb_gap", type=int, default=386)
    ap.add_argument("--dma_end", type=int, default=400)
    ap.add_argument("--stamps", action="store_true")
    ap.add_argument("--shift", type=int, default=0)
    ap.add_argument("--cpfsplit", type=int, default=1)
    ap.add_argument("--backoff", type=int, default=0)
    ap.add_argument("--w0prep", type=int, default=0)
    ap.add_argument("--nb_pro", type=int, default=0, help="early mode: x0 B-half DMAs issued before the first MFMA")
    ap.add_argument("--dmapair", type=int, default=30)
    ap.add_argument("--dbgout", type=int, default=-1)
    ap.add_argument("--tailpk", type=int, default=1)
    ap.add_argument("--gather", type=int, default=1)
    ap.add_argument("--wsig2", type=int, default=0)
    ap.add_argument("--stagger", type=int, default=-1, help="workgroup-id bit selecting the late group")
    ap.add_argument("--ynb", type=int, default=4)
    ap.add_argument("--sig0_at", type=float, default=0.1)
    ap.add_argument("--poll0_at", type=float, default=0.7)
    ap.add_argument("--verbose", action="store_true")
    ap.add_argument("--gload", type=int, default=1)
    ap.add_argument("--pace", type=float, default=0.1)
    ap.add_argument("--early", type=int, default=1)
    ap.add_argument("--pub0_end", type=int, default=40)
    ap.add_argument("--earlyprep", type=int, default=0)
    ap.add_argument("--lateprep", type=int, default=400)
    ap.add_argument("--preps_at", type=int, default=330)
    ap.add_argument("--prepl_at", type=float, default=0.1)
    ap.add_argument("--wdelay", type=int, default=2)
    ap.add_argument("--short_at", type=int, default=72)
    ap.add_argument("--pkmul", type=int, default=0)
    ap.add_argument("--pkadd", type=int, default=0)
    ap.add_argument("--apub", type=int, default=0, help="publish x0's A half in the prologue")
    ap.add_argument("--cpf", type=int, default=4, help="code prefetch loads per wave (16 KB each)")
    ap.add_argument("--desync", type=int, default=0, help="diagnostic")
    ap.add_argument("--direct", type=int, nargs=2, default=[16, 16])
    ap.add_argument("--siga2_at", type=float, default=0.15)
    ap.add_argument("--puba_end", type=int, default=200)
    ap.add_argument("--sg", type=int, nargs=4, default=[-1, 0, 390, 82])
    ap.add_argument("--delay", type=int, default=0, help="diagnostic")
    ap.add_argument("--touch", type=int, default=0, help="diagnostic")
    ap.add_argument("--pstamps", type=int, default=0, help="phase stamps in layer N-1")
    ap.add_argument("--xbase", type=int, default=32)
    ap.add_argument("--xbufs", type=int, default=6)
    ap.add_argument("--now", action="store_true", help="diagnostic: no W loads in the loop")
    ap.add_argument("--noxch", action="store_true", help="diagnostic: no exchange traffic")
    ap.add_argument("--noepi", action="store_true", help="diagnostic: no epilogue/bias in the loop")
    o = ap.parse_args()
    for k in ("wflags", "xflags", "oflags", "rflags", "xsflags", "xlflags"):
        v = getattr(o, k)
        setattr(o, k, (" " + v.replace(",", " ")) if v and v != "none" else "")
    mtxt, mkd = Main(o).build()
    opts = " ".join(a for a in sys.argv[1:] if not a.endswith(".s") and a != "-o")
    s = HEADER.format(opts=opts)
    s += f"; @launch grid=(256,1,1) block=(256,1,1) lds={LDS_TOTAL}\n"
    s += '.amdgcn_target "amdgcn-amd-amdhsa--gfx950"\n.text\n'
    s += mtxt + mkd
    open(o.o, "w").write(s)
    print(o.o, len(s), "bytes")


if __name__ == "__main__":
    main()
```

```python
import argparse
import sys
from asmir import *

KNAME = "standalone__cross_network_dcn__recsys_kernel"
NL = 6
D = 1024
NB = 16384
MB = 1 << 20

HEADER = """; Kernarg layout for this problem (48 bytes, ptrs only, base s[0:1]):
;   offset  40: d_ws      268435456 bytes workspace
; Generated by gen/gen3.py (hand-written generator). Options: {opts}
"""

LDS_BIAS = 131072
LDS_STAGE = LDS_BIAS + NL * 512 * 4
LDS_TOTAL = LDS_STAGE + 8192
WS_FLAGS = 15 * MB
WS_XCH = 32 * MB
WS_STAMP = 16 * MB


def kd(name, vgpr, sgpr, accum):
    return f""".section .rodata,"a"
.p2align 6
.amdhsa_kernel {name}
  .amdhsa_next_free_vgpr {vgpr}
  .amdhsa_next_free_sgpr {sgpr}
  .amdhsa_accum_offset {accum}
  .amdhsa_group_segment_fixed_size 0
  .amdhsa_kernarg_size 48
  .amdhsa_user_sgpr_count 2
  .amdhsa_user_sgpr_kernarg_segment_ptr 1
  .amdhsa_system_sgpr_workgroup_id_x 1
  .amdhsa_float_denorm_mode_32 3
.end_amdhsa_kernel
"""


def srd(base, lo, hi, nbytes):
    return [salu("s_mov_b32", f"s{base}", lo), salu("s_mov_b32", f"s{base + 1}", hi),
            salu("s_mov_b32", f"s{base + 2}", hex(nbytes)), salu("s_mov_b32", f"s{base + 3}", "0x20000")]


def srd_off(base, lo, hi, off, nbytes):
    return [salu("s_add_u32", f"s{base}", lo, off), salu("s_addc_u32", f"s{base + 1}", hi, 0),
            salu("s_mov_b32", f"s{base + 2}", hex(nbytes)), salu("s_mov_b32", f"s{base + 3}", "0x20000")]


def sload(d, off, n=2):
    return I(f"s_load_dwordx{n} {d}, s[0:1], {off}", "smem", wr=[d])


def tagged(ins, tag):
    ins.wr = set(ins.wr) | {tag}
    return ins


def dma(voff, srdn, soff, off, flags, tag):
    o = f" offset:{off}" if off else ""
    return tagged(I(f"buffer_load_dwordx4 {voff}, {srdn}, {soff} offen{o}{flags} lds", "vld", rd=[voff]), tag)


def hoist(ins):
    ins.note = "hoist"
    return ins


def space(n):
    return [I("", "space") for _ in range(n)]


def insert_at(stream, frac, items, ok):
    i = int(len(stream) * frac)
    while 0 < i < len(stream) and not ok(stream[i - 1]):
        i += 1
    return stream[:i] + items + stream[i:]


class Main:
    def __init__(self, o):
        self.o = o
        self.sX, self.sW, self.sO, self.sB = "s[8:11]", "s[12:15]", "s[16:19]", "s[20:23]"
        self.sE, self.sR, self.sD = "s[32:35]", "s[40:43]", "s[44:47]"
        self.sC, self.sFm, self.sFp = "s[56:59]", "s[60:63]", "s[64:67]"
        self.sWoff, self.sL, self.sMask, self.sNeed = "s24", "s25", "s26", "s27"
        self.sRow, self.sXs, self.sXl, self.sFlag = "s28", "s29", "s30", "s31"
        self.sRaw, self.sDst, self.sLds, self.sBias, self.sStage, self.sSpin, self.sWave, self.sPNeed = (
            "s48", "s49", "s50", "s51", "s52", "s53", "s54", "s55")
        self.vW, self.vXw, self.vB = "v0", "v3", "v4"
        self.vXr = ["v1", "v2"]
        self.vL = "v1"
        self.t = ["v5", "v6", "v7"]
        self.Q = [8, 12]
        self.vP, self.vG = "v16", "v17"
        self.vS = ["v18", "v19"]
        self.RQ = [20, 24]
        self.NS = o.slots
        self.aX0 = 0
        self.aXF = 128
        self.aW = 192
        self.aACC = self.aW + 8 * self.NS
        self.nA = 256 - self.aACC
        self.vACC = self.nA
        NS = self.NS
        nshort = (-128) % NS
        nlong = (128 - nshort * (NS - 1)) // NS
        first = min(nlong, o.short_at // NS)
        seq = list(range(NS)) * first + list(range(NS - 1)) * nshort + list(range(NS)) * (nlong - first)
        assert len(seq) == 128
        self.slot = seq
        site = {}
        for s2 in range(-128, 256):
            p = s2 - 1
            while seq[p % 128] != seq[s2 % 128]:
                p -= 1
            site[s2] = max(p, site.get(s2 - 1, -10 ** 9))
        self.site = site
        self.loads_at = {}
        for s2 in range(0, 256):
            self.loads_at.setdefault(site[s2], []).append(s2)
        self.small = self.vACC < 28
        if self.small:
            self.vP = self.vB
            q0 = [int(self.acc_tile(nt, 0, 0, 1)[1:]) for nt in range(4)]
            self.vG, self.vS, self.RQ = f"v{q0[0]}", [f"v{q0[0] + 1}", f"v{q0[0] + 2}"], [q0[1], q0[2]]
        self.stampn = 0
        self.names = []
        self.ool = []

    def acc(self, p, i, n=1):
        h = self.nA // 2
        nv = 128 - h
        if i < nv:
            assert i + n <= nv
            return R("v", self.vACC + p * nv + i, n)
        return R("a", self.aACC + p * h + (i - nv), n)

    def acc_tile(self, nt, bt, r=0, n=4):
        return self.acc(nt >> 2, ((nt & 3) * 8 + bt) * 4 + r, n)

    def x0reg(self, kbl, bt, j=0, n=4):
        return R("a", self.aX0 + (kbl * 8 + bt) * 4 + j, n)

    def xf(self, bt, c):
        return R("a", self.aXF + (bt * 2 + c) * 4, 4)

    def wslot(self, s, c):
        return R("a", self.aW + (self.slot[s % 128] * 2 + c) * 4, 4)

    def wload(self, s, c, dst=None):
        if self.o.gload:
            d = dst or self.wslot(s, c)
            off = (s & 3) * 2048 + c * 1024 - 4096
            return I(f"global_load_dwordx4 {d}, {self.vW}, s[70:71] offset:{off}{self.o.wflags}", "vld",
                     rd=[self.vW, "s[70:71]"], wr=[d])
        return bload(dst or self.wslot(s, c), self.vW, self.sW, self.sWoff, (s & 1) * 2048 + c * 1024, flags=self.o.wflags)

    def wstep(self, s):
        if self.o.gload:
            if (s & 3) != 3:
                return []
            d = 8192 if (s % 128) != 127 else 8192 + 2 * MB - 256 * 1024
            both = I(f"s_add_u32 s70, s70, {d}\n s_addc_u32 s71, s71, 0", "salu", rd=["s[70:71]"], wr=["s[70:71]"])
            both.states = 2
            return [both]
        if not s & 1:
            return []
        return [salu("s_add_u32", self.sWoff, self.sWoff, 4096 if (s % 128) != 127 else 4096 + 2 * MB - 256 * 1024)]

    def xread(self, bt, c, rho, ss):
        return dsread(self.xf(bt, c), self.vXr[ss >> 1], (ss & 1) * 32768 + bt * 4096 + rho * 2048 + c * 1024)

    def stamp(self, name="x"):
        if not self.o.stamps:
            return []
        if self.o.pstamps and name in ("kernarg", "stores_issued", "signalled", "x0_issued", "x0_part", "flag_seen"):
            return []
        n = self.stampn
        self.stampn += 1
        self.names.append(name)
        assert n < 15
        return [raw(f"s_memtime s[{72 + 2 * n}:{73 + 2 * n}]", "other")]

    def lstamp(self, name, lval):
        if not self.o.pstamps:
            return []
        n = self.stampn
        return [raw(f"s_cmp_eq_u32 s25, {lval}"), raw(f"s_cbranch_scc0 Lns{n}")] + self.stamp(name) + [Label(f"Lns{n}")]

    def epi_unit(self, kbl, bt, q, pk=False):
        s = []
        accs = [self.acc_tile(2 * kbl + t, bt, r, 1) for t in range(2) for r in range(4)]
        hi, lo, m = self.t
        for j in range(4):
            a0, a1 = accs[2 * j], accs[2 * j + 1]
            if self.o.pkmul or pk:
                s.append(valu("v_accvgpr_read_b32", "v7", self.x0reg(kbl, bt, j, 1)))
                ap = f"v[{a0[1:]}:{a1[1:]}]"
                if a0[0] == "a":
                    tp = int(self.acc_tile(3, 0, 0, 1)[1:]) if pk else 28
                    s.append(valu("v_accvgpr_read_b32", f"v{tp}", a0))
                    s.append(valu("v_accvgpr_read_b32", f"v{tp + 1}", a1))
                    ap = R("v", tp, 2)
                s.append(valu("v_lshlrev_b32", "v6", 16, "v7"))
                s.append(valu("v_and_b32", "v7", self.sMask, "v7"))
                s.append(valu("v_pk_mul_f32", "v[6:7]", "v[6:7]", ap))
                s.append(valu("v_cvt_pk_bf16_f32", f"v{q + j}", "v6", "v7"))
                continue
            s.append(valu("v_accvgpr_read_b32", hi, self.x0reg(kbl, bt, j, 1)))
            if a0[0] == "a":
                s.append(valu("v_accvgpr_read_b32", m, a0))
                a0 = m
            s.append(valu("v_lshlrev_b32", lo, 16, hi))
            s.append(valu("v_and_b32", hi, self.sMask, hi))
            s.append(valu("v_mul_f32", lo, lo, a0))
            if a1[0] == "a":
                s.append(valu("v_accvgpr_read_b32", m, a1))
                a1 = m
            s.append(valu("v_mul_f32", hi, hi, a1))
            s.append(valu("v_cvt_pk_bf16_f32", f"v{q + j}", lo, hi))
        return s

    def xstore(self, src, p, u, tmp, state):
        if self.o.noxch or self.o.nost:
            return []
        s = []
        off = p * 16384 + u * 1024
        if state.get("g") != off >> 12:
            state["g"] = off >> 12
            s.append(salu("s_add_u32", tmp, self.sXs, off & ~4095))
        s.append(tagged(bstore(src, self.vXw, self.sE, tmp, off & 4095, flags=self.o.xsflags), f"xs{p}"))
        return s

    def xnext(self, reg, back):
        n = self.o.xbufs
        if n == 1:
            return [salu("s_sub_u32", reg, reg, back)]
        if n == 2:
            return [salu("s_sub_u32", reg, reg, back), salu("s_xor_b32", reg, reg, hex(32 * MB))]
        return [salu("s_add_u32", reg, reg, hex(32 * MB - back))]

    def epi_stream(self, p, ndirect=16):
        s = []
        st = {}
        for bt in range(8):
            for c in range(2):
                q = self.Q[c]
                s += self.epi_unit(2 * p + c, bt, q)
                s.append(dswrite(self.vXw, R("v", q, 4), bt * 4096 + p * 2048 + c * 1024))
                if bt * 2 + c < ndirect:
                    s += self.xstore(R("v", q, 4), p, bt * 2 + c, "s68", st)
        return s

    def pub_stream(self, p, lo, hi):
        s = []
        st = {}
        if self.o.noxch or lo >= hi:
            return s
        assert not self.small

        def rd(u):
            return dsread(R("v", self.RQ[u & 1], 4), self.vXw, (u >> 1) * 4096 + p * 2048 + (u & 1) * 1024)

        s.append(rd(lo))
        s += space(6)
        for u in range(lo, hi):
            if u + 1 < hi:
                s.append(rd(u + 1))
            s.append(Wait(lg=[R("v", self.RQ[u & 1], 4)]))
            s += self.xstore(R("v", self.RQ[u & 1], 4), p, u, "s69", st)
        return s

    def x0pub_stream(self, p, lo=0, hi=16):
        s = []
        st = {}
        for u in range(lo, hi):
            s += self.xstore(self.x0reg(2 * p + (u & 1), u >> 1), p, u, "s68", st)
        return s

    def xch_dma(self, p):
        if self.o.gather:
            return self.xch_dma_g(p)
        s = [raw(f"s_add_u32 m0, {self.sLds}, {p * 2048}", "salu", rd=[self.sLds])] + space(1)
        for bt in range(8):
            for c in range(2):
                if not self.o.noxch:
                    s.append(dma(self.vXw, self.sE, self.sXl, c * 1024, self.o.xlflags, f"xl{p}"))
            if bt < 7:
                s.append(raw("s_add_u32 m0, m0, 4096", "salu"))
            if bt == 7 and p == 1:
                s += self.xnext(self.sXl, 15 * 2048)
            else:
                s.append(salu("s_add_u32", self.sXl, self.sXl, 2048))
        return s

    def xch_dma_g(self, p):
        t0, t1 = self.t[0], self.t[1]
        vL = self.vL
        if self.o.quadg:
            X = self.vXw
            self.ool += [Label(f"Lgat{p}"),
                         raw(f"v_lshrrev_b32 {t0}, 4, {X}"), raw(f"v_and_b32 {t0}, 0x20, {t0}"), raw(f"v_xor_b32 {t0}, {t0}, {X}"),
                         raw(f"v_and_b32 {t0}, 0x30, {t0}"), raw(f"v_bfe_u32 {t1}, {X}, 6, 4"),
                         raw(f"v_lshl_add_u32 {t1}, {t1}, 11, {t0}"), raw(f"s_branch Lgatr{p}")]
        else:
            self.ool += [Label(f"Lgat{p}"),
                         raw(f"v_and_b32 {t0}, 0xf0, {vL}"), raw(f"v_lshrrev_b32 {t1}, 4, {vL}"),
                         raw(f"v_and_b32 {t1}, 0x30, {t1}"), raw(f"v_lshl_add_u32 {t1}, {t0}, 7, {t1}"),
                         raw(f"s_branch Lgatr{p}")]
        sel = I(f"v_mov_b32 {t1}, {self.vXw}\n s_cmp_eq_u32 {self.sL}, 0\n s_cbranch_scc1 Lgat{p}\nLgatr{p}:", "valu",
                rd=[self.vXw], wr=[t0, t1])
        s = [sel, raw(f"s_add_u32 m0, {self.sLds}, {p * 2048}", "salu", rd=[self.sLds])] + space(1)
        for bt in range(8):
            for c in range(2):
                if not self.o.noxch and not self.o.nodma:
                    s.append(dma(t1, self.sX, self.sXl, 0, self.o.xlflags, f"xl{p}"))
                s.append(raw(f"s_add_u32 m0, m0, {1024 if c == 0 else 3072}", "salu"))
                s.append(salu("s_add_u32", self.sXl, self.sXl, "s20" if c == 0 else "s21" if bt < 7 else "s22"))
            if bt < 7 and (bt + 1) % self.o.dmagroup == 0:
                s += space(self.o.dmapair * self.o.dmagroup)
        return s

    def xr_gathered(self):
        if not self.o.quadg:
            return []
        t0, X, r0, r1 = self.t[0], self.vXw, self.vXr[0], self.vXr[1]
        self.ool += [Label("Lxrg"),
                     raw(f"v_lshrrev_b32 {t0}, 2, {X}"), raw(f"v_and_b32 {t0}, 0x20, {t0}"),
                     raw(f"v_lshrrev_b32 {r1}, 4, {X}"), raw(f"v_xor_b32 {t0}, {t0}, {r1}"),
                     raw(f"v_and_b32 {t0}, 0x30, {t0}"), raw(f"v_bfe_u32 {r0}, {X}, 4, 4"),
                     raw(f"v_lshl_add_u32 {r0}, {r0}, 6, {t0}"), raw(f"v_add_u32 {r1}, 0x10000, {r0}"),
                     raw("s_branch Lxrgr")]
        return [I(f"s_cmp_eq_u32 {self.sL}, 0\n s_cbranch_scc1 Lxrg\nLxrgr:", "valu", rd=[X], wr=[t0, r0, r1])]

    def xr_plain(self):
        if not self.o.quadg:
            return []
        return [valu("v_and_b32", self.vXr[0], 0x3ff, self.vXw), valu("v_add_u32", self.vXr[1], 65536, self.vXr[0])]

    def xch_switch(self):
        return [salu("s_mov_b32", "s8", "s32"), salu("s_mov_b32", "s9", "s33"), salu("s_mov_b32", "s10", "s34"),
                salu("s_mov_b32", "s20", 1024), salu("s_mov_b32", "s21", 1024), salu("s_mov_b32", "s22", 1024),
                salu("s_xor_b32", self.sXl, self.sXs, 1 << 17)]

    def calc_vG(self, vG):
        t0, t1 = self.t[0], self.t[1]
        return [valu("v_lshrrev_b32", t0, 7, self.vL), valu("v_lshlrev_b32", t1, 4, t0),
                valu("v_xor_b32", t1, t1, self.vL), valu("v_and_b32", t1, 0x70, t1),
                valu("v_lshl_add_u32", vG, t0, 11, t1)]

    def calc_vS(self, vS):
        t0, t1 = self.t[0], self.t[1]
        vL = self.vL
        return [valu("v_lshrrev_b32", t0, 4, vL), valu("v_and_b32", t0, 0x30, t0), valu("v_xor_b32", t0, t0, vL),
                valu("v_and_b32", t0, 0x70, t0), valu("v_and_b32", t1, 0xf0, vL),
                valu("v_lshl_add_u32", t0, t1, 3, t0), valu("v_add_u32", vS[0], self.sLds, t0),
                valu("v_xor_b32", vS[1], 64, vS[0])]

    def out_setup(self):
        return self.calc_vG(self.vG) + self.calc_vS(self.vS)

    def x0h_dma(self, p, lo, hi, vG):
        r = []
        for i in range(lo, hi):
            r.append(raw(f"s_add_u32 m0, {self.sLds}, {(i >> 1) * 4096 + p * 2048 + (i & 1) * 1024}", "salu"))
            r.append(salu("s_add_u32", "s3", self.sRow, i * 16384 + p * 128))
            r.append(dma(vG, self.sX, "s3", 0, self.o.xflags, f"x0_{p}_{i >> 1}"))
        return r

    def x0h_read(self, p, bt, vS):
        return [Wait(vm=[f"x0_{p}_{bt}"])] + [dsread(self.x0reg(2 * p + c, bt), vS[c], bt * 4096 + p * 2048)
                                              for c in range(2)]

    def x0h_write(self, p, bt):
        return [Wait(lg=[self.x0reg(2 * p + c, bt) for c in range(2)])] + [
            dswrite(self.vXw, self.x0reg(2 * p + c, bt), bt * 4096 + p * 2048 + c * 1024) for c in range(2)]

    def wreg0(self, s, c):
        if s < 16 - self.NS:
            return self.acc(1, (s * 2 + c) * 4, 4)
        return self.wslot(s, c)

    def out_stream(self, p):
        s = []
        pend = []
        for bt in range(8):
            for c in range(2):
                q = self.Q[c]
                u = self.epi_unit(2 * p + c, bt, q, pk=(p == 1 and self.o.tailpk))
                if c == 0 and pend:
                    u = u[:12] + pend + u[12:]
                    pend = []
                s += u
                if p == 0 and bt == 0 and c == 0:
                    s += self.out_setup()
                s.append(dswrite(self.vS[c], R("v", q, 4), bt * 4096))
            for i in range(2):
                s.append(dsread(R("v", self.RQ[i], 4), self.vXw, bt * 4096 + i * 1024))
            for i in range(2):
                pend.append(Wait(lg=[R("v", self.RQ[i], 4)]))
                pend.append(salu("s_add_u32", "s3", self.sRow, bt * 32768 + i * 16384))
                pend.append(bstore(R("v", self.RQ[i], 4), self.vG, self.sO, "s3", p * 128, flags=self.o.oflags))
        return s + pend

    def calc_vB(self):
        return [valu("v_bfe_u32", self.vB, self.vXw, 8, 2),
                valu("v_lshl_add_u32", self.vB, self.vB, 5, self.sBias)]

    def bias_stream(self, p):
        s = []
        if self.o.nobias:
            return [valu("v_add_f32", self.acc_tile(4 * p, 0, 0, 1), self.acc_tile(4 * p, 0, 0, 1), 0) for _ in range(8)]

        def rd(nt):
            return dsread(R("v", self.Q[nt & 1], 4), self.vB, (nt >> 1) * 128 + (nt & 1) * 16)

        s.append(rd(4 * p))
        s += space(8)
        for nt in range(4 * p, 4 * p + 4):
            q = self.Q[nt & 1]
            cnt = 0
            for bt in range(8):
                for r in range(4):
                    if cnt == 0:
                        s.append(Wait(lg=[R("v", q, 4)]))
                    a = self.acc_tile(nt, bt, r, 1)
                    if self.o.pkadd and a[0] == "v":
                        if not r & 1:
                            ap = self.acc_tile(nt, bt, r, 2)
                            s.append(valu("v_pk_add_f32", ap, ap, R("v", q + r, 2)))
                    elif a[0] == "a":
                        t = self.t[cnt & 1]
                        s.append(valu("v_accvgpr_read_b32", t, a))
                        s.append(valu("v_add_f32", t, t, f"v{q + r}"))
                        s.append(valu("v_accvgpr_write_b32", a, t))
                    else:
                        s.append(valu("v_add_f32", a, a, f"v{q + r}"))
                    cnt += 1
                    if cnt == 1 and nt + 1 < 4 * p + 4:
                        s.append(rd(nt + 1))
        return s

    def prep_load(self):
        t0, t1 = self.t[0], self.t[1]
        s = [valu("v_lshrrev_b32", t0, 6, self.vL),
             valu("v_and_b32", t1, 48, self.vL),
             valu("v_lshl_add_u32", t0, t0, 11, t1),
             raw(f"s_mov_b32 m0, {self.sStage}", "salu", rd=[self.sStage]),
             salu("s_add_u32", "s3", self.sRaw, 32768 - 1024)]
        s.append(dma(t0, self.sR, self.sRaw, 0, self.o.rflags, "raw"))
        s.append(dma(t0, self.sR, "s3", 1024, self.o.rflags, "raw"))
        s.append(salu("s_add_u32", self.sRaw, self.sRaw, D * D * 2))
        return s

    def prep_store(self, sp=0):
        t0 = self.t[0]
        t1 = self.t[2]
        s = [valu("v_and_b32", t0, 0x300, self.vXw),
             valu("v_and_b32", t1, 0x3ff, self.vXw),
             valu("v_add3_u32", t0, t0, t1, self.sStage),
             Wait(vm=["raw"])]
        for t in range(2):
            for h in range(2):
                s.append(I(f"ds_read_b64_tr_b16 {R('v', self.Q[t] + 2 * h, 2)}, {t0} offset:{h * 256 + t * 8}", "dsr",
                           rd=[t0], wr=[R("v", self.Q[t] + 2 * h, 2)]))
        s += space(sp)
        for t in range(2):
            s.append(Wait(lg=[R("v", self.Q[t], 4)]))
            s.append(tagged(bstore(R("v", self.Q[t], 4), t1, self.sW, self.sDst, t * 2048, flags=" sc1"), "pst"))
        s.append(salu("s_add_u32", self.sDst, self.sDst, D * D * 2))
        return s

    def wsignal(self):
        t = self.t[2]
        return [valu("v_mov_b32", t, 1),
                I(f"buffer_atomic_add {t}, {self.vW}, {self.sC}, 0 offen sc1", "vst", rd=[t, self.vW])]

    def psignal(self, p):
        t = self.t[2]
        return [salu("s_add_u32", self.sFlag, self.sFlag, 1), Wait(vm=[f"xs{p}"]),
                valu("v_mov_b32", t, self.sFlag),
                bstore(t, self.vL, self.sFm, 0, w="dword", flags=" sc1")]

    def wpoll_load(self):
        v = self.vP
        return [valu("v_lshlrev_b32", v, 2, self.vXw), valu("v_and_b32", v, 0xc0, v),
                bload(v, v, self.sD, 0, w="dword", flags=" sc1")]

    def ppoll_load(self):
        return [I(f"buffer_load_dword {self.vP}, off, {self.sFp}, 0 sc1", "vld", wr=[self.vP])]

    def poll_check(self, name, need, inc, loader):
        v = self.vP
        spin = [Label(f"Lspin_{name}"), raw(f"s_add_u32 {self.sSpin}, {self.sSpin}, 1")]
        if self.o.backoff:
            spin.append(raw(f"s_sleep {self.o.backoff}"))
        spin += [raw(x.text) for x in loader()]
        spin += [raw(f"s_cmp_ge_u32 {self.sSpin}, 0x100000"),
                 raw(f"s_cbranch_scc1 Lgiveup_{name}"),
                 raw("s_waitcnt vmcnt(0)"),
                 raw(f"v_cmp_gt_i32 vcc, {need}, {v}"),
                 raw(f"s_cbranch_vccnz Lspin_{name}"),
                 Label(f"Lgiveup_{name}"),
                 raw("s_waitcnt vmcnt(0)"),
                 raw(f"s_branch Lok_{name}")]
        self.ool += spin
        return [Wait(vm=[v]), I(f"v_cmp_gt_i32 vcc, {need}, {v}", "valu", rd=[v, need]),
                raw(f"s_cbranch_vccnz Lspin_{name}", "branch"), Label(f"Lok_{name}"),
                salu("s_add_u32", need, need, inc)]

    def phase(self, s0, nts, rho, next_rho, stream=(), bar=False, last=False, start=0, end=None, pre_bar=(),
              fixed=(), extra=(), wreg=None, skip_below=0, post_bar=()):
        o = self.o
        NS = self.NS
        NT = len(nts)
        L = NT * 16
        mf = []
        gaps = [[] for _ in range(4 * L)]
        fwd = list(range(8))
        wreg = wreg or self.wslot
        for ss in range(4):
            base = ss * L
            for k, nt in enumerate(nts):
                s = s0 + ss * NT + k
                order = fwd if ((ss + k) & 1) == 0 else fwd[::-1]
                for j, bt in enumerate(order):
                    for i in range(2):
                        c = i ^ (j & 1)
                        mf.append(mfma(16, self.acc_tile(nt, bt), wreg(s, c), self.xf(bt, c)))
                g = base + k * 16
                at = self.loads_at.get(s, [])
                for n, sn in enumerate(at):
                    if (last and sn >= 128) or o.now or sn < skip_below:
                        continue
                    ga, gb, gc = g + (14 if n == 0 else 15), g + 15, g + 18
                    if o.wdelay and g + 16 < 4 * L and (o.wdelay == 2 or k == NT - 1):
                        ga, gb, gc = g + 17 + 4 * n, g + 19 + 4 * n, g + 20 + 4 * n
                    elif o.wdelay and g + 16 < 4 * L and len(at) == 1:
                        gb, gc = g + 17, g + 19
                    elif not (g + 18 < 4 * L and n == len(at) - 1):
                        gc = g + 15
                    gaps[ga].append(hoist(self.wload(sn, 1)))
                    gaps[gb].append(hoist(self.wload(sn, 0)))
                    gaps[gc] += self.wstep(sn)
                if k < NT - 1:
                    gaps[g + 15].append(Wait(vm=[wreg(s + 1, 0), wreg(s + 1, 1)]))
                if k == 0:
                    for j in range(o.xw, 8, o.xw):
                        gaps[g + 2 * j - 1].append(
                            Wait(lg=[self.xf(order[jj], c) for jj in range(j, min(8, j + o.xw)) for c in range(2)]))
            nrho, nss = (rho, ss + 1) if ss < 3 else (next_rho, 0)
            gl = base + L - 16
            if ss == 3 and bar:
                gaps[gl - o.bar_lead] += list(pre_bar) + [Wait(all_lg=True), barrier()]
                gaps[gl - o.bar_lead + 1] += list(post_bar)
            if nrho is not None:
                for j, bt in enumerate(order):
                    for i in range(2):
                        c = i ^ (j & 1)
                        if not o.nox:
                            gaps[gl + 2 * j + i].append(hoist(self.xread(bt, c, nrho, nss)))
                s = s0 + (ss + 1) * NT
                gaps[base + L - 1].append(Wait(vm=[wreg(s, 0), wreg(s, 1)],
                                               lg=[self.xf(order[jj], c) for jj in range(o.xw) for c in range(2)]))
        for gi, inss in fixed:
            gaps[gi] += inss
        hi = end if end is not None else (4 * L - 16 - o.bar_lead if bar else 4 * L - 1)
        for st, lo2, hi2 in extra:
            self.place(gaps, list(st), lo2, hi2)
        self.place(gaps, list(stream), start, hi)
        out = []
        for i, m in enumerate(mf):
            out.append(m)
            gaps[i] = self.merge([], gaps[i])
            out += gaps[i]
        if o.verbose:
            print(f"; phase s0={s0} mfma={len(mf)} modelled excess={sum(self.gap_excess(g) for g in gaps)}", file=sys.stderr)
        return out

    @staticmethod
    def gap_excess(items):
        slots = 0
        ex = 0
        free = 2
        seenv = False
        for x in items:
            k = x.kind
            if k in ("valu", "nop"):
                slots += 1
                seenv = True
                continue
            if k in ("dsr", "vld", "dsw", "vst") and seenv:
                ex += 8
            if k == "dsr":
                slots += 1
            elif k == "vld":
                slots += 1 if x.text.startswith("global") else 2
            elif k == "dsw":
                ex += 12
                free -= 2
            elif k == "vst":
                ex += (20 if x.big else 4) + 4 * slots + (8 if free < 2 else 0)
                free = 4 if x.big else free - 1
            elif k == "barrier":
                ex += 24
        return ex + 4 * max(0, slots - max(free, 0))

    @staticmethod
    def merge(items, fixed):
        k = 0
        lead, rest = [], []
        stop = False
        for x in fixed:
            if not stop and x.kind in ("dsr", "vld") and getattr(x, "note", "") == "hoist":
                lead.append(x)
            else:
                rest.append(x)
                if x.kind not in ("wait",):
                    stop = True
        items = [x for x in items if x.kind != "space"]
        j = 0
        while j < len(items) and items[j].kind in ("salu", "wait"):
            j += 1
        if j < len(items) and items[j].kind == "vst":
            return items[:j + 1] + lead + items[j + 1:] + rest
        return lead + items + rest

    def place(self, gaps, stream, lo, hi):
        if not stream:
            return
        n, G = len(stream), hi - lo
        KMAX = 8
        INF = float("inf")
        dp = [INF] * (n + 1)
        dp[0] = 0.0
        back = []
        NG = len(gaps)
        cnt = lambda g, kind: sum(1 for x in gaps[g] if x.kind == kind) if g < NG else 0
        for g in range(G):
            fixed = gaps[lo + g]
            base = self.gap_excess(self.merge([], fixed))
            wpen = 7 * sum(cnt(lo + g + d, "dsr") for d in (1, 2, 3)) + 4 * cnt(lo + g, "dsr")
            spen = 12 * cnt(lo + g + 1, "vld") + 6 * cnt(lo + g, "vld") + 4 * cnt(lo + g + 2, "vld")
            nd = [INF] * (n + 1)
            bk = [0] * (n + 1)
            tgt = n * (g + 1) / G
            for i in range(n + 1):
                if dp[i] == INF:
                    continue
                for k in range(0, min(KMAX, n - i) + 1):
                    c = dp[i]
                    if k:
                        its = stream[i:i + k]
                        if k > 1 and its[-2].kind == "space":
                            break
                        c += self.gap_excess(self.merge(its, fixed)) - base
                        c += sum(wpen if x.kind == "dsw" else spen if x.kind == "vst" else 0 for x in its)
                    c += self.o.pace * ((i + k - tgt) / max(1.0, n / G)) ** 2 + 0.02 * k * k
                    if c < nd[i + k]:
                        nd[i + k] = c
                        bk[i + k] = k
            dp = nd
            back.append(bk)
        assert dp[n] < INF
        i = n
        for g in range(G - 1, -1, -1):
            k = back[g][i]
            gaps[lo + g] = self.merge(stream[i - k:i], gaps[lo + g])
            i -= k

    def prologue(self):
        o = self.o
        vL = self.vL
        b = []
        b.append(salu("s_cmp_ge_u32", "s2", 256))
        b.append(raw("s_cbranch_scc1 Lend", "branch"))
        b += self.stamp("start")
        if o.stamps:
            b.append(raw("s_memrealtime s[36:37]"))
        b += [nop(0) for _ in range(o.shift)]
        b += [sload("s[56:59]", 0, 4), sload("s[60:63]", 16, 4), sload("s[64:67]", 32, 4)]
        b.append(valu("v_lshrrev_b32", "v9", 6, "v0"))
        b.append(valu("v_and_b32", "v10", 63, "v0"))
        b.append(valu("v_readfirstlane_b32", self.sWave, "v9"))
        b.append(valu("v_lshlrev_b32", vL, 4, "v10"))
        if o.cpf:
            b.append(raw("s_getpc_b64 s[4:5]", "salu"))
            b.append(Label("Lpc"))
            b.append(valu("v_lshlrev_b32", "v11", 6, "v0"))
            if o.cpfsplit:
                b += [salu("s_bfe_u32", "s3", "s2", "0x20003"), salu("s_lshl_b32", "s3", "s3", 14),
                      valu("v_add_u32", "v11", "s3", "v11")]
            for i in range(1 if o.cpfsplit else o.cpf):
                b.append(raw(f"v_min_u32 v12, Lend-Lpc, v11", "valu", rd=["v11"], wr=["v12"]))
                b.append(I(f"global_load_dword v{60 + i}, v12, s[4:5]", "vld", rd=["v12"], wr=[f"v{60 + i}"]))
                b.append(valu("v_add_u32", "v11", 16384, "v11"))
        b.append(valu("v_lshrrev_b32", "v11", 7, "v0"))
        b.append(valu("v_and_b32", "v12", 127, "v0"))
        b.append(valu("v_lshlrev_b32", "v12", 3, "v12"))
        b.append(valu("v_lshl_add_u32", "v30", "v11", 11, "v12"))
        b.append(valu("v_lshlrev_b32", "v31", 4, "v0"))
        b.append(valu("v_add_u32", "v31", LDS_BIAS, "v31"))
        b.append(valu("v_add_u32", self.vXr[1], 65536, vL))
        b.append(valu("v_lshl_add_u32", self.vXw, "v9", 15, vL))
        b.append(valu("v_lshl_add_u32", self.vW, "v9", 18, vL))
        nb0 = len(b)
        b.append(valu("v_lshrrev_b32", "v11", 4, "v10"))
        b.append(valu("v_and_b32", "v12", 15, "v10"))
        b.append(valu("v_xor_b32", "v13", "v11", "v12"))
        b.append(valu("v_lshlrev_b32", "v13", 4, "v13"))
        b.append(valu("v_lshl_add_u32", "v20", "v11", 11, "v13"))
        for i in range(1, 4):
            b.append(valu("v_xor_b32", f"v{20 + i}", 64 * i, "v20"))
        b.append(valu("v_lshl_add_u32", "v24", "v12", 8, "v13"))
        b.append(valu("v_lshl_add_u32", "v24", "v9", 15, "v24"))
        for i in range(1, 4):
            b.append(valu("v_xor_b32", f"v{24 + i}", 64 * i, "v24"))
        if o.early == 1:
            del b[nb0:]
        b.append(salu("s_and_b32", "s7", "s2", 1))
        b.append(salu("s_lshr_b32", self.sRow, "s2", 1))
        b.append(salu("s_lshl_b32", self.sRow, self.sRow, 18))
        b.append(salu("s_lshl_b32", "s6", "s7", 10))
        b.append(salu("s_add_u32", self.sRow, self.sRow, "s6"))
        b.append(salu("s_lshl_b32", "s6", self.sWave, 8))
        b.append(salu("s_add_u32", self.sRow, self.sRow, "s6"))
        b.append(salu("s_mov_b32", self.sMask, "0xffff0000"))
        b.append(salu("s_lshl_b32", self.sWoff, "s7", 20))
        b.append(salu("s_mov_b32", self.sL, 0))
        b.append(salu("s_mov_b32", self.sSpin, 0))
        b.append(salu("s_mov_b32", self.sFlag, -1 if o.gather else 0))
        b.append(salu("s_mov_b32", self.sNeed, 64))
        b.append(salu("s_mov_b32", self.sPNeed, -1 if o.gather else 1))
        b.append(salu("s_lshl_b32", self.sLds, self.sWave, 15))
        b.append(salu("s_lshl_b32", self.sXs, "s2", 17))
        b.append(salu("s_add_u32", self.sXs, self.sXs, o.xbase * MB))
        b.append(salu("s_xor_b32", self.sXl, self.sXs, 1 << 17))
        b.append(salu("s_lshr_b32", "s4", "s2", 3))
        b.append(salu("s_and_b32", "s5", "s2", 7))
        b.append(salu("s_lshl_b32", self.sRaw, "s4", 16))
        b.append(salu("s_lshl_b32", "s6", "s5", 8))
        b.append(salu("s_add_u32", self.sRaw, self.sRaw, "s6"))
        b.append(salu("s_lshl_b32", "s6", self.sWave, 6))
        b.append(salu("s_add_u32", self.sRaw, self.sRaw, "s6"))
        b.append(salu("s_lshl_b32", self.sDst, "s5", 18))
        b.append(salu("s_and_b32", "s6", "s4", 1))
        b.append(salu("s_lshl_b32", "s6", "s6", 10))
        b.append(salu("s_add_u32", self.sDst, self.sDst, "s6"))
        b.append(salu("s_lshr_b32", "s6", "s4", 4))
        b.append(salu("s_lshr_b32", "s5", "s5", 2))
        b.append(salu("s_xor_b32", "s5", "s5", "s6"))
        b.append(salu("s_bfe_u32", "s6", "s4", "0x10001"))
        b.append(salu("s_lshl_b32", "s3", "s5", 1))
        b.append(salu("s_add_u32", "s3", "s3", "s6"))
        b.append(salu("s_lshl_b32", "s3", "s3", 16))
        b.append(salu("s_add_u32", self.sDst, self.sDst, "s3"))
        b.append(salu("s_bfe_u32", "s4", "s4", "0x20002"))
        b.append(salu("s_xor_b32", "s5", "s5", "s6"))
        b.append(salu("s_lshr_b32", "s3", self.sWave, 1))
        b.append(salu("s_lshl_b32", "s3", "s3", 4))
        b.append(salu("s_lshl_b32", "s6", "s4", 2))
        b.append(salu("s_add_u32", "s3", "s3", "s6"))
        b.append(salu("s_and_b32", "s6", self.sWave, 1))
        b.append(salu("s_lshl_b32", "s6", "s6", 1))
        b.append(salu("s_add_u32", "s3", "s3", "s6"))
        b.append(salu("s_lshl_b32", "s4", "s4", 3))
        b.append(salu("s_lshl_b32", "s6", self.sWave, 1))
        b.append(salu("s_add_u32", "s4", "s4", "s6"))
        b.append(salu("s_cmp_eq_u32", "s5", 0))
        b.append(salu("s_cselect_b32", "s3", "s3", "s4"))
        b.append(salu("s_lshl_b32", "s3", "s3", 11))
        b.append(salu("s_add_u32", self.sDst, self.sDst, "s3"))
        b.append(salu("s_lshl_b32", self.sStage, self.sWave, 11))
        b.append(salu("s_add_u32", self.sStage, self.sStage, LDS_STAGE))
        b.append(salu("s_lshl_b32", self.sBias, self.sWave, 9))
        b.append(salu("s_add_u32", self.sBias, self.sBias, LDS_BIAS))
        b.append(Wait(all_lg=True))
        b += self.stamp("kernarg")
        b += srd(40, "s58", "s59", NL * D * D * 2)

        def only(ins, w0):
            n = self.nseg = getattr(self, "nseg", 0) + 1
            for x in ins:
                x.note = "gy" if w0 else "gx"
            return [salu("s_cmp_eq_u32", self.sWave, 0), raw(f"s_cbranch_scc{0 if w0 else 1} Lseg{n}", "branch")] + \
                ins + [Label(f"Lseg{n}")]

        if o.w0prep:
            t0, t1 = self.t[0], self.t[1]
            r = [valu("v_lshrrev_b32", t0, 6, vL), valu("v_and_b32", t1, 48, vL), valu("v_lshl_add_u32", t0, t0, 11, t1)]
            for q in range(4):
                r += [raw(f"s_mov_b32 m0, {LDS_STAGE + q * 2048}", "salu"), salu("s_add_u32", "s3", self.sRaw, q * 64),
                      dma(t0, self.sR, "s3", 0, o.rflags, f"raw{q}"),
                      salu("s_add_u32", "s3", self.sRaw, q * 64 + 32768 - 1024),
                      dma(t0, self.sR, "s3", 1024, o.rflags, f"raw{q}")]
            b += only(r, True)
            b.append(salu("s_add_u32", self.sRaw, self.sRaw, D * D * 2))
        else:
            b += self.prep_load()
        b += srd(20, "s60", "s61", NL * D * 2)
        tb = 32
        b.append(salu("s_lshl_b32", "s3", "s7", 10))
        for m in range(3):
            b.append(bload(R("v", tb + 2 * m, 2), "v30", self.sB, "s3", w="dwordx2"))
            b.append(salu("s_add_u32", "s3", "s3", 4096))
        b += srd(8, "s56", "s57", NB * D * 2)
        b += srd(16, "s62", "s63", NB * D * 2)
        b += srd(12, "s66", "s67", NL * D * D * 2)
        b += srd(32, "s66", "s67", 256 * MB)
        b += srd(44, "s64", "s65", 256)
        b += [salu("s_add_u32", self.sWoff, self.sWoff, 4096), salu("s_add_u32", "s70", "s66", self.sWoff),
              salu("s_addc_u32", "s71", "s67", 0), salu("s_sub_u32", self.sWoff, self.sWoff, 4096)]
        b.append(salu("s_and_b32", "s3", "s2", 3))
        b.append(salu("s_lshl_b32", "s3", "s3", 6))
        b += srd_off(56, "s44", "s45", "s3", 4)
        b.append(salu("s_lshl_b32", "s3", "s2", 2))
        b.append(salu("s_add_u32", "s3", "s3", self.sWave))
        b.append(salu("s_lshl_b32", "s3", "s3", 7))
        b.append(salu("s_add_u32", "s3", "s3", WS_FLAGS))
        b += srd_off(60, "s32", "s33", "s3", 4)
        b.append(salu("s_xor_b32", "s3", "s3", 512))
        b += srd_off(64, "s32", "s33", "s3", 4)
        if o.delay:
            for _ in range(o.delay):
                b.append(raw("s_sleep 127"))
        if o.touch:
            for l in range(6):
                b.append(salu("s_add_u32", "s3", self.sXs, l * 32 * MB))
                if o.touch == 1:
                    b.append(bload(f"v{60 + l}", self.vXw, self.sE, "s3", w="dword"))
                else:
                    b.append(bstore(f"v{60 + l}", self.vXw, self.sE, "s3", w="dword", flags=" sc1"))
            b.append(Wait(all_vm=True))
        def x0dma(lo, hi):
            r = []
            for i in range(lo, hi):
                r.append(raw(f"s_add_u32 m0, {self.sLds}, {i * 1024}", "salu"))
                r.append(salu("s_add_u32", "s3", self.sRow, i * 8192))
                r.append(dma(f"v{20 + (i & 3)}", self.sX, "s3", 0, o.xflags, f"x0_{i >> 2}"))
            return r

        def x0fix(bt):
            r = [Wait(vm=[f"x0_{bt}"])]
            for kbl in range(4):
                r.append(dsread(self.x0reg(kbl, bt), f"v{24 + kbl}", bt * 4096))
            r.append(Wait(all_lg=True))
            for kbl in range(4):
                r.append(dswrite(self.vXw, self.x0reg(kbl, bt), bt * 4096 + kbl * 1024))
            if o.apub:
                r += self.x0pub_stream(0, 2 * bt, 2 * bt + 2)
            return r

        def accinit(pred):
            r = []
            for p in range(2):
                for i in range(128):
                    a = self.acc(p, i)
                    if pred(a):
                        r.append(valu("v_accvgpr_write_b32" if a[0] == "a" else "v_mov_b32", a, "1.0"))
            return r

        if o.early == 1:
            return b + self.prologue_early(accinit, tb)
        late = lambda a: a[0] == "v" and 32 <= int(a[1:]) < 72
        final = lambda a: a[0] == "v" and int(a[1:]) < 32
        na, nb, ahead, npoll = o.x0split

        def biascvt():
            r = []
            for m in range(3):
                r.append(Wait(vm=[R("v", tb + 2 * m, 2)]))
                for j in range(2):
                    src = f"v{tb + 2 * m + j}"
                    r.append(valu("v_lshlrev_b32", f"v{40 + 4 * m + 2 * j}", 16, src))
                    r.append(valu("v_and_b32", f"v{41 + 4 * m + 2 * j}", self.sMask, src))
                r.append(dswrite("v31", R("v", 40 + 4 * m, 4), m * 4096))
            return r + [Wait(all_lg=True)]

        if o.w0prep:
            t0, t1, t2 = self.t
            r = [valu("v_lshlrev_b32", t1, 3, vL), valu("v_mov_b32", t2, 0), salu("s_mov_b32", "s62", 512),
                 tagged(bstore(t2, t1, self.sFm, 0, w="dword", flags=" sc1"), "pst"), salu("s_mov_b32", "s62", 4)]
            b += only(r, True)
            b += only(x0dma(0, nb), False)
            b += accinit(lambda a: not late(a) and not final(a))
            r = [valu("v_and_b32", t0, 0x300, vL), valu("v_add3_u32", t0, t0, vL, self.sStage)]
            qs = [8, 40, 48, 64]
            for q in range(4):
                r.append(Wait(vm=[f"raw{q}"]))
                for t in range(2):
                    for h in range(2):
                        d = R("v", qs[q] + 4 * t + 2 * h, 2)
                        r.append(I(f"ds_read_b64_tr_b16 {d}, {t0} offset:{q * 2048 + h * 256 + t * 8}", "dsr", rd=[t0], wr=[d]))
            for q in range(4):
                r += [salu("s_cmp_eq_u32", "s5", 0),
                      salu("s_cselect_b32", "s3", ((q >> 1) * 16 + 2 * (q & 1)) * 2048, "s6") if q > 1 else
                      salu("s_mov_b32", "s3", 2 * q * 2048),
                      salu("s_add_u32", "s3", "s3", self.sDst), salu("s_mov_b32", "s6", 2 * (q + 1) * 2048)]
                for t in range(2):
                    r.append(Wait(lg=[R("v", qs[q] + 4 * t, 4)]))
                    r.append(tagged(bstore(R("v", qs[q] + 4 * t, 4), vL, self.sW, "s3", t * 2048, flags=" sc1"), "pst"))
            r += x0dma(0, na) + [Wait(vm=["pst"])] + self.wsignal() + x0dma(na, nb)
            b += only(r, True)
            b.append(salu("s_add_u32", self.sDst, self.sDst, D * D * 2))
            b += self.stamp("signalled")
            b += biascvt() + accinit(late)
        else:
            b.append(valu("v_mov_b32", self.t[2], 0))
            b.append(tagged(bstore(self.t[2], vL, self.sFm, 0, w="dword", flags=" sc1"), "pst"))
            b += x0dma(0, na)
            b += accinit(lambda a: not late(a) and not final(a))
            b += self.prep_store()
            b += self.stamp("stores_issued")
            b += x0dma(na, nb)
            b += biascvt() + accinit(late)
            b += [Wait(vm=["pst"]), barrier()] + self.wsignal()
            b += self.stamp("signalled")
        def wring():
            r = []
            for s in [x for x in range(128) if self.site[x] < 0]:
                r += [self.wload(s, 1), self.wload(s, 0)] + self.wstep(s)
            return r

        def path(name, nb2, npoll, stamps):
            st = self.stamp if stamps else (lambda n: [])
            r = x0dma(nb, nb2)
            issued = max(nb, nb2)
            checked = False
            poll_before = None
            for bt in range(8):
                want = min(32, 4 * (bt + 1 + ahead))
                if bt == npoll:
                    r += self.wpoll_load()
                    poll_before = (issued + 3) // 4 if npoll else 0
                if want > issued and (npoll or checked):
                    r += x0dma(issued, want)
                    issued = want
                if poll_before is not None and not checked and bt >= poll_before:
                    r += st("x0_part")
                    r += self.poll_check(name, self.sNeed, 64, self.wpoll_load)
                    r += st("flag_seen")
                    checked = True
                    if npoll:
                        r += x0dma(issued, 32) + wring()
                        issued = 32
                    else:
                        r += wring() + x0dma(issued, want)
                        issued = max(issued, want)
                r += x0fix(bt)
            assert checked and issued == 32
            return r

        if o.stagger < 0:
            b += path("pro", nb, npoll, True)
        else:
            px = path("prox", nb, npoll, True)
            n0 = self.stampn
            self.stampn -= 2 if o.stamps and not o.pstamps else 0
            self.names = self.names[:self.stampn]
            py = path("proy", o.ynb, 0, True)
            assert self.stampn == n0
            for x in px:
                x.note = "gx"
            for x in py:
                x.note = "gy"
            b += [salu("s_bitcmp1_b32", "s2", o.stagger), raw("s_cbranch_scc1 Lgy", "branch")]
            b += px + [raw("s_branch Lgjoin", "branch"), Label("Lgy")] + py + [Label("Lgjoin")]
        b += accinit(final)
        if o.gather:
            b += [salu("s_xor_b32", self.sXl, self.sRow, 1024), salu("s_mov_b32", "s20", 64),
                  salu("s_mov_b32", "s21", 32768 - 64), salu("s_mov_b32", "s22", hex((128 - 64 - 7 * 32768) & 0xffffffff))]
        b += [Wait(all_lg=True), barrier()]
        for j in range(8):
            for i in range(2):
                b.append(self.xread(j, i ^ (j & 1), 0, 0))
        b.append(Wait(lg=[self.xf(j, c) for j in range(o.xw) for c in range(2)], vm=[self.wslot(0, 0), self.wslot(0, 1)]))
        if o.desync:
            b += [raw("s_lshr_b32 s3, s2, 1"), raw("s_and_b32 s3, s3, 15"), Label("Lds"), raw(f"s_sleep {o.desync}"),
                  raw("s_sub_u32 s3, s3, 1"), raw("s_cbranch_scc0 Lds")]
        b += self.stamp("pro_done")
        return b

    def prologue_early(self, accinit, tb):
        o = self.o
        vL = self.vL
        b = []
        vG, vS = "v20", ["v21", "v22"]
        wbuf = set(r for s in range(16 - self.NS) for c in range(2) for r in regs(self.wreg0(s, c)))
        late = lambda a: a[0] == "v" and 32 <= int(a[1:]) < 64
        final = lambda a: a[0] == "v" and int(a[1:]) < 32
        na, nb, npoll, nB0 = o.x0split
        b.append(valu("v_mov_b32", self.t[2], 0))
        b.append(tagged(bstore(self.t[2], vL, self.sFm, 0, w="dword", flags=" sc1"), "pst"))
        b += self.calc_vG(vG) + self.calc_vS(vS)
        b += self.x0h_dma(0, 0, na, vG)
        b += accinit(lambda a: not late(a) and not final(a) and a not in wbuf)
        b += self.prep_store()
        b += self.stamp("stores_issued")
        b += self.x0h_dma(0, na, nb, vG)
        for m in range(3):
            b.append(Wait(vm=[R("v", tb + 2 * m, 2)]))
            for j in range(2):
                src = f"v{tb + 2 * m + j}"
                b.append(valu("v_lshlrev_b32", f"v{40 + 4 * m + 2 * j}", 16, src))
                b.append(valu("v_and_b32", f"v{41 + 4 * m + 2 * j}", self.sMask, src))
            b.append(dswrite("v31", R("v", 40 + 4 * m, 4), m * 4096))
        b.append(Wait(all_lg=True))
        b += accinit(late)
        b += [Wait(vm=["pst"]), barrier()] + self.wsignal()
        b += self.stamp("signalled")
        b += self.x0h_dma(0, nb, 16, vG)
        def only0(ins):
            if not o.poll0:
                return ins
            n = self.nseg = getattr(self, "nseg", 0) + 1
            for x in ins:
                x.note = "gy"
            return [salu("s_cmp_eq_u32", self.sWave, 0), raw(f"s_cbranch_scc0 Lseg{n}", "branch")] + ins + [Label(f"Lseg{n}")]

        for bt in range(8):
            if bt == npoll:
                b += only0(self.wpoll_load()) + self.x0h_dma(1, 0, nB0, vG)
            b += self.x0h_read(0, bt, vS)
            if bt:
                b += self.x0h_write(0, bt - 1)
        if npoll >= 8:
            b += only0(self.wpoll_load()) + self.x0h_dma(1, 0, nB0, vG)
        b += self.x0h_write(0, 7)
        b += self.stamp("x0_part")
        chk = self.poll_check("pro", self.sNeed, 64, self.wpoll_load)
        if o.poll0:
            b += only0(chk[:-1]) + chk[-1:]
            chk = []
        b += [Wait(all_lg=True), barrier()]
        xr = [self.xread(j, i ^ (j & 1), 0, 0) for j in range(8) for i in range(2)]
        if not o.poll0:
            b += xr + chk
            xr = []
        b += self.stamp("flag_seen")
        for s in range(16):
            b += [self.wload(s, 1, self.wreg0(s, 1)), self.wload(s, 0, self.wreg0(s, 0))]
            b += self.wstep(s)
            if s == 3:
                b += xr
        b += self.x0h_dma(1, nB0, max(nB0, o.nb_pro) if o.gather else 16, vG)
        b.append(valu("v_mov_b32", "v8", vG))
        b += accinit(final)
        if o.gather:
            b += [salu("s_xor_b32", self.sXl, self.sRow, 1024), salu("s_mov_b32", "s20", 64),
                  salu("s_mov_b32", "s21", 32768 - 64), salu("s_mov_b32", "s22", hex((128 - 64 - 7 * 32768) & 0xffffffff))]
        b.append(Wait(lg=[self.xf(j, c) for j in range(o.xw) for c in range(2)], vm=[self.wreg0(0, 0), self.wreg0(0, 1)]))
        b += self.stamp("pro_done")
        return b

    def build(self):
        o = self.o
        A, B, AB = [0, 1, 2, 3], [4, 5, 6, 7], list(range(8))
        e = (lambda s: []) if o.noepi else (lambda s: s)
        unit_end = lambda x: x.kind in ("vst", "dsw") and x.rd & {"v12"}
        safe_bias = lambda x: x.kind == "valu" and "add_f32" in x.text and not x.wr & set(self.t)
        pro = self.prologue()
        PL = o.pstamps - 1
        dA, dB = o.direct
        g0, g1, g2, g3 = o.sg
        ep = o.earlyprep
        if o.gather and o.early == 1:
            ini = []
            for s in range(16 - self.NS):
                ini.append(([valu("v_mov_b32", r, "1.0") for c in range(2) for r in regs(self.wreg0(s, c))],
                            16 * s + 18, 16 * s + 30))
            nB1 = o.x0split[3]
            late = self.x0h_dma(1, max(nB1, o.nb_pro), 16, "v8")
            s1a0 = self.phase(0, A, 0, 0, late, wreg=self.wreg0, skip_below=16, extra=ini, end=o.pub0_end)
            s1a0 += self.stamp("s1a0")
            vS = [f"v{self.Q[0]}", f"v{self.Q[0] + 1}"]
            fix = self.calc_vS(vS)
            for bt in range(8):
                fix += self.x0h_read(1, bt, vS) + space(3)
                if bt:
                    fix += self.x0h_write(1, bt - 1)
            fix += space(4) + self.x0h_write(1, 7)
            s1a0 += self.phase(16, B, 0, 1, fix + self.calc_vB() + e(self.bias_stream(0)), bar=True,
                               pre_bar=[salu("s_add_u32", self.sPNeed, self.sPNeed, 1)])
            s1a0 += self.stamp("s1b0")
        elif o.gather:
            assert not o.early
            s1a0 = self.phase(0, A, 0, 0, []) + self.stamp("s1a0")
        elif o.early == 2:
            s1a0 = self.phase(0, A, 0, 0, self.x0pub_stream(0), end=o.pub0_end) + self.stamp("s1a0")
            st = insert_at(self.calc_vB() + e(self.bias_stream(0)), o.sig0_at, self.psignal(0), safe_bias)
            st = insert_at(st, o.poll0_at, self.ppoll_load(), safe_bias)
            if o.wsig2:
                st = st + self.prep_load()
            s1a0 += self.phase(16, B, 0, 1, st, bar=True, extra=[(self.x0pub_stream(1), 0, 230)],
                               pre_bar=self.poll_check("pa0", self.sPNeed, 1, self.ppoll_load))
            s1a0 += self.stamp("s1b0")
        elif o.early:
            ini = []
            for s in range(16 - self.NS):
                ini.append(([valu("v_mov_b32", r, "1.0") for c in range(2) for r in regs(self.wreg0(s, c))],
                            16 * s + 18, 16 * s + 30))
            s1a0 = self.phase(0, A, 0, 0, self.x0pub_stream(0), wreg=self.wreg0, skip_below=16, extra=ini,
                              end=o.pub0_end) + self.stamp("s1a0")
            vS = [f"v{self.Q[0]}", f"v{self.Q[0] + 1}"]
            fix = self.calc_vS(vS)
            for bt in range(8):
                fix += self.x0h_read(1, bt, vS)
                if bt:
                    fix += self.x0h_write(1, bt - 1) + self.x0pub_stream(1, 2 * bt - 2, 2 * bt)
                if bt == 1:
                    fix += self.psignal(0)
            fix += self.x0h_write(1, 7) + self.x0pub_stream(1, 14, 16)
            st = insert_at(self.calc_vB() + e(self.bias_stream(0)), 0.6, self.ppoll_load(), safe_bias)
            s1a0 += self.phase(16, B, 0, 1, fix + st, bar=True,
                               pre_bar=self.poll_check("pa0", self.sPNeed, 1, self.ppoll_load))
            s1a0 += self.stamp("s1b0")
        else:
            s1a0 = self.phase(0, A, 0, 0, (self.prep_load() if ep else []) + self.x0pub_stream(0) +
                              self.x0pub_stream(1, 0, dB) + (self.psignal(0) if dA == 16 else [])) + self.stamp("s1a0")
        lp = o.lateprep
        st = (self.prep_store() if ep else [] if lp else self.prep_load()) + self.calc_vB() + e(self.bias_stream(0))
        if o.wsig2:
            st = st + self.prep_load()
        if dA < 16:
            st = insert_at(st, o.siga2_at, self.psignal(0), safe_bias)
        if dB == 16 and not o.early:
            st = insert_at(st, o.sigb_at, self.psignal(1), safe_bias)
        fx2 = [(o.pollb_gap, self.ppoll_load()), (1, self.xnext(self.sXs, 0))]
        if dB < 16 or o.early:
            fx2.append((g3, self.psignal(1)))
        if g0 < 0:
            st = insert_at(st, o.polla_at, self.ppoll_load(), safe_bias)
            pb1 = self.poll_check("pa", self.sPNeed, 1, self.ppoll_load)
            g1 = -1
        else:
            assert not o.early
            pb1 = []
            fx2 += [(g0, self.ppoll_load()), (g1, self.poll_check("pa", self.sPNeed, 1, self.ppoll_load))]
        if ep:
            pb1 = [Wait(vm=["pst"])] + pb1
            fx2.append((3, self.wsignal()))
        s1b = [Label("Ls1b")] + self.phase(16, B, 0, 1, st, bar=True, pre_bar=pb1,
                                            extra=[(self.pub_stream(1, dB, 16), 0, 232)])
        s2 = self.phase(32, AB, 1, 0, self.xch_dma(0) + ([] if ep or lp else self.prep_store()), bar=True, start=g1 + 1, end=g2, fixed=fx2,
                        post_bar=self.xr_gathered(),
                        extra=[(self.prep_store(10) if o.wsig2 else self.prep_load() if lp else [], lp, lp + (30 if o.wsig2 else 12))],
                        pre_bar=[Wait(vm=["xl0", "pst"] if o.wsig2 else ["xl0"])] + self.poll_check("pb", self.sPNeed, 1, self.ppoll_load))
        s3 = self.phase(64, AB, 0, 1, self.xch_dma(1), bar=True, end=o.dma_end, pre_bar=[Wait(vm=["xl1", "pst"])],
                        extra=[(self.wsignal(), 2, 6)] if o.wsig2 else
                        [(self.prep_store(10) if lp else [], o.preps_at, o.preps_at + 30)])
        s1b[1:1] = self.lstamp("pre", PL) if PL > 0 else []
        s1b += self.lstamp("s1b", PL)
        s2 += self.lstamp("s2", PL)
        s3 += self.lstamp("s3", PL)
        s4a = self.phase(96, A, 1, 1, ([] if ep or o.wsig2 else self.wsignal()) + (self.calc_vB() if self.small else []) + e(self.bias_stream(1)))
        if o.gather:
            s4a += self.xch_switch()
        s4a += self.lstamp("s4a", PL)
        s4a += [salu("s_add_u32", self.sBias, self.sBias, 2048), salu("s_add_u32", self.sL, self.sL, 1),
                salu("s_cmp_eq_u32", self.sL, NL), raw("s_cbranch_scc1 Llast", "branch")]
        st = insert_at(e(self.epi_stream(0, dA)), o.pollw_at, self.wpoll_load(), unit_end)
        chk = (self.site[128] - 112) * 16 + 2
        s4b = self.phase(112, B, 1, 0, st, bar=True, post_bar=self.xr_plain(),
                         fixed=[(chk, self.poll_check("w", self.sNeed, 64, self.wpoll_load))])
        s4b += self.lstamp("s4b", PL + 1)
        st = e(self.epi_stream(1, dB))
        if dA == 16:
            st = insert_at(st, o.siga_at, self.psignal(0), unit_end)
        if ep:
            st = insert_at(st, o.prepl_at, self.prep_load(), unit_end)
        s1a = self.phase(0, A, 0, 0, st, extra=[(self.pub_stream(0, dA, 16), 0, o.puba_end)])
        if o.stamps:
            s1a += [raw(f"s_cmp_eq_u32 s25, {max(1, o.pstamps)}"), raw("s_cbranch_scc0 Lnostamp")] + self.stamp("layer1") + [
                raw("s_memrealtime s[4:5]"), Label("Lnostamp")]
        if o.early:
            assert lp
            s2 = [Label("Lloop")] + s2
            s1b += [raw("s_branch Lloop", "branch")]
        else:
            s1a += [raw("s_branch Ls1b", "branch")]
        s4bl = [Label("Llast")] + self.stamp("4.75layers") + ([raw("s_memrealtime s[6:7]")] if o.stamps else [])
        s4bl += self.phase(112, B, 1, None, self.out_stream(0), last=True)
        tail = self.stamp("s4b_last") + [nop(7)] + [x for x in self.out_stream(1) if x.kind != "space"]
        if o.stamps:
            tail += self.stamp("tail_issued")
            tail += [Wait(all_vm=True)]
            tail += self.stamp("tail_drained")
            tail.append(raw("s_memrealtime s[38:39]"))
            tail.append(raw("s_waitcnt lgkmcnt(0)"))
            tail.append(raw("v_cmp_eq_u32 vcc, 0, v0"))
            tail.append(raw("s_and_saveexec_b64 s[68:69], vcc"))
            tail.append(raw("s_cbranch_execz Lend"))
            if o.dbgout >= 0:
                tail += [raw(f"s_cmp_lg_u32 s2, {o.dbgout}"), raw("s_cbranch_scc1 Lend"), raw("v_mov_b32 v1, 0")]
                tail += [raw("s_sub_u32 s3, s38, s36"), raw("v_mov_b32 v2, s3"),
                         raw("buffer_store_dword v2, v1, s[44:47], 0 offen offset:4"),
                         raw("s_sub_u32 s3, s6, s4"), raw("v_mov_b32 v2, s3"),
                         raw("buffer_store_dword v2, v1, s[44:47], 0 offen offset:8"),
                         raw("v_mov_b32 v2, s53"), raw("buffer_store_dword v2, v1, s[44:47], 0 offen offset:12")]
                for n in range(1, min(self.stampn, 13)):
                    tail += [raw(f"s_sub_u32 s3, s{72 + 2 * n}, s{70 + 2 * n}"), raw("v_mov_b32 v2, s3"),
                             raw(f"buffer_store_dword v2, v1, s[44:47], 0 offen offset:{12 + 4 * n}")]
            else:
                tail.append(raw("s_lshl_b32 s3, s2, 8"))
                tail.append(raw(f"s_add_u32 s3, s3, {WS_STAMP}"))
                tail.append(raw("v_mov_b32 v1, 0"))
                for n, i in enumerate(list(range(36, 40)) + list(range(72, 102)) + [4, 5, 6, 7, 53]):
                    tail.append(raw(f"v_mov_b32 v2, s{i}"))
                    tail.append(raw(f"buffer_store_dword v2, v1, s[32:35], s3 offen offset:{n * 4}"))
        tail += [Label("Lend"), raw("s_endpgm")]
        rest = s1a0 + ([] if o.early else s1b)
        for l in range(NL - 1):
            rest = rest + s2 + s3 + s4a + s4b + s1a + s1b
        rest = rest + s2 + s3 + s4a + s4bl + tail
        traces = [[x for x in pro if x.note != skip] + rest for skip in ("gx", "gy")]
        for tr in traces:
            resolve_waits(tr)
        for tr in traces:
            errs, mv, ml = check(tr)
            if errs and not o.now:
                for x in errs[:20]:
                    print(x, file=sys.stderr)
                raise SystemExit("hazard/dependency errors")
        if o.early:
            prog = pro + s1a0 + s2 + s3 + s4a + s4b + s1a + s1b + s4bl + tail + self.ool
        else:
            prog = pro + s1a0 + s1b + s2 + s3 + s4a + s4b + s1a + s4bl + tail + self.ool
        txt = f".globl {KNAME}\n.p2align 8\n.type {KNAME},@function\n{KNAME}:\n" + emit(prog) + "\n"
        txt = "; stamps: " + " ".join(self.names) + "\n" + txt
        return txt, kd(KNAME, 512, 102, 256)


def main():
    ap = argparse.ArgumentParser()
    ap.add_argument("-o", default="standalone__cross_network_dcn__recsys.s")
    ap.add_argument("--slots", type=int, default=6)
    ap.add_argument("--wflags", default="sc1")
    ap.add_argument("--xflags", default="")
    ap.add_argument("--oflags", default="nt")
    ap.add_argument("--rflags", default="")
    ap.add_argument("--xsflags", default="sc1")
    ap.add_argument("--xlflags", default="")
    ap.add_argument("--bar_lead", type=int, default=6)
    ap.add_argument("--xw", type=int, default=4)
    ap.add_argument("--x0split", type=int, nargs=4, default=[4, 4, 8, 0])
    ap.add_argument("--sigb_at", type=float, default=0.45)
    ap.add_argument("--polla_at", type=float, default=0.6)
    ap.add_argument("--siga_at", type=float, default=0.45)
    ap.add_argument("--pollw_at", type=float, default=0.3)
    ap.add_argument("--pollb_gap", type=int, default=386)
    ap.add_argument("--dma_end", type=int, default=440)
    ap.add_argument("--stamps", action="store_true")
    ap.add_argument("--quadg", type=int, default=1)
    ap.add_argument("--dmagroup", type=int, default=1)
    ap.add_argument("--poll0", type=int, default=1)
    ap.add_argument("--nox", action="store_true", help="diagnostic")
    ap.add_argument("--nost", action="store_true", help="diagnostic")
    ap.add_argument("--nodma", action="store_true", help="diagnostic")
    ap.add_argument("--nobias", action="store_true", help="diagnostic")
    ap.add_argument("--shift", type=int, default=0)
    ap.add_argument("--cpfsplit", type=int, default=1)
    ap.add_argument("--backoff", type=int, default=0)
    ap.add_argument("--w0prep", type=int, default=0)
    ap.add_argument("--nb_pro", type=int, default=0, help="early mode: x0 B-half DMAs issued before the first MFMA")
    ap.add_argument("--dmapair", type=int, default=10)
    ap.add_argument("--dbgout", type=int, default=-1)
    ap.add_argument("--tailpk", type=int, default=1)
    ap.add_argument("--gather", type=int, default=1)
    ap.add_argument("--wsig2", type=int, default=0)
    ap.add_argument("--stagger", type=int, default=-1, help="workgroup-id bit selecting the late group")
    ap.add_argument("--ynb", type=int, default=4)
    ap.add_argument("--sig0_at", type=float, default=0.1)
    ap.add_argument("--poll0_at", type=float, default=0.7)
    ap.add_argument("--verbose", action="store_true")
    ap.add_argument("--gload", type=int, default=1)
    ap.add_argument("--pace", type=float, default=0.1)
    ap.add_argument("--early", type=int, default=1)
    ap.add_argument("--pub0_end", type=int, default=40)
    ap.add_argument("--earlyprep", type=int, default=0)
    ap.add_argument("--lateprep", type=int, default=400)
    ap.add_argument("--preps_at", type=int, default=330)
    ap.add_argument("--prepl_at", type=float, default=0.1)
    ap.add_argument("--wdelay", type=int, default=2)
    ap.add_argument("--short_at", type=int, default=72)
    ap.add_argument("--pkmul", type=int, default=0)
    ap.add_argument("--pkadd", type=int, default=0)
    ap.add_argument("--apub", type=int, default=0, help="publish x0's A half in the prologue")
    ap.add_argument("--cpf", type=int, default=4, help="code prefetch loads per wave (16 KB each)")
    ap.add_argument("--desync", type=int, default=0, help="diagnostic")
    ap.add_argument("--direct", type=int, nargs=2, default=[16, 16])
    ap.add_argument("--siga2_at", type=float, default=0.15)
    ap.add_argument("--puba_end", type=int, default=200)
    ap.add_argument("--sg", type=int, nargs=4, default=[-1, 0, 390, 82])
    ap.add_argument("--delay", type=int, default=0, help="diagnostic")
    ap.add_argument("--touch", type=int, default=0, help="diagnostic")
    ap.add_argument("--pstamps", type=int, default=0, help="phase stamps in layer N-1")
    ap.add_argument("--xbase", type=int, default=32)
    ap.add_argument("--xbufs", type=int, default=6)
    ap.add_argument("--now", action="store_true", help="diagnostic: no W loads in the loop")
    ap.add_argument("--noxch", action="store_true", help="diagnostic: no exchange traffic")
    ap.add_argument("--noepi", action="store_true", help="diagnostic: no epilogue/bias in the loop")
    o = ap.parse_args()
    for k in ("wflags", "xflags", "oflags", "rflags", "xsflags", "xlflags"):
        v = getattr(o, k)
        setattr(o, k, (" " + v.replace(",", " ")) if v and v != "none" else "")
    mtxt, mkd = Main(o).build()
    opts = " ".join(a for a in sys.argv[1:] if not a.endswith(".s") and a != "-o")
    s = HEADER.format(opts=opts)
    s += f"; @launch grid=(256,1,1) block=(256,1,1) lds={LDS_TOTAL}\n"
    s += '.amdgcn_target "amdgcn-amd-amdhsa--gfx950"\n.text\n'
    s += mtxt + mkd
    open(o.o, "w").write(s)
    print(o.o, len(s), "bytes")


if __name__ == "__main__":
    main()
```

```python
import argparse
import sys
from asmir import *

KNAME = "standalone__cross_network_dcn__recsys_kernel"
NL = 6
D = 1024
NB = 16384
MB = 1 << 20

HEADER = """; Kernarg layout for this problem (48 bytes, ptrs only, base s[0:1]):
;   offset  40: d_ws      268435456 bytes workspace
; Generated by gen/gen3.py (hand-written generator). Options: {opts}
"""

LDS_BIAS = 131072
LDS_STAGE = LDS_BIAS + NL * 512 * 4
LDS_TOTAL = LDS_STAGE + 8192
WS_FLAGS = 15 * MB
WS_XCH = 32 * MB
WS_STAMP = 16 * MB


def kd(name, vgpr, sgpr, accum):
    return f""".section .rodata,"a"
.p2align 6
.amdhsa_kernel {name}
  .amdhsa_next_free_vgpr {vgpr}
  .amdhsa_next_free_sgpr {sgpr}
  .amdhsa_accum_offset {accum}
  .amdhsa_group_segment_fixed_size 0
  .amdhsa_kernarg_size 48
  .amdhsa_user_sgpr_count 2
  .amdhsa_user_sgpr_kernarg_segment_ptr 1
  .amdhsa_system_sgpr_workgroup_id_x 1
  .amdhsa_float_denorm_mode_32 3
.end_amdhsa_kernel
"""


def srd(base, lo, hi, nbytes):
    return [salu("s_mov_b32", f"s{base}", lo), salu("s_mov_b32", f"s{base + 1}", hi),
            salu("s_mov_b32", f"s{base + 2}", hex(nbytes)), salu("s_mov_b32", f"s{base + 3}", "0x20000")]


def srd_off(base, lo, hi, off, nbytes):
    return [salu("s_add_u32", f"s{base}", lo, off), salu("s_addc_u32", f"s{base + 1}", hi, 0),
            salu("s_mov_b32", f"s{base + 2}", hex(nbytes)), salu("s_mov_b32", f"s{base + 3}", "0x20000")]


def sload(d, off, n=2):
    return I(f"s_load_dwordx{n} {d}, s[0:1], {off}", "smem", wr=[d])


def tagged(ins, tag):
    ins.wr = set(ins.wr) | {tag}
    return ins


def dma(voff, srdn, soff, off, flags, tag):
    o = f" offset:{off}" if off else ""
    return tagged(I(f"buffer_load_dwordx4 {voff}, {srdn}, {soff} offen{o}{flags} lds", "vld", rd=[voff]), tag)


def hoist(ins):
    ins.note = "hoist"
    return ins


def space(n):
    return [I("", "space") for _ in range(n)]


def insert_at(stream, frac, items, ok):
    i = int(len(stream) * frac)
    while 0 < i < len(stream) and not ok(stream[i - 1]):
        i += 1
    return stream[:i] + items + stream[i:]


class Main:
    def __init__(self, o):
        self.o = o
        self.sX, self.sW, self.sO, self.sB = "s[8:11]", "s[12:15]", "s[16:19]", "s[20:23]"
        self.sE, self.sR, self.sD = "s[32:35]", "s[40:43]", "s[44:47]"
        self.sC, self.sFm, self.sFp = "s[56:59]", "s[60:63]", "s[64:67]"
        self.sWoff, self.sL, self.sMask, self.sNeed = "s24", "s25", "s26", "s27"
        self.sRow, self.sXs, self.sXl, self.sFlag = "s28", "s29", "s30", "s31"
        self.sRaw, self.sDst, self.sLds, self.sBias, self.sStage, self.sSpin, self.sWave, self.sPNeed = (
            "s48", "s49", "s50", "s51", "s52", "s53", "s54", "s55")
        self.vW, self.vXw, self.vB = "v0", "v3", "v4"
        self.vXr = ["v1", "v2"]
        self.vL = "v1"
        self.t = ["v5", "v6", "v7"]
        self.Q = [8, 12]
        self.vP, self.vG = "v16", "v17"
        self.vS = ["v18", "v19"]
        self.RQ = [20, 24]
        self.NS = o.slots
        self.aX0 = 0
        self.aXF = 128
        self.aW = 192
        self.aACC = self.aW + 8 * min(self.NS, 6)
        self.nA = 256 - self.aACC
        self.vACC = self.nA
        NS = self.NS
        nshort = (-128) % NS
        nlong = (128 - nshort * (NS - 1)) // NS
        first = min(nlong, o.short_at // NS)
        seq = list(range(NS)) * first + list(range(NS - 1)) * nshort + list(range(NS)) * (nlong - first)
        assert len(seq) == 128
        self.slot = seq
        site = {}
        for s2 in range(-128, 256):
            p = s2 - 1
            while seq[p % 128] != seq[s2 % 128]:
                p -= 1
            site[s2] = max(p, site.get(s2 - 1, -10 ** 9))
        if o.wbunch > 1:
            k = o.wbunch
            for s2 in site:
                site[s2] = ((site[s2] // k) + 1) * k - 1
        self.site = site
        self.loads_at = {}
        for s2 in range(0, 256):
            self.loads_at.setdefault(site[s2], []).append(s2)
        self.small = self.vACC < 28
        if self.small:
            self.vP = self.vB
            q0 = [int(self.acc_tile(nt, 0, 0, 1)[1:]) for nt in range(4)]
            self.vG, self.vS, self.RQ = f"v{q0[0]}", [f"v{q0[0] + 1}", f"v{q0[0] + 2}"], [q0[1], q0[2]]
        self.stampn = 0
        self.names = []
        self.ool = []

    def acc(self, p, i, n=1):
        h = self.nA // 2
        nv = 128 - h
        if i < nv:
            assert i + n <= nv
            return R("v", self.vACC + p * nv + i, n)
        return R("a", self.aACC + p * h + (i - nv), n)

    def acc_tile(self, nt, bt, r=0, n=4):
        return self.acc(nt >> 2, ((nt & 3) * 8 + bt) * 4 + r, n)

    def x0reg(self, kbl, bt, j=0, n=4):
        return R("a", self.aX0 + (kbl * 8 + bt) * 4 + j, n)

    def xf(self, bt, c):
        return R("a", self.aXF + (bt * 2 + c) * 4, 4)

    def wslot(self, s, c):
        if self.slot[s % 128] >= 6:
            return R("a", ((self.slot[s % 128] - 6) * 2 + c) * 4, 4)
        return R("a", self.aW + (self.slot[s % 128] * 2 + c) * 4, 4)

    def wload(self, s, c, dst=None):
        if self.o.gload:
            d = dst or self.wslot(s, c)
            off = (s & 3) * 2048 + c * 1024 - 4096
            return I(f"global_load_dwordx4 {d}, {self.vW}, s[70:71] offset:{off}{self.o.wflags}", "vld",
                     rd=[self.vW, "s[70:71]"], wr=[d])
        return bload(dst or self.wslot(s, c), self.vW, self.sW, self.sWoff, (s & 1) * 2048 + c * 1024, flags=self.o.wflags)

    def wstep(self, s):
        if self.o.gload:
            if (s & 3) != 3:
                return []
            d = 8192 if (s % 128) != 127 else 8192 + 2 * MB - 256 * 1024
            both = I(f"s_add_u32 s70, s70, {d}\n s_addc_u32 s71, s71, 0", "salu", rd=["s[70:71]"], wr=["s[70:71]"])
            both.states = 2
            return [both]
        if not s & 1:
            return []
        return [salu("s_add_u32", self.sWoff, self.sWoff, 4096 if (s % 128) != 127 else 4096 + 2 * MB - 256 * 1024)]

    def xread(self, bt, c, rho, ss):
        return dsread(self.xf(bt, c), self.vXr[ss >> 1], (ss & 1) * 32768 + bt * 4096 + rho * 2048 + c * 1024)

    def stamp(self, name="x"):
        if not self.o.stamps:
            return []
        if self.o.pstamps and name in ("kernarg", "x0A_issued", "stores_issued", "signalled", "x0_issued", "x0_part", "flag_seen"):
            return []
        n = self.stampn
        self.stampn += 1
        self.names.append(name)
        assert n < 15
        return [raw(f"s_memtime s[{72 + 2 * n}:{73 + 2 * n}]", "other")]

    def lstamp(self, name, lval):
        if not self.o.pstamps:
            return []
        n = self.stampn
        return [raw(f"s_cmp_eq_u32 s25, {lval}"), raw(f"s_cbranch_scc0 Lns{n}")] + self.stamp(name) + [Label(f"Lns{n}")]

    def epi_unit(self, kbl, bt, q, pk=False):
        s = []
        accs = [self.acc_tile(2 * kbl + t, bt, r, 1) for t in range(2) for r in range(4)]
        hi, lo, m = self.t
        for j in range(4):
            a0, a1 = accs[2 * j], accs[2 * j + 1]
            if self.o.pkmul or pk:
                s.append(valu("v_accvgpr_read_b32", "v7", self.x0reg(kbl, bt, j, 1)))
                ap = f"v[{a0[1:]}:{a1[1:]}]"
                if a0[0] == "a":
                    tp = int(self.acc_tile(3, 0, 0, 1)[1:]) if pk else 28
                    s.append(valu("v_accvgpr_read_b32", f"v{tp}", a0))
                    s.append(valu("v_accvgpr_read_b32", f"v{tp + 1}", a1))
                    ap = R("v", tp, 2)
                s.append(valu("v_lshlrev_b32", "v6", 16, "v7"))
                s.append(valu("v_and_b32", "v7", self.sMask, "v7"))
                s.append(valu("v_pk_mul_f32", "v[6:7]", "v[6:7]", ap))
                s.append(valu("v_cvt_pk_bf16_f32", f"v{q + j}", "v6", "v7"))
                continue
            s.append(valu("v_accvgpr_read_b32", hi, self.x0reg(kbl, bt, j, 1)))
            if a0[0] == "a":
                s.append(valu("v_accvgpr_read_b32", m, a0))
                a0 = m
            s.append(valu("v_lshlrev_b32", lo, 16, hi))
            s.append(valu("v_and_b32", hi, self.sMask, hi))
            s.append(valu("v_mul_f32", lo, lo, a0))
            if a1[0] == "a":
                s.append(valu("v_accvgpr_read_b32", m, a1))
                a1 = m
            s.append(valu("v_mul_f32", hi, hi, a1))
            s.append(valu("v_cvt_pk_bf16_f32", f"v{q + j}", lo, hi))
        return s

    def xstore(self, src, p, u, tmp, state):
        if self.o.noxch or self.o.nost:
            return []
        s = []
        off = p * 16384 + u * 1024
        if state.get("g") != off >> 12:
            state["g"] = off >> 12
            s.append(salu("s_add_u32", tmp, self.sXs, off & ~4095))
        s.append(tagged(bstore(src, self.vXw, self.sE, tmp, off & 4095, flags=self.o.xsflags), f"xs{p}"))
        return s

    def xnext(self, reg, back):
        n = self.o.xbufs
        if n == 1:
            return [salu("s_sub_u32", reg, reg, back)]
        if n == 2:
            return [salu("s_sub_u32", reg, reg, back), salu("s_xor_b32", reg, reg, hex(32 * MB))]
        return [salu("s_add_u32", reg, reg, hex(32 * MB - back))]

    def epi_stream(self, p, ndirect=16):
        s = []
        st = {}
        for bt in range(8):
            for c in range(2):
                q = self.Q[c]
                s += self.epi_unit(2 * p + c, bt, q)
                s.append(dswrite(self.vXw, R("v", q, 4), bt * 4096 + p * 2048 + c * 1024))
                if bt * 2 + c < ndirect:
                    s += self.xstore(R("v", q, 4), p, bt * 2 + c, "s68", st)
        return s

    def pub_stream(self, p, lo, hi):
        s = []
        st = {}
        if self.o.noxch or lo >= hi:
            return s
        assert not self.small

        def rd(u):
            return dsread(R("v", self.RQ[u & 1], 4), self.vXw, (u >> 1) * 4096 + p * 2048 + (u & 1) * 1024)

        s.append(rd(lo))
        s += space(6)
        for u in range(lo, hi):
            if u + 1 < hi:
                s.append(rd(u + 1))
            s.append(Wait(lg=[R("v", self.RQ[u & 1], 4)]))
            s += self.xstore(R("v", self.RQ[u & 1], 4), p, u, "s69", st)
        return s

    def x0pub_stream(self, p, lo=0, hi=16):
        s = []
        st = {}
        for u in range(lo, hi):
            s += self.xstore(self.x0reg(2 * p + (u & 1), u >> 1), p, u, "s68", st)
        return s

    def xch_dma(self, p):
        if self.o.gather:
            return self.xch_dma_g(p)
        s = [raw(f"s_add_u32 m0, {self.sLds}, {p * 2048}", "salu", rd=[self.sLds])] + space(1)
        for bt in range(8):
            for c in range(2):
                if not self.o.noxch:
                    s.append(dma(self.vXw, self.sE, self.sXl, c * 1024, self.o.xlflags, f"xl{p}"))
            if bt < 7:
                s.append(raw("s_add_u32 m0, m0, 4096", "salu"))
            if bt == 7 and p == 1:
                s += self.xnext(self.sXl, 15 * 2048)
            else:
                s.append(salu("s_add_u32", self.sXl, self.sXl, 2048))
        return s

    def xch_dma_g(self, p):
        t0, t1 = self.t[0], self.t[1]
        vL = self.vL
        if self.o.quadg:
            X = self.vXw
            self.ool += [Label(f"Lgat{p}"),
                         raw(f"v_lshrrev_b32 {t0}, 4, {X}"), raw(f"v_and_b32 {t0}, 0x20, {t0}"), raw(f"v_xor_b32 {t0}, {t0}, {X}"),
                         raw(f"v_and_b32 {t0}, 0x30, {t0}"), raw(f"v_bfe_u32 {t1}, {X}, 6, 4"),
                         raw(f"v_lshl_add_u32 {t1}, {t1}, 11, {t0}"), raw(f"s_branch Lgatr{p}")]
        else:
            self.ool += [Label(f"Lgat{p}"),
                         raw(f"v_and_b32 {t0}, 0xf0, {vL}"), raw(f"v_lshrrev_b32 {t1}, 4, {vL}"),
                         raw(f"v_and_b32 {t1}, 0x30, {t1}"), raw(f"v_lshl_add_u32 {t1}, {t0}, 7, {t1}"),
                         raw(f"s_branch Lgatr{p}")]
        sel = I(f"v_mov_b32 {t1}, {self.vXw}\n s_cmp_eq_u32 {self.sL}, 0\n s_cbranch_scc1 Lgat{p}\nLgatr{p}:", "valu",
                rd=[self.vXw], wr=[t0, t1])
        s = [sel, raw(f"s_add_u32 m0, {self.sLds}, {p * 2048}", "salu", rd=[self.sLds])] + space(1)
        for bt in range(8):
            for c in range(2):
                if not self.o.noxch and not self.o.nodma:
                    s.append(dma(t1, self.sX, self.sXl, 0, self.o.xlflags, f"xl{p}"))
                s.append(raw(f"s_add_u32 m0, m0, {1024 if c == 0 else 3072}", "salu"))
                s.append(salu("s_add_u32", self.sXl, self.sXl, "s20" if c == 0 else "s21" if bt < 7 else "s22"))
            if bt < 7 and (bt + 1) % self.o.dmagroup == 0:
                s += space(self.o.dmapair * self.o.dmagroup)
        return s

    def xr_gathered(self):
        if not self.o.quadg:
            return []
        t0, X, r0, r1 = self.t[0], self.vXw, self.vXr[0], self.vXr[1]
        self.ool += [Label("Lxrg"),
                     raw(f"v_lshrrev_b32 {t0}, 2, {X}"), raw(f"v_and_b32 {t0}, 0x20, {t0}"),
                     raw(f"v_lshrrev_b32 {r1}, 4, {X}"), raw(f"v_xor_b32 {t0}, {t0}, {r1}"),
                     raw(f"v_and_b32 {t0}, 0x30, {t0}"), raw(f"v_bfe_u32 {r0}, {X}, 4, 4"),
                     raw(f"v_lshl_add_u32 {r0}, {r0}, 6, {t0}"), raw(f"v_add_u32 {r1}, 0x10000, {r0}"),
                     raw("s_branch Lxrgr")]
        return [I(f"s_cmp_eq_u32 {self.sL}, 0\n s_cbranch_scc1 Lxrg\nLxrgr:", "valu", rd=[X], wr=[t0, r0, r1])]

    def xr_plain(self):
        if not self.o.quadg:
            return []
        return [valu("v_and_b32", self.vXr[0], 0x3ff, self.vXw), valu("v_add_u32", self.vXr[1], 65536, self.vXr[0])]

    def xch_switch(self):
        return [salu("s_mov_b32", "s8", "s32"), salu("s_mov_b32", "s9", "s33"), salu("s_mov_b32", "s10", "s34"),
                salu("s_mov_b32", "s20", 1024), salu("s_mov_b32", "s21", 1024), salu("s_mov_b32", "s22", 1024),
                salu("s_xor_b32", self.sXl, self.sXs, 1 << 17)]

    def calc_vG(self, vG):
        t0, t1 = self.t[0], self.t[1]
        return [valu("v_lshrrev_b32", t0, 7, self.vL), valu("v_lshlrev_b32", t1, 4, t0),
                valu("v_xor_b32", t1, t1, self.vL), valu("v_and_b32", t1, 0x70, t1),
                valu("v_lshl_add_u32", vG, t0, 11, t1)]

    def calc_vS(self, vS):
        t0, t1 = self.t[0], self.t[1]
        vL = self.vL
        return [valu("v_lshrrev_b32", t0, 4, vL), valu("v_and_b32", t0, 0x30, t0), valu("v_xor_b32", t0, t0, vL),
                valu("v_and_b32", t0, 0x70, t0), valu("v_and_b32", t1, 0xf0, vL),
                valu("v_lshl_add_u32", t0, t1, 3, t0), valu("v_add_u32", vS[0], self.sLds, t0),
                valu("v_xor_b32", vS[1], 64, vS[0])]

    def out_setup(self):
        return self.calc_vG(self.vG) + self.calc_vS(self.vS)

    def x0h_dma(self, p, lo, hi, vG):
        r = []
        for i in range(lo, hi):
            r.append(raw(f"s_add_u32 m0, {self.sLds}, {(i >> 1) * 4096 + p * 2048 + (i & 1) * 1024}", "salu"))
            r.append(salu("s_add_u32", "s3", self.sRow, i * 16384 + p * 128))
            r.append(dma(vG, self.sX, "s3", 0, self.o.xflags, f"x0_{p}_{i >> 1}"))
        return r

    def x0h_read(self, p, bt, vS):
        return [Wait(vm=[f"x0_{p}_{bt}"])] + [dsread(self.x0reg(2 * p + c, bt), vS[c], bt * 4096 + p * 2048)
                                              for c in range(2)]

    def x0h_write(self, p, bt):
        return [Wait(lg=[self.x0reg(2 * p + c, bt) for c in range(2)])] + [
            dswrite(self.vXw, self.x0reg(2 * p + c, bt), bt * 4096 + p * 2048 + c * 1024) for c in range(2)]

    def wreg0(self, s, c):
        if s < 16 - self.NS:
            return self.acc(1, (s * 2 + c) * 4, 4)
        return self.wslot(s, c)

    def out_stream(self, p):
        s = []
        pend = []
        for bt in range(8):
            for c in range(2):
                q = self.Q[c]
                u = self.epi_unit(2 * p + c, bt, q, pk=(p == 1 and self.o.tailpk))
                if c == 0 and pend:
                    u = u[:12] + pend + u[12:]
                    pend = []
                s += u
                if p == 0 and bt == 0 and c == 0:
                    s += self.out_setup()
                s.append(dswrite(self.vS[c], R("v", q, 4), bt * 4096))
            for i in range(2):
                s.append(dsread(R("v", self.RQ[i], 4), self.vXw, bt * 4096 + i * 1024))
            for i in range(2):
                pend.append(Wait(lg=[R("v", self.RQ[i], 4)]))
                pend.append(salu("s_add_u32", "s3", self.sRow, bt * 32768 + i * 16384))
                pend.append(bstore(R("v", self.RQ[i], 4), self.vG, self.sO, "s3", p * 128, flags=self.o.oflags))
        return s + pend

    def calc_vB(self):
        return [valu("v_bfe_u32", self.vB, self.vXw, 8, 2),
                valu("v_lshl_add_u32", self.vB, self.vB, 5, self.sBias)]

    def bias_stream(self, p):
        s = []
        if self.o.nobias:
            return [valu("v_add_f32", self.acc_tile(4 * p, 0, 0, 1), self.acc_tile(4 * p, 0, 0, 1), 0) for _ in range(8)]

        def rd(nt):
            return dsread(R("v", self.Q[nt & 1], 4), self.vB, (nt >> 1) * 128 + (nt & 1) * 16)

        s.append(rd(4 * p))
        s += space(8)
        for nt in range(4 * p, 4 * p + 4):
            q = self.Q[nt & 1]
            cnt = 0
            for bt in range(8):
                for r in range(4):
                    if cnt == 0:
                        s.append(Wait(lg=[R("v", q, 4)]))
                    a = self.acc_tile(nt, bt, r, 1)
                    if self.o.pkadd and a[0] == "v":
                        if not r & 1:
                            ap = self.acc_tile(nt, bt, r, 2)
                            s.append(valu("v_pk_add_f32", ap, ap, R("v", q + r, 2)))
                    elif a[0] == "a":
                        t = self.t[cnt & 1]
                        s.append(valu("v_accvgpr_read_b32", t, a))
                        s.append(valu("v_add_f32", t, t, f"v{q + r}"))
                        s.append(valu("v_accvgpr_write_b32", a, t))
                    else:
                        s.append(valu("v_add_f32", a, a, f"v{q + r}"))
                    cnt += 1
                    if cnt == 1 and nt + 1 < 4 * p + 4:
                        s.append(rd(nt + 1))
        return s

    def prep_load(self):
        t0, t1 = self.t[0], self.t[1]
        s = [valu("v_lshrrev_b32", t0, 6, self.vL),
             valu("v_and_b32", t1, 48, self.vL),
             valu("v_lshl_add_u32", t0, t0, 11, t1),
             raw(f"s_mov_b32 m0, {self.sStage}", "salu", rd=[self.sStage]),
             salu("s_add_u32", "s3", self.sRaw, 32768 - 1024)]
        s.append(dma(t0, self.sR, self.sRaw, 0, self.o.rflags, "raw"))
        s.append(dma(t0, self.sR, "s3", 1024, self.o.rflags, "raw"))
        s.append(salu("s_add_u32", self.sRaw, self.sRaw, D * D * 2))
        return s

    def prep_store(self, sp=0):
        t0 = self.t[0]
        t1 = self.t[2]
        s = [valu("v_and_b32", t0, 0x300, self.vXw),
             valu("v_and_b32", t1, 0x3ff, self.vXw),
             valu("v_add3_u32", t0, t0, t1, self.sStage),
             Wait(vm=["raw"])]
        for t in range(2):
            for h in range(2):
                s.append(I(f"ds_read_b64_tr_b16 {R('v', self.Q[t] + 2 * h, 2)}, {t0} offset:{h * 256 + t * 8}", "dsr",
                           rd=[t0], wr=[R("v", self.Q[t] + 2 * h, 2)]))
        s += space(sp)
        for t in range(2):
            s.append(Wait(lg=[R("v", self.Q[t], 4)]))
            s.append(tagged(bstore(R("v", self.Q[t], 4), t1, self.sW, self.sDst, t * 2048, flags=" sc1"), "pst"))
        s.append(salu("s_add_u32", self.sDst, self.sDst, D * D * 2))
        return s

    def wsignal(self):
        t = self.t[2]
        return [valu("v_mov_b32", t, 1),
                I(f"buffer_atomic_add {t}, {self.vW}, {self.sC}, 0 offen sc1", "vst", rd=[t, self.vW])]

    def psignal(self, p):
        t = self.t[2]
        return [salu("s_add_u32", self.sFlag, self.sFlag, 1), Wait(vm=[f"xs{p}"]),
                valu("v_mov_b32", t, self.sFlag),
                bstore(t, self.vL, self.sFm, 0, w="dword", flags=" sc1")]

    def wpoll_load(self):
        v = self.vP
        return [valu("v_lshlrev_b32", v, 2, self.vXw), valu("v_and_b32", v, 0xc0, v),
                bload(v, v, self.sD, 0, w="dword", flags=" sc1")]

    def ppoll_load(self):
        return [I(f"buffer_load_dword {self.vP}, off, {self.sFp}, 0 sc1", "vld", wr=[self.vP])]

    def poll_check(self, name, need, inc, loader):
        v = self.vP
        spin = [Label(f"Lspin_{name}"), raw(f"s_add_u32 {self.sSpin}, {self.sSpin}, 1")]
        if self.o.backoff:
            spin.append(raw(f"s_sleep {self.o.backoff}"))
        spin += [raw(x.text) for x in loader()]
        spin += [raw(f"s_cmp_ge_u32 {self.sSpin}, 0x100000"),
                 raw(f"s_cbranch_scc1 Lgiveup_{name}"),
                 raw("s_waitcnt vmcnt(0)"),
                 raw(f"v_cmp_gt_i32 vcc, {need}, {v}"),
                 raw("s_and_b64 vcc, exec, vcc"),
                 raw(f"s_cbranch_vccnz Lspin_{name}"),
                 Label(f"Lgiveup_{name}"),
                 raw("s_waitcnt vmcnt(0)"),
                 raw(f"s_branch Lok_{name}")]
        self.ool += spin
        return [Wait(vm=[v]), I(f"v_cmp_gt_i32 vcc, {need}, {v}", "valu", rd=[v, need]),
                raw(f"s_and_b64 vcc, exec, vcc\n s_cbranch_vccnz Lspin_{name}\nLok_{name}:", "branch"),
                salu("s_add_u32", need, need, inc)]

    def phase(self, s0, nts, rho, next_rho, stream=(), bar=False, last=False, start=0, end=None, pre_bar=(),
              fixed=(), extra=(), wreg=None, skip_below=0, post_bar=()):
        o = self.o
        NS = self.NS
        NT = len(nts)
        L = NT * 16
        mf = []
        gaps = [[] for _ in range(4 * L)]
        fwd = list(range(8))
        wreg = wreg or self.wslot
        for ss in range(4):
            base = ss * L
            for k, nt in enumerate(nts):
                s = s0 + ss * NT + k
                order = fwd if ((ss + k) & 1) == 0 else fwd[::-1]
                for j, bt in enumerate(order):
                    for i in range(2):
                        c = i ^ (j & 1)
                        mf.append(mfma(16, self.acc_tile(nt, bt), wreg(s, c), self.xf(bt, c)))
                g = base + k * 16
                at = self.loads_at.get(s, [])
                for n, sn in enumerate(at):
                    if (last and sn >= 128) or o.now or sn < skip_below:
                        continue
                    ga, gb, gc = g + (14 if n == 0 else 15), g + 15, g + 18
                    if o.wdelay and g + 16 < 4 * L and (o.wdelay == 2 or k == NT - 1):
                        ga, gb, gc = g + 17 + 4 * n, g + 19 + 4 * n, g + 20 + 4 * n
                    elif o.wdelay and g + 16 < 4 * L and len(at) == 1:
                        gb, gc = g + 17, g + 19
                    elif not (g + 18 < 4 * L and n == len(at) - 1):
                        gc = g + 15
                    gaps[ga].append(hoist(self.wload(sn, 1)))
                    gaps[gb].append(hoist(self.wload(sn, 0)))
                    gaps[gc] += self.wstep(sn)
                if k < NT - 1:
                    gaps[g + 15].append(Wait(vm=[wreg(s + 1, 0), wreg(s + 1, 1)]))
                if k == 0:
                    for j in range(o.xw, 8, o.xw):
                        gaps[g + 2 * j - 1].append(
                            Wait(lg=[self.xf(order[jj], c) for jj in range(j, min(8, j + o.xw)) for c in range(2)]))
            nrho, nss = (rho, ss + 1) if ss < 3 else (next_rho, 0)
            gl = base + L - 16
            if ss == 3 and bar:
                gaps[gl - o.bar_lead] += list(pre_bar) + [Wait(all_lg=True), barrier()]
                gaps[gl - o.bar_lead + 1] += list(post_bar)
            if nrho is not None:
                for j, bt in enumerate(order):
                    for i in range(2):
                        c = i ^ (j & 1)
                        if not o.nox:
                            gaps[gl + 2 * j + i].append(hoist(self.xread(bt, c, nrho, nss)))
                s = s0 + (ss + 1) * NT
                gaps[base + L - 1].append(Wait(vm=[wreg(s, 0), wreg(s, 1)],
                                               lg=[self.xf(order[jj], c) for jj in range(o.xw) for c in range(2)]))
        for gi, inss in fixed:
            gaps[gi] += inss
        hi = end if end is not None else (4 * L - 16 - o.bar_lead if bar else 4 * L - 1)
        for st, lo2, hi2 in extra:
            self.place(gaps, list(st), lo2, hi2)
        self.place(gaps, list(stream), start, hi)
        out = []
        for i, m in enumerate(mf):
            out.append(m)
            gaps[i] = self.merge([], gaps[i])
            out += gaps[i]
        if o.verbose:
            print(f"; phase s0={s0} mfma={len(mf)} modelled excess={sum(self.gap_excess(g) for g in gaps)}", file=sys.stderr)
        return out

    @staticmethod
    def gap_excess(items):
        slots = 0
        ex = 0
        free = 2
        seenv = False
        for x in items:
            k = x.kind
            if k in ("valu", "nop"):
                slots += 1
                seenv = True
                continue
            if k in ("dsr", "vld", "dsw", "vst") and seenv:
                ex += 8
            if k == "dsr":
                slots += 1
            elif k == "vld":
                slots += 1 if x.text.startswith("global") else 2
            elif k == "dsw":
                ex += 12
                free -= 2
            elif k == "vst":
                ex += (20 if x.big else 4) + 4 * slots + (8 if free < 2 else 0)
                free = 4 if x.big else free - 1
            elif k == "barrier":
                ex += 24
        return ex + 4 * max(0, slots - max(free, 0))

    @staticmethod
    def merge(items, fixed):
        k = 0
        lead, rest = [], []
        stop = False
        for x in fixed:
            if not stop and x.kind in ("dsr", "vld") and getattr(x, "note", "") == "hoist":
                lead.append(x)
            else:
                rest.append(x)
                if x.kind not in ("wait",):
                    stop = True
        items = [x for x in items if x.kind != "space"]
        j = 0
        while j < len(items) and items[j].kind in ("salu", "wait"):
            j += 1
        if j < len(items) and items[j].kind == "vst":
            return items[:j + 1] + lead + items[j + 1:] + rest
        return lead + items + rest

    def place(self, gaps, stream, lo, hi):
        if not stream:
            return
        n, G = len(stream), hi - lo
        KMAX = 8
        INF = float("inf")
        dp = [INF] * (n + 1)
        dp[0] = 0.0
        back = []
        NG = len(gaps)
        cnt = lambda g, kind: sum(1 for x in gaps[g] if x.kind == kind) if g < NG else 0
        for g in range(G):
            fixed = gaps[lo + g]
            base = self.gap_excess(self.merge([], fixed))
            wpen = 7 * sum(cnt(lo + g + d, "dsr") for d in (1, 2, 3)) + 4 * cnt(lo + g, "dsr")
            spen = 12 * cnt(lo + g + 1, "vld") + 6 * cnt(lo + g, "vld") + 4 * cnt(lo + g + 2, "vld")
            nd = [INF] * (n + 1)
            bk = [0] * (n + 1)
            tgt = n * (g + 1) / G
            for i in range(n + 1):
                if dp[i] == INF:
                    continue
                for k in range(0, min(KMAX, n - i) + 1):
                    c = dp[i]
                    if k:
                        its = stream[i:i + k]
                        if k > 1 and its[-2].kind == "space":
                            break
                        c += self.gap_excess(self.merge(its, fixed)) - base
                        c += sum(wpen if x.kind == "dsw" else spen if x.kind == "vst" else 0 for x in its)
                    c += self.o.pace * ((i + k - tgt) / max(1.0, n / G)) ** 2 + 0.02 * k * k
                    if c < nd[i + k]:
                        nd[i + k] = c
                        bk[i + k] = k
            dp = nd
            back.append(bk)
        assert dp[n] < INF
        i = n
        for g in range(G - 1, -1, -1):
            k = back[g][i]
            gaps[lo + g] = self.merge(stream[i - k:i], gaps[lo + g])
            i -= k

    def prologue(self):
        o = self.o
        vL = self.vL
        b = []
        b.append(salu("s_cmp_ge_u32", "s2", 256))
        b.append(raw("s_cbranch_scc1 Lend", "branch"))
        b += self.stamp("start")
        if o.stamps:
            b.append(raw("s_memrealtime s[36:37]"))
        b += [nop(0) for _ in range(o.shift)]
        b += [sload("s[56:59]", 0, 4), sload("s[60:63]", 16, 4), sload("s[64:67]", 32, 4)]
        b.append(valu("v_lshrrev_b32", "v9", 6, "v0"))
        b.append(valu("v_and_b32", "v10", 63, "v0"))
        b.append(valu("v_readfirstlane_b32", self.sWave, "v9"))
        b.append(valu("v_lshlrev_b32", vL, 4, "v10"))
        if o.cpf:
            b.append(raw("s_getpc_b64 s[4:5]", "salu"))
            b.append(Label("Lpc"))
            b.append(valu("v_lshlrev_b32", "v11", 6, "v0"))
            if o.cpfsplit:
                b += [salu("s_bfe_u32", "s3", "s2", "0x20003"), salu("s_lshl_b32", "s3", "s3", 14),
                      valu("v_add_u32", "v11", "s3", "v11")]
            for i in range(1 if o.cpfsplit else o.cpf):
                b.append(raw(f"v_min_u32 v12, Lend-Lpc, v11", "valu", rd=["v11"], wr=["v12"]))
                b.append(I(f"global_load_dword v{60 + i}, v12, s[4:5]", "vld", rd=["v12"], wr=[f"v{60 + i}"]))
                b.append(valu("v_add_u32", "v11", 16384, "v11"))
        b.append(valu("v_lshrrev_b32", "v11", 7, "v0"))
        b.append(valu("v_and_b32", "v12", 127, "v0"))
        b.append(valu("v_lshlrev_b32", "v12", 3, "v12"))
        b.append(valu("v_lshl_add_u32", "v30", "v11", 11, "v12"))
        b.append(valu("v_lshlrev_b32", "v31", 4, "v0"))
        b.append(valu("v_add_u32", "v31", LDS_BIAS, "v31"))
        b.append(valu("v_add_u32", self.vXr[1], 65536, vL))
        b.append(valu("v_lshl_add_u32", self.vXw, "v9", 15, vL))
        b.append(valu("v_lshl_add_u32", self.vW, "v9", 18, vL))
        nb0 = len(b)
        b.append(valu("v_lshrrev_b32", "v11", 4, "v10"))
        b.append(valu("v_and_b32", "v12", 15, "v10"))
        b.append(valu("v_xor_b32", "v13", "v11", "v12"))
        b.append(valu("v_lshlrev_b32", "v13", 4, "v13"))
        b.append(valu("v_lshl_add_u32", "v20", "v11", 11, "v13"))
        for i in range(1, 4):
            b.append(valu("v_xor_b32", f"v{20 + i}", 64 * i, "v20"))
        b.append(valu("v_lshl_add_u32", "v24", "v12", 8, "v13"))
        b.append(valu("v_lshl_add_u32", "v24", "v9", 15, "v24"))
        for i in range(1, 4):
            b.append(valu("v_xor_b32", f"v{24 + i}", 64 * i, "v24"))
        if o.early == 1:
            del b[nb0:]
        b.append(salu("s_and_b32", "s7", "s2", 1))
        b.append(salu("s_lshr_b32", self.sRow, "s2", 1))
        b.append(salu("s_lshl_b32", self.sRow, self.sRow, 18))
        b.append(salu("s_lshl_b32", "s6", "s7", 10))
        b.append(salu("s_add_u32", self.sRow, self.sRow, "s6"))
        b.append(salu("s_lshl_b32", "s6", self.sWave, 8))
        b.append(salu("s_add_u32", self.sRow, self.sRow, "s6"))
        b.append(salu("s_mov_b32", self.sMask, "0xffff0000"))
        b.append(salu("s_lshl_b32", self.sWoff, "s7", 20))
        b.append(salu("s_mov_b32", self.sL, 0))
        b.append(salu("s_mov_b32", self.sSpin, 0))
        b.append(salu("s_mov_b32", self.sFlag, -1 if o.gather else 0))
        b.append(salu("s_mov_b32", self.sNeed, 64))
        b.append(salu("s_mov_b32", self.sPNeed, -1 if o.gather else 1))
        b.append(salu("s_lshl_b32", self.sLds, self.sWave, 15))
        b.append(salu("s_lshl_b32", self.sXs, "s2", 17))
        b.append(salu("s_add_u32", self.sXs, self.sXs, o.xbase * MB))
        b.append(salu("s_xor_b32", self.sXl, self.sXs, 1 << 17))
        b.append(salu("s_lshr_b32", "s4", "s2", 3))
        b.append(salu("s_and_b32", "s5", "s2", 7))
        b.append(salu("s_lshl_b32", self.sRaw, "s4", 16))
        b.append(salu("s_lshl_b32", "s6", "s5", 8))
        b.append(salu("s_add_u32", self.sRaw, self.sRaw, "s6"))
        b.append(salu("s_lshl_b32", "s6", self.sWave, 6))
        b.append(salu("s_add_u32", self.sRaw, self.sRaw, "s6"))
        b.append(salu("s_lshl_b32", self.sDst, "s5", 18))
        b.append(salu("s_and_b32", "s6", "s4", 1))
        b.append(salu("s_lshl_b32", "s6", "s6", 10))
        b.append(salu("s_add_u32", self.sDst, self.sDst, "s6"))
        b.append(salu("s_lshr_b32", "s6", "s4", 4))
        b.append(salu("s_lshr_b32", "s5", "s5", 2))
        b.append(salu("s_xor_b32", "s5", "s5", "s6"))
        b.append(salu("s_bfe_u32", "s6", "s4", "0x10001"))
        b.append(salu("s_lshl_b32", "s3", "s5", 1))
        b.append(salu("s_add_u32", "s3", "s3", "s6"))
        b.append(salu("s_lshl_b32", "s3", "s3", 16))
        b.append(salu("s_add_u32", self.sDst, self.sDst, "s3"))
        b.append(salu("s_bfe_u32", "s4", "s4", "0x20002"))
        b.append(salu("s_xor_b32", "s5", "s5", "s6"))
        b.append(salu("s_lshr_b32", "s3", self.sWave, 1))
        b.append(salu("s_lshl_b32", "s3", "s3", 4))
        b.append(salu("s_lshl_b32", "s6", "s4", 2))
        b.append(salu("s_add_u32", "s3", "s3", "s6"))
        b.append(salu("s_and_b32", "s6", self.sWave, 1))
        b.append(salu("s_lshl_b32", "s6", "s6", 1))
        b.append(salu("s_add_u32", "s3", "s3", "s6"))
        b.append(salu("s_lshl_b32", "s4", "s4", 3))
        b.append(salu("s_lshl_b32", "s6", self.sWave, 1))
        b.append(salu("s_add_u32", "s4", "s4", "s6"))
        b.append(salu("s_cmp_eq_u32", "s5", 0))
        b.append(salu("s_cselect_b32", "s3", "s3", "s4"))
        b.append(salu("s_lshl_b32", "s3", "s3", 11))
        b.append(salu("s_add_u32", self.sDst, self.sDst, "s3"))
        b.append(salu("s_lshl_b32", self.sStage, self.sWave, 11))
        b.append(salu("s_add_u32", self.sStage, self.sStage, LDS_STAGE))
        b.append(salu("s_lshl_b32", self.sBias, self.sWave, 9))
        b.append(salu("s_add_u32", self.sBias, self.sBias, LDS_BIAS))
        b.append(Wait(all_lg=True))
        b += self.stamp("kernarg")
        b += srd(40, "s58", "s59", NL * D * D * 2)

        def only(ins, w0):
            n = self.nseg = getattr(self, "nseg", 0) + 1
            for x in ins:
                x.note = "gy" if w0 else "gx"
            return [salu("s_cmp_eq_u32", self.sWave, 0), raw(f"s_cbranch_scc{0 if w0 else 1} Lseg{n}", "branch")] + \
                ins + [Label(f"Lseg{n}")]

        if o.w0prep:
            t0, t1 = self.t[0], self.t[1]
            r = [valu("v_lshrrev_b32", t0, 6, vL), valu("v_and_b32", t1, 48, vL), valu("v_lshl_add_u32", t0, t0, 11, t1)]
            for q in range(4):
                r += [raw(f"s_mov_b32 m0, {LDS_STAGE + q * 2048}", "salu"), salu("s_add_u32", "s3", self.sRaw, q * 64),
                      dma(t0, self.sR, "s3", 0, o.rflags, f"raw{q}"),
                      salu("s_add_u32", "s3", self.sRaw, q * 64 + 32768 - 1024),
                      dma(t0, self.sR, "s3", 1024, o.rflags, f"raw{q}")]
            b += only(r, True)
            b.append(salu("s_add_u32", self.sRaw, self.sRaw, D * D * 2))
        else:
            b += self.prep_load()
        b += srd(20, "s60", "s61", NL * D * 2)
        tb = 32
        b.append(salu("s_lshl_b32", "s3", "s7", 10))
        for m in range(3):
            b.append(bload(R("v", tb + 2 * m, 2), "v30", self.sB, "s3", w="dwordx2"))
            b.append(salu("s_add_u32", "s3", "s3", 4096))
        b += srd(8, "s56", "s57", NB * D * 2)
        b += srd(16, "s62", "s63", NB * D * 2)
        b += srd(12, "s66", "s67", NL * D * D * 2)
        b += srd(32, "s66", "s67", 256 * MB)
        b += srd(44, "s64", "s65", 256)
        b += [salu("s_add_u32", self.sWoff, self.sWoff, 4096), salu("s_add_u32", "s70", "s66", self.sWoff),
              salu("s_addc_u32", "s71", "s67", 0), salu("s_sub_u32", self.sWoff, self.sWoff, 4096)]
        b.append(salu("s_and_b32", "s3", "s2", 3))
        b.append(salu("s_lshl_b32", "s3", "s3", 6))
        b += srd_off(56, "s44", "s45", "s3", 4)
        b.append(salu("s_lshl_b32", "s3", "s2", 2))
        b.append(salu("s_add_u32", "s3", "s3", self.sWave))
        b.append(salu("s_lshl_b32", "s3", "s3", 7))
        b.append(salu("s_add_u32", "s3", "s3", WS_FLAGS))
        b += srd_off(60, "s32", "s33", "s3", 4)
        b.append(salu("s_xor_b32", "s3", "s3", 512))
        b += srd_off(64, "s32", "s33", "s3", 4)
        if o.delay:
            for _ in range(o.delay):
                b.append(raw("s_sleep 127"))
        if o.touch:
            for l in range(6):
                b.append(salu("s_add_u32", "s3", self.sXs, l * 32 * MB))
                if o.touch == 1:
                    b.append(bload(f"v{60 + l}", self.vXw, self.sE, "s3", w="dword"))
                else:
                    b.append(bstore(f"v{60 + l}", self.vXw, self.sE, "s3", w="dword", flags=" sc1"))
            b.append(Wait(all_vm=True))
        def x0dma(lo, hi):
            r = []
            for i in range(lo, hi):
                r.append(raw(f"s_add_u32 m0, {self.sLds}, {i * 1024}", "salu"))
                r.append(salu("s_add_u32", "s3", self.sRow, i * 8192))
                r.append(dma(f"v{20 + (i & 3)}", self.sX, "s3", 0, o.xflags, f"x0_{i >> 2}"))
            return r

        def x0fix(bt):
            r = [Wait(vm=[f"x0_{bt}"])]
            for kbl in range(4):
                r.append(dsread(self.x0reg(kbl, bt), f"v{24 + kbl}", bt * 4096))
            r.append(Wait(all_lg=True))
            for kbl in range(4):
                r.append(dswrite(self.vXw, self.x0reg(kbl, bt), bt * 4096 + kbl * 1024))
            if o.apub:
                r += self.x0pub_stream(0, 2 * bt, 2 * bt + 2)
            return r

        def accinit(pred):
            r = []
            for p in range(2):
                for i in range(128):
                    a = self.acc(p, i)
                    if pred(a):
                        r.append(valu("v_accvgpr_write_b32" if a[0] == "a" else "v_mov_b32", a, "1.0"))
            return r

        if o.early == 1 and o.selfw:
            return b + self.prologue_self(accinit, tb)
        if o.early == 1:
            return b + self.prologue_early(accinit, tb)
        late = lambda a: a[0] == "v" and 32 <= int(a[1:]) < 72
        final = lambda a: a[0] == "v" and int(a[1:]) < 32
        na, nb, ahead, npoll = o.x0split

        def biascvt():
            r = []
            for m in range(3):
                r.append(Wait(vm=[R("v", tb + 2 * m, 2)]))
                for j in range(2):
                    src = f"v{tb + 2 * m + j}"
                    r.append(valu("v_lshlrev_b32", f"v{40 + 4 * m + 2 * j}", 16, src))
                    r.append(valu("v_and_b32", f"v{41 + 4 * m + 2 * j}", self.sMask, src))
                r.append(dswrite("v31", R("v", 40 + 4 * m, 4), m * 4096))
            return r + [Wait(all_lg=True)]

        if o.w0prep:
            t0, t1, t2 = self.t
            r = [valu("v_lshlrev_b32", t1, 3, vL), valu("v_mov_b32", t2, 0), salu("s_mov_b32", "s62", 512),
                 tagged(bstore(t2, t1, self.sFm, 0, w="dword", flags=" sc1"), "pst"), salu("s_mov_b32", "s62", 4)]
            b += only(r, True)
            b += only(x0dma(0, nb), False)
            b += accinit(lambda a: not late(a) and not final(a))
            r = [valu("v_and_b32", t0, 0x300, vL), valu("v_add3_u32", t0, t0, vL, self.sStage)]
            qs = [8, 40, 48, 64]
            for q in range(4):
                r.append(Wait(vm=[f"raw{q}"]))
                for t in range(2):
                    for h in range(2):
                        d = R("v", qs[q] + 4 * t + 2 * h, 2)
                        r.append(I(f"ds_read_b64_tr_b16 {d}, {t0} offset:{q * 2048 + h * 256 + t * 8}", "dsr", rd=[t0], wr=[d]))
            for q in range(4):
                r += [salu("s_cmp_eq_u32", "s5", 0),
                      salu("s_cselect_b32", "s3", ((q >> 1) * 16 + 2 * (q & 1)) * 2048, "s6") if q > 1 else
                      salu("s_mov_b32", "s3", 2 * q * 2048),
                      salu("s_add_u32", "s3", "s3", self.sDst), salu("s_mov_b32", "s6", 2 * (q + 1) * 2048)]
                for t in range(2):
                    r.append(Wait(lg=[R("v", qs[q] + 4 * t, 4)]))
                    r.append(tagged(bstore(R("v", qs[q] + 4 * t, 4), vL, self.sW, "s3", t * 2048, flags=" sc1"), "pst"))
            r += x0dma(0, na) + [Wait(vm=["pst"])] + self.wsignal() + x0dma(na, nb)
            b += only(r, True)
            b.append(salu("s_add_u32", self.sDst, self.sDst, D * D * 2))
            b += self.stamp("signalled")
            b += biascvt() + accinit(late)
        else:
            b.append(valu("v_mov_b32", self.t[2], 0))
            b.append(tagged(bstore(self.t[2], vL, self.sFm, 0, w="dword", flags=" sc1"), "pst"))
            b += x0dma(0, na)
            b += accinit(lambda a: not late(a) and not final(a))
            b += self.prep_store()
            b += self.stamp("stores_issued")
            b += x0dma(na, nb)
            b += biascvt() + accinit(late)
            b += [Wait(vm=["pst"]), barrier()] + self.wsignal()
            b += self.stamp("signalled")
        def wring():
            r = []
            for s in [x for x in range(128) if self.site[x] < 0]:
                r += [self.wload(s, 1), self.wload(s, 0)] + self.wstep(s)
            return r

        def path(name, nb2, npoll, stamps):
            st = self.stamp if stamps else (lambda n: [])
            r = x0dma(nb, nb2)
            issued = max(nb, nb2)
            checked = False
            poll_before = None
            for bt in range(8):
                want = min(32, 4 * (bt + 1 + ahead))
                if bt == npoll:
                    r += self.wpoll_load()
                    poll_before = (issued + 3) // 4 if npoll else 0
                if want > issued and (npoll or checked):
                    r += x0dma(issued, want)
                    issued = want
                if poll_before is not None and not checked and bt >= poll_before:
                    r += st("x0_part")
                    r += self.poll_check(name, self.sNeed, 64, self.wpoll_load)
                    r += st("flag_seen")
                    checked = True
                    if npoll:
                        r += x0dma(issued, 32) + wring()
                        issued = 32
                    else:
                        r += wring() + x0dma(issued, want)
                        issued = max(issued, want)
                r += x0fix(bt)
            assert checked and issued == 32
            return r

        if o.stagger < 0:
            b += path("pro", nb, npoll, True)
        else:
            px = path("prox", nb, npoll, True)
            n0 = self.stampn
            self.stampn -= 2 if o.stamps and not o.pstamps else 0
            self.names = self.names[:self.stampn]
            py = path("proy", o.ynb, 0, True)
            assert self.stampn == n0
            for x in px:
                x.note = "gx"
            for x in py:
                x.note = "gy"
            b += [salu("s_bitcmp1_b32", "s2", o.stagger), raw("s_cbranch_scc1 Lgy", "branch")]
            b += px + [raw("s_branch Lgjoin", "branch"), Label("Lgy")] + py + [Label("Lgjoin")]
        b += accinit(final)
        if o.gather:
            b += [salu("s_xor_b32", self.sXl, self.sRow, 1024), salu("s_mov_b32", "s20", 64),
                  salu("s_mov_b32", "s21", 32768 - 64), salu("s_mov_b32", "s22", hex((128 - 64 - 7 * 32768) & 0xffffffff))]
        b += [Wait(all_lg=True), barrier()]
        for j in range(8):
            for i in range(2):
                b.append(self.xread(j, i ^ (j & 1), 0, 0))
        b.append(Wait(lg=[self.xf(j, c) for j in range(o.xw) for c in range(2)], vm=[self.wslot(0, 0), self.wslot(0, 1)]))
        if o.desync:
            b += [raw("s_lshr_b32 s3, s2, 1"), raw("s_and_b32 s3, s3, 15"), Label("Lds"), raw(f"s_sleep {o.desync}"),
                  raw("s_sub_u32 s3, s3, 1"), raw("s_cbranch_scc0 Lds")]
        b += self.stamp("pro_done")
        return b

    def prologue_self(self, accinit, tb):
        o = self.o
        vL = self.vL
        t0, t1 = self.t[0], self.t[1]
        b = []
        vG, vS, vR, vT = "v20", ["v21", "v22"], "v23", ["v24", "v25"]
        wbuf = set(r for s in range(16 - self.NS) for c in range(2) for r in regs(self.wreg0(s, c)))
        late = lambda a: a[0] == "v" and 32 <= int(a[1:]) < 64
        final = lambda a: a[0] == "v" and int(a[1:]) < 32
        ns1, psig, na, nB0, lead = o.selfp
        b += [valu("v_lshrrev_b32", t0, 2, vL), valu("v_and_b32", t0, 0x40, t0), valu("v_xor_b32", t0, t0, vL),
              valu("v_and_b32", t0, 0x70, t0), valu("v_lshrrev_b32", t1, 7, vL), valu("v_lshl_add_u32", vR, t1, 11, t0),
              salu("s_and_b32", "s69", self.sRow, 2047), salu("s_lshl_b32", "s3", "s7", 20),
              salu("s_add_u32", "s69", "s69", "s3")]

        def rawdma(lo, hi):
            r = []
            for n in range(lo, min(hi, 4 * o.nself)):
                p, i = n >> 2, n & 3
                r.append(raw(f"s_add_u32 m0, {self.sLds}, {(2 * (p & 3) + (i >> 1)) * 4096 + (p >> 2) * 2048 + (i & 1) * 1024}", "salu"))
                r.append(salu("s_add_u32", "s3", "s69", (128 * (p >> 1) + 32 * (p & 1) + 8 * i) * 2048))
                r.append(dma(vR, self.sR, "s3", 0, "", f"sw{p}"))
            return r

        def trans(p):
            if p >= o.nself:
                return []
            r = [Wait(vm=[f"sw{p}"])]
            for nt in range(4):
                d = int(regs(self.wreg0((p >> 1) * 4 + nt, p & 1))[0][1:])
                k = self.wreg0((p >> 1) * 4 + nt, p & 1)[0]
                for h in range(2):
                    dd = R(k, d + 2 * h, 2)
                    r.append(I(f"ds_read_b64_tr_b16 {dd}, {vT[nt >> 1]} offset:{(p & 3) * 8192 + (p >> 2) * 2048 + h * 512 + (nt & 1) * 8}", "dsr",
                               rd=[vT[nt >> 1]], wr=[dd]))
            return r

        b += rawdma(0, ns1)
        b.append(valu("v_mov_b32", self.t[2], 0))
        b.append(tagged(bstore(self.t[2], vL, self.sFm, 0, w="dword", flags=" sc1"), "pst"))
        b += self.calc_vG(vG) + self.calc_vS(vS)
        b += [valu("v_lshrrev_b32", t0, 1, vL), valu("v_and_b32", t0, 0x40, t0), valu("v_and_b32", t1, 0x30, vL),
              valu("v_or_b32", t0, t0, t1), valu("v_and_b32", t1, 0xc0, vL), valu("v_lshl_add_u32", t0, t1, 1, t0),
              valu("v_and_b32", t1, 0x100, vL), valu("v_lshl_add_u32", t0, t1, 2, t0),
              valu("v_and_b32", t1, 0x200, vL), valu("v_lshl_add_u32", t0, t1, 3, t0),
              valu("v_add_u32", vT[0], self.sLds, t0), valu("v_xor_b32", vT[1], 64, vT[0])]
        b += accinit(lambda a: not late(a) and not final(a) and a not in wbuf)
        b += self.prep_store()
        ns2 = max(ns1, o.ns2)
        b += rawdma(ns1, ns2)
        b += self.stamp("stores_issued")
        for m in range(3):
            b.append(Wait(vm=[R("v", tb + 2 * m, 2)]))
            for j in range(2):
                src = f"v{tb + 2 * m + j}"
                b.append(valu("v_lshlrev_b32", f"v{40 + 4 * m + 2 * j}", 16, src))
                b.append(valu("v_and_b32", f"v{41 + 4 * m + 2 * j}", self.sMask, src))
            b.append(dswrite("v31", R("v", 40 + 4 * m, 4), m * 4096))
        b.append(Wait(all_lg=True))
        b += accinit(late)
        issued = 0
        pdone = lambda p: [self.wreg0((p >> 1) * 4 + nt, p & 1) for nt in range(4)]
        assert ns2 >= 16 and psig <= ns2 // 4
        nearly = 8 if not o.rawlate else ns2 // 4
        for p in range(nearly + 1):
            if p == psig:
                b += [Wait(vm=["pst"]), barrier()] + self.wsignal()
                b += self.stamp("signalled")
                if not o.rawlate:
                    b += rawdma(ns2, 32)
            if p < nearly and (p < 4 or p < psig):
                b += trans(p)
            if p:
                want = min(16, 4 * p) if p > psig else min(4 * p, na)
                if want > issued:
                    b.append(Wait(lg=pdone(min(p - 1, 3))))
                    b += self.x0h_dma(0, issued, want, vG)
                    issued = want
            if p >= 4 and p >= psig:
                break
        b.append(Wait(lg=pdone(3)))
        b += self.x0h_dma(0, issued, 16, vG)
        if o.rawlate:
            b += rawdma(ns2, 32)
        for p in range(max(4, psig), nearly):
            b += trans(p)
        lateT = [x for p in range(max(nearly, psig), 8) for x in trans(p)]
        b += self.stamp("x0A_issued")
        nB = 0
        polled = False
        for bt in range(min(0, -lead), 9):
            want = min(16, 2 * (bt + lead + 1)) if bt < 8 else (o.nb_pro if o.nb_pro else 16)
            if nB < want and nB == 0:
                b += lateT + [Wait(all_lg=True)]
                lateT = []
            while nB < want:
                if nB == nB0:
                    b += self.wpoll_load()
                    polled = True
                b += self.x0h_dma(1, nB, nB + 1, vG)
                nB += 1
            if 0 <= bt < 8:
                b += self.x0h_read(0, bt, vS)
            if 0 < bt < 8:
                b += self.x0h_write(0, bt - 1)
            if bt == 7:
                b += self.x0h_write(0, 7)
        b += lateT
        if not polled:
            b += self.wpoll_load()
        self.nB_done = nB
        b.append(valu("v_mov_b32", "v8", vG))
        b += self.stamp("x0_part")
        b += accinit(final)
        b += [I(f"s_add_u32 s70, s70, {4096 * o.nself}\n s_addc_u32 s71, s71, 0", "salu", rd=["s[70:71]"], wr=["s[70:71]"]),
              salu("s_xor_b32", self.sXl, self.sRow, 1024), salu("s_mov_b32", "s20", 64),
              salu("s_mov_b32", "s21", 32768 - 64), salu("s_mov_b32", "s22", hex((128 - 64 - 7 * 32768) & 0xffffffff))]
        b += [Wait(all_lg=True), barrier()]
        b += [self.xread(j, i ^ (j & 1), 0, 0) for j in range(8) for i in range(2)]
        b.append(Wait(lg=[self.xf(j, c) for j in range(o.xw) for c in range(2)]))
        b += self.stamp("pro_done")
        return b

    def prologue_early(self, accinit, tb):
        o = self.o
        vL = self.vL
        b = []
        vG, vS = "v20", ["v21", "v22"]
        wbuf = set(r for s in range(16 - self.NS) for c in range(2) for r in regs(self.wreg0(s, c)))
        late = lambda a: a[0] == "v" and 32 <= int(a[1:]) < 64
        final = lambda a: a[0] == "v" and int(a[1:]) < 32
        na, nb, npoll, nB0 = o.x0split
        b.append(valu("v_mov_b32", self.t[2], 0))
        b.append(tagged(bstore(self.t[2], vL, self.sFm, 0, w="dword", flags=" sc1"), "pst"))
        b += self.calc_vG(vG) + self.calc_vS(vS)
        b += self.x0h_dma(0, 0, na, vG)
        b += accinit(lambda a: not late(a) and not final(a) and a not in wbuf)
        b += self.prep_store()
        b += self.stamp("stores_issued")
        b += self.x0h_dma(0, na, nb, vG)
        for m in range(3):
            b.append(Wait(vm=[R("v", tb + 2 * m, 2)]))
            for j in range(2):
                src = f"v{tb + 2 * m + j}"
                b.append(valu("v_lshlrev_b32", f"v{40 + 4 * m + 2 * j}", 16, src))
                b.append(valu("v_and_b32", f"v{41 + 4 * m + 2 * j}", self.sMask, src))
            b.append(dswrite("v31", R("v", 40 + 4 * m, 4), m * 4096))
        b.append(Wait(all_lg=True))
        b += accinit(late)
        b += [Wait(vm=["pst"]), barrier()] + self.wsignal()
        b += self.stamp("signalled")
        b += self.x0h_dma(0, nb, 16, vG)
        def only0(ins):
            if not o.poll0:
                return ins
            n = self.nseg = getattr(self, "nseg", 0) + 1
            for x in ins:
                x.note = "gy"
            return [salu("s_cmp_eq_u32", self.sWave, 0), raw(f"s_cbranch_scc0 Lseg{n}", "branch")] + ins + [Label(f"Lseg{n}")]

        for bt in range(8):
            if bt == npoll:
                b += only0(self.wpoll_load()) + self.x0h_dma(1, 0, nB0, vG)
            b += self.x0h_read(0, bt, vS)
            if bt:
                b += self.x0h_write(0, bt - 1)
        if npoll >= 8:
            b += only0(self.wpoll_load()) + self.x0h_dma(1, 0, nB0, vG)
        b += self.x0h_write(0, 7)
        b += self.stamp("x0_part")
        chk = self.poll_check("pro", self.sNeed, 64, self.wpoll_load)
        if o.poll0:
            b += only0(chk[:-1]) + chk[-1:]
            chk = []
        b += [Wait(all_lg=True), barrier()]
        xr = [self.xread(j, i ^ (j & 1), 0, 0) for j in range(8) for i in range(2)]
        if not o.poll0:
            b += xr + chk
            xr = []
        b += self.stamp("flag_seen")
        for s in range(16):
            b += [self.wload(s, 1, self.wreg0(s, 1)), self.wload(s, 0, self.wreg0(s, 0))]
            b += self.wstep(s)
            if s == 3:
                b += xr
        b += self.x0h_dma(1, nB0, max(nB0, o.nb_pro) if o.gather else 16, vG)
        b.append(valu("v_mov_b32", "v8", vG))
        b += accinit(final)
        if o.gather:
            b += [salu("s_xor_b32", self.sXl, self.sRow, 1024), salu("s_mov_b32", "s20", 64),
                  salu("s_mov_b32", "s21", 32768 - 64), salu("s_mov_b32", "s22", hex((128 - 64 - 7 * 32768) & 0xffffffff))]
        b.append(Wait(lg=[self.xf(j, c) for j in range(o.xw) for c in range(2)], vm=[self.wreg0(0, 0), self.wreg0(0, 1)]))
        b += self.stamp("pro_done")
        return b

    def build(self):
        o = self.o
        A, B, AB = [0, 1, 2, 3], [4, 5, 6, 7], list(range(8))
        e = (lambda s: []) if o.noepi else (lambda s: s)
        unit_end = lambda x: x.kind in ("vst", "dsw") and x.rd & {"v12"}
        safe_bias = lambda x: x.kind == "valu" and "add_f32" in x.text and not x.wr & set(self.t)
        pro = self.prologue()
        PL = o.pstamps - 1
        dA, dB = o.direct
        g0, g1, g2, g3 = o.sg
        ep = o.earlyprep
        if o.gather and o.early == 1:
            ini = []
            for s in range(16 - self.NS):
                ini.append(([valu("v_mov_b32", r, "1.0") for c in range(2) for r in regs(self.wreg0(s, c))],
                            16 * s + 18, 16 * s + 30))
            nB1 = o.x0split[3]
            late = self.x0h_dma(1, max(nB1, o.nb_pro), 16, "v8")
            fx = []
            if o.selfw:
                late = self.x0h_dma(1, self.nB_done, 16, "v8")
                chk = self.poll_check("pro", self.sNeed, 64, self.wpoll_load)
                if o.nself < 8:
                    wl = []
                    for s in range(2 * o.nself, 16):
                        wl += [self.wload(s, 1, self.wreg0(s, 1)), self.wload(s, 0, self.wreg0(s, 0))] + self.wstep(s)
                    late = chk + wl + late
                else:
                    fx = [(self.site[16] * 16 + 2, chk)]
            s1a0 = self.phase(0, A, 0, 0, late, wreg=self.wreg0, skip_below=16, extra=ini, end=o.pub0_end, fixed=fx)
            s1a0 += self.stamp("s1a0")
            vS = [f"v{self.Q[0]}", f"v{self.Q[0] + 1}"]
            fix = self.calc_vS(vS)
            for bt in range(8):
                fix += self.x0h_read(1, bt, vS) + space(3)
                if bt:
                    fix += self.x0h_write(1, bt - 1)
            fix += space(4) + self.x0h_write(1, 7)
            s1a0 += self.phase(16, B, 0, 1, fix + self.calc_vB() + e(self.bias_stream(0)), bar=True,
                               pre_bar=[salu("s_add_u32", self.sPNeed, self.sPNeed, 1)])
            s1a0 += self.stamp("s1b0")
        elif o.gather:
            assert not o.early
            s1a0 = self.phase(0, A, 0, 0, []) + self.stamp("s1a0")
        elif o.early == 2:
            s1a0 = self.phase(0, A, 0, 0, self.x0pub_stream(0), end=o.pub0_end) + self.stamp("s1a0")
            st = insert_at(self.calc_vB() + e(self.bias_stream(0)), o.sig0_at, self.psignal(0), safe_bias)
            st = insert_at(st, o.poll0_at, self.ppoll_load(), safe_bias)
            if o.wsig2:
                st = st + self.prep_load()
            s1a0 += self.phase(16, B, 0, 1, st, bar=True, extra=[(self.x0pub_stream(1), 0, 230)],
                               pre_bar=self.poll_check("pa0", self.sPNeed, 1, self.ppoll_load))
            s1a0 += self.stamp("s1b0")
        elif o.early:
            ini = []
            for s in range(16 - self.NS):
                ini.append(([valu("v_mov_b32", r, "1.0") for c in range(2) for r in regs(self.wreg0(s, c))],
                            16 * s + 18, 16 * s + 30))
            s1a0 = self.phase(0, A, 0, 0, self.x0pub_stream(0), wreg=self.wreg0, skip_below=16, extra=ini,
                              end=o.pub0_end) + self.stamp("s1a0")
            vS = [f"v{self.Q[0]}", f"v{self.Q[0] + 1}"]
            fix = self.calc_vS(vS)
            for bt in range(8):
                fix += self.x0h_read(1, bt, vS)
                if bt:
                    fix += self.x0h_write(1, bt - 1) + self.x0pub_stream(1, 2 * bt - 2, 2 * bt)
                if bt == 1:
                    fix += self.psignal(0)
            fix += self.x0h_write(1, 7) + self.x0pub_stream(1, 14, 16)
            st = insert_at(self.calc_vB() + e(self.bias_stream(0)), 0.6, self.ppoll_load(), safe_bias)
            s1a0 += self.phase(16, B, 0, 1, fix + st, bar=True,
                               pre_bar=self.poll_check("pa0", self.sPNeed, 1, self.ppoll_load))
            s1a0 += self.stamp("s1b0")
        else:
            s1a0 = self.phase(0, A, 0, 0, (self.prep_load() if ep else []) + self.x0pub_stream(0) +
                              self.x0pub_stream(1, 0, dB) + (self.psignal(0) if dA == 16 else [])) + self.stamp("s1a0")
        lp = o.lateprep
        st = (self.prep_store() if ep else [] if lp else self.prep_load()) + self.calc_vB() + e(self.bias_stream(0))
        if o.wsig2:
            st = st + self.prep_load()
        if dA < 16:
            st = insert_at(st, o.siga2_at, self.psignal(0), safe_bias)
        if dB == 16 and not o.early:
            st = insert_at(st, o.sigb_at, self.psignal(1), safe_bias)
        fx2 = [(o.pollb_gap, self.ppoll_load()), (1, self.xnext(self.sXs, 0))]
        if dB < 16 or o.early:
            fx2.append((g3, self.psignal(1)))
        if g0 < 0:
            st = insert_at(st, o.polla_at, self.ppoll_load(), safe_bias)
            pb1 = self.poll_check("pa", self.sPNeed, 1, self.ppoll_load)
            g1 = -1
        else:
            assert not o.early
            pb1 = []
            fx2 += [(g0, self.ppoll_load()), (g1, self.poll_check("pa", self.sPNeed, 1, self.ppoll_load))]
        if ep:
            pb1 = [Wait(vm=["pst"])] + pb1
            fx2.append((3, self.wsignal()))
        s1b = [Label("Ls1b")] + self.phase(16, B, 0, 1, st, bar=True, pre_bar=pb1, end=o.bias_end or None,
                                            extra=[(self.pub_stream(1, dB, 16), 0, 232)])
        s2 = self.phase(32, AB, 1, 0, self.xch_dma(0) + ([] if ep or lp else self.prep_store()), bar=True, start=g1 + 1, end=g2, fixed=fx2,
                        post_bar=self.xr_gathered(),
                        extra=[(self.prep_store(10) if o.wsig2 else self.prep_load() if lp else [], lp, lp + (30 if o.wsig2 else 12))],
                        pre_bar=[Wait(vm=["xl0", "pst"] if o.wsig2 else ["xl0"])] + self.poll_check("pb", self.sPNeed, 1, self.ppoll_load))
        s3 = self.phase(64, AB, 0, 1, self.xch_dma(1), bar=True, end=o.dma_end, pre_bar=[Wait(vm=["xl1", "pst"])],
                        extra=[(self.wsignal(), 2, 6)] if o.wsig2 else
                        [(self.prep_store(10) if lp else [], o.preps_at, o.preps_at + 30)])
        s1b[1:1] = self.lstamp("pre", PL) if PL > 0 else []
        s1b += self.lstamp("s1b", PL)
        s2 += self.lstamp("s2", PL)
        s3 += self.lstamp("s3", PL)
        s4a = self.phase(96, A, 1, 1, ([] if ep or o.wsig2 else self.wsignal()) + (self.calc_vB() if self.small else []) + e(self.bias_stream(1)),
                         end=o.bias_end or None)
        if o.gather:
            s4a += self.xch_switch()
        s4a += self.lstamp("s4a", PL)
        s4a += [salu("s_add_u32", self.sBias, self.sBias, 2048), salu("s_add_u32", self.sL, self.sL, 1),
                salu("s_cmp_eq_u32", self.sL, NL), raw("s_cbranch_scc1 Llast", "branch")]
        st = insert_at(e(self.epi_stream(0, dA)), o.pollw_at, self.wpoll_load(), unit_end)
        chk = (self.site[128] - 112) * 16 + 2
        s4b = self.phase(112, B, 1, 0, st, bar=True, post_bar=self.xr_plain(),
                         fixed=[(chk, self.poll_check("w", self.sNeed, 64, self.wpoll_load))])
        s4b += self.lstamp("s4b", PL + 1)
        st = e(self.epi_stream(1, dB))
        if dA == 16:
            st = insert_at(st, o.siga_at, self.psignal(0), unit_end)
        if ep:
            st = insert_at(st, o.prepl_at, self.prep_load(), unit_end)
        s1a = self.phase(0, A, 0, 0, st, extra=[(self.pub_stream(0, dA, 16), 0, o.puba_end)])
        if o.stamps:
            s1a += [raw(f"s_cmp_eq_u32 s25, {max(1, o.pstamps)}"), raw("s_cbranch_scc0 Lnostamp")] + self.stamp("layer1") + [
                raw("s_memrealtime s[4:5]"), Label("Lnostamp")]
        if o.early:
            assert lp
            s2 = [Label("Lloop")] + s2
            s1b += [raw("s_branch Lloop", "branch")]
        else:
            s1a += [raw("s_branch Ls1b", "branch")]
        s4bl = [Label("Llast")] + self.stamp("4.75layers") + ([raw("s_memrealtime s[6:7]")] if o.stamps else [])
        s4bl += self.phase(112, B, 1, None, self.out_stream(0), last=True)
        tail = self.stamp("s4b_last") + [nop(7)] + [x for x in self.out_stream(1) if x.kind != "space"]
        if o.stamps:
            tail += self.stamp("tail_issued")
            tail += [Wait(all_vm=True)]
            tail += self.stamp("tail_drained")
            tail.append(raw("s_memrealtime s[38:39]"))
            tail.append(raw("s_waitcnt lgkmcnt(0)"))
            tail.append(raw("v_cmp_eq_u32 vcc, 0, v0"))
            tail.append(raw("s_and_saveexec_b64 s[68:69], vcc"))
            tail.append(raw("s_cbranch_execz Lend"))
            if o.dbgout >= 0:
                tail += [raw(f"s_cmp_lg_u32 s2, {o.dbgout}"), raw("s_cbranch_scc1 Lend"), raw("v_mov_b32 v1, 0")]
                tail += [raw("s_sub_u32 s3, s38, s36"), raw("v_mov_b32 v2, s3"),
                         raw("buffer_store_dword v2, v1, s[44:47], 0 offen offset:4"),
                         raw("s_sub_u32 s3, s6, s4"), raw("v_mov_b32 v2, s3"),
                         raw("buffer_store_dword v2, v1, s[44:47], 0 offen offset:8"),
                         raw("v_mov_b32 v2, s53"), raw("buffer_store_dword v2, v1, s[44:47], 0 offen offset:12")]
                for n in range(1, min(self.stampn, 13)):
                    tail += [raw(f"s_sub_u32 s3, s{72 + 2 * n}, s{70 + 2 * n}"), raw("v_mov_b32 v2, s3"),
                             raw(f"buffer_store_dword v2, v1, s[44:47], 0 offen offset:{12 + 4 * n}")]
            else:
                tail.append(raw("s_lshl_b32 s3, s2, 8"))
                tail.append(raw(f"s_add_u32 s3, s3, {WS_STAMP}"))
                tail.append(raw("v_mov_b32 v1, 0"))
                for n, i in enumerate(list(range(36, 40)) + list(range(72, 102)) + [4, 5, 6, 7, 53]):
                    tail.append(raw(f"v_mov_b32 v2, s{i}"))
                    tail.append(raw(f"buffer_store_dword v2, v1, s[32:35], s3 offen offset:{n * 4}"))
        tail += [Label("Lend"), raw("s_endpgm")]
        rest = s1a0 + ([] if o.early else s1b)
        for l in range(NL - 1):
            rest = rest + s2 + s3 + s4a + s4b + s1a + s1b
        rest = rest + s2 + s3 + s4a + s4bl + tail
        traces = [[x for x in pro if x.note != skip] + rest for skip in ("gx", "gy")]
        for tr in traces:
            resolve_waits(tr)
        for tr in traces:
            errs, mv, ml = check(tr)
            if errs and not o.now and o.slots <= 6:
                for x in errs[:20]:
                    print(x, file=sys.stderr)
                raise SystemExit("hazard/dependency errors")
        if o.early:
            prog = pro + s1a0 + s2 + s3 + s4a + s4b + s1a + s1b + s4bl + tail + self.ool
        else:
            prog = pro + s1a0 + s1b + s2 + s3 + s4a + s4b + s1a + s4bl + tail + self.ool
        txt = f".globl {KNAME}\n.p2align 8\n.type {KNAME},@function\n{KNAME}:\n" + emit(prog) + "\n"
        txt = "; stamps: " + " ".join(self.names) + "\n" + txt
        return txt, kd(KNAME, 512, 102, 256)


def main():
    ap = argparse.ArgumentParser()
    ap.add_argument("-o", default="standalone__cross_network_dcn__recsys.s")
    ap.add_argument("--slots", type=int, default=6)
    ap.add_argument("--wflags", default="sc1")
    ap.add_argument("--xflags", default="")
    ap.add_argument("--oflags", default="nt")
    ap.add_argument("--rflags", default="")
    ap.add_argument("--xsflags", default="sc1")
    ap.add_argument("--xlflags", default="")
    ap.add_argument("--bar_lead", type=int, default=6)
    ap.add_argument("--xw", type=int, default=4)
    ap.add_argument("--x0split", type=int, nargs=4, default=[4, 4, 8, 0])
    ap.add_argument("--sigb_at", type=float, default=0.45)
    ap.add_argument("--polla_at", type=float, default=0.6)
    ap.add_argument("--siga_at", type=float, default=0.45)
    ap.add_argument("--pollw_at", type=float, default=0.3)
    ap.add_argument("--pollb_gap", type=int, default=386)
    ap.add_argument("--dma_end", type=int, default=440)
    ap.add_argument("--stamps", action="store_true")
    ap.add_argument("--nself", type=int, default=8)
    ap.add_argument("--rawlate", type=int, default=0)
    ap.add_argument("--ns2", type=int, default=32)
    ap.add_argument("--selfw", type=int, default=0)
    ap.add_argument("--selfp", type=int, nargs=5, default=[16, 4, 4, 8, 0],
                    help="raw DMAs before the prep stores, piece before which to signal, x0A DMAs before the signal, x0B DMAs before the poll, x0B lead")
    ap.add_argument("--wbunch", type=int, default=1)
    ap.add_argument("--bias_end", type=int, default=0)
    ap.add_argument("--quadg", type=int, default=1)
    ap.add_argument("--dmagroup", type=int, default=1)
    ap.add_argument("--poll0", type=int, default=1)
    ap.add_argument("--nox", action="store_true", help="diagnostic")
    ap.add_argument("--nost", action="store_true", help="diagnostic")
    ap.add_argument("--nodma", action="store_true", help="diagnostic")
    ap.add_argument("--nobias", action="store_true", help="diagnostic")
    ap.add_argument("--shift", type=int, default=0)
    ap.add_argument("--cpfsplit", type=int, default=1)
    ap.add_argument("--backoff", type=int, default=0)
    ap.add_argument("--w0prep", type=int, default=0)
    ap.add_argument("--nb_pro", type=int, default=0, help="early mode: x0 B-half DMAs issued before the first MFMA")
    ap.add_argument("--dmapair", type=int, default=10)
    ap.add_argument("--dbgout", type=int, default=-1)
    ap.add_argument("--tailpk", type=int, default=1)
    ap.add_argument("--gather", type=int, default=1)
    ap.add_argument("--wsig2", type=int, default=0)
    ap.add_argument("--stagger", type=int, default=-1, help="workgroup-id bit selecting the late group")
    ap.add_argument("--ynb", type=int, default=4)
    ap.add_argument("--sig0_at", type=float, default=0.1)
    ap.add_argument("--poll0_at", type=float, default=0.7)
    ap.add_argument("--verbose", action="store_true")
    ap.add_argument("--gload", type=int, default=1)
    ap.add_argument("--pace", type=float, default=0.1)
    ap.add_argument("--early", type=int, default=1)
    ap.add_argument("--pub0_end", type=int, default=40)
    ap.add_argument("--earlyprep", type=int, default=0)
    ap.add_argument("--lateprep", type=int, default=400)
    ap.add_argument("--preps_at", type=int, default=330)
    ap.add_argument("--prepl_at", type=float, default=0.1)
    ap.add_argument("--wdelay", type=int, default=2)
    ap.add_argument("--short_at", type=int, default=72)
    ap.add_argument("--pkmul", type=int, default=0)
    ap.add_argument("--pkadd", type=int, default=0)
    ap.add_argument("--apub", type=int, default=0, help="publish x0's A half in the prologue")
    ap.add_argument("--cpf", type=int, default=4, help="code prefetch loads per wave (16 KB each)")
    ap.add_argument("--desync", type=int, default=0, help="diagnostic")
    ap.add_argument("--direct", type=int, nargs=2, default=[16, 16])
    ap.add_argument("--siga2_at", type=float, default=0.15)
    ap.add_argument("--puba_end", type=int, default=200)
    ap.add_argument("--sg", type=int, nargs=4, default=[-1, 0, 390, 82])
    ap.add_argument("--delay", type=int, default=0, help="diagnostic")
    ap.add_argument("--touch", type=int, default=0, help="diagnostic")
    ap.add_argument("--pstamps", type=int, default=0, help="phase stamps in layer N-1")
    ap.add_argument("--xbase", type=int, default=32)
    ap.add_argument("--xbufs", type=int, default=6)
    ap.add_argument("--now", action="store_true", help="diagnostic: no W loads in the loop")
    ap.add_argument("--noxch", action="store_true", help="diagnostic: no exchange traffic")
    ap.add_argument("--noepi", action="store_true", help="diagnostic: no epilogue/bias in the loop")
    o = ap.parse_args()
    for k in ("wflags", "xflags", "oflags", "rflags", "xsflags", "xlflags"):
        v = getattr(o, k)
        setattr(o, k, (" " + v.replace(",", " ")) if v and v != "none" else "")
    mtxt, mkd = Main(o).build()
    opts = " ".join(a for a in sys.argv[1:] if not a.endswith(".s") and a != "-o")
    s = HEADER.format(opts=opts)
    s += f"; @launch grid=(256,1,1) block=(256,1,1) lds={LDS_TOTAL}\n"
    s += '.amdgcn_target "amdgcn-amd-amdhsa--gfx950"\n.text\n'
    s += mtxt + mkd
    open(o.o, "w").write(s)
    print(o.o, len(s), "bytes")


if __name__ == "__main__":
    main()
```

```python
import argparse
import sys
from asmir import *

KNAME = "standalone__cross_network_dcn__recsys_kernel"
NL = 6
D = 1024
NB = 16384
MB = 1 << 20

HEADER = """; Kernarg layout for this problem (48 bytes, ptrs only, base s[0:1]):
;   offset  40: d_ws      268435456 bytes workspace
; Generated by gen/gen3.py (hand-written generator). Options: {opts}
"""

LDS_BIAS = 131072
LDS_STAGE = LDS_BIAS + NL * 512 * 4
LDS_TOTAL = LDS_STAGE + 8192
WS_FLAGS = 15 * MB
WS_XCH = 32 * MB
WS_STAMP = 16 * MB


def kd(name, vgpr, sgpr, accum):
    return f""".section .rodata,"a"
.p2align 6
.amdhsa_kernel {name}
  .amdhsa_next_free_vgpr {vgpr}
  .amdhsa_next_free_sgpr {sgpr}
  .amdhsa_accum_offset {accum}
  .amdhsa_group_segment_fixed_size 0
  .amdhsa_kernarg_size 48
  .amdhsa_user_sgpr_count 2
  .amdhsa_user_sgpr_kernarg_segment_ptr 1
  .amdhsa_system_sgpr_workgroup_id_x 1
  .amdhsa_float_denorm_mode_32 3
.end_amdhsa_kernel
"""


def srd(base, lo, hi, nbytes):
    return [salu("s_mov_b32", f"s{base}", lo), salu("s_mov_b32", f"s{base + 1}", hi),
            salu("s_mov_b32", f"s{base + 2}", hex(nbytes)), salu("s_mov_b32", f"s{base + 3}", "0x20000")]


def srd_off(base, lo, hi, off, nbytes):
    return [salu("s_add_u32", f"s{base}", lo, off), salu("s_addc_u32", f"s{base + 1}", hi, 0),
            salu("s_mov_b32", f"s{base + 2}", hex(nbytes)), salu("s_mov_b32", f"s{base + 3}", "0x20000")]


def sload(d, off, n=2):
    return I(f"s_load_dwordx{n} {d}, s[0:1], {off}", "smem", wr=[d])


def tagged(ins, tag):
    ins.wr = set(ins.wr) | {tag}
    return ins


def dma(voff, srdn, soff, off, flags, tag):
    o = f" offset:{off}" if off else ""
    return tagged(I(f"buffer_load_dwordx4 {voff}, {srdn}, {soff} offen{o}{flags} lds", "vld", rd=[voff]), tag)


def hoist(ins):
    ins.note = "hoist"
    return ins


def space(n):
    return [I("", "space") for _ in range(n)]


def insert_at(stream, frac, items, ok):
    i = int(len(stream) * frac)
    while 0 < i < len(stream) and not ok(stream[i - 1]):
        i += 1
    return stream[:i] + items + stream[i:]


class Main:
    def __init__(self, o):
        self.o = o
        self.sX, self.sW, self.sO, self.sB = "s[8:11]", "s[12:15]", "s[16:19]", "s[20:23]"
        self.sE, self.sR, self.sD = "s[32:35]", "s[40:43]", "s[44:47]"
        self.sC, self.sFm, self.sFp = "s[56:59]", "s[60:63]", "s[64:67]"
        self.sWoff, self.sL, self.sMask, self.sNeed = "s24", "s25", "s26", "s27"
        self.sRow, self.sXs, self.sXl, self.sFlag = "s28", "s29", "s30", "s31"
        self.sRaw, self.sDst, self.sLds, self.sBias, self.sStage, self.sSpin, self.sWave, self.sPNeed = (
            "s48", "s49", "s50", "s51", "s52", "s53", "s54", "s55")
        self.vW, self.vXw, self.vB = "v0", "v3", "v4"
        self.vXr = ["v1", "v2"]
        self.vL = "v1"
        self.t = ["v5", "v6", "v7"]
        self.Q = [8, 12]
        self.vP, self.vG = "v16", "v17"
        self.vS = ["v18", "v19"]
        self.RQ = [20, 24]
        self.NS = o.slots
        self.aX0 = 0
        self.aXF = 128
        self.aW = 192
        self.aACC = self.aW + 8 * min(self.NS, 6)
        self.nA = 256 - self.aACC
        self.vACC = self.nA
        NS = self.NS
        nshort = (-128) % NS
        nlong = (128 - nshort * (NS - 1)) // NS
        first = min(nlong, o.short_at // NS)
        seq = list(range(NS)) * first + list(range(NS - 1)) * nshort + list(range(NS)) * (nlong - first)
        assert len(seq) == 128
        self.slot = seq
        site = {}
        for s2 in range(-128, 256):
            p = s2 - 1
            while seq[p % 128] != seq[s2 % 128]:
                p -= 1
            site[s2] = max(p, site.get(s2 - 1, -10 ** 9))
        if o.wbunch > 1:
            k = o.wbunch
            for s2 in site:
                site[s2] = ((site[s2] // k) + 1) * k - 1
        self.site = site
        self.loads_at = {}
        for s2 in range(0, 256):
            self.loads_at.setdefault(site[s2], []).append(s2)
        self.small = self.vACC < 28
        if self.small:
            self.vP = self.vB
            q0 = [int(self.acc_tile(nt, 0, 0, 1)[1:]) for nt in range(4)]
            self.vG, self.vS, self.RQ = f"v{q0[0]}", [f"v{q0[0] + 1}", f"v{q0[0] + 2}"], [q0[1], q0[2]]
        self.init = "1.0" if not o.init else "s23"
        self.stampn = 0
        self.names = []
        self.ool = []

    def acc(self, p, i, n=1):
        h = self.nA // 2
        nv = 128 - h
        if i < nv:
            assert i + n <= nv
            return R("v", self.vACC + p * nv + i, n)
        return R("a", self.aACC + p * h + (i - nv), n)

    def acc_tile(self, nt, bt, r=0, n=4):
        return self.acc(nt >> 2, ((nt & 3) * 8 + bt) * 4 + r, n)

    def x0reg(self, kbl, bt, j=0, n=4):
        return R("a", self.aX0 + (kbl * 8 + bt) * 4 + j, n)

    def xf(self, bt, c):
        return R("a", self.aXF + (bt * 2 + c) * 4, 4)

    def wslot(self, s, c):
        if self.slot[s % 128] >= 6:
            return R("a", ((self.slot[s % 128] - 6) * 2 + c) * 4, 4)
        return R("a", self.aW + (self.slot[s % 128] * 2 + c) * 4, 4)

    def wload(self, s, c, dst=None):
        if self.o.gload:
            d = dst or self.wslot(s, c)
            off = (s & 3) * 2048 + c * 1024 - 4096
            return I(f"global_load_dwordx4 {d}, {self.vW}, s[70:71] offset:{off}{self.o.wflags}", "vld",
                     rd=[self.vW, "s[70:71]"], wr=[d])
        return bload(dst or self.wslot(s, c), self.vW, self.sW, self.sWoff, (s & 1) * 2048 + c * 1024, flags=self.o.wflags)

    def wstep(self, s):
        if self.o.gload:
            if (s & 3) != 3:
                return []
            d = 8192 if (s % 128) != 127 else 8192 + 2 * MB - 256 * 1024
            both = I(f"s_add_u32 s70, s70, {d}\n s_addc_u32 s71, s71, 0", "salu", rd=["s[70:71]"], wr=["s[70:71]"])
            both.states = 2
            return [both]
        if not s & 1:
            return []
        return [salu("s_add_u32", self.sWoff, self.sWoff, 4096 if (s % 128) != 127 else 4096 + 2 * MB - 256 * 1024)]

    def xread(self, bt, c, rho, ss):
        return dsread(self.xf(bt, c), self.vXr[ss >> 1], (ss & 1) * 32768 + bt * 4096 + rho * 2048 + c * 1024)

    def stamp(self, name="x"):
        if not self.o.stamps:
            return []
        if self.o.pstamps and name in ("kernarg", "x0A_issued", "stores_issued", "signalled", "x0_issued", "x0_part", "flag_seen"):
            return []
        n = self.stampn
        self.stampn += 1
        self.names.append(name)
        assert n < 15
        return [raw(f"s_memtime s[{72 + 2 * n}:{73 + 2 * n}]", "other")]

    def lstamp(self, name, lval):
        if not self.o.pstamps:
            return []
        n = self.stampn
        return [raw(f"s_cmp_eq_u32 s25, {lval}"), raw(f"s_cbranch_scc0 Lns{n}")] + self.stamp(name) + [Label(f"Lns{n}")]

    def epi_unit(self, kbl, bt, q, pk=False):
        s = []
        accs = [self.acc_tile(2 * kbl + t, bt, r, 1) for t in range(2) for r in range(4)]
        hi, lo, m = self.t
        for j in range(4):
            a0, a1 = accs[2 * j], accs[2 * j + 1]
            if self.o.pkmul or pk:
                s.append(valu("v_accvgpr_read_b32", "v7", self.x0reg(kbl, bt, j, 1)))
                ap = f"v[{a0[1:]}:{a1[1:]}]"
                if a0[0] == "a":
                    tp = int(self.acc_tile(3, 0, 0, 1)[1:]) if pk else 28
                    s.append(valu("v_accvgpr_read_b32", f"v{tp}", a0))
                    s.append(valu("v_accvgpr_read_b32", f"v{tp + 1}", a1))
                    ap = R("v", tp, 2)
                s.append(valu("v_lshlrev_b32", "v6", 16, "v7"))
                s.append(valu("v_and_b32", "v7", self.sMask, "v7"))
                s.append(valu("v_pk_mul_f32", "v[6:7]", "v[6:7]", ap))
                s.append(valu("v_cvt_pk_bf16_f32", f"v{q + j}", "v6", "v7"))
                continue
            s.append(valu("v_accvgpr_read_b32", hi, self.x0reg(kbl, bt, j, 1)))
            if a0[0] == "a":
                s.append(valu("v_accvgpr_read_b32", m, a0))
                a0 = m
            s.append(valu("v_lshlrev_b32", lo, 16, hi))
            s.append(valu("v_and_b32", hi, self.sMask, hi))
            s.append(valu("v_mul_f32", lo, lo, a0))
            if a1[0] == "a":
                s.append(valu("v_accvgpr_read_b32", m, a1))
                a1 = m
            s.append(valu("v_mul_f32", hi, hi, a1))
            s.append(valu("v_cvt_pk_bf16_f32", f"v{q + j}", lo, hi))
        return s

    def xstore(self, src, p, u, tmp, state):
        if self.o.noxch or self.o.nost:
            return []
        s = []
        off = p * 16384 + u * 1024
        if state.get("g") != off >> 12:
            state["g"] = off >> 12
            s.append(salu("s_add_u32", tmp, self.sXs, off & ~4095))
        s.append(tagged(bstore(src, self.vXw, self.sE, tmp, off & 4095, flags=self.o.xsflags), f"xs{p}"))
        return s

    def xnext(self, reg, back):
        n = self.o.xbufs
        if n == 1:
            return [salu("s_sub_u32", reg, reg, back)]
        if n == 2:
            return [salu("s_sub_u32", reg, reg, back), salu("s_xor_b32", reg, reg, hex(32 * MB))]
        return [salu("s_add_u32", reg, reg, hex(32 * MB - back))]

    def epi_stream(self, p, ndirect=16):
        s = []
        st = {}
        for bt in range(8):
            for c in range(2):
                q = self.Q[c]
                s += self.epi_unit(2 * p + c, bt, q)
                s.append(dswrite(self.vXw, R("v", q, 4), bt * 4096 + p * 2048 + c * 1024))
                if bt * 2 + c < ndirect:
                    s += self.xstore(R("v", q, 4), p, bt * 2 + c, "s68", st)
        return s

    def pub_stream(self, p, lo, hi):
        s = []
        st = {}
        if self.o.noxch or lo >= hi:
            return s
        assert not self.small

        def rd(u):
            return dsread(R("v", self.RQ[u & 1], 4), self.vXw, (u >> 1) * 4096 + p * 2048 + (u & 1) * 1024)

        s.append(rd(lo))
        s += space(6)
        for u in range(lo, hi):
            if u + 1 < hi:
                s.append(rd(u + 1))
            s.append(Wait(lg=[R("v", self.RQ[u & 1], 4)]))
            s += self.xstore(R("v", self.RQ[u & 1], 4), p, u, "s69", st)
        return s

    def x0pub_stream(self, p, lo=0, hi=16):
        s = []
        st = {}
        for u in range(lo, hi):
            s += self.xstore(self.x0reg(2 * p + (u & 1), u >> 1), p, u, "s68", st)
        return s

    def xch_dma(self, p):
        if self.o.gather:
            return self.xch_dma_g(p)
        s = [raw(f"s_add_u32 m0, {self.sLds}, {p * 2048}", "salu", rd=[self.sLds])] + space(1)
        for bt in range(8):
            for c in range(2):
                if not self.o.noxch:
                    s.append(dma(self.vXw, self.sE, self.sXl, c * 1024, self.o.xlflags, f"xl{p}"))
            if bt < 7:
                s.append(raw("s_add_u32 m0, m0, 4096", "salu"))
            if bt == 7 and p == 1:
                s += self.xnext(self.sXl, 15 * 2048)
            else:
                s.append(salu("s_add_u32", self.sXl, self.sXl, 2048))
        return s

    def xch_dma_g(self, p):
        t0, t1 = self.t[0], self.t[1]
        vL = self.vL
        if self.o.quadg:
            X = self.vXw
            self.ool += [Label(f"Lgat{p}"),
                         raw(f"v_lshrrev_b32 {t0}, 4, {X}"), raw(f"v_and_b32 {t0}, 0x20, {t0}"), raw(f"v_xor_b32 {t0}, {t0}, {X}"),
                         raw(f"v_and_b32 {t0}, 0x30, {t0}"), raw(f"v_bfe_u32 {t1}, {X}, 6, 4"),
                         raw(f"v_lshl_add_u32 {t1}, {t1}, 11, {t0}"), raw(f"s_branch Lgatr{p}")]
        else:
            self.ool += [Label(f"Lgat{p}"),
                         raw(f"v_and_b32 {t0}, 0xf0, {vL}"), raw(f"v_lshrrev_b32 {t1}, 4, {vL}"),
                         raw(f"v_and_b32 {t1}, 0x30, {t1}"), raw(f"v_lshl_add_u32 {t1}, {t0}, 7, {t1}"),
                         raw(f"s_branch Lgatr{p}")]
        sel = I(f"v_mov_b32 {t1}, {self.vXw}\n s_cmp_eq_u32 {self.sL}, 0\n s_cbranch_scc1 Lgat{p}\nLgatr{p}:", "valu",
                rd=[self.vXw], wr=[t0, t1])
        s = [sel, raw(f"s_add_u32 m0, {self.sLds}, {p * 2048}", "salu", rd=[self.sLds])] + space(1)
        for bt in range(8):
            for c in range(2):
                if not self.o.noxch and not self.o.nodma:
                    s.append(dma(t1, self.sX, self.sXl, 0, self.o.xlflags, f"xl{p}"))
                s.append(raw(f"s_add_u32 m0, m0, {1024 if c == 0 else 3072}", "salu"))
                s.append(salu("s_add_u32", self.sXl, self.sXl, "s20" if c == 0 else "s21" if bt < 7 else "s22"))
            if bt < 7 and (bt + 1) % self.o.dmagroup == 0:
                s += space(self.o.dmapair * self.o.dmagroup)
        return s

    def xr_gathered(self):
        if not self.o.quadg:
            return []
        t0, X, r0, r1 = self.t[0], self.vXw, self.vXr[0], self.vXr[1]
        self.ool += [Label("Lxrg"),
                     raw(f"v_lshrrev_b32 {t0}, 2, {X}"), raw(f"v_and_b32 {t0}, 0x20, {t0}"),
                     raw(f"v_lshrrev_b32 {r1}, 4, {X}"), raw(f"v_xor_b32 {t0}, {t0}, {r1}"),
                     raw(f"v_and_b32 {t0}, 0x30, {t0}"), raw(f"v_bfe_u32 {r0}, {X}, 4, 4"),
                     raw(f"v_lshl_add_u32 {r0}, {r0}, 6, {t0}"), raw(f"v_add_u32 {r1}, 0x10000, {r0}"),
                     raw("s_branch Lxrgr")]
        return [I(f"s_cmp_eq_u32 {self.sL}, 0\n s_cbranch_scc1 Lxrg\nLxrgr:", "valu", rd=[X], wr=[t0, r0, r1])]

    def xr_plain(self):
        if not self.o.quadg:
            return []
        return [valu("v_and_b32", self.vXr[0], 0x3ff, self.vXw), valu("v_add_u32", self.vXr[1], 65536, self.vXr[0])]

    def xch_switch(self):
        return [salu("s_mov_b32", "s8", "s32"), salu("s_mov_b32", "s9", "s33"), salu("s_mov_b32", "s10", "s34"),
                salu("s_mov_b32", "s20", 1024), salu("s_mov_b32", "s21", 1024), salu("s_mov_b32", "s22", 1024),
                salu("s_xor_b32", self.sXl, self.sXs, 1 << 17)]

    def calc_vG(self, vG):
        t0, t1 = self.t[0], self.t[1]
        return [valu("v_lshrrev_b32", t0, 7, self.vL), valu("v_lshlrev_b32", t1, 4, t0),
                valu("v_xor_b32", t1, t1, self.vL), valu("v_and_b32", t1, 0x70, t1),
                valu("v_lshl_add_u32", vG, t0, 11, t1)]

    def calc_vS(self, vS):
        t0, t1 = self.t[0], self.t[1]
        vL = self.vL
        return [valu("v_lshrrev_b32", t0, 4, vL), valu("v_and_b32", t0, 0x30, t0), valu("v_xor_b32", t0, t0, vL),
                valu("v_and_b32", t0, 0x70, t0), valu("v_and_b32", t1, 0xf0, vL),
                valu("v_lshl_add_u32", t0, t1, 3, t0), valu("v_add_u32", vS[0], self.sLds, t0),
                valu("v_xor_b32", vS[1], 64, vS[0])]

    def out_setup(self):
        return self.calc_vG(self.vG) + self.calc_vS(self.vS)

    def x0h_dma(self, p, lo, hi, vG):
        r = []
        for i in range(lo, hi):
            r.append(raw(f"s_add_u32 m0, {self.sLds}, {(i >> 1) * 4096 + p * 2048 + (i & 1) * 1024}", "salu"))
            r.append(salu("s_add_u32", "s3", self.sRow, i * 16384 + p * 128))
            r.append(dma(vG, self.sX, "s3", 0, self.o.xflags, f"x0_{p}_{i >> 1}"))
        return r

    def x0h_read(self, p, bt, vS):
        return [Wait(vm=[f"x0_{p}_{bt}"])] + [dsread(self.x0reg(2 * p + c, bt), vS[c], bt * 4096 + p * 2048)
                                              for c in range(2)]

    def x0h_write(self, p, bt):
        return [Wait(lg=[self.x0reg(2 * p + c, bt) for c in range(2)])] + [
            dswrite(self.vXw, self.x0reg(2 * p + c, bt), bt * 4096 + p * 2048 + c * 1024) for c in range(2)]

    def wreg0(self, s, c):
        if s < 16 - self.NS:
            return self.acc(1, (s * 2 + c) * 4, 4)
        return self.wslot(s, c)

    def out_stream(self, p):
        s = []
        pend = []
        for bt in range(8):
            for c in range(2):
                q = self.Q[c]
                u = self.epi_unit(2 * p + c, bt, q, pk=(p == 1 and self.o.tailpk))
                if c == 0 and pend:
                    u = u[:12] + pend + u[12:]
                    pend = []
                s += u
                if p == 0 and bt == 0 and c == 0:
                    s += self.out_setup()
                s.append(dswrite(self.vS[c], R("v", q, 4), bt * 4096))
            for i in range(2):
                s.append(dsread(R("v", self.RQ[i], 4), self.vXw, bt * 4096 + i * 1024))
            for i in range(2):
                pend.append(Wait(lg=[R("v", self.RQ[i], 4)]))
                pend.append(salu("s_add_u32", "s3", self.sRow, bt * 32768 + i * 16384))
                pend.append(bstore(R("v", self.RQ[i], 4), self.vG, self.sO, "s3", p * 128, flags=self.o.oflags))
        return s + pend

    def out_stream4(self, kbl):
        s = []
        pend = []
        p, c = kbl >> 1, kbl & 1
        for bt in range(8):
            q = self.Q[bt & 1]
            u = self.epi_unit(kbl, bt, q, pk=(kbl == 3 and self.o.tailpk))
            s += u[:12] + pend + u[12:]
            pend = []
            if kbl == 0 and bt == 0:
                s += self.out_setup()
            s.append(dswrite(self.vS[c], R("v", q, 4), bt * 4096))
            if c:
                rq = [int(self.acc_tile(1, 0, 0, 1)[1:]), int(self.acc_tile(0, 1, 0, 1)[1:])]
                for i in range(2):
                    s.append(dsread(R("v", rq[i], 4), self.vXw, bt * 4096 + i * 1024))
                for i in range(2):
                    pend.append(Wait(lg=[R("v", rq[i], 4)]))
                    pend.append(salu("s_add_u32", "s3", self.sRow, bt * 32768 + i * 16384))
                    pend.append(bstore(R("v", rq[i], 4), self.vG, self.sO, "s3", p * 128, flags=self.o.oflags))
        return s + pend

    def calc_vB(self):
        return [valu("v_bfe_u32", self.vB, self.vXw, 8, 2),
                valu("v_lshl_add_u32", self.vB, self.vB, 5, self.sBias)]

    def bias_stream(self, p):
        s = []
        if self.o.nobias:
            return [valu("v_add_f32", self.acc_tile(4 * p, 0, 0, 1), self.acc_tile(4 * p, 0, 0, 1), 0) for _ in range(8)]

        def rd(nt):
            return dsread(R("v", self.Q[nt & 1], 4), self.vB, (nt >> 1) * 128 + (nt & 1) * 16)

        s.append(rd(4 * p))
        s += space(8)
        for nt in range(4 * p, 4 * p + 4):
            q = self.Q[nt & 1]
            cnt = 0
            for bt in range(8):
                for r in range(4):
                    if cnt == 0:
                        s.append(Wait(lg=[R("v", q, 4)]))
                    a = self.acc_tile(nt, bt, r, 1)
                    if self.o.pkadd and a[0] == "v":
                        if not r & 1:
                            ap = self.acc_tile(nt, bt, r, 2)
                            s.append(valu("v_pk_add_f32", ap, ap, R("v", q + r, 2)))
                    elif a[0] == "a":
                        t = self.t[cnt & 1]
                        s.append(valu("v_accvgpr_read_b32", t, a))
                        s.append(valu("v_add_f32", t, t, f"v{q + r}"))
                        s.append(valu("v_accvgpr_write_b32", a, t))
                    else:
                        s.append(valu("v_add_f32", a, a, f"v{q + r}"))
                    cnt += 1
                    if cnt == 1 and nt + 1 < 4 * p + 4:
                        s.append(rd(nt + 1))
        return s

    def prep_load(self):
        t0, t1 = self.t[0], self.t[1]
        s = [valu("v_lshrrev_b32", t0, 6, self.vL),
             valu("v_and_b32", t1, 48, self.vL),
             valu("v_lshl_add_u32", t0, t0, 11, t1),
             raw(f"s_mov_b32 m0, {self.sStage}", "salu", rd=[self.sStage]),
             salu("s_add_u32", "s3", self.sRaw, 32768 - 1024)]
        s.append(dma(t0, self.sR, self.sRaw, 0, self.o.rflags, "raw"))
        s.append(dma(t0, self.sR, "s3", 1024, self.o.rflags, "raw"))
        s.append(salu("s_add_u32", self.sRaw, self.sRaw, D * D * 2))
        return s

    def prep_store(self, sp=0):
        t0 = self.t[0]
        t1 = self.t[2]
        s = [valu("v_and_b32", t0, 0x300, self.vXw),
             valu("v_and_b32", t1, 0x3ff, self.vXw),
             valu("v_add3_u32", t0, t0, t1, self.sStage),
             Wait(vm=["raw"])]
        for t in range(2):
            for h in range(2):
                s.append(I(f"ds_read_b64_tr_b16 {R('v', self.Q[t] + 2 * h, 2)}, {t0} offset:{h * 256 + t * 8}", "dsr",
                           rd=[t0], wr=[R("v", self.Q[t] + 2 * h, 2)]))
        dst = self.sDst
        if sp and self.o.tail4:
            dst = "s69"
            s.append(I(f"s_cmp_eq_u32 {self.sL}, {NL - 2}\n s_cselect_b32 s69, s24, 0\n s_add_u32 s69, s69, {self.sDst}",
                       "salu", rd=[self.sL, "s24", self.sDst], wr=["s69"]))
        s += space(sp)
        for t in range(2):
            s.append(Wait(lg=[R("v", self.Q[t], 4)]))
            s.append(tagged(bstore(R("v", self.Q[t], 4), t1, self.sW, dst, t * 2048, flags=" sc1"), "pst"))
        s.append(salu("s_add_u32", self.sDst, self.sDst, D * D * 2))
        return s

    def wsignal(self):
        t = self.t[2]
        return [valu("v_mov_b32", t, 1),
                I(f"buffer_atomic_add {t}, {self.vW}, {self.sC}, 0 offen sc1", "vst", rd=[t, self.vW])]

    def psignal(self, p):
        t = self.t[2]
        return [salu("s_add_u32", self.sFlag, self.sFlag, 1), Wait(vm=[f"xs{p}"]),
                valu("v_mov_b32", t, self.sFlag),
                bstore(t, self.vL, self.sFm, 0, w="dword", flags=" sc1")]

    def wpoll_load(self):
        v = self.vP
        return [valu("v_lshlrev_b32", v, 2, self.vXw), valu("v_and_b32", v, 0xc0, v),
                bload(v, v, self.sD, 0, w="dword", flags=" sc1")]

    def ppoll_load(self):
        return [I(f"buffer_load_dword {self.vP}, off, {self.sFp}, 0 sc1", "vld", wr=[self.vP])]

    def poll_check(self, name, need, inc, loader):
        v = self.vP
        spin = [Label(f"Lspin_{name}"), raw(f"s_add_u32 {self.sSpin}, {self.sSpin}, 1")]
        if self.o.backoff:
            spin.append(raw(f"s_sleep {self.o.backoff}"))
        spin += [raw(x.text) for x in loader()]
        spin += [raw(f"s_cmp_ge_u32 {self.sSpin}, 0x100000"),
                 raw(f"s_cbranch_scc1 Lgiveup_{name}"),
                 raw("s_waitcnt vmcnt(0)"),
                 raw(f"v_cmp_gt_i32 vcc, {need}, {v}"),
                 raw("s_and_b64 vcc, exec, vcc"),
                 raw(f"s_cbranch_vccnz Lspin_{name}"),
                 Label(f"Lgiveup_{name}"),
                 raw("s_waitcnt vmcnt(0)"),
                 raw(f"s_branch Lok_{name}")]
        self.ool += spin
        return [Wait(vm=[v]), I(f"v_cmp_gt_i32 vcc, {need}, {v}", "valu", rd=[v, need]),
                raw(f"s_and_b64 vcc, exec, vcc\n s_cbranch_vccnz Lspin_{name}\nLok_{name}:", "branch"),
                salu("s_add_u32", need, need, inc)]

    def phase(self, s0, nts, rho, next_rho, stream=(), bar=False, last=False, start=0, end=None, pre_bar=(),
              fixed=(), extra=(), wreg=None, skip_below=0, post_bar=()):
        o = self.o
        NS = self.NS
        NT = len(nts)
        L = NT * 16
        mf = []
        gaps = [[] for _ in range(4 * L)]
        fwd = list(range(8))
        wreg = wreg or self.wslot
        for ss in range(4):
            base = ss * L
            for k, nt in enumerate(nts):
                s = s0 + ss * NT + k
                order = fwd if ((ss + k) & 1) == 0 else fwd[::-1]
                for j, bt in enumerate(order):
                    for i in range(2):
                        c = i ^ (j & 1)
                        mf.append(mfma(16, self.acc_tile(nt, bt), wreg(s, c), self.xf(bt, c)))
                g = base + k * 16
                at = self.loads_at.get(s, [])
                for n, sn in enumerate(at):
                    if (last and sn >= 128) or o.now or sn < skip_below:
                        continue
                    ga, gb, gc = g + (14 if n == 0 else 15), g + 15, g + 18
                    if o.wdelay and g + 16 < 4 * L and (o.wdelay == 2 or k == NT - 1):
                        ga, gb, gc = g + 17 + 4 * n, g + 19 + 4 * n, g + 20 + 4 * n
                    elif o.wdelay and g + 16 < 4 * L and len(at) == 1:
                        gb, gc = g + 17, g + 19
                    elif not (g + 18 < 4 * L and n == len(at) - 1):
                        gc = g + 15
                    gaps[ga].append(hoist(self.wload(sn, 1)))
                    gaps[gb].append(hoist(self.wload(sn, 0)))
                    gaps[gc] += self.wstep(sn)
                if k < NT - 1:
                    gaps[g + 15].append(Wait(vm=[wreg(s + 1, 0), wreg(s + 1, 1)]))
                if k == 0:
                    for j in range(o.xw, 8, o.xw):
                        gaps[g + 2 * j - 1].append(
                            Wait(lg=[self.xf(order[jj], c) for jj in range(j, min(8, j + o.xw)) for c in range(2)]))
            nrho, nss = (rho, ss + 1) if ss < 3 else (next_rho, 0)
            gl = base + L - 16
            if ss == 3 and bar:
                gaps[gl - o.bar_lead] += list(pre_bar) + [Wait(all_lg=True), barrier()]
                gaps[gl - o.bar_lead + 1] += list(post_bar)
            if nrho is not None:
                for j, bt in enumerate(order):
                    for i in range(2):
                        c = i ^ (j & 1)
                        if not o.nox:
                            gaps[gl + 2 * j + i].append(hoist(self.xread(bt, c, nrho, nss)))
                s = s0 + (ss + 1) * NT
                gaps[base + L - 1].append(Wait(vm=[wreg(s, 0), wreg(s, 1)],
                                               lg=[self.xf(order[jj], c) for jj in range(o.xw) for c in range(2)]))
        for gi, inss in fixed:
            gaps[gi] += inss
        hi = end if end is not None else (4 * L - 16 - o.bar_lead if bar else 4 * L - 1)
        for st, lo2, hi2 in extra:
            self.place(gaps, list(st), lo2, hi2)
        self.place(gaps, list(stream), start, hi)
        out = []
        for i, m in enumerate(mf):
            out.append(m)
            gaps[i] = self.merge([], gaps[i])
            out += gaps[i]
        if o.verbose:
            print(f"; phase s0={s0} mfma={len(mf)} modelled excess={sum(self.gap_excess(g) for g in gaps)}", file=sys.stderr)
        return out

    @staticmethod
    def gap_excess(items):
        slots = 0
        ex = 0
        free = 2
        seenv = False
        for x in items:
            k = x.kind
            if k in ("valu", "nop"):
                slots += 1
                seenv = True
                continue
            if k in ("dsr", "vld", "dsw", "vst") and seenv:
                ex += 8
            if k == "dsr":
                slots += 1
            elif k == "vld":
                slots += 1 if x.text.startswith("global") else 2
            elif k == "dsw":
                ex += 12
                free -= 2
            elif k == "vst":
                ex += (20 if x.big else 4) + 4 * slots + (8 if free < 2 else 0)
                free = 4 if x.big else free - 1
            elif k == "barrier":
                ex += 24
        return ex + 4 * max(0, slots - max(free, 0))

    @staticmethod
    def merge(items, fixed):
        k = 0
        lead, rest = [], []
        stop = False
        for x in fixed:
            if not stop and x.kind in ("dsr", "vld") and getattr(x, "note", "") == "hoist":
                lead.append(x)
            else:
                rest.append(x)
                if x.kind not in ("wait",):
                    stop = True
        items = [x for x in items if x.kind != "space"]
        j = 0
        while j < len(items) and items[j].kind in ("salu", "wait"):
            j += 1
        if j < len(items) and items[j].kind == "vst":
            return items[:j + 1] + lead + items[j + 1:] + rest
        return lead + items + rest

    def place(self, gaps, stream, lo, hi):
        if not stream:
            return
        n, G = len(stream), hi - lo
        KMAX = 8
        INF = float("inf")
        dp = [INF] * (n + 1)
        dp[0] = 0.0
        back = []
        NG = len(gaps)
        cnt = lambda g, kind: sum(1 for x in gaps[g] if x.kind == kind) if g < NG else 0
        for g in range(G):
            fixed = gaps[lo + g]
            base = self.gap_excess(self.merge([], fixed))
            wpen = 7 * sum(cnt(lo + g + d, "dsr") for d in (1, 2, 3)) + 4 * cnt(lo + g, "dsr")
            spen = 12 * cnt(lo + g + 1, "vld") + 6 * cnt(lo + g, "vld") + 4 * cnt(lo + g + 2, "vld")
            nd = [INF] * (n + 1)
            bk = [0] * (n + 1)
            tgt = n * (g + 1) / G
            for i in range(n + 1):
                if dp[i] == INF:
                    continue
                for k in range(0, min(KMAX, n - i) + 1):
                    c = dp[i]
                    if k:
                        its = stream[i:i + k]
                        if k > 1 and its[-2].kind == "space":
                            break
                        c += self.gap_excess(self.merge(its, fixed)) - base
                        c += sum(wpen if x.kind == "dsw" else spen if x.kind == "vst" else 0 for x in its)
                    c += self.o.pace * ((i + k - tgt) / max(1.0, n / G)) ** 2 + 0.02 * k * k
                    if c < nd[i + k]:
                        nd[i + k] = c
                        bk[i + k] = k
            dp = nd
            back.append(bk)
        assert dp[n] < INF
        i = n
        for g in range(G - 1, -1, -1):
            k = back[g][i]
            gaps[lo + g] = self.merge(stream[i - k:i], gaps[lo + g])
            i -= k

    def prologue(self):
        o = self.o
        vL = self.vL
        b = []
        b.append(salu("s_cmp_ge_u32", "s2", 256))
        b.append(raw("s_cbranch_scc1 Lend", "branch"))
        b += self.stamp("start")
        if o.stamps:
            b.append(raw("s_memrealtime s[36:37]"))
        b += [nop(0) for _ in range(o.shift)]
        b += [sload("s[56:59]", 0, 4), sload("s[60:63]", 16, 4), sload("s[64:67]", 32, 4)]
        b.append(valu("v_lshrrev_b32", "v9", 6, "v0"))
        b.append(valu("v_and_b32", "v10", 63, "v0"))
        b.append(valu("v_readfirstlane_b32", self.sWave, "v9"))
        b.append(valu("v_lshlrev_b32", vL, 4, "v10"))
        if o.cpf:
            b.append(raw("s_getpc_b64 s[4:5]", "salu"))
            b.append(Label("Lpc"))
            b.append(valu("v_lshlrev_b32", "v11", 6, "v0"))
            if o.cpfsplit:
                b += [salu("s_bfe_u32", "s3", "s2", "0x20003"), salu("s_lshl_b32", "s3", "s3", 14),
                      valu("v_add_u32", "v11", "s3", "v11")]
            for i in range(1 if o.cpfsplit else o.cpf):
                b.append(raw(f"v_min_u32 v12, Lend-Lpc, v11", "valu", rd=["v11"], wr=["v12"]))
                b.append(I(f"global_load_dword v{60 + i}, v12, s[4:5]", "vld", rd=["v12"], wr=[f"v{60 + i}"]))
                b.append(valu("v_add_u32", "v11", 16384, "v11"))
        b.append(valu("v_lshrrev_b32", "v11", 7, "v0"))
        b.append(valu("v_and_b32", "v12", 127, "v0"))
        b.append(valu("v_lshlrev_b32", "v12", 3, "v12"))
        b.append(valu("v_lshl_add_u32", "v30", "v11", 11, "v12"))
        b.append(valu("v_lshlrev_b32", "v31", 4, "v0"))
        b.append(valu("v_add_u32", "v31", LDS_BIAS, "v31"))
        b.append(valu("v_add_u32", self.vXr[1], 65536, vL))
        b.append(valu("v_lshl_add_u32", self.vXw, "v9", 15, vL))
        b.append(valu("v_lshl_add_u32", self.vW, "v9", 18, vL))
        nb0 = len(b)
        b.append(valu("v_lshrrev_b32", "v11", 4, "v10"))
        b.append(valu("v_and_b32", "v12", 15, "v10"))
        b.append(valu("v_xor_b32", "v13", "v11", "v12"))
        b.append(valu("v_lshlrev_b32", "v13", 4, "v13"))
        b.append(valu("v_lshl_add_u32", "v20", "v11", 11, "v13"))
        for i in range(1, 4):
            b.append(valu("v_xor_b32", f"v{20 + i}", 64 * i, "v20"))
        b.append(valu("v_lshl_add_u32", "v24", "v12", 8, "v13"))
        b.append(valu("v_lshl_add_u32", "v24", "v9", 15, "v24"))
        for i in range(1, 4):
            b.append(valu("v_xor_b32", f"v{24 + i}", 64 * i, "v24"))
        if o.early == 1:
            del b[nb0:]
        b.append(salu("s_and_b32", "s7", "s2", 1))
        b.append(salu("s_lshr_b32", self.sRow, "s2", 1))
        b.append(salu("s_lshl_b32", self.sRow, self.sRow, 18))
        b.append(salu("s_lshl_b32", "s6", "s7", 10))
        b.append(salu("s_add_u32", self.sRow, self.sRow, "s6"))
        b.append(salu("s_lshl_b32", "s6", self.sWave, 8))
        b.append(salu("s_add_u32", self.sRow, self.sRow, "s6"))
        b.append(salu("s_mov_b32", self.sMask, "0xffff0000"))
        b.append(salu("s_lshl_b32", self.sWoff, "s7", 20))
        b.append(salu("s_mov_b32", self.sL, 0))
        b.append(salu("s_mov_b32", self.sSpin, 0))
        b.append(salu("s_mov_b32", self.sFlag, -1 if o.gather else 0))
        b.append(salu("s_mov_b32", self.sNeed, 64))
        b.append(salu("s_mov_b32", self.sPNeed, -1 if o.gather else 1))
        b.append(salu("s_lshl_b32", self.sLds, self.sWave, 15))
        b.append(salu("s_lshl_b32", self.sXs, "s2", 17))
        b.append(salu("s_add_u32", self.sXs, self.sXs, o.xbase * MB))
        b.append(salu("s_xor_b32", self.sXl, self.sXs, 1 << 17))
        b.append(salu("s_lshr_b32", "s4", "s2", 3))
        b.append(salu("s_and_b32", "s5", "s2", 7))
        b.append(salu("s_lshl_b32", self.sRaw, "s4", 16))
        b.append(salu("s_lshl_b32", "s6", "s5", 8))
        b.append(salu("s_add_u32", self.sRaw, self.sRaw, "s6"))
        b.append(salu("s_lshl_b32", "s6", self.sWave, 6))
        b.append(salu("s_add_u32", self.sRaw, self.sRaw, "s6"))
        b.append(salu("s_lshl_b32", self.sDst, "s5", 18))
        b.append(salu("s_and_b32", "s6", "s4", 1))
        b.append(salu("s_lshl_b32", "s6", "s6", 10))
        b.append(salu("s_add_u32", self.sDst, self.sDst, "s6"))
        b.append(salu("s_lshr_b32", "s6", "s4", 4))
        b.append(salu("s_lshr_b32", "s5", "s5", 2))
        b.append(salu("s_xor_b32", "s5", "s5", "s6"))
        b.append(salu("s_bfe_u32", "s6", "s4", "0x10001"))
        b.append(salu("s_lshl_b32", "s3", "s5", 1))
        b.append(salu("s_add_u32", "s3", "s3", "s6"))
        b.append(salu("s_lshl_b32", "s3", "s3", 16))
        b.append(salu("s_add_u32", self.sDst, self.sDst, "s3"))
        b.append(salu("s_bfe_u32", "s4", "s4", "0x20002"))
        b.append(salu("s_xor_b32", "s5", "s5", "s6"))
        b.append(salu("s_lshr_b32", "s3", self.sWave, 1))
        b.append(salu("s_lshl_b32", "s3", "s3", 4))
        b.append(salu("s_lshl_b32", "s6", "s4", 2))
        b.append(salu("s_add_u32", "s3", "s3", "s6"))
        b.append(salu("s_and_b32", "s6", self.sWave, 1))
        b.append(salu("s_lshl_b32", "s6", "s6", 1))
        b.append(salu("s_add_u32", "s3", "s3", "s6"))
        b.append(salu("s_lshl_b32", "s4", "s4", 3))
        b.append(salu("s_lshl_b32", "s6", self.sWave, 1))
        b.append(salu("s_add_u32", "s4", "s4", "s6"))
        b.append(salu("s_cmp_eq_u32", "s5", 0))
        b.append(salu("s_cselect_b32", "s3", "s3", "s4"))
        b.append(salu("s_lshl_b32", "s3", "s3", 11))
        b.append(salu("s_add_u32", self.sDst, self.sDst, "s3"))
        b.append(salu("s_lshl_b32", self.sStage, self.sWave, 11))
        b.append(salu("s_add_u32", self.sStage, self.sStage, LDS_STAGE))
        b.append(salu("s_lshl_b32", self.sBias, self.sWave, 9))
        b.append(salu("s_add_u32", self.sBias, self.sBias, LDS_BIAS))
        b.append(Wait(all_lg=True))
        b += self.stamp("kernarg")
        b += srd(40, "s58", "s59", NL * D * D * 2)

        def only(ins, w0):
            n = self.nseg = getattr(self, "nseg", 0) + 1
            for x in ins:
                x.note = "gy" if w0 else "gx"
            return [salu("s_cmp_eq_u32", self.sWave, 0), raw(f"s_cbranch_scc{0 if w0 else 1} Lseg{n}", "branch")] + \
                ins + [Label(f"Lseg{n}")]

        if o.w0prep:
            t0, t1 = self.t[0], self.t[1]
            r = [valu("v_lshrrev_b32", t0, 6, vL), valu("v_and_b32", t1, 48, vL), valu("v_lshl_add_u32", t0, t0, 11, t1)]
            for q in range(4):
                r += [raw(f"s_mov_b32 m0, {LDS_STAGE + q * 2048}", "salu"), salu("s_add_u32", "s3", self.sRaw, q * 64),
                      dma(t0, self.sR, "s3", 0, o.rflags, f"raw{q}"),
                      salu("s_add_u32", "s3", self.sRaw, q * 64 + 32768 - 1024),
                      dma(t0, self.sR, "s3", 1024, o.rflags, f"raw{q}")]
            b += only(r, True)
            b.append(salu("s_add_u32", self.sRaw, self.sRaw, D * D * 2))
        else:
            b += self.prep_load()
        b += srd(20, "s60", "s61", NL * D * 2)
        tb = 32
        b.append(salu("s_lshl_b32", "s3", "s7", 10))
        for m in range(3):
            b.append(bload(R("v", tb + 2 * m, 2), "v30", self.sB, "s3", w="dwordx2"))
            b.append(salu("s_add_u32", "s3", "s3", 4096))
        if o.init:
            b.append(salu("s_mov_b32", "s23", o.init))
        b += srd(8, "s56", "s57", NB * D * 2)
        b += srd(16, "s62", "s63", NB * D * 2)
        b += srd(12, "s66", "s67", NL * D * D * 2)
        b += srd(32, "s66", "s67", 256 * MB)
        b += srd(44, "s64", "s65", 256)
        b += [salu("s_add_u32", self.sWoff, self.sWoff, 4096), salu("s_add_u32", "s70", "s66", self.sWoff),
              salu("s_addc_u32", "s71", "s67", 0), salu("s_sub_u32", self.sWoff, self.sWoff, 4096)]
        if o.tail4:
            b += [salu("s_and_b32", "s24", self.sWave, 1), salu("s_mul_i32", "s24", "s24", 6 * 2048),
                  salu("s_bfe_u32", "s3", "s2", "0x20005"), salu("s_lshl_b32", "s3", "s3", 12),
                  salu("s_sub_u32", "s24", "s24", "s3"),
                  salu("s_lshr_b32", "s3", "s2", 7), salu("s_lshr_b32", "s6", "s2", 2), salu("s_xor_b32", "s3", "s3", "s6"),
                  salu("s_lshr_b32", "s6", "s2", 4), salu("s_and_b32", "s3", "s3", "s6"), salu("s_bitcmp1_b32", "s3", 0),
                  salu("s_cselect_b32", "s24", "s24", 0)]
        b.append(salu("s_and_b32", "s3", "s2", 3))
        b.append(salu("s_lshl_b32", "s3", "s3", 6))
        b += srd_off(56, "s44", "s45", "s3", 4)
        b.append(salu("s_lshl_b32", "s3", "s2", 2))
        b.append(salu("s_add_u32", "s3", "s3", self.sWave))
        b.append(salu("s_lshl_b32", "s3", "s3", 7))
        b.append(salu("s_add_u32", "s3", "s3", WS_FLAGS))
        b += srd_off(60, "s32", "s33", "s3", 4)
        b.append(salu("s_xor_b32", "s3", "s3", 512))
        b += srd_off(64, "s32", "s33", "s3", 4)
        if o.delay:
            for _ in range(o.delay):
                b.append(raw("s_sleep 127"))
        if o.touch:
            for l in range(6):
                b.append(salu("s_add_u32", "s3", self.sXs, l * 32 * MB))
                if o.touch == 1:
                    b.append(bload(f"v{60 + l}", self.vXw, self.sE, "s3", w="dword"))
                else:
                    b.append(bstore(f"v{60 + l}", self.vXw, self.sE, "s3", w="dword", flags=" sc1"))
            b.append(Wait(all_vm=True))
        def x0dma(lo, hi):
            r = []
            for i in range(lo, hi):
                r.append(raw(f"s_add_u32 m0, {self.sLds}, {i * 1024}", "salu"))
                r.append(salu("s_add_u32", "s3", self.sRow, i * 8192))
                r.append(dma(f"v{20 + (i & 3)}", self.sX, "s3", 0, o.xflags, f"x0_{i >> 2}"))
            return r

        def x0fix(bt):
            r = [Wait(vm=[f"x0_{bt}"])]
            for kbl in range(4):
                r.append(dsread(self.x0reg(kbl, bt), f"v{24 + kbl}", bt * 4096))
            r.append(Wait(all_lg=True))
            for kbl in range(4):
                r.append(dswrite(self.vXw, self.x0reg(kbl, bt), bt * 4096 + kbl * 1024))
            if o.apub:
                r += self.x0pub_stream(0, 2 * bt, 2 * bt + 2)
            return r

        def accinit(pred):
            r = []
            for p in range(2):
                for i in range(128):
                    a = self.acc(p, i)
                    if pred(a):
                        r.append(valu("v_accvgpr_write_b32" if a[0] == "a" else "v_mov_b32", a, self.init))
            return r

        if o.early == 1 and o.selfw:
            return b + self.prologue_self(accinit, tb)
        if o.early == 1:
            return b + self.prologue_early(accinit, tb)
        late = lambda a: a[0] == "v" and 32 <= int(a[1:]) < 72
        final = lambda a: a[0] == "v" and int(a[1:]) < 32
        na, nb, ahead, npoll = o.x0split

        def biascvt():
            r = []
            for m in range(3):
                r.append(Wait(vm=[R("v", tb + 2 * m, 2)]))
                for j in range(2):
                    src = f"v{tb + 2 * m + j}"
                    r.append(valu("v_lshlrev_b32", f"v{40 + 4 * m + 2 * j}", 16, src))
                    r.append(valu("v_and_b32", f"v{41 + 4 * m + 2 * j}", self.sMask, src))
                r.append(dswrite("v31", R("v", 40 + 4 * m, 4), m * 4096))
            return r + [Wait(all_lg=True)]

        if o.w0prep:
            t0, t1, t2 = self.t
            r = [valu("v_lshlrev_b32", t1, 3, vL), valu("v_mov_b32", t2, 0), salu("s_mov_b32", "s62", 512),
                 tagged(bstore(t2, t1, self.sFm, 0, w="dword", flags=" sc1"), "pst"), salu("s_mov_b32", "s62", 4)]
            b += only(r, True)
            b += only(x0dma(0, nb), False)
            b += accinit(lambda a: not late(a) and not final(a))
            r = [valu("v_and_b32", t0, 0x300, vL), valu("v_add3_u32", t0, t0, vL, self.sStage)]
            qs = [8, 40, 48, 64]
            for q in range(4):
                r.append(Wait(vm=[f"raw{q}"]))
                for t in range(2):
                    for h in range(2):
                        d = R("v", qs[q] + 4 * t + 2 * h, 2)
                        r.append(I(f"ds_read_b64_tr_b16 {d}, {t0} offset:{q * 2048 + h * 256 + t * 8}", "dsr", rd=[t0], wr=[d]))
            for q in range(4):
                r += [salu("s_cmp_eq_u32", "s5", 0),
                      salu("s_cselect_b32", "s3", ((q >> 1) * 16 + 2 * (q & 1)) * 2048, "s6") if q > 1 else
                      salu("s_mov_b32", "s3", 2 * q * 2048),
                      salu("s_add_u32", "s3", "s3", self.sDst), salu("s_mov_b32", "s6", 2 * (q + 1) * 2048)]
                for t in range(2):
                    r.append(Wait(lg=[R("v", qs[q] + 4 * t, 4)]))
                    r.append(tagged(bstore(R("v", qs[q] + 4 * t, 4), vL, self.sW, "s3", t * 2048, flags=" sc1"), "pst"))
            r += x0dma(0, na) + [Wait(vm=["pst"])] + self.wsignal() + x0dma(na, nb)
            b += only(r, True)
            b.append(salu("s_add_u32", self.sDst, self.sDst, D * D * 2))
            b += self.stamp("signalled")
            b += biascvt() + accinit(late)
        else:
            b.append(valu("v_mov_b32", self.t[2], 0))
            b.append(tagged(bstore(self.t[2], vL, self.sFm, 0, w="dword", flags=" sc1"), "pst"))
            b += x0dma(0, na)
            b += accinit(lambda a: not late(a) and not final(a))
            b += self.prep_store()
            b += self.stamp("stores_issued")
            b += x0dma(na, nb)
            b += biascvt() + accinit(late)
            b += [Wait(vm=["pst"]), barrier()] + self.wsignal()
            b += self.stamp("signalled")
        def wring():
            r = []
            for s in [x for x in range(128) if self.site[x] < 0]:
                r += [self.wload(s, 1), self.wload(s, 0)] + self.wstep(s)
            return r

        def path(name, nb2, npoll, stamps):
            st = self.stamp if stamps else (lambda n: [])
            r = x0dma(nb, nb2)
            issued = max(nb, nb2)
            checked = False
            poll_before = None
            for bt in range(8):
                want = min(32, 4 * (bt + 1 + ahead))
                if bt == npoll:
                    r += self.wpoll_load()
                    poll_before = (issued + 3) // 4 if npoll else 0
                if want > issued and (npoll or checked):
                    r += x0dma(issued, want)
                    issued = want
                if poll_before is not None and not checked and bt >= poll_before:
                    r += st("x0_part")
                    r += self.poll_check(name, self.sNeed, 64, self.wpoll_load)
                    r += st("flag_seen")
                    checked = True
                    if npoll:
                        r += x0dma(issued, 32) + wring()
                        issued = 32
                    else:
                        r += wring() + x0dma(issued, want)
                        issued = max(issued, want)
                r += x0fix(bt)
            assert checked and issued == 32
            return r

        if o.stagger < 0:
            b += path("pro", nb, npoll, True)
        else:
            px = path("prox", nb, npoll, True)
            n0 = self.stampn
            self.stampn -= 2 if o.stamps and not o.pstamps else 0
            self.names = self.names[:self.stampn]
            py = path("proy", o.ynb, 0, True)
            assert self.stampn == n0
            for x in px:
                x.note = "gx"
            for x in py:
                x.note = "gy"
            b += [salu("s_bitcmp1_b32", "s2", o.stagger), raw("s_cbranch_scc1 Lgy", "branch")]
            b += px + [raw("s_branch Lgjoin", "branch"), Label("Lgy")] + py + [Label("Lgjoin")]
        b += accinit(final)
        if o.gather:
            b += [salu("s_xor_b32", self.sXl, self.sRow, 1024), salu("s_mov_b32", "s20", 64),
                  salu("s_mov_b32", "s21", 32768 - 64), salu("s_mov_b32", "s22", hex((128 - 64 - 7 * 32768) & 0xffffffff))]
        b += [Wait(all_lg=True), barrier()]
        for j in range(8):
            for i in range(2):
                b.append(self.xread(j, i ^ (j & 1), 0, 0))
        b.append(Wait(lg=[self.xf(j, c) for j in range(o.xw) for c in range(2)], vm=[self.wslot(0, 0), self.wslot(0, 1)]))
        if o.desync:
            b += [raw("s_lshr_b32 s3, s2, 1"), raw("s_and_b32 s3, s3, 15"), Label("Lds"), raw(f"s_sleep {o.desync}"),
                  raw("s_sub_u32 s3, s3, 1"), raw("s_cbranch_scc0 Lds")]
        b += self.stamp("pro_done")
        return b

    def prologue_self(self, accinit, tb):
        o = self.o
        vL = self.vL
        t0, t1 = self.t[0], self.t[1]
        b = []
        vG, vS, vR, vT = "v20", ["v21", "v22"], "v23", ["v24", "v25"]
        wbuf = set(r for s in range(16 - self.NS) for c in range(2) for r in regs(self.wreg0(s, c)))
        late = lambda a: a[0] == "v" and 32 <= int(a[1:]) < 64
        final = lambda a: a[0] == "v" and int(a[1:]) < 32
        ns1, psig, na, nB0, lead = o.selfp
        b += [valu("v_lshrrev_b32", t0, 2, vL), valu("v_and_b32", t0, 0x40, t0), valu("v_xor_b32", t0, t0, vL),
              valu("v_and_b32", t0, 0x70, t0), valu("v_lshrrev_b32", t1, 7, vL), valu("v_lshl_add_u32", vR, t1, 11, t0),
              salu("s_and_b32", "s69", self.sRow, 2047), salu("s_lshl_b32", "s3", "s7", 20),
              salu("s_add_u32", "s69", "s69", "s3")]

        def rawdma(lo, hi):
            r = []
            for n in range(lo, min(hi, 4 * o.nself)):
                p, i = n >> 2, n & 3
                r.append(raw(f"s_add_u32 m0, {self.sLds}, {(2 * (p & 3) + (i >> 1)) * 4096 + (p >> 2) * 2048 + (i & 1) * 1024}", "salu"))
                r.append(salu("s_add_u32", "s3", "s69", (128 * (p >> 1) + 32 * (p & 1) + 8 * i) * 2048))
                r.append(dma(vR, self.sR, "s3", 0, "", f"sw{p}"))
            return r

        def trans(p):
            if p >= o.nself:
                return []
            r = [Wait(vm=[f"sw{p}"])]
            for nt in range(4):
                d = int(regs(self.wreg0((p >> 1) * 4 + nt, p & 1))[0][1:])
                k = self.wreg0((p >> 1) * 4 + nt, p & 1)[0]
                for h in range(2):
                    dd = R(k, d + 2 * h, 2)
                    r.append(I(f"ds_read_b64_tr_b16 {dd}, {vT[nt >> 1]} offset:{(p & 3) * 8192 + (p >> 2) * 2048 + h * 512 + (nt & 1) * 8}", "dsr",
                               rd=[vT[nt >> 1]], wr=[dd]))
            return r

        b += rawdma(0, ns1)
        b.append(valu("v_mov_b32", self.t[2], 0))
        b.append(tagged(bstore(self.t[2], vL, self.sFm, 0, w="dword", flags=" sc1"), "pst"))
        b += self.calc_vG(vG) + self.calc_vS(vS)
        b += [valu("v_lshrrev_b32", t0, 1, vL), valu("v_and_b32", t0, 0x40, t0), valu("v_and_b32", t1, 0x30, vL),
              valu("v_or_b32", t0, t0, t1), valu("v_and_b32", t1, 0xc0, vL), valu("v_lshl_add_u32", t0, t1, 1, t0),
              valu("v_and_b32", t1, 0x100, vL), valu("v_lshl_add_u32", t0, t1, 2, t0),
              valu("v_and_b32", t1, 0x200, vL), valu("v_lshl_add_u32", t0, t1, 3, t0),
              valu("v_add_u32", vT[0], self.sLds, t0), valu("v_xor_b32", vT[1], 64, vT[0])]
        b += accinit(lambda a: not late(a) and not final(a) and a not in wbuf)
        b += self.prep_store()
        ns2 = max(ns1, o.ns2)
        b += rawdma(ns1, ns2)
        b += self.stamp("stores_issued")
        for m in range(3):
            b.append(Wait(vm=[R("v", tb + 2 * m, 2)]))
            for j in range(2):
                src = f"v{tb + 2 * m + j}"
                b.append(valu("v_lshlrev_b32", f"v{40 + 4 * m + 2 * j}", 16, src))
                b.append(valu("v_and_b32", f"v{41 + 4 * m + 2 * j}", self.sMask, src))
            b.append(dswrite("v31", R("v", 40 + 4 * m, 4), m * 4096))
        b.append(Wait(all_lg=True))
        b += accinit(late)
        issued = 0
        pdone = lambda p: [self.wreg0((p >> 1) * 4 + nt, p & 1) for nt in range(4)]
        assert ns2 >= 16 and psig <= ns2 // 4
        nearly = 8 if not o.rawlate else ns2 // 4
        for p in range(nearly + 1):
            if p == psig:
                b += [Wait(vm=["pst"]), barrier()] + self.wsignal()
                b += self.stamp("signalled")
                if not o.rawlate:
                    b += rawdma(ns2, 32)
            if p < nearly and (p < 4 or p < psig):
                b += trans(p)
            if p:
                want = min(16, 4 * p) if p > psig else min(4 * p, na)
                if want > issued:
                    b.append(Wait(lg=pdone(min(p - 1, 3))))
                    b += self.x0h_dma(0, issued, want, vG)
                    issued = want
            if p >= 4 and p >= psig:
                break
        b.append(Wait(lg=pdone(3)))
        b += self.x0h_dma(0, issued, 16, vG)
        if o.rawlate:
            b += rawdma(ns2, 32)
        for p in range(max(4, psig), nearly):
            b += trans(p)
        lateT = [x for p in range(max(nearly, psig), 8) for x in trans(p)]
        b += self.stamp("x0A_issued")
        nB = 0
        polled = False
        for bt in range(min(0, -lead), 9):
            want = min(16, 2 * (bt + lead + 1)) if bt < 8 else (o.nb_pro if o.nb_pro else 16)
            if nB < want and nB == 0:
                b += lateT + [Wait(all_lg=True)]
                lateT = []
            while nB < want:
                if nB == nB0:
                    b += self.wpoll_load()
                    polled = True
                b += self.x0h_dma(1, nB, nB + 1, vG)
                nB += 1
            if 0 <= bt < 8:
                b += self.x0h_read(0, bt, vS)
            if 0 < bt < 8:
                b += self.x0h_write(0, bt - 1)
            if bt == 7:
                b += self.x0h_write(0, 7)
        b += lateT
        if not polled:
            b += self.wpoll_load()
        self.nB_done = nB
        b.append(valu("v_mov_b32", "v8", vG))
        b += self.stamp("x0_part")
        b += accinit(final)
        b += [I(f"s_add_u32 s70, s70, {4096 * o.nself}\n s_addc_u32 s71, s71, 0", "salu", rd=["s[70:71]"], wr=["s[70:71]"]),
              salu("s_xor_b32", self.sXl, self.sRow, 1024), salu("s_mov_b32", "s20", 64),
              salu("s_mov_b32", "s21", 32768 - 64), salu("s_mov_b32", "s22", hex((128 - 64 - 7 * 32768) & 0xffffffff))]
        b += [Wait(all_lg=True), barrier()]
        b += [self.xread(j, i ^ (j & 1), 0, 0) for j in range(8) for i in range(2)]
        b.append(Wait(lg=[self.xf(j, c) for j in range(o.xw) for c in range(2)]))
        b += self.stamp("pro_done")
        return b

    def prologue_early(self, accinit, tb):
        o = self.o
        vL = self.vL
        b = []
        vG, vS = "v20", ["v21", "v22"]
        wbuf = set(r for s in range(16 - self.NS) for c in range(2) for r in regs(self.wreg0(s, c)))
        late = lambda a: a[0] == "v" and 32 <= int(a[1:]) < 64
        final = lambda a: a[0] == "v" and int(a[1:]) < 32
        na, nb, npoll, nB0 = o.x0split
        b.append(valu("v_mov_b32", self.t[2], 0))
        b.append(tagged(bstore(self.t[2], vL, self.sFm, 0, w="dword", flags=" sc1"), "pst"))
        b += self.calc_vG(vG) + self.calc_vS(vS)
        b += self.x0h_dma(0, 0, na, vG)
        b += accinit(lambda a: not late(a) and not final(a) and a not in wbuf)
        b += self.prep_store()
        b += self.stamp("stores_issued")
        b += self.x0h_dma(0, na, nb, vG)
        for m in range(3):
            b.append(Wait(vm=[R("v", tb + 2 * m, 2)]))
            for j in range(2):
                src = f"v{tb + 2 * m + j}"
                b.append(valu("v_lshlrev_b32", f"v{40 + 4 * m + 2 * j}", 16, src))
                b.append(valu("v_and_b32", f"v{41 + 4 * m + 2 * j}", self.sMask, src))
            b.append(dswrite("v31", R("v", 40 + 4 * m, 4), m * 4096))
        b.append(Wait(all_lg=True))
        b += accinit(late)
        b += [Wait(vm=["pst"]), barrier()] + self.wsignal()
        b += self.stamp("signalled")
        b += self.x0h_dma(0, nb, 16, vG)
        def only0(ins):
            if not o.poll0:
                return ins
            n = self.nseg = getattr(self, "nseg", 0) + 1
            for x in ins:
                x.note = "gy"
            return [salu("s_cmp_eq_u32", self.sWave, 0), raw(f"s_cbranch_scc0 Lseg{n}", "branch")] + ins + [Label(f"Lseg{n}")]

        for bt in range(8):
            if bt == npoll:
                b += only0(self.wpoll_load()) + self.x0h_dma(1, 0, nB0, vG)
            b += self.x0h_read(0, bt, vS)
            if bt:
                b += self.x0h_write(0, bt - 1)
        if npoll >= 8:
            b += only0(self.wpoll_load()) + self.x0h_dma(1, 0, nB0, vG)
        b += self.x0h_write(0, 7)
        b += self.stamp("x0_part")
        chk = self.poll_check("pro", self.sNeed, 64, self.wpoll_load)
        if o.poll0:
            b += only0(chk[:-1]) + chk[-1:]
            chk = []
        b += [Wait(all_lg=True), barrier()]
        xr = [self.xread(j, i ^ (j & 1), 0, 0) for j in range(8) for i in range(2)]
        if not o.poll0:
            b += xr + chk
            xr = []
        b += self.stamp("flag_seen")
        for s in range(16):
            b += [self.wload(s, 1, self.wreg0(s, 1)), self.wload(s, 0, self.wreg0(s, 0))]
            b += self.wstep(s)
            if s == 3:
                b += xr
        b += self.x0h_dma(1, nB0, max(nB0, o.nb_pro) if o.gather else 16, vG)
        b.append(valu("v_mov_b32", "v8", vG))
        b += accinit(final)
        if o.gather:
            b += [salu("s_xor_b32", self.sXl, self.sRow, 1024), salu("s_mov_b32", "s20", 64),
                  salu("s_mov_b32", "s21", 32768 - 64), salu("s_mov_b32", "s22", hex((128 - 64 - 7 * 32768) & 0xffffffff))]
        b.append(Wait(lg=[self.xf(j, c) for j in range(o.xw) for c in range(2)], vm=[self.wreg0(0, 0), self.wreg0(0, 1)]))
        b += self.stamp("pro_done")
        return b

    def build(self):
        o = self.o
        A, B, AB = [0, 1, 2, 3], [4, 5, 6, 7], list(range(8))
        e = (lambda s: []) if o.noepi else (lambda s: s)
        unit_end = lambda x: x.kind in ("vst", "dsw") and x.rd & {"v12"}
        safe_bias = lambda x: x.kind == "valu" and "add_f32" in x.text and not x.wr & set(self.t)
        pro = self.prologue()
        PL = o.pstamps - 1
        dA, dB = o.direct
        g0, g1, g2, g3 = o.sg
        ep = o.earlyprep
        if o.gather and o.early == 1:
            ini = []
            for s in range(16 - self.NS):
                ini.append(([valu("v_mov_b32", r, self.init) for c in range(2) for r in regs(self.wreg0(s, c))],
                            16 * s + 18, 16 * s + 30))
            nB1 = o.x0split[3]
            late = self.x0h_dma(1, max(nB1, o.nb_pro), 16, "v8")
            fx = []
            if o.selfw:
                late = self.x0h_dma(1, self.nB_done, 16, "v8")
                chk = self.poll_check("pro", self.sNeed, 64, self.wpoll_load)
                if o.nself < 8:
                    wl = []
                    for s in range(2 * o.nself, 16):
                        wl += [self.wload(s, 1, self.wreg0(s, 1)), self.wload(s, 0, self.wreg0(s, 0))] + self.wstep(s)
                    late = chk + wl + late
                else:
                    fx = [(self.site[16] * 16 + 2, chk)]
            s1a0 = self.phase(0, A, 0, 0, late, wreg=self.wreg0, skip_below=16, extra=ini, end=o.pub0_end, fixed=fx)
            s1a0 += self.stamp("s1a0")
            vS = [f"v{self.Q[0]}", f"v{self.Q[0] + 1}"]
            fix = self.calc_vS(vS)
            for bt in range(8):
                fix += self.x0h_read(1, bt, vS) + space(3)
                if bt:
                    fix += self.x0h_write(1, bt - 1)
            fix += space(4) + self.x0h_write(1, 7)
            s1a0 += self.phase(16, B, 0, 1, fix + self.calc_vB() + e(self.bias_stream(0)), bar=True,
                               pre_bar=[salu("s_add_u32", self.sPNeed, self.sPNeed, 1)])
            s1a0 += self.stamp("s1b0")
        elif o.gather:
            assert not o.early
            s1a0 = self.phase(0, A, 0, 0, []) + self.stamp("s1a0")
        elif o.early == 2:
            s1a0 = self.phase(0, A, 0, 0, self.x0pub_stream(0), end=o.pub0_end) + self.stamp("s1a0")
            st = insert_at(self.calc_vB() + e(self.bias_stream(0)), o.sig0_at, self.psignal(0), safe_bias)
            st = insert_at(st, o.poll0_at, self.ppoll_load(), safe_bias)
            if o.wsig2:
                st = st + self.prep_load()
            s1a0 += self.phase(16, B, 0, 1, st, bar=True, extra=[(self.x0pub_stream(1), 0, 230)],
                               pre_bar=self.poll_check("pa0", self.sPNeed, 1, self.ppoll_load))
            s1a0 += self.stamp("s1b0")
        elif o.early:
            ini = []
            for s in range(16 - self.NS):
                ini.append(([valu("v_mov_b32", r, self.init) for c in range(2) for r in regs(self.wreg0(s, c))],
                            16 * s + 18, 16 * s + 30))
            s1a0 = self.phase(0, A, 0, 0, self.x0pub_stream(0), wreg=self.wreg0, skip_below=16, extra=ini,
                              end=o.pub0_end) + self.stamp("s1a0")
            vS = [f"v{self.Q[0]}", f"v{self.Q[0] + 1}"]
            fix = self.calc_vS(vS)
            for bt in range(8):
                fix += self.x0h_read(1, bt, vS)
                if bt:
                    fix += self.x0h_write(1, bt - 1) + self.x0pub_stream(1, 2 * bt - 2, 2 * bt)
                if bt == 1:
                    fix += self.psignal(0)
            fix += self.x0h_write(1, 7) + self.x0pub_stream(1, 14, 16)
            st = insert_at(self.calc_vB() + e(self.bias_stream(0)), 0.6, self.ppoll_load(), safe_bias)
            s1a0 += self.phase(16, B, 0, 1, fix + st, bar=True,
                               pre_bar=self.poll_check("pa0", self.sPNeed, 1, self.ppoll_load))
            s1a0 += self.stamp("s1b0")
        else:
            s1a0 = self.phase(0, A, 0, 0, (self.prep_load() if ep else []) + self.x0pub_stream(0) +
                              self.x0pub_stream(1, 0, dB) + (self.psignal(0) if dA == 16 else [])) + self.stamp("s1a0")
        lp = o.lateprep
        st = (self.prep_store() if ep else [] if lp else self.prep_load()) + self.calc_vB() + e(self.bias_stream(0))
        if o.wsig2:
            st = st + self.prep_load()
        if dA < 16:
            st = insert_at(st, o.siga2_at, self.psignal(0), safe_bias)
        if dB == 16 and not o.early:
            st = insert_at(st, o.sigb_at, self.psignal(1), safe_bias)
        fx2 = [(o.pollb_gap, self.ppoll_load()), (1, self.xnext(self.sXs, 0))]
        if dB < 16 or o.early:
            fx2.append((g3, self.psignal(1)))
        if g0 < 0:
            st = insert_at(st, o.polla_at, self.ppoll_load(), safe_bias)
            pb1 = self.poll_check("pa", self.sPNeed, 1, self.ppoll_load)
            g1 = -1
        else:
            assert not o.early
            pb1 = []
            fx2 += [(g0, self.ppoll_load()), (g1, self.poll_check("pa", self.sPNeed, 1, self.ppoll_load))]
        if ep:
            pb1 = [Wait(vm=["pst"])] + pb1
            fx2.append((3, self.wsignal()))
        s1b = [Label("Ls1b")] + self.phase(16, B, 0, 1, st, bar=True, pre_bar=pb1, end=o.bias_end or None,
                                            extra=[(self.pub_stream(1, dB, 16), 0, 232)])
        s2 = self.phase(32, AB, 1, 0, self.xch_dma(0) + ([] if ep or lp else self.prep_store()), bar=True, start=g1 + 1, end=g2, fixed=fx2,
                        post_bar=self.xr_gathered(),
                        extra=[(self.prep_store(10) if o.wsig2 else self.prep_load() if lp else [], lp, lp + (30 if o.wsig2 else 12))],
                        pre_bar=[Wait(vm=["xl0", "pst"] if o.wsig2 else ["xl0"])] + self.poll_check("pb", self.sPNeed, 1, self.ppoll_load))
        s3 = self.phase(64, AB, 0, 1, self.xch_dma(1), bar=True, end=o.dma_end, pre_bar=[Wait(vm=["xl1", "pst"])],
                        extra=[(self.wsignal(), 2, 6)] if o.wsig2 else
                        [(self.prep_store(10) if lp else [], o.preps_at, o.preps_at + 30)])
        s1b[1:1] = self.lstamp("pre", PL) if PL > 0 else []
        s1b += self.lstamp("s1b", PL)
        s2 += self.lstamp("s2", PL)
        s3 += self.lstamp("s3", PL)
        if o.tail4:
            s3 += [salu("s_cmp_eq_u32", self.sL, NL - 1), raw("s_cbranch_scc1 Llast", "branch")]
        s4a = self.phase(96, A, 1, 1, ([] if ep or o.wsig2 else self.wsignal()) + (self.calc_vB() if self.small else []) + e(self.bias_stream(1)),
                         end=o.bias_end or None)
        if o.gather:
            s4a += self.xch_switch()
        s4a += self.lstamp("s4a", PL)
        s4a += [salu("s_add_u32", self.sBias, self.sBias, 2048), salu("s_add_u32", self.sL, self.sL, 1)]
        if not o.tail4:
            s4a += [salu("s_cmp_eq_u32", self.sL, NL), raw("s_cbranch_scc1 Llast", "branch")]
        st = insert_at(e(self.epi_stream(0, dA)), o.pollw_at, self.wpoll_load(), unit_end)
        chk = (self.site[128] - 112) * 16 + 2
        s4b = self.phase(112, B, 1, 0, st, bar=True, post_bar=self.xr_plain(),
                         fixed=[(chk, self.poll_check("w", self.sNeed, 64, self.wpoll_load))])
        s4b += self.lstamp("s4b", PL + 1)
        st = e(self.epi_stream(1, dB))
        if dA == 16:
            st = insert_at(st, o.siga_at, self.psignal(0), unit_end)
        if ep:
            st = insert_at(st, o.prepl_at, self.prep_load(), unit_end)
        s1a = self.phase(0, A, 0, 0, st, extra=[(self.pub_stream(0, dA, 16), 0, o.puba_end)])
        if o.stamps:
            s1a += [raw(f"s_cmp_eq_u32 s25, {max(1, o.pstamps)}"), raw("s_cbranch_scc0 Lnostamp")] + self.stamp("layer1") + [
                raw("s_memrealtime s[4:5]"), Label("Lnostamp")]
        if o.early:
            assert lp
            s2 = [Label("Lloop")] + s2
            s1b += [raw("s_branch Lloop", "branch")]
        else:
            s1a += [raw("s_branch Ls1b", "branch")]
        s4bl = [Label("Llast")] + self.stamp("4.75layers") + ([raw("s_memrealtime s[6:7]")] if o.stamps else [])
        if o.tail4:
            s4bl += self.phase(96, [0, 1], 1, 1, self.calc_vB() + self.bias_stream(1), last=True)
            s4bl += self.phase(104, [2, 3], 1, 1, self.out_stream4(0), last=True)
            s4bl += self.phase(112, [4, 5], 1, 1, self.out_stream4(1), last=True)
            s4bl += self.phase(120, [6, 7], 1, None, self.out_stream4(2), last=True)
            tail = self.stamp("s4b_last") + [nop(7)] + self.out_stream4(3)
        else:
            s4bl += self.phase(112, B, 1, None, self.out_stream(0), last=True)
            tail = self.stamp("s4b_last") + [nop(7)] + [x for x in self.out_stream(1) if x.kind != "space"]
        if o.stamps:
            tail += self.stamp("tail_issued")
            tail += [Wait(all_vm=True)]
            tail += self.stamp("tail_drained")
            tail.append(raw("s_memrealtime s[38:39]"))
            tail.append(raw("s_waitcnt lgkmcnt(0)"))
            tail.append(raw("v_cmp_eq_u32 vcc, 0, v0"))
            tail.append(raw("s_and_saveexec_b64 s[68:69], vcc"))
            tail.append(raw("s_cbranch_execz Lend"))
            if o.dbgout >= 0:
                tail += [raw(f"s_cmp_lg_u32 s2, {o.dbgout}"), raw("s_cbranch_scc1 Lend"), raw("v_mov_b32 v1, 0")]
                tail += [raw("s_sub_u32 s3, s38, s36"), raw("v_mov_b32 v2, s3"),
                         raw("buffer_store_dword v2, v1, s[44:47], 0 offen offset:4"),
                         raw("s_sub_u32 s3, s6, s4"), raw("v_mov_b32 v2, s3"),
                         raw("buffer_store_dword v2, v1, s[44:47], 0 offen offset:8"),
                         raw("v_mov_b32 v2, s53"), raw("buffer_store_dword v2, v1, s[44:47], 0 offen offset:12")]
                for n in range(1, min(self.stampn, 13)):
                    tail += [raw(f"s_sub_u32 s3, s{72 + 2 * n}, s{70 + 2 * n}"), raw("v_mov_b32 v2, s3"),
                             raw(f"buffer_store_dword v2, v1, s[44:47], 0 offen offset:{12 + 4 * n}")]
            else:
                tail.append(raw("s_lshl_b32 s3, s2, 8"))
                tail.append(raw(f"s_add_u32 s3, s3, {WS_STAMP}"))
                tail.append(raw("v_mov_b32 v1, 0"))
                for n, i in enumerate(list(range(36, 40)) + list(range(72, 102)) + [4, 5, 6, 7, 53]):
                    tail.append(raw(f"v_mov_b32 v2, s{i}"))
                    tail.append(raw(f"buffer_store_dword v2, v1, s[32:35], s3 offen offset:{n * 4}"))
        tail += [Label("Lend"), raw("s_endpgm")]
        rest = s1a0 + ([] if o.early else s1b)
        for l in range(NL - 1):
            rest = rest + s2 + s3 + s4a + s4b + s1a + s1b
        rest = rest + s2 + s3 + ([] if o.tail4 else s4a) + s4bl + tail
        traces = [[x for x in pro if x.note != skip] + rest for skip in ("gx", "gy")]
        for tr in traces:
            resolve_waits(tr)
        for tr in traces:
            errs, mv, ml = check(tr)
            if errs and not o.now and o.slots <= 6:
                for x in errs[:20]:
                    print(x, file=sys.stderr)
                raise SystemExit("hazard/dependency errors")
        if o.early:
            prog = pro + s1a0 + s2 + s3 + s4a + s4b + s1a + s1b + s4bl + tail + self.ool
        else:
            prog = pro + s1a0 + s1b + s2 + s3 + s4a + s4b + s1a + s4bl + tail + self.ool
        txt = f".globl {KNAME}\n.p2align 8\n.type {KNAME},@function\n{KNAME}:\n" + emit(prog) + "\n"
        txt = "; stamps: " + " ".join(self.names) + "\n" + txt
        return txt, kd(KNAME, 512, 102, 256)


def main():
    ap = argparse.ArgumentParser()
    ap.add_argument("-o", default="standalone__cross_network_dcn__recsys.s")
    ap.add_argument("--slots", type=int, default=6)
    ap.add_argument("--wflags", default="sc1")
    ap.add_argument("--xflags", default="")
    ap.add_argument("--oflags", default="nt")
    ap.add_argument("--rflags", default="")
    ap.add_argument("--xsflags", default="sc1")
    ap.add_argument("--xlflags", default="")
    ap.add_argument("--bar_lead", type=int, default=6)
    ap.add_argument("--xw", type=int, default=4)
    ap.add_argument("--x0split", type=int, nargs=4, default=[4, 4, 8, 0])
    ap.add_argument("--sigb_at", type=float, default=0.45)
    ap.add_argument("--polla_at", type=float, default=0.6)
    ap.add_argument("--siga_at", type=float, default=0.45)
    ap.add_argument("--pollw_at", type=float, default=0.3)
    ap.add_argument("--pollb_gap", type=int, default=386)
    ap.add_argument("--dma_end", type=int, default=440)
    ap.add_argument("--stamps", action="store_true")
    ap.add_argument("--init", default="", help="accumulator start value (hex float bits)")
    ap.add_argument("--tail4", type=int, default=0)
    ap.add_argument("--nself", type=int, default=8)
    ap.add_argument("--rawlate", type=int, default=0)
    ap.add_argument("--ns2", type=int, default=24)
    ap.add_argument("--selfw", type=int, default=1)
    ap.add_argument("--selfp", type=int, nargs=5, default=[16, 4, 4, 0, -7],
                    help="raw DMAs before the prep stores, piece before which to signal, x0A DMAs before the signal, x0B DMAs before the poll, x0B lead")
    ap.add_argument("--wbunch", type=int, default=1)
    ap.add_argument("--bias_end", type=int, default=0)
    ap.add_argument("--quadg", type=int, default=1)
    ap.add_argument("--dmagroup", type=int, default=1)
    ap.add_argument("--poll0", type=int, default=1)
    ap.add_argument("--nox", action="store_true", help="diagnostic")
    ap.add_argument("--nost", action="store_true", help="diagnostic")
    ap.add_argument("--nodma", action="store_true", help="diagnostic")
    ap.add_argument("--nobias", action="store_true", help="diagnostic")
    ap.add_argument("--shift", type=int, default=0)
    ap.add_argument("--cpfsplit", type=int, default=1)
    ap.add_argument("--backoff", type=int, default=0)
    ap.add_argument("--w0prep", type=int, default=0)
    ap.add_argument("--nb_pro", type=int, default=6, help="early mode: x0 B-half DMAs issued before the first MFMA")
    ap.add_argument("--dmapair", type=int, default=10)
    ap.add_argument("--dbgout", type=int, default=-1)
    ap.add_argument("--tailpk", type=int, default=1)
    ap.add_argument("--gather", type=int, default=1)
    ap.add_argument("--wsig2", type=int, default=0)
    ap.add_argument("--stagger", type=int, default=-1, help="workgroup-id bit selecting the late group")
    ap.add_argument("--ynb", type=int, default=4)
    ap.add_argument("--sig0_at", type=float, default=0.1)
    ap.add_argument("--poll0_at", type=float, default=0.7)
    ap.add_argument("--verbose", action="store_true")
    ap.add_argument("--gload", type=int, default=1)
    ap.add_argument("--pace", type=float, default=0.1)
    ap.add_argument("--early", type=int, default=1)
    ap.add_argument("--pub0_end", type=int, default=40)
    ap.add_argument("--earlyprep", type=int, default=0)
    ap.add_argument("--lateprep", type=int, default=400)
    ap.add_argument("--preps_at", type=int, default=330)
    ap.add_argument("--prepl_at", type=float, default=0.1)
    ap.add_argument("--wdelay", type=int, default=2)
    ap.add_argument("--short_at", type=int, default=72)
    ap.add_argument("--pkmul", type=int, default=0)
    ap.add_argument("--pkadd", type=int, default=0)
    ap.add_argument("--apub", type=int, default=0, help="publish x0's A half in the prologue")
    ap.add_argument("--cpf", type=int, default=4, help="code prefetch loads per wave (16 KB each)")
    ap.add_argument("--desync", type=int, default=0, help="diagnostic")
    ap.add_argument("--direct", type=int, nargs=2, default=[16, 16])
    ap.add_argument("--siga2_at", type=float, default=0.15)
    ap.add_argument("--puba_end", type=int, default=200)
    ap.add_argument("--sg", type=int, nargs=4, default=[-1, 0, 390, 82])
    ap.add_argument("--delay", type=int, default=0, help="diagnostic")
    ap.add_argument("--touch", type=int, default=0, help="diagnostic")
    ap.add_argument("--pstamps", type=int, default=0, help="phase stamps in layer N-1")
    ap.add_argument("--xbase", type=int, default=32)
    ap.add_argument("--xbufs", type=int, default=6)
    ap.add_argument("--now", action="store_true", help="diagnostic: no W loads in the loop")
    ap.add_argument("--noxch", action="store_true", help="diagnostic: no exchange traffic")
    ap.add_argument("--noepi", action="store_true", help="diagnostic: no epilogue/bias in the loop")
    o = ap.parse_args()
    for k in ("wflags", "xflags", "oflags", "rflags", "xsflags", "xlflags"):
        v = getattr(o, k)
        setattr(o, k, (" " + v.replace(",", " ")) if v and v != "none" else "")
    mtxt, mkd = Main(o).build()
    opts = " ".join(a for a in sys.argv[1:] if not a.endswith(".s") and a != "-o")
    s = HEADER.format(opts=opts)
    s += f"; @launch grid=(256,1,1) block=(256,1,1) lds={LDS_TOTAL}\n"
    s += '.amdgcn_target "amdgcn-amd-amdhsa--gfx950"\n.text\n'
    s += mtxt + mkd
    open(o.o, "w").write(s)
    print(o.o, len(s), "bytes")


if __name__ == "__main__":
    main()
```

```python
import argparse
import sys
from asmir import *

KNAME = "standalone__cross_network_dcn__recsys_kernel"
NL = 6
D = 1024
NB = 16384
MB = 1 << 20

HEADER = """; Kernarg layout for this problem (48 bytes, ptrs only, base s[0:1]):
;   offset  40: d_ws      268435456 bytes workspace
; Generated by gen/gen3.py (hand-written generator). Options: {opts}
"""

LDS_BIAS = 131072
LDS_STAGE = LDS_BIAS + NL * 512 * 4
LDS_TOTAL = LDS_STAGE + 8192
WS_FLAGS = 15 * MB
WS_XCH = 32 * MB
WS_STAMP = 16 * MB


def kd(name, vgpr, sgpr, accum):
    return f""".section .rodata,"a"
.p2align 6
.amdhsa_kernel {name}
  .amdhsa_next_free_vgpr {vgpr}
  .amdhsa_next_free_sgpr {sgpr}
  .amdhsa_accum_offset {accum}
  .amdhsa_group_segment_fixed_size 0
  .amdhsa_kernarg_size 48
  .amdhsa_user_sgpr_count 2
  .amdhsa_user_sgpr_kernarg_segment_ptr 1
  .amdhsa_system_sgpr_workgroup_id_x 1
  .amdhsa_float_denorm_mode_32 3
.end_amdhsa_kernel
"""


def srd(base, lo, hi, nbytes):
    return [salu("s_mov_b32", f"s{base}", lo), salu("s_mov_b32", f"s{base + 1}", hi),
            salu("s_mov_b32", f"s{base + 2}", hex(nbytes)), salu("s_mov_b32", f"s{base + 3}", "0x20000")]


def srd_off(base, lo, hi, off, nbytes):
    return [salu("s_add_u32", f"s{base}", lo, off), salu("s_addc_u32", f"s{base + 1}", hi, 0),
            salu("s_mov_b32", f"s{base + 2}", hex(nbytes)), salu("s_mov_b32", f"s{base + 3}", "0x20000")]


def sload(d, off, n=2):
    return I(f"s_load_dwordx{n} {d}, s[0:1], {off}", "smem", wr=[d])


def tagged(ins, tag):
    ins.wr = set(ins.wr) | {tag}
    return ins


def dma(voff, srdn, soff, off, flags, tag):
    o = f" offset:{off}" if off else ""
    return tagged(I(f"buffer_load_dwordx4 {voff}, {srdn}, {soff} offen{o}{flags} lds", "vld", rd=[voff]), tag)


def hoist(ins):
    ins.note = "hoist"
    return ins


def space(n):
    return [I("", "space") for _ in range(n)]


def insert_at(stream, frac, items, ok):
    i = int(len(stream) * frac)
    while 0 < i < len(stream) and not ok(stream[i - 1]):
        i += 1
    return stream[:i] + items + stream[i:]


class Main:
    def __init__(self, o):
        self.o = o
        self.sX, self.sW, self.sO, self.sB = "s[8:11]", "s[12:15]", "s[16:19]", "s[20:23]"
        self.sE, self.sR, self.sD = "s[32:35]", "s[40:43]", "s[44:47]"
        self.sC, self.sFm, self.sFp = "s[56:59]", "s[60:63]", "s[64:67]"
        self.sWoff, self.sL, self.sMask, self.sNeed = "s24", "s25", "s26", "s27"
        self.sRow, self.sXs, self.sXl, self.sFlag = "s28", "s29", "s30", "s31"
        self.sRaw, self.sDst, self.sLds, self.sBias, self.sStage, self.sSpin, self.sWave, self.sPNeed = (
            "s48", "s49", "s50", "s51", "s52", "s53", "s54", "s55")
        self.vW, self.vXw, self.vB = "v0", "v3", "v4"
        self.vXr = ["v1", "v2"]
        self.vL = "v1"
        self.t = ["v5", "v6", "v7"]
        self.Q = [8, 12]
        self.vP, self.vG = "v16", "v17"
        self.vS = ["v18", "v19"]
        self.RQ = [20, 24]
        self.NS = o.slots
        self.aX0 = 0
        self.aXF = 128
        self.aW = 192
        self.aACC = self.aW + 8 * min(self.NS, 6)
        self.nA = 256 - self.aACC
        self.vACC = self.nA
        NS = self.NS
        nshort = (-128) % NS
        nlong = (128 - nshort * (NS - 1)) // NS
        first = min(nlong, o.short_at // NS)
        seq = list(range(NS)) * first + list(range(NS - 1)) * nshort + list(range(NS)) * (nlong - first)
        assert len(seq) == 128
        self.slot = seq
        site = {}
        for s2 in range(-128, 256):
            p = s2 - 1
            while seq[p % 128] != seq[s2 % 128]:
                p -= 1
            site[s2] = max(p, site.get(s2 - 1, -10 ** 9))
        if o.wbunch > 1:
            k = o.wbunch
            for s2 in site:
                site[s2] = ((site[s2] // k) + 1) * k - 1
        self.site = site
        self.loads_at = {}
        for s2 in range(0, 256):
            self.loads_at.setdefault(site[s2], []).append(s2)
        self.small = self.vACC < 28
        if self.small:
            self.vP = self.vB
            q0 = [int(self.acc_tile(nt, 0, 0, 1)[1:]) for nt in range(4)]
            self.vG, self.vS, self.RQ = f"v{q0[0]}", [f"v{q0[0] + 1}", f"v{q0[0] + 2}"], [q0[1], q0[2]]
        self.init = "1.0" if not o.init else "s23"
        self.stampn = 0
        self.names = []
        self.ool = []

    def acc(self, p, i, n=1):
        h = self.nA // 2
        nv = 128 - h
        if i < nv:
            assert i + n <= nv
            return R("v", self.vACC + p * nv + i, n)
        return R("a", self.aACC + p * h + (i - nv), n)

    def acc_tile(self, nt, bt, r=0, n=4):
        return self.acc(nt >> 2, ((nt & 3) * 8 + bt) * 4 + r, n)

    def x0reg(self, kbl, bt, j=0, n=4):
        return R("a", self.aX0 + (kbl * 8 + bt) * 4 + j, n)

    def xf(self, bt, c):
        return R("a", self.aXF + (bt * 2 + c) * 4, 4)

    def wslot(self, s, c):
        if self.slot[s % 128] >= 6:
            return R("a", ((self.slot[s % 128] - 6) * 2 + c) * 4, 4)
        return R("a", self.aW + (self.slot[s % 128] * 2 + c) * 4, 4)

    def wload(self, s, c, dst=None):
        if self.o.gload:
            d = dst or self.wslot(s, c)
            off = (s & 3) * 2048 + c * 1024 - 4096
            return I(f"global_load_dwordx4 {d}, {self.vW}, s[70:71] offset:{off}{self.o.wflags}", "vld",
                     rd=[self.vW, "s[70:71]"], wr=[d])
        return bload(dst or self.wslot(s, c), self.vW, self.sW, self.sWoff, (s & 1) * 2048 + c * 1024, flags=self.o.wflags)

    def wstep(self, s):
        if self.o.gload:
            if (s & 3) != 3:
                return []
            d = 8192 if (s % 128) != 127 else 8192 + 2 * MB - 256 * 1024
            both = I(f"s_add_u32 s70, s70, {d}\n s_addc_u32 s71, s71, 0", "salu", rd=["s[70:71]"], wr=["s[70:71]"])
            both.states = 2
            return [both]
        if not s & 1:
            return []
        return [salu("s_add_u32", self.sWoff, self.sWoff, 4096 if (s % 128) != 127 else 4096 + 2 * MB - 256 * 1024)]

    def xread(self, bt, c, rho, ss):
        return dsread(self.xf(bt, c), self.vXr[ss >> 1], (ss & 1) * 32768 + bt * 4096 + rho * 2048 + c * 1024)

    def stamp(self, name="x"):
        if not self.o.stamps:
            return []
        if self.o.pstamps and name in ("kernarg", "x0A_issued", "stores_issued", "signalled", "x0_issued", "x0_part", "flag_seen"):
            return []
        n = self.stampn
        self.stampn += 1
        self.names.append(name)
        assert n < 15
        return [raw(f"s_memtime s[{72 + 2 * n}:{73 + 2 * n}]", "other")]

    def lstamp(self, name, lval):
        if not self.o.pstamps:
            return []
        n = self.stampn
        return [raw(f"s_cmp_eq_u32 s25, {lval}"), raw(f"s_cbranch_scc0 Lns{n}")] + self.stamp(name) + [Label(f"Lns{n}")]

    def epi_unit(self, kbl, bt, q, pk=False):
        s = []
        accs = [self.acc_tile(2 * kbl + t, bt, r, 1) for t in range(2) for r in range(4)]
        hi, lo, m = self.t
        for j in range(4):
            a0, a1 = accs[2 * j], accs[2 * j + 1]
            if self.o.pkmul or pk:
                s.append(valu("v_accvgpr_read_b32", "v7", self.x0reg(kbl, bt, j, 1)))
                ap = f"v[{a0[1:]}:{a1[1:]}]"
                if a0[0] == "a":
                    tp = int(self.acc_tile(3, 0, 0, 1)[1:]) if pk else 28
                    s.append(valu("v_accvgpr_read_b32", f"v{tp}", a0))
                    s.append(valu("v_accvgpr_read_b32", f"v{tp + 1}", a1))
                    ap = R("v", tp, 2)
                s.append(valu("v_lshlrev_b32", "v6", 16, "v7"))
                s.append(valu("v_and_b32", "v7", self.sMask, "v7"))
                s.append(valu("v_pk_mul_f32", "v[6:7]", "v[6:7]", ap))
                s.append(valu("v_cvt_pk_bf16_f32", f"v{q + j}", "v6", "v7"))
                continue
            s.append(valu("v_accvgpr_read_b32", hi, self.x0reg(kbl, bt, j, 1)))
            if a0[0] == "a":
                s.append(valu("v_accvgpr_read_b32", m, a0))
                a0 = m
            s.append(valu("v_lshlrev_b32", lo, 16, hi))
            s.append(valu("v_and_b32", hi, self.sMask, hi))
            s.append(valu("v_mul_f32", lo, lo, a0))
            if a1[0] == "a":
                s.append(valu("v_accvgpr_read_b32", m, a1))
                a1 = m
            s.append(valu("v_mul_f32", hi, hi, a1))
            s.append(valu("v_cvt_pk_bf16_f32", f"v{q + j}", lo, hi))
        return s

    def xstore(self, src, p, u, tmp, state):
        if self.o.noxch or self.o.nost:
            return []
        s = []
        off = p * 16384 + u * 1024
        if state.get("g") != off >> 12:
            state["g"] = off >> 12
            s.append(salu("s_add_u32", tmp, self.sXs, off & ~4095))
        s.append(tagged(bstore(src, self.vXw, self.sE, tmp, off & 4095, flags=self.o.xsflags), f"xs{p}"))
        return s

    def xnext(self, reg, back):
        n = self.o.xbufs
        if n == 1:
            return [salu("s_sub_u32", reg, reg, back)]
        if n == 2:
            return [salu("s_sub_u32", reg, reg, back), salu("s_xor_b32", reg, reg, hex(32 * MB))]
        return [salu("s_add_u32", reg, reg, hex(32 * MB - back))]

    def epi_stream(self, p, ndirect=16):
        s = []
        st = {}
        for bt in range(8):
            for c in range(2):
                q = self.Q[c]
                s += self.epi_unit(2 * p + c, bt, q)
                s.append(dswrite(self.vXw, R("v", q, 4), bt * 4096 + p * 2048 + c * 1024))
                if bt * 2 + c < ndirect:
                    s += self.xstore(R("v", q, 4), p, bt * 2 + c, "s68", st)
        return s

    def pub_stream(self, p, lo, hi):
        s = []
        st = {}
        if self.o.noxch or lo >= hi:
            return s
        assert not self.small

        def rd(u):
            return dsread(R("v", self.RQ[u & 1], 4), self.vXw, (u >> 1) * 4096 + p * 2048 + (u & 1) * 1024)

        s.append(rd(lo))
        s += space(6)
        for u in range(lo, hi):
            if u + 1 < hi:
                s.append(rd(u + 1))
            s.append(Wait(lg=[R("v", self.RQ[u & 1], 4)]))
            s += self.xstore(R("v", self.RQ[u & 1], 4), p, u, "s69", st)
        return s

    def x0pub_stream(self, p, lo=0, hi=16):
        s = []
        st = {}
        for u in range(lo, hi):
            s += self.xstore(self.x0reg(2 * p + (u & 1), u >> 1), p, u, "s68", st)
        return s

    def xch_dma(self, p):
        if self.o.gather:
            return self.xch_dma_g(p)
        s = [raw(f"s_add_u32 m0, {self.sLds}, {p * 2048}", "salu", rd=[self.sLds])] + space(1)
        for bt in range(8):
            for c in range(2):
                if not self.o.noxch:
                    s.append(dma(self.vXw, self.sE, self.sXl, c * 1024, self.o.xlflags, f"xl{p}"))
            if bt < 7:
                s.append(raw("s_add_u32 m0, m0, 4096", "salu"))
            if bt == 7 and p == 1:
                s += self.xnext(self.sXl, 15 * 2048)
            else:
                s.append(salu("s_add_u32", self.sXl, self.sXl, 2048))
        return s

    def xch_dma_g(self, p):
        t0, t1 = self.t[0], self.t[1]
        vL = self.vL
        if self.o.quadg:
            X = self.vXw
            self.ool += [Label(f"Lgat{p}"),
                         raw(f"v_lshrrev_b32 {t0}, 4, {X}"), raw(f"v_and_b32 {t0}, 0x20, {t0}"), raw(f"v_xor_b32 {t0}, {t0}, {X}"),
                         raw(f"v_and_b32 {t0}, 0x30, {t0}"), raw(f"v_bfe_u32 {t1}, {X}, 6, 4"),
                         raw(f"v_lshl_add_u32 {t1}, {t1}, 11, {t0}"), raw(f"s_branch Lgatr{p}")]
        else:
            self.ool += [Label(f"Lgat{p}"),
                         raw(f"v_and_b32 {t0}, 0xf0, {vL}"), raw(f"v_lshrrev_b32 {t1}, 4, {vL}"),
                         raw(f"v_and_b32 {t1}, 0x30, {t1}"), raw(f"v_lshl_add_u32 {t1}, {t0}, 7, {t1}"),
                         raw(f"s_branch Lgatr{p}")]
        sel = I(f"v_mov_b32 {t1}, {self.vXw}\n s_cmp_eq_u32 {self.sL}, 0\n s_cbranch_scc1 Lgat{p}\nLgatr{p}:", "valu",
                rd=[self.vXw], wr=[t0, t1])
        s = [sel, raw(f"s_add_u32 m0, {self.sLds}, {p * 2048}", "salu", rd=[self.sLds])] + space(1)
        for bt in range(8):
            for c in range(2):
                if not self.o.noxch and not self.o.nodma:
                    s.append(dma(t1, self.sX, self.sXl, 0, self.o.xlflags, f"xl{p}"))
                s.append(raw(f"s_add_u32 m0, m0, {1024 if c == 0 else 3072}", "salu"))
                s.append(salu("s_add_u32", self.sXl, self.sXl, "s20" if c == 0 else "s21" if bt < 7 else "s22"))
            if bt < 7 and (bt + 1) % self.o.dmagroup == 0:
                s += space(self.o.dmapair * self.o.dmagroup)
        return s

    def xr_gathered(self):
        if not self.o.quadg:
            return []
        t0, X, r0, r1 = self.t[0], self.vXw, self.vXr[0], self.vXr[1]
        self.ool += [Label("Lxrg"),
                     raw(f"v_lshrrev_b32 {t0}, 2, {X}"), raw(f"v_and_b32 {t0}, 0x20, {t0}"),
                     raw(f"v_lshrrev_b32 {r1}, 4, {X}"), raw(f"v_xor_b32 {t0}, {t0}, {r1}"),
                     raw(f"v_and_b32 {t0}, 0x30, {t0}"), raw(f"v_bfe_u32 {r0}, {X}, 4, 4"),
                     raw(f"v_lshl_add_u32 {r0}, {r0}, 6, {t0}"), raw(f"v_add_u32 {r1}, 0x10000, {r0}"),
                     raw("s_branch Lxrgr")]
        return [I(f"s_cmp_eq_u32 {self.sL}, 0\n s_cbranch_scc1 Lxrg\nLxrgr:", "valu", rd=[X], wr=[t0, r0, r1])]

    def xr_plain(self):
        if not self.o.quadg:
            return []
        return [valu("v_and_b32", self.vXr[0], 0x3ff, self.vXw), valu("v_add_u32", self.vXr[1], 65536, self.vXr[0])]

    def xch_switch(self):
        return [salu("s_mov_b32", "s8", "s32"), salu("s_mov_b32", "s9", "s33"), salu("s_mov_b32", "s10", "s34"),
                salu("s_mov_b32", "s20", 1024), salu("s_mov_b32", "s21", 1024), salu("s_mov_b32", "s22", 1024),
                salu("s_xor_b32", self.sXl, self.sXs, 1 << 17)]

    def calc_vG(self, vG):
        t0, t1 = self.t[0], self.t[1]
        return [valu("v_lshrrev_b32", t0, 7, self.vL), valu("v_lshlrev_b32", t1, 4, t0),
                valu("v_xor_b32", t1, t1, self.vL), valu("v_and_b32", t1, 0x70, t1),
                valu("v_lshl_add_u32", vG, t0, 11, t1)]

    def calc_vS(self, vS):
        t0, t1 = self.t[0], self.t[1]
        vL = self.vL
        return [valu("v_lshrrev_b32", t0, 4, vL), valu("v_and_b32", t0, 0x30, t0), valu("v_xor_b32", t0, t0, vL),
                valu("v_and_b32", t0, 0x70, t0), valu("v_and_b32", t1, 0xf0, vL),
                valu("v_lshl_add_u32", t0, t1, 3, t0), valu("v_add_u32", vS[0], self.sLds, t0),
                valu("v_xor_b32", vS[1], 64, vS[0])]

    def out_setup(self):
        return self.calc_vG(self.vG) + self.calc_vS(self.vS)

    def x0h_dma(self, p, lo, hi, vG):
        r = []
        for i in range(lo, hi):
            r.append(raw(f"s_add_u32 m0, {self.sLds}, {(i >> 1) * 4096 + p * 2048 + (i & 1) * 1024}", "salu"))
            r.append(salu("s_add_u32", "s3", self.sRow, i * 16384 + p * 128))
            r.append(dma(vG, self.sX, "s3", 0, self.o.xflags, f"x0_{p}_{i >> 1}"))
        return r

    def x0h_read(self, p, bt, vS):
        return [Wait(vm=[f"x0_{p}_{bt}"])] + [dsread(self.x0reg(2 * p + c, bt), vS[c], bt * 4096 + p * 2048)
                                              for c in range(2)]

    def x0h_write(self, p, bt):
        return [Wait(lg=[self.x0reg(2 * p + c, bt) for c in range(2)])] + [
            dswrite(self.vXw, self.x0reg(2 * p + c, bt), bt * 4096 + p * 2048 + c * 1024) for c in range(2)]

    def wreg0(self, s, c):
        if s < 16 - self.NS:
            return self.acc(1, (s * 2 + c) * 4, 4)
        return self.wslot(s, c)

    def out_stream(self, p):
        s = []
        pend = []
        for bt in range(8):
            for c in range(2):
                q = self.Q[c]
                u = self.epi_unit(2 * p + c, bt, q, pk=(p == 1 and self.o.tailpk))
                if c == 0 and pend:
                    u = u[:12] + pend + u[12:]
                    pend = []
                s += u
                if p == 0 and bt == 0 and c == 0:
                    s += self.out_setup()
                s.append(dswrite(self.vS[c], R("v", q, 4), bt * 4096))
            for i in range(2):
                s.append(dsread(R("v", self.RQ[i], 4), self.vXw, bt * 4096 + i * 1024))
            for i in range(2):
                pend.append(Wait(lg=[R("v", self.RQ[i], 4)]))
                pend.append(salu("s_add_u32", "s3", self.sRow, bt * 32768 + i * 16384))
                pend.append(bstore(R("v", self.RQ[i], 4), self.vG, self.sO, "s3", p * 128, flags=self.o.oflags))
        return s + pend

    def out_stream4(self, kbl):
        s = []
        pend = []
        p, c = kbl >> 1, kbl & 1
        for bt in range(8):
            q = self.Q[bt & 1]
            u = self.epi_unit(kbl, bt, q, pk=(kbl == 3 and self.o.tailpk))
            s += u[:12] + pend + u[12:]
            pend = []
            if kbl == 0 and bt == 0:
                s += self.out_setup()
            s.append(dswrite(self.vS[c], R("v", q, 4), bt * 4096))
            if c:
                rq = [int(self.acc_tile(1, 0, 0, 1)[1:]), int(self.acc_tile(0, 1, 0, 1)[1:])]
                for i in range(2):
                    s.append(dsread(R("v", rq[i], 4), self.vXw, bt * 4096 + i * 1024))
                for i in range(2):
                    pend.append(Wait(lg=[R("v", rq[i], 4)]))
                    pend.append(salu("s_add_u32", "s3", self.sRow, bt * 32768 + i * 16384))
                    pend.append(bstore(R("v", rq[i], 4), self.vG, self.sO, "s3", p * 128, flags=self.o.oflags))
        return s + pend

    def calc_vB(self):
        return [valu("v_bfe_u32", self.vB, self.vXw, 8, 2),
                valu("v_lshl_add_u32", self.vB, self.vB, 5, self.sBias)]

    def bias_stream(self, p):
        s = []
        if self.o.nobias:
            return [valu("v_add_f32", self.acc_tile(4 * p, 0, 0, 1), self.acc_tile(4 * p, 0, 0, 1), 0) for _ in range(8)]

        def rd(nt):
            return dsread(R("v", self.Q[nt & 1], 4), self.vB, (nt >> 1) * 128 + (nt & 1) * 16)

        s.append(rd(4 * p))
        s += space(8)
        for nt in range(4 * p, 4 * p + 4):
            q = self.Q[nt & 1]
            cnt = 0
            for bt in range(8):
                for r in range(4):
                    if cnt == 0:
                        s.append(Wait(lg=[R("v", q, 4)]))
                    a = self.acc_tile(nt, bt, r, 1)
                    if self.o.pkadd and a[0] == "v":
                        if not r & 1:
                            ap = self.acc_tile(nt, bt, r, 2)
                            s.append(valu("v_pk_add_f32", ap, ap, R("v", q + r, 2)))
                    elif a[0] == "a":
                        t = self.t[cnt & 1]
                        s.append(valu("v_accvgpr_read_b32", t, a))
                        s.append(valu("v_add_f32", t, t, f"v{q + r}"))
                        s.append(valu("v_accvgpr_write_b32", a, t))
                    else:
                        s.append(valu("v_add_f32", a, a, f"v{q + r}"))
                    cnt += 1
                    if cnt == 1 and nt + 1 < 4 * p + 4:
                        s.append(rd(nt + 1))
        return s

    def prep_load(self):
        t0, t1 = self.t[0], self.t[1]
        s = [valu("v_lshrrev_b32", t0, 6, self.vL),
             valu("v_and_b32", t1, 48, self.vL),
             valu("v_lshl_add_u32", t0, t0, 11, t1),
             raw(f"s_mov_b32 m0, {self.sStage}", "salu", rd=[self.sStage]),
             salu("s_add_u32", "s3", self.sRaw, 32768 - 1024)]
        s.append(dma(t0, self.sR, self.sRaw, 0, self.o.rflags, "raw"))
        s.append(dma(t0, self.sR, "s3", 1024, self.o.rflags, "raw"))
        s.append(salu("s_add_u32", self.sRaw, self.sRaw, D * D * 2))
        return s

    def prep_store(self, sp=0):
        t0 = self.t[0]
        t1 = self.t[2]
        s = [valu("v_and_b32", t0, 0x300, self.vXw),
             valu("v_and_b32", t1, 0x3ff, self.vXw),
             valu("v_add3_u32", t0, t0, t1, self.sStage),
             Wait(vm=["raw"])]
        for t in range(2):
            for h in range(2):
                s.append(I(f"ds_read_b64_tr_b16 {R('v', self.Q[t] + 2 * h, 2)}, {t0} offset:{h * 256 + t * 8}", "dsr",
                           rd=[t0], wr=[R("v", self.Q[t] + 2 * h, 2)]))
        dst = self.sDst
        if sp and self.o.tail4:
            dst = "s69"
            s.append(I(f"s_cmp_eq_u32 {self.sL}, {NL - 2}\n s_cselect_b32 s69, s24, 0\n s_add_u32 s69, s69, {self.sDst}",
                       "salu", rd=[self.sL, "s24", self.sDst], wr=["s69"]))
        s += space(sp)
        for t in range(2):
            s.append(Wait(lg=[R("v", self.Q[t], 4)]))
            s.append(tagged(bstore(R("v", self.Q[t], 4), t1, self.sW, dst, t * 2048, flags=" sc1"), "pst"))
        s.append(salu("s_add_u32", self.sDst, self.sDst, D * D * 2))
        return s

    def wsignal(self):
        t = self.t[2]
        return [valu("v_mov_b32", t, 1),
                I(f"buffer_atomic_add {t}, {self.vW}, {self.sC}, 0 offen sc1", "vst", rd=[t, self.vW])]

    def psignal(self, p):
        t = self.t[2]
        return [salu("s_add_u32", self.sFlag, self.sFlag, 1), Wait(vm=[f"xs{p}"]),
                valu("v_mov_b32", t, self.sFlag),
                bstore(t, self.vL, self.sFm, 0, w="dword", flags=" sc1")]

    def wpoll_load(self):
        v = self.vP
        return [valu("v_lshlrev_b32", v, 2, self.vXw), valu("v_and_b32", v, 0xc0, v),
                bload(v, v, self.sD, 0, w="dword", flags=" sc1")]

    def ppoll_load(self):
        return [I(f"buffer_load_dword {self.vP}, off, {self.sFp}, 0 sc1", "vld", wr=[self.vP])]

    def poll_check(self, name, need, inc, loader):
        v = self.vP
        spin = [Label(f"Lspin_{name}"), raw(f"s_add_u32 {self.sSpin}, {self.sSpin}, 1")]
        if self.o.backoff:
            spin.append(raw(f"s_sleep {self.o.backoff}"))
        spin += [raw(x.text) for x in loader()]
        spin += [raw(f"s_cmp_ge_u32 {self.sSpin}, 0x100000"),
                 raw(f"s_cbranch_scc1 Lgiveup_{name}"),
                 raw("s_waitcnt vmcnt(0)"),
                 raw(f"v_cmp_gt_i32 vcc, {need}, {v}"),
                 raw("s_and_b64 vcc, exec, vcc"),
                 raw(f"s_cbranch_vccnz Lspin_{name}"),
                 Label(f"Lgiveup_{name}"),
                 raw("s_waitcnt vmcnt(0)"),
                 raw(f"s_branch Lok_{name}")]
        self.ool += spin
        return [Wait(vm=[v]), I(f"v_cmp_gt_i32 vcc, {need}, {v}", "valu", rd=[v, need]),
                raw(f"s_and_b64 vcc, exec, vcc\n s_cbranch_vccnz Lspin_{name}\nLok_{name}:", "branch"),
                salu("s_add_u32", need, need, inc)]

    def phase(self, s0, nts, rho, next_rho, stream=(), bar=False, last=False, start=0, end=None, pre_bar=(),
              fixed=(), extra=(), wreg=None, skip_below=0, post_bar=()):
        o = self.o
        NS = self.NS
        NT = len(nts)
        L = NT * 16
        mf = []
        gaps = [[] for _ in range(4 * L)]
        fwd = list(range(8))
        keepx = o.revb and s0 in (0, 96)
        rev = o.revb and s0 in (16, 112)
        flip = 1 if (o.revb and 16 <= s0 <= 96) else 0
        wreg = wreg or self.wslot
        for ss in range(4):
            base = ss * L
            for k, nt in enumerate(nts):
                s = s0 + ss * NT + k
                order = fwd if ((ss + k + flip) & 1) == 0 else fwd[::-1]
                for j, bt in enumerate(order):
                    for i in range(2):
                        c = i ^ (j & 1)
                        mf.append(mfma(16, self.acc_tile(nt, bt), wreg(s, c), self.xf(bt, c)))
                g = base + k * 16
                at = self.loads_at.get(s, [])
                for n, sn in enumerate(at):
                    if (last and sn >= 128) or o.now or sn < skip_below:
                        continue
                    ga, gb, gc = g + (14 if n == 0 else 15), g + 15, g + 18
                    if o.wdelay and g + 16 < 4 * L and (o.wdelay == 2 or k == NT - 1):
                        ga, gb, gc = g + 17 + 4 * n, g + 19 + 4 * n, g + 20 + 4 * n
                    elif o.wdelay and g + 16 < 4 * L and len(at) == 1:
                        gb, gc = g + 17, g + 19
                    elif not (g + 18 < 4 * L and n == len(at) - 1):
                        gc = g + 15
                    gaps[ga].append(hoist(self.wload(sn, 1)))
                    gaps[gb].append(hoist(self.wload(sn, 0)))
                    gaps[gc] += self.wstep(sn)
                if k < NT - 1:
                    gaps[g + 15].append(Wait(vm=[wreg(s + 1, 0), wreg(s + 1, 1)]))
                if k == 0:
                    for j in range(o.xw, 8, o.xw):
                        gaps[g + 2 * j - 1].append(
                            Wait(lg=[self.xf(order[jj], c) for jj in range(j, min(8, j + o.xw)) for c in range(2)]))
            nrho, nss = (rho, 2 - ss if rev else ss + 1) if ss < 3 else (next_rho, 0)
            if ss == 3 and keepx:
                nrho = None
                s = s0 + 4 * NT
                gaps[base + L - 1].append(Wait(vm=[wreg(s, 0), wreg(s, 1)]))
            gl = base + L - 16
            if ss == 3 and bar:
                gaps[gl - o.bar_lead] += list(pre_bar) + [Wait(all_lg=True), barrier()]
                gaps[gl - o.bar_lead + 1] += list(post_bar)
            if nrho is not None:
                for j, bt in enumerate(order):
                    for i in range(2):
                        c = i ^ (j & 1)
                        if not o.nox:
                            gaps[gl + 2 * j + i].append(hoist(self.xread(bt, c, nrho, nss)))
                s = s0 + (ss + 1) * NT
                gaps[base + L - 1].append(Wait(vm=[wreg(s, 0), wreg(s, 1)],
                                               lg=[self.xf(order[jj], c) for jj in range(o.xw) for c in range(2)]))
        for gi, inss in fixed:
            gaps[gi] += inss
        hi = end if end is not None else (4 * L - 16 - o.bar_lead if bar else 4 * L - 1)
        for st, lo2, hi2 in extra:
            self.place(gaps, list(st), lo2, hi2)
        self.place(gaps, list(stream), start, hi)
        out = []
        if o.jitter:
            n = self.njit = getattr(self, "njit", 0) + 1
            out.append(raw(f"s_mul_i32 s23, s23, 1664525\n s_add_u32 s23, s23, 1013904223\n s_lshr_b32 s101, s23, 24\n"
                           f" s_cmp_ge_u32 s101, {o.jitter}\n s_cbranch_scc1 Ljit{n}\n s_bfe_u32 s101, s23, 0x40010\nLjs{n}:\n s_sleep 20\n"
                           f" s_sub_u32 s101, s101, 1\n s_cbranch_scc0 Ljs{n}\nLjit{n}:", "salu"))
        for i, m in enumerate(mf):
            out.append(m)
            gaps[i] = self.merge([], gaps[i])
            out += gaps[i]
        if o.verbose:
            print(f"; phase s0={s0} mfma={len(mf)} modelled excess={sum(self.gap_excess(g) for g in gaps)}", file=sys.stderr)
        return out

    @staticmethod
    def gap_excess(items):
        slots = 0
        ex = 0
        free = 2
        seenv = False
        for x in items:
            k = x.kind
            if k in ("valu", "nop"):
                slots += 1
                seenv = True
                continue
            if k in ("dsr", "vld", "dsw", "vst") and seenv:
                ex += 8
            if k == "dsr":
                slots += 1
            elif k == "vld":
                slots += 1 if x.text.startswith("global") else 2
            elif k == "dsw":
                ex += 12
                free -= 2
            elif k == "vst":
                ex += (20 if x.big else 4) + 4 * slots + (8 if free < 2 else 0)
                free = 4 if x.big else free - 1
            elif k == "barrier":
                ex += 24
        return ex + 4 * max(0, slots - max(free, 0))

    @staticmethod
    def merge(items, fixed):
        k = 0
        lead, rest = [], []
        stop = False
        for x in fixed:
            if not stop and x.kind in ("dsr", "vld") and getattr(x, "note", "") == "hoist":
                lead.append(x)
            else:
                rest.append(x)
                if x.kind not in ("wait",):
                    stop = True
        items = [x for x in items if x.kind != "space"]
        j = 0
        while j < len(items) and items[j].kind in ("salu", "wait"):
            j += 1
        if j < len(items) and items[j].kind == "vst":
            return items[:j + 1] + lead + items[j + 1:] + rest
        return lead + items + rest

    def place(self, gaps, stream, lo, hi):
        if not stream:
            return
        n, G = len(stream), hi - lo
        KMAX = 8
        INF = float("inf")
        dp = [INF] * (n + 1)
        dp[0] = 0.0
        back = []
        NG = len(gaps)
        cnt = lambda g, kind: sum(1 for x in gaps[g] if x.kind == kind) if g < NG else 0
        for g in range(G):
            fixed = gaps[lo + g]
            base = self.gap_excess(self.merge([], fixed))
            wpen = 7 * sum(cnt(lo + g + d, "dsr") for d in (1, 2, 3)) + 4 * cnt(lo + g, "dsr")
            spen = 12 * cnt(lo + g + 1, "vld") + 6 * cnt(lo + g, "vld") + 4 * cnt(lo + g + 2, "vld")
            nd = [INF] * (n + 1)
            bk = [0] * (n + 1)
            tgt = n * (g + 1) / G
            for i in range(n + 1):
                if dp[i] == INF:
                    continue
                for k in range(0, min(KMAX, n - i) + 1):
                    c = dp[i]
                    if k:
                        its = stream[i:i + k]
                        if k > 1 and its[-2].kind == "space":
                            break
                        c += self.gap_excess(self.merge(its, fixed)) - base
                        c += sum(wpen if x.kind == "dsw" else spen if x.kind == "vst" else 0 for x in its)
                    c += self.o.pace * ((i + k - tgt) / max(1.0, n / G)) ** 2 + 0.02 * k * k
                    if c < nd[i + k]:
                        nd[i + k] = c
                        bk[i + k] = k
            dp = nd
            back.append(bk)
        assert dp[n] < INF
        i = n
        for g in range(G - 1, -1, -1):
            k = back[g][i]
            gaps[lo + g] = self.merge(stream[i - k:i], gaps[lo + g])
            i -= k

    def prologue(self):
        o = self.o
        vL = self.vL
        b = []
        b.append(salu("s_cmp_ge_u32", "s2", 256))
        b.append(raw("s_cbranch_scc1 Lend", "branch"))
        b += self.stamp("start")
        if o.stamps:
            b.append(raw("s_memrealtime s[36:37]"))
        b += [nop(0) for _ in range(o.shift)]
        b += [sload("s[56:59]", 0, 4), sload("s[60:63]", 16, 4), sload("s[64:67]", 32, 4)]
        b.append(valu("v_lshrrev_b32", "v9", 6, "v0"))
        b.append(valu("v_and_b32", "v10", 63, "v0"))
        b.append(valu("v_readfirstlane_b32", self.sWave, "v9"))
        b.append(valu("v_lshlrev_b32", vL, 4, "v10"))
        if o.cpf:
            b.append(raw("s_getpc_b64 s[4:5]", "salu"))
            b.append(Label("Lpc"))
            b.append(valu("v_lshlrev_b32", "v11", 6, "v0"))
            if o.cpfsplit:
                b += [salu("s_bfe_u32", "s3", "s2", "0x20003"), salu("s_lshl_b32", "s3", "s3", 14),
                      valu("v_add_u32", "v11", "s3", "v11")]
            for i in range(1 if o.cpfsplit else o.cpf):
                b.append(raw(f"v_min_u32 v12, Lend-Lpc, v11", "valu", rd=["v11"], wr=["v12"]))
                b.append(I(f"global_load_dword v{60 + i}, v12, s[4:5]", "vld", rd=["v12"], wr=[f"v{60 + i}"]))
                b.append(valu("v_add_u32", "v11", 16384, "v11"))
        b.append(valu("v_lshrrev_b32", "v11", 7, "v0"))
        b.append(valu("v_and_b32", "v12", 127, "v0"))
        b.append(valu("v_lshlrev_b32", "v12", 3, "v12"))
        b.append(valu("v_lshl_add_u32", "v30", "v11", 11, "v12"))
        b.append(valu("v_lshlrev_b32", "v31", 4, "v0"))
        b.append(valu("v_add_u32", "v31", LDS_BIAS, "v31"))
        b.append(valu("v_add_u32", self.vXr[1], 65536, vL))
        b.append(valu("v_lshl_add_u32", self.vXw, "v9", 15, vL))
        b.append(valu("v_lshl_add_u32", self.vW, "v9", 18, vL))
        nb0 = len(b)
        b.append(valu("v_lshrrev_b32", "v11", 4, "v10"))
        b.append(valu("v_and_b32", "v12", 15, "v10"))
        b.append(valu("v_xor_b32", "v13", "v11", "v12"))
        b.append(valu("v_lshlrev_b32", "v13", 4, "v13"))
        b.append(valu("v_lshl_add_u32", "v20", "v11", 11, "v13"))
        for i in range(1, 4):
            b.append(valu("v_xor_b32", f"v{20 + i}", 64 * i, "v20"))
        b.append(valu("v_lshl_add_u32", "v24", "v12", 8, "v13"))
        b.append(valu("v_lshl_add_u32", "v24", "v9", 15, "v24"))
        for i in range(1, 4):
            b.append(valu("v_xor_b32", f"v{24 + i}", 64 * i, "v24"))
        if o.early == 1:
            del b[nb0:]
        b.append(salu("s_and_b32", "s7", "s2", 1))
        b.append(salu("s_lshr_b32", self.sRow, "s2", 1))
        b.append(salu("s_lshl_b32", self.sRow, self.sRow, 18))
        b.append(salu("s_lshl_b32", "s6", "s7", 10))
        b.append(salu("s_add_u32", self.sRow, self.sRow, "s6"))
        b.append(salu("s_lshl_b32", "s6", self.sWave, 8))
        b.append(salu("s_add_u32", self.sRow, self.sRow, "s6"))
        b.append(salu("s_mov_b32", self.sMask, "0xffff0000"))
        b.append(salu("s_lshl_b32", self.sWoff, "s7", 20))
        b.append(salu("s_mov_b32", self.sL, 0))
        b.append(salu("s_mov_b32", self.sSpin, 0))
        b.append(salu("s_mov_b32", self.sFlag, -1 if o.gather else 0))
        b.append(salu("s_mov_b32", self.sNeed, 64))
        b.append(salu("s_mov_b32", self.sPNeed, -1 if o.gather else 1))
        b.append(salu("s_lshl_b32", self.sLds, self.sWave, 15))
        b.append(salu("s_lshl_b32", self.sXs, "s2", 17))
        b.append(salu("s_add_u32", self.sXs, self.sXs, o.xbase * MB))
        b.append(salu("s_xor_b32", self.sXl, self.sXs, 1 << 17))
        b.append(salu("s_lshr_b32", "s4", "s2", 3))
        b.append(salu("s_and_b32", "s5", "s2", 7))
        b.append(salu("s_lshl_b32", self.sRaw, "s4", 16))
        b.append(salu("s_lshl_b32", "s6", "s5", 8))
        b.append(salu("s_add_u32", self.sRaw, self.sRaw, "s6"))
        b.append(salu("s_lshl_b32", "s6", self.sWave, 6))
        b.append(salu("s_add_u32", self.sRaw, self.sRaw, "s6"))
        b.append(salu("s_lshl_b32", self.sDst, "s5", 18))
        b.append(salu("s_and_b32", "s6", "s4", 1))
        b.append(salu("s_lshl_b32", "s6", "s6", 10))
        b.append(salu("s_add_u32", self.sDst, self.sDst, "s6"))
        b.append(salu("s_lshr_b32", "s6", "s4", 4))
        b.append(salu("s_lshr_b32", "s5", "s5", 2))
        b.append(salu("s_xor_b32", "s5", "s5", "s6"))
        b.append(salu("s_bfe_u32", "s6", "s4", "0x10001"))
        b.append(salu("s_lshl_b32", "s3", "s5", 1))
        b.append(salu("s_add_u32", "s3", "s3", "s6"))
        b.append(salu("s_lshl_b32", "s3", "s3", 16))
        b.append(salu("s_add_u32", self.sDst, self.sDst, "s3"))
        b.append(salu("s_bfe_u32", "s4", "s4", "0x20002"))
        b.append(salu("s_xor_b32", "s5", "s5", "s6"))
        b.append(salu("s_lshr_b32", "s3", self.sWave, 1))
        b.append(salu("s_lshl_b32", "s3", "s3", 4))
        if o.revb:
            assert not o.tail4 and not o.w0prep
            b += [salu("s_lshr_b32", "s6", self.sWave, 1), salu("s_mul_i32", "s6", "s6", 3), salu("s_xor_b32", "s6", "s6", "s4"),
                  salu("s_lshl_b32", "s6", "s6", 2)]
        else:
            b.append(salu("s_lshl_b32", "s6", "s4", 2))
        b.append(salu("s_add_u32", "s3", "s3", "s6"))
        b.append(salu("s_and_b32", "s6", self.sWave, 1))
        b.append(salu("s_lshl_b32", "s6", "s6", 1))
        b.append(salu("s_add_u32", "s3", "s3", "s6"))
        b.append(salu("s_lshl_b32", "s4", "s4", 3))
        b.append(salu("s_lshl_b32", "s6", self.sWave, 1))
        b.append(salu("s_add_u32", "s4", "s4", "s6"))
        b.append(salu("s_cmp_eq_u32", "s5", 0))
        b.append(salu("s_cselect_b32", "s3", "s3", "s4"))
        b.append(salu("s_lshl_b32", "s3", "s3", 11))
        b.append(salu("s_add_u32", self.sDst, self.sDst, "s3"))
        b.append(salu("s_lshl_b32", self.sStage, self.sWave, 11))
        b.append(salu("s_add_u32", self.sStage, self.sStage, LDS_STAGE))
        b.append(salu("s_lshl_b32", self.sBias, self.sWave, 9))
        b.append(salu("s_add_u32", self.sBias, self.sBias, LDS_BIAS))
        b.append(Wait(all_lg=True))
        b += self.stamp("kernarg")
        b += srd(40, "s58", "s59", NL * D * D * 2)

        def only(ins, w0):
            n = self.nseg = getattr(self, "nseg", 0) + 1
            for x in ins:
                x.note = "gy" if w0 else "gx"
            return [salu("s_cmp_eq_u32", self.sWave, 0), raw(f"s_cbranch_scc{0 if w0 else 1} Lseg{n}", "branch")] + \
                ins + [Label(f"Lseg{n}")]

        if o.w0prep:
            t0, t1 = self.t[0], self.t[1]
            r = [valu("v_lshrrev_b32", t0, 6, vL), valu("v_and_b32", t1, 48, vL), valu("v_lshl_add_u32", t0, t0, 11, t1)]
            for q in range(4):
                r += [raw(f"s_mov_b32 m0, {LDS_STAGE + q * 2048}", "salu"), salu("s_add_u32", "s3", self.sRaw, q * 64),
                      dma(t0, self.sR, "s3", 0, o.rflags, f"raw{q}"),
                      salu("s_add_u32", "s3", self.sRaw, q * 64 + 32768 - 1024),
                      dma(t0, self.sR, "s3", 1024, o.rflags, f"raw{q}")]
            b += only(r, True)
            b.append(salu("s_add_u32", self.sRaw, self.sRaw, D * D * 2))
        else:
            b += self.prep_load()
        b += srd(20, "s60", "s61", NL * D * 2)
        tb = 32
        b.append(salu("s_lshl_b32", "s3", "s7", 10))
        for m in range(3):
            b.append(bload(R("v", tb + 2 * m, 2), "v30", self.sB, "s3", w="dwordx2"))
            b.append(salu("s_add_u32", "s3", "s3", 4096))
        if o.jitter:
            b += [raw("s_memrealtime s[100:101]"), raw("s_waitcnt lgkmcnt(0)"), raw("s_lshl_b32 s23, s2, 2"),
                  raw(f"s_add_u32 s23, s23, {self.sWave}"), raw("s_mul_i32 s23, s23, 0x9e3779b1"), raw("s_add_u32 s23, s23, s100")]
        if o.init:
            b.append(salu("s_mov_b32", "s23", o.init))
        b += srd(8, "s56", "s57", NB * D * 2)
        b += srd(16, "s62", "s63", NB * D * 2)
        b += srd(12, "s66", "s67", NL * D * D * 2)
        b += srd(32, "s66", "s67", 256 * MB)
        b += srd(44, "s64", "s65", 256)
        b += [salu("s_add_u32", self.sWoff, self.sWoff, 4096), salu("s_add_u32", "s70", "s66", self.sWoff),
              salu("s_addc_u32", "s71", "s67", 0), salu("s_sub_u32", self.sWoff, self.sWoff, 4096)]
        if o.tail4:
            b += [salu("s_and_b32", "s24", self.sWave, 1), salu("s_mul_i32", "s24", "s24", 6 * 2048),
                  salu("s_bfe_u32", "s3", "s2", "0x20005"), salu("s_lshl_b32", "s3", "s3", 12),
                  salu("s_sub_u32", "s24", "s24", "s3"),
                  salu("s_lshr_b32", "s3", "s2", 7), salu("s_lshr_b32", "s6", "s2", 2), salu("s_xor_b32", "s3", "s3", "s6"),
                  salu("s_lshr_b32", "s6", "s2", 4), salu("s_and_b32", "s3", "s3", "s6"), salu("s_bitcmp1_b32", "s3", 0),
                  salu("s_cselect_b32", "s24", "s24", 0)]
        b.append(salu("s_and_b32", "s3", "s2", 3))
        b.append(salu("s_lshl_b32", "s3", "s3", 6))
        b += srd_off(56, "s44", "s45", "s3", 4)
        b.append(salu("s_lshl_b32", "s3", "s2", 2))
        b.append(salu("s_add_u32", "s3", "s3", self.sWave))
        b.append(salu("s_lshl_b32", "s3", "s3", 7))
        b.append(salu("s_add_u32", "s3", "s3", WS_FLAGS))
        b += srd_off(60, "s32", "s33", "s3", 4)
        b.append(salu("s_xor_b32", "s3", "s3", 512))
        b += srd_off(64, "s32", "s33", "s3", 4)
        if o.delay:
            for _ in range(o.delay):
                b.append(raw("s_sleep 127"))
        if o.touch:
            for l in range(6):
                b.append(salu("s_add_u32", "s3", self.sXs, l * 32 * MB))
                if o.touch == 1:
                    b.append(bload(f"v{60 + l}", self.vXw, self.sE, "s3", w="dword"))
                else:
                    b.append(bstore(f"v{60 + l}", self.vXw, self.sE, "s3", w="dword", flags=" sc1"))
            b.append(Wait(all_vm=True))
        def x0dma(lo, hi):
            r = []
            for i in range(lo, hi):
                r.append(raw(f"s_add_u32 m0, {self.sLds}, {i * 1024}", "salu"))
                r.append(salu("s_add_u32", "s3", self.sRow, i * 8192))
                r.append(dma(f"v{20 + (i & 3)}", self.sX, "s3", 0, o.xflags, f"x0_{i >> 2}"))
            return r

        def x0fix(bt):
            r = [Wait(vm=[f"x0_{bt}"])]
            for kbl in range(4):
                r.append(dsread(self.x0reg(kbl, bt), f"v{24 + kbl}", bt * 4096))
            r.append(Wait(all_lg=True))
            for kbl in range(4):
                r.append(dswrite(self.vXw, self.x0reg(kbl, bt), bt * 4096 + kbl * 1024))
            if o.apub:
                r += self.x0pub_stream(0, 2 * bt, 2 * bt + 2)
            return r

        def accinit(pred):
            r = []
            for p in range(2):
                for i in range(128):
                    a = self.acc(p, i)
                    if pred(a):
                        r.append(valu("v_accvgpr_write_b32" if a[0] == "a" else "v_mov_b32", a, self.init))
            return r

        if o.early == 1 and o.selfw:
            return b + self.prologue_self(accinit, tb)
        if o.early == 1:
            return b + self.prologue_early(accinit, tb)
        late = lambda a: a[0] == "v" and 32 <= int(a[1:]) < 72
        final = lambda a: a[0] == "v" and int(a[1:]) < 32
        na, nb, ahead, npoll = o.x0split

        def biascvt():
            r = []
            for m in range(3):
                r.append(Wait(vm=[R("v", tb + 2 * m, 2)]))
                for j in range(2):
                    src = f"v{tb + 2 * m + j}"
                    r.append(valu("v_lshlrev_b32", f"v{40 + 4 * m + 2 * j}", 16, src))
                    r.append(valu("v_and_b32", f"v{41 + 4 * m + 2 * j}", self.sMask, src))
                r.append(dswrite("v31", R("v", 40 + 4 * m, 4), m * 4096))
            return r + [Wait(all_lg=True)]

        if o.w0prep:
            t0, t1, t2 = self.t
            r = [valu("v_lshlrev_b32", t1, 3, vL), valu("v_mov_b32", t2, 0), salu("s_mov_b32", "s62", 512),
                 tagged(bstore(t2, t1, self.sFm, 0, w="dword", flags=" sc1"), "pst"), salu("s_mov_b32", "s62", 4)]
            b += only(r, True)
            b += only(x0dma(0, nb), False)
            b += accinit(lambda a: not late(a) and not final(a))
            r = [valu("v_and_b32", t0, 0x300, vL), valu("v_add3_u32", t0, t0, vL, self.sStage)]
            qs = [8, 40, 48, 64]
            for q in range(4):
                r.append(Wait(vm=[f"raw{q}"]))
                for t in range(2):
                    for h in range(2):
                        d = R("v", qs[q] + 4 * t + 2 * h, 2)
                        r.append(I(f"ds_read_b64_tr_b16 {d}, {t0} offset:{q * 2048 + h * 256 + t * 8}", "dsr", rd=[t0], wr=[d]))
            for q in range(4):
                r += [salu("s_cmp_eq_u32", "s5", 0),
                      salu("s_cselect_b32", "s3", ((q >> 1) * 16 + 2 * (q & 1)) * 2048, "s6") if q > 1 else
                      salu("s_mov_b32", "s3", 2 * q * 2048),
                      salu("s_add_u32", "s3", "s3", self.sDst), salu("s_mov_b32", "s6", 2 * (q + 1) * 2048)]
                for t in range(2):
                    r.append(Wait(lg=[R("v", qs[q] + 4 * t, 4)]))
                    r.append(tagged(bstore(R("v", qs[q] + 4 * t, 4), vL, self.sW, "s3", t * 2048, flags=" sc1"), "pst"))
            r += x0dma(0, na) + [Wait(vm=["pst"])] + self.wsignal() + x0dma(na, nb)
            b += only(r, True)
            b.append(salu("s_add_u32", self.sDst, self.sDst, D * D * 2))
            b += self.stamp("signalled")
            b += biascvt() + accinit(late)
        else:
            b.append(valu("v_mov_b32", self.t[2], 0))
            b.append(tagged(bstore(self.t[2], vL, self.sFm, 0, w="dword", flags=" sc1"), "pst"))
            b += x0dma(0, na)
            b += accinit(lambda a: not late(a) and not final(a))
            b += self.prep_store()
            b += self.stamp("stores_issued")
            b += x0dma(na, nb)
            b += biascvt() + accinit(late)
            b += [Wait(vm=["pst"]), barrier()] + self.wsignal()
            b += self.stamp("signalled")
        def wring():
            r = []
            for s in [x for x in range(128) if self.site[x] < 0]:
                r += [self.wload(s, 1), self.wload(s, 0)] + self.wstep(s)
            return r

        def path(name, nb2, npoll, stamps):
            st = self.stamp if stamps else (lambda n: [])
            r = x0dma(nb, nb2)
            issued = max(nb, nb2)
            checked = False
            poll_before = None
            for bt in range(8):
                want = min(32, 4 * (bt + 1 + ahead))
                if bt == npoll:
                    r += self.wpoll_load()
                    poll_before = (issued + 3) // 4 if npoll else 0
                if want > issued and (npoll or checked):
                    r += x0dma(issued, want)
                    issued = want
                if poll_before is not None and not checked and bt >= poll_before:
                    r += st("x0_part")
                    r += self.poll_check(name, self.sNeed, 64, self.wpoll_load)
                    r += st("flag_seen")
                    checked = True
                    if npoll:
                        r += x0dma(issued, 32) + wring()
                        issued = 32
                    else:
                        r += wring() + x0dma(issued, want)
                        issued = max(issued, want)
                r += x0fix(bt)
            assert checked and issued == 32
            return r

        if o.stagger < 0:
            b += path("pro", nb, npoll, True)
        else:
            px = path("prox", nb, npoll, True)
            n0 = self.stampn
            self.stampn -= 2 if o.stamps and not o.pstamps else 0
            self.names = self.names[:self.stampn]
            py = path("proy", o.ynb, 0, True)
            assert self.stampn == n0
            for x in px:
                x.note = "gx"
            for x in py:
                x.note = "gy"
            b += [salu("s_bitcmp1_b32", "s2", o.stagger), raw("s_cbranch_scc1 Lgy", "branch")]
            b += px + [raw("s_branch Lgjoin", "branch"), Label("Lgy")] + py + [Label("Lgjoin")]
        b += accinit(final)
        if o.gather:
            b += [salu("s_xor_b32", self.sXl, self.sRow, 1024), salu("s_mov_b32", "s20", 64),
                  salu("s_mov_b32", "s21", 32768 - 64), salu("s_mov_b32", "s22", hex((128 - 64 - 7 * 32768) & 0xffffffff))]
        b += [Wait(all_lg=True), barrier()]
        for j in range(8):
            for i in range(2):
                b.append(self.xread(j, i ^ (j & 1), 0, 0))
        b.append(Wait(lg=[self.xf(j, c) for j in range(o.xw) for c in range(2)], vm=[self.wslot(0, 0), self.wslot(0, 1)]))
        if o.desync:
            b += [raw("s_lshr_b32 s3, s2, 1"), raw("s_and_b32 s3, s3, 15"), Label("Lds"), raw(f"s_sleep {o.desync}"),
                  raw("s_sub_u32 s3, s3, 1"), raw("s_cbranch_scc0 Lds")]
        b += self.stamp("pro_done")
        return b

    def prologue_self(self, accinit, tb):
        o = self.o
        vL = self.vL
        t0, t1 = self.t[0], self.t[1]
        b = []
        vG, vS, vR, vT = "v20", ["v21", "v22"], "v23", ["v24", "v25"]
        wbuf = set(r for s in range(16 - self.NS) for c in range(2) for r in regs(self.wreg0(s, c)))
        late = lambda a: a[0] == "v" and 32 <= int(a[1:]) < 64
        final = lambda a: a[0] == "v" and int(a[1:]) < 32
        ns1, psig, na, nB0, lead = o.selfp
        b += [valu("v_lshrrev_b32", t0, 2, vL), valu("v_and_b32", t0, 0x40, t0), valu("v_xor_b32", t0, t0, vL),
              valu("v_and_b32", t0, 0x70, t0), valu("v_lshrrev_b32", t1, 7, vL), valu("v_lshl_add_u32", vR, t1, 11, t0),
              salu("s_and_b32", "s69", self.sRow, 2047), salu("s_lshl_b32", "s3", "s7", 20),
              salu("s_add_u32", "s69", "s69", "s3")]

        def rawdma(lo, hi):
            r = []
            for n in range(lo, min(hi, 4 * o.nself)):
                p, i = n >> 2, n & 3
                r.append(raw(f"s_add_u32 m0, {self.sLds}, {(2 * (p & 3) + (i >> 1)) * 4096 + (p >> 2) * 2048 + (i & 1) * 1024}", "salu"))
                r.append(salu("s_add_u32", "s3", "s69", (128 * (p >> 1) + 32 * (p & 1) + 8 * i) * 2048))
                r.append(dma(vR, self.sR, "s3", 0, "", f"sw{p}"))
            return r

        def trans(p):
            if p >= o.nself:
                return []
            r = [Wait(vm=[f"sw{p}"])]
            for nt in range(4):
                d = int(regs(self.wreg0((p >> 1) * 4 + nt, p & 1))[0][1:])
                k = self.wreg0((p >> 1) * 4 + nt, p & 1)[0]
                for h in range(2):
                    dd = R(k, d + 2 * h, 2)
                    r.append(I(f"ds_read_b64_tr_b16 {dd}, {vT[nt >> 1]} offset:{(p & 3) * 8192 + (p >> 2) * 2048 + h * 512 + (nt & 1) * 8}", "dsr",
                               rd=[vT[nt >> 1]], wr=[dd]))
            return r

        b += rawdma(0, ns1)
        b.append(valu("v_mov_b32", self.t[2], 0))
        b.append(tagged(bstore(self.t[2], vL, self.sFm, 0, w="dword", flags=" sc1"), "pst"))
        b += self.calc_vG(vG) + self.calc_vS(vS)
        b += [valu("v_lshrrev_b32", t0, 1, vL), valu("v_and_b32", t0, 0x40, t0), valu("v_and_b32", t1, 0x30, vL),
              valu("v_or_b32", t0, t0, t1), valu("v_and_b32", t1, 0xc0, vL), valu("v_lshl_add_u32", t0, t1, 1, t0),
              valu("v_and_b32", t1, 0x100, vL), valu("v_lshl_add_u32", t0, t1, 2, t0),
              valu("v_and_b32", t1, 0x200, vL), valu("v_lshl_add_u32", t0, t1, 3, t0),
              valu("v_add_u32", vT[0], self.sLds, t0), valu("v_xor_b32", vT[1], 64, vT[0])]
        b += accinit(lambda a: not late(a) and not final(a) and a not in wbuf)
        b += self.prep_store()
        ns2 = max(ns1, o.ns2)
        b += rawdma(ns1, ns2)
        b += self.stamp("stores_issued")
        for m in range(3):
            b.append(Wait(vm=[R("v", tb + 2 * m, 2)]))
            for j in range(2):
                src = f"v{tb + 2 * m + j}"
                b.append(valu("v_lshlrev_b32", f"v{40 + 4 * m + 2 * j}", 16, src))
                b.append(valu("v_and_b32", f"v{41 + 4 * m + 2 * j}", self.sMask, src))
            b.append(dswrite("v31", R("v", 40 + 4 * m, 4), m * 4096))
        b.append(Wait(all_lg=True))
        b += accinit(late)
        issued = 0
        pdone = lambda p: [self.wreg0((p >> 1) * 4 + nt, p & 1) for nt in range(4)]
        assert ns2 >= 16 and psig <= ns2 // 4
        nearly = 8 if not o.rawlate else ns2 // 4
        for p in range(nearly + 1):
            if p == psig:
                b += [Wait(vm=["pst"]), barrier()] + self.wsignal()
                b += self.stamp("signalled")
                if not o.rawlate:
                    b += rawdma(ns2, 32)
            if p < nearly and (p < 4 or p < psig):
                b += trans(p)
            if p:
                want = min(16, 4 * p) if p > psig else min(4 * p, na)
                if want > issued:
                    b.append(Wait(lg=pdone(min(p - 1, 3))))
                    b += self.x0h_dma(0, issued, want, vG)
                    issued = want
            if p >= 4 and p >= psig:
                break
        b.append(Wait(lg=pdone(3)))
        b += self.x0h_dma(0, issued, 16, vG)
        if o.rawlate:
            b += rawdma(ns2, 32)
        for p in range(max(4, psig), nearly):
            b += trans(p)
        lateT = [x for p in range(max(nearly, psig), 8) for x in trans(p)]
        b += self.stamp("x0A_issued")
        nB = 0
        polled = False
        for bt in range(min(0, -lead), 9):
            want = min(16, 2 * (bt + lead + 1)) if bt < 8 else (o.nb_pro if o.nb_pro else 16)
            if nB < want and nB == 0:
                b += lateT + [Wait(all_lg=True)]
                lateT = []
            while nB < want:
                if nB == nB0:
                    b += self.wpoll_load()
                    polled = True
                b += self.x0h_dma(1, nB, nB + 1, vG)
                nB += 1
            if 0 <= bt < 8:
                b += self.x0h_read(0, bt, vS)
            if 0 < bt < 8:
                b += self.x0h_write(0, bt - 1)
            if bt == 7:
                b += self.x0h_write(0, 7)
        b += lateT
        if not polled:
            b += self.wpoll_load()
        self.nB_done = nB
        b.append(valu("v_mov_b32", "v8", vG))
        b += self.stamp("x0_part")
        b += accinit(final)
        b += [I(f"s_add_u32 s70, s70, {4096 * o.nself}\n s_addc_u32 s71, s71, 0", "salu", rd=["s[70:71]"], wr=["s[70:71]"]),
              salu("s_xor_b32", self.sXl, self.sRow, 1024), salu("s_mov_b32", "s20", 64),
              salu("s_mov_b32", "s21", 32768 - 64), salu("s_mov_b32", "s22", hex((128 - 64 - 7 * 32768) & 0xffffffff))]
        b += [Wait(all_lg=True), barrier()]
        b += [self.xread(j, i ^ (j & 1), 0, 0) for j in range(8) for i in range(2)]
        b.append(Wait(lg=[self.xf(j, c) for j in range(o.xw) for c in range(2)]))
        b += self.stamp("pro_done")
        return b

    def prologue_early(self, accinit, tb):
        o = self.o
        vL = self.vL
        b = []
        vG, vS = "v20", ["v21", "v22"]
        wbuf = set(r for s in range(16 - self.NS) for c in range(2) for r in regs(self.wreg0(s, c)))
        late = lambda a: a[0] == "v" and 32 <= int(a[1:]) < 64
        final = lambda a: a[0] == "v" and int(a[1:]) < 32
        na, nb, npoll, nB0 = o.x0split
        b.append(valu("v_mov_b32", self.t[2], 0))
        b.append(tagged(bstore(self.t[2], vL, self.sFm, 0, w="dword", flags=" sc1"), "pst"))
        b += self.calc_vG(vG) + self.calc_vS(vS)
        b += self.x0h_dma(0, 0, na, vG)
        b += accinit(lambda a: not late(a) and not final(a) and a not in wbuf)
        b += self.prep_store()
        b += self.stamp("stores_issued")
        b += self.x0h_dma(0, na, nb, vG)
        for m in range(3):
            b.append(Wait(vm=[R("v", tb + 2 * m, 2)]))
            for j in range(2):
                src = f"v{tb + 2 * m + j}"
                b.append(valu("v_lshlrev_b32", f"v{40 + 4 * m + 2 * j}", 16, src))
                b.append(valu("v_and_b32", f"v{41 + 4 * m + 2 * j}", self.sMask, src))
            b.append(dswrite("v31", R("v", 40 + 4 * m, 4), m * 4096))
        b.append(Wait(all_lg=True))
        b += accinit(late)
        b += [Wait(vm=["pst"]), barrier()] + self.wsignal()
        b += self.stamp("signalled")
        b += self.x0h_dma(0, nb, 16, vG)
        def only0(ins):
            if not o.poll0:
                return ins
            n = self.nseg = getattr(self, "nseg", 0) + 1
            for x in ins:
                x.note = "gy"
            return [salu("s_cmp_eq_u32", self.sWave, 0), raw(f"s_cbranch_scc0 Lseg{n}", "branch")] + ins + [Label(f"Lseg{n}")]

        for bt in range(8):
            if bt == npoll:
                b += only0(self.wpoll_load()) + self.x0h_dma(1, 0, nB0, vG)
            b += self.x0h_read(0, bt, vS)
            if bt:
                b += self.x0h_write(0, bt - 1)
        if npoll >= 8:
            b += only0(self.wpoll_load()) + self.x0h_dma(1, 0, nB0, vG)
        b += self.x0h_write(0, 7)
        b += self.stamp("x0_part")
        chk = self.poll_check("pro", self.sNeed, 64, self.wpoll_load)
        if o.poll0:
            b += only0(chk[:-1]) + chk[-1:]
            chk = []
        b += [Wait(all_lg=True), barrier()]
        xr = [self.xread(j, i ^ (j & 1), 0, 0) for j in range(8) for i in range(2)]
        if not o.poll0:
            b += xr + chk
            xr = []
        b += self.stamp("flag_seen")
        for s in range(16):
            b += [self.wload(s, 1, self.wreg0(s, 1)), self.wload(s, 0, self.wreg0(s, 0))]
            b += self.wstep(s)
            if s == 3:
                b += xr
        b += self.x0h_dma(1, nB0, max(nB0, o.nb_pro) if o.gather else 16, vG)
        b.append(valu("v_mov_b32", "v8", vG))
        b += accinit(final)
        if o.gather:
            b += [salu("s_xor_b32", self.sXl, self.sRow, 1024), salu("s_mov_b32", "s20", 64),
                  salu("s_mov_b32", "s21", 32768 - 64), salu("s_mov_b32", "s22", hex((128 - 64 - 7 * 32768) & 0xffffffff))]
        b.append(Wait(lg=[self.xf(j, c) for j in range(o.xw) for c in range(2)], vm=[self.wreg0(0, 0), self.wreg0(0, 1)]))
        b += self.stamp("pro_done")
        return b

    def build(self):
        o = self.o
        A, B, AB = [0, 1, 2, 3], [4, 5, 6, 7], list(range(8))
        e = (lambda s: []) if o.noepi else (lambda s: s)
        unit_end = lambda x: x.kind in ("vst", "dsw") and x.rd & {"v12"}
        safe_bias = lambda x: x.kind == "valu" and "add_f32" in x.text and not x.wr & set(self.t)
        pro = self.prologue()
        PL = o.pstamps - 1
        dA, dB = o.direct
        g0, g1, g2, g3 = o.sg
        ep = o.earlyprep
        if o.gather and o.early == 1:
            ini = []
            for s in range(16 - self.NS):
                ini.append(([valu("v_mov_b32", r, self.init) for c in range(2) for r in regs(self.wreg0(s, c))],
                            16 * s + 18, 16 * s + 30))
            nB1 = o.x0split[3]
            late = self.x0h_dma(1, max(nB1, o.nb_pro), 16, "v8")
            fx = []
            if o.selfw:
                late = self.x0h_dma(1, self.nB_done, 16, "v8")
                chk = self.poll_check("pro", self.sNeed, 64, self.wpoll_load)
                if o.nself < 8:
                    wl = []
                    for s in range(2 * o.nself, 16):
                        wl += [self.wload(s, 1, self.wreg0(s, 1)), self.wload(s, 0, self.wreg0(s, 0))] + self.wstep(s)
                    late = chk + wl + late
                else:
                    fx = [(self.site[16] * 16 + 2, chk)]
            s1a0 = self.phase(0, A, 0, 0, late, wreg=self.wreg0, skip_below=16, extra=ini, end=o.pub0_end, fixed=fx)
            s1a0 += self.stamp("s1a0")
            vS = [f"v{self.Q[0]}", f"v{self.Q[0] + 1}"]
            fix = self.calc_vS(vS)
            for bt in range(8):
                fix += self.x0h_read(1, bt, vS) + space(3)
                if bt:
                    fix += self.x0h_write(1, bt - 1)
            fix += space(4) + self.x0h_write(1, 7)
            s1a0 += self.phase(16, B, 0, 1, fix + self.calc_vB() + e(self.bias_stream(0)), bar=True,
                               pre_bar=[salu("s_add_u32", self.sPNeed, self.sPNeed, 1)])
            s1a0 += self.stamp("s1b0")
            if o.stamps:
                s1a0.append(raw(f"s_lshl_b32 {self.sSpin}, {self.sSpin}, 8"))
        elif o.gather:
            assert not o.early
            s1a0 = self.phase(0, A, 0, 0, []) + self.stamp("s1a0")
        elif o.early == 2:
            s1a0 = self.phase(0, A, 0, 0, self.x0pub_stream(0), end=o.pub0_end) + self.stamp("s1a0")
            st = insert_at(self.calc_vB() + e(self.bias_stream(0)), o.sig0_at, self.psignal(0), safe_bias)
            st = insert_at(st, o.poll0_at, self.ppoll_load(), safe_bias)
            if o.wsig2:
                st = st + self.prep_load()
            s1a0 += self.phase(16, B, 0, 1, st, bar=True, extra=[(self.x0pub_stream(1), 0, 230)],
                               pre_bar=self.poll_check("pa0", self.sPNeed, 1, self.ppoll_load))
            s1a0 += self.stamp("s1b0")
        elif o.early:
            ini = []
            for s in range(16 - self.NS):
                ini.append(([valu("v_mov_b32", r, self.init) for c in range(2) for r in regs(self.wreg0(s, c))],
                            16 * s + 18, 16 * s + 30))
            s1a0 = self.phase(0, A, 0, 0, self.x0pub_stream(0), wreg=self.wreg0, skip_below=16, extra=ini,
                              end=o.pub0_end) + self.stamp("s1a0")
            vS = [f"v{self.Q[0]}", f"v{self.Q[0] + 1}"]
            fix = self.calc_vS(vS)
            for bt in range(8):
                fix += self.x0h_read(1, bt, vS)
                if bt:
                    fix += self.x0h_write(1, bt - 1) + self.x0pub_stream(1, 2 * bt - 2, 2 * bt)
                if bt == 1:
                    fix += self.psignal(0)
            fix += self.x0h_write(1, 7) + self.x0pub_stream(1, 14, 16)
            st = insert_at(self.calc_vB() + e(self.bias_stream(0)), 0.6, self.ppoll_load(), safe_bias)
            s1a0 += self.phase(16, B, 0, 1, fix + st, bar=True,
                               pre_bar=self.poll_check("pa0", self.sPNeed, 1, self.ppoll_load))
            s1a0 += self.stamp("s1b0")
        else:
            s1a0 = self.phase(0, A, 0, 0, (self.prep_load() if ep else []) + self.x0pub_stream(0) +
                              self.x0pub_stream(1, 0, dB) + (self.psignal(0) if dA == 16 else [])) + self.stamp("s1a0")
        lp = o.lateprep
        st = (self.prep_store() if ep else [] if lp else self.prep_load()) + self.calc_vB() + e(self.bias_stream(0))
        if o.wsig2:
            st = st + self.prep_load()
        if dA < 16:
            st = insert_at(st, o.siga2_at, self.psignal(0), safe_bias)
        if dB == 16 and not o.early:
            st = insert_at(st, o.sigb_at, self.psignal(1), safe_bias)
        fx2 = [(o.pollb_gap, self.ppoll_load()), (1, self.xnext(self.sXs, 0))]
        if dB < 16 or o.early:
            fx2.append((g3, self.psignal(1)))
        if g0 < 0:
            st = insert_at(st, o.polla_at, self.ppoll_load(), safe_bias)
            pb1 = self.poll_check("pa", self.sPNeed, 1, self.ppoll_load)
            g1 = -1
        else:
            assert not o.early
            pb1 = []
            fx2 += [(g0, self.ppoll_load()), (g1, self.poll_check("pa", self.sPNeed, 1, self.ppoll_load))]
        if ep:
            pb1 = [Wait(vm=["pst"])] + pb1
            fx2.append((3, self.wsignal()))
        s1b = [Label("Ls1b")] + self.phase(16, B, 0, 1, st, bar=True, pre_bar=pb1, end=o.bias_end or None,
                                            extra=[(self.pub_stream(1, dB, 16), 0, 232)])
        s2 = self.phase(32, AB, 1, 0, self.xch_dma(0) + ([] if ep or lp else self.prep_store()), bar=True, start=g1 + 1, end=g2, fixed=fx2,
                        post_bar=self.xr_gathered(),
                        extra=[(self.prep_store(10) if o.wsig2 else self.prep_load() if lp else [], lp, lp + (30 if o.wsig2 else 12))],
                        pre_bar=[Wait(vm=["xl0", "pst"] if o.wsig2 else ["xl0"])] + self.poll_check("pb", self.sPNeed, 1, self.ppoll_load))
        s3 = self.phase(64, AB, 0, 1, self.xch_dma(1), bar=True, end=o.dma_end, pre_bar=[Wait(vm=["xl1", "pst"])],
                        extra=[(self.wsignal(), 2, 6)] if o.wsig2 else
                        [(self.prep_store(10) if lp else [], o.preps_at, o.preps_at + 30)])
        s1b[1:1] = self.lstamp("pre", PL) if PL > 0 else []
        s1b += self.lstamp("s1b", PL)
        s2 += self.lstamp("s2", PL)
        s3 += self.lstamp("s3", PL)
        if o.tail4:
            s3 += [salu("s_cmp_eq_u32", self.sL, NL - 1), raw("s_cbranch_scc1 Llast", "branch")]
        s4a = self.phase(96, A, 1, 1, ([] if ep or o.wsig2 else self.wsignal()) + (self.calc_vB() if self.small else []) + e(self.bias_stream(1)),
                         end=o.bias_end or None)
        if o.gather:
            s4a += self.xch_switch()
        s4a += self.lstamp("s4a", PL)
        s4a += [salu("s_add_u32", self.sBias, self.sBias, 2048), salu("s_add_u32", self.sL, self.sL, 1)]
        if not o.tail4:
            s4a += [salu("s_cmp_eq_u32", self.sL, NL), raw("s_cbranch_scc1 Llast", "branch")]
        st = insert_at(e(self.epi_stream(0, dA)), o.pollw_at, self.wpoll_load(), unit_end)
        chk = (self.site[128] - 112) * 16 + 2
        s4b = self.phase(112, B, 1, 0, st, bar=True, post_bar=self.xr_plain(),
                         fixed=[(chk, self.poll_check("w", self.sNeed, 64, self.wpoll_load))])
        s4b += self.lstamp("s4b", PL + 1)
        st = e(self.epi_stream(1, dB))
        if dA == 16:
            st = insert_at(st, o.siga_at, self.psignal(0), unit_end)
        if ep:
            st = insert_at(st, o.prepl_at, self.prep_load(), unit_end)
        s1a = self.phase(0, A, 0, 0, st, extra=[(self.pub_stream(0, dA, 16), 0, o.puba_end)])
        if o.stamps:
            s1a += [raw(f"s_cmp_eq_u32 s25, {max(1, o.pstamps)}"), raw("s_cbranch_scc0 Lnostamp")] + self.stamp("layer1") + [
                raw("s_memrealtime s[4:5]"), Label("Lnostamp")]
        if o.early:
            assert lp
            s2 = [Label("Lloop")] + s2
            s1b += [raw("s_branch Lloop", "branch")]
        else:
            s1a += [raw("s_branch Ls1b", "branch")]
        s4bl = [Label("Llast")] + self.stamp("4.75layers") + ([raw("s_memrealtime s[6:7]")] if o.stamps else [])
        if o.tail4:
            s4bl += self.phase(96, [0, 1], 1, 1, self.calc_vB() + self.bias_stream(1), last=True)
            s4bl += self.phase(104, [2, 3], 1, 1, self.out_stream4(0), last=True)
            s4bl += self.phase(112, [4, 5], 1, 1, self.out_stream4(1), last=True)
            s4bl += self.phase(120, [6, 7], 1, None, self.out_stream4(2), last=True)
            tail = self.stamp("s4b_last") + [nop(7)] + self.out_stream4(3)
        else:
            s4bl += self.phase(112, B, 1, None, self.out_stream(0), last=True)
            tail = self.stamp("s4b_last") + [nop(7)] + [x for x in self.out_stream(1) if x.kind != "space"]
        if o.stamps:
            tail += self.stamp("tail_issued")
            tail += [Wait(all_vm=True)]
            tail += self.stamp("tail_drained")
            tail.append(raw("s_memrealtime s[38:39]"))
            tail.append(raw("s_waitcnt lgkmcnt(0)"))
            tail.append(raw("v_cmp_eq_u32 vcc, 0, v0"))
            tail.append(raw("s_and_saveexec_b64 s[68:69], vcc"))
            tail.append(raw("s_cbranch_execz Lend"))
            if o.dbgout >= 0:
                tail += [raw(f"s_cmp_lg_u32 s2, {o.dbgout}"), raw("s_cbranch_scc1 Lend"), raw("v_mov_b32 v1, 0")]
                tail += [raw("s_sub_u32 s3, s38, s36"), raw("v_mov_b32 v2, s3"),
                         raw("buffer_store_dword v2, v1, s[44:47], 0 offen offset:4"),
                         raw("s_sub_u32 s3, s6, s4"), raw("v_mov_b32 v2, s3"),
                         raw("buffer_store_dword v2, v1, s[44:47], 0 offen offset:8"),
                         raw("v_mov_b32 v2, s53"), raw("buffer_store_dword v2, v1, s[44:47], 0 offen offset:12")]
                for n in range(1, min(self.stampn, 13)):
                    tail += [raw(f"s_sub_u32 s3, s{72 + 2 * n}, s{70 + 2 * n}"), raw("v_mov_b32 v2, s3"),
                             raw(f"buffer_store_dword v2, v1, s[44:47], 0 offen offset:{12 + 4 * n}")]
            else:
                tail.append(raw("s_lshl_b32 s3, s2, 8"))
                tail.append(raw(f"s_add_u32 s3, s3, {WS_STAMP}"))
                tail.append(raw("v_mov_b32 v1, 0"))
                for n, i in enumerate(list(range(36, 40)) + list(range(72, 102)) + [4, 5, 6, 7, 53]):
                    tail.append(raw(f"v_mov_b32 v2, s{i}"))
                    tail.append(raw(f"buffer_store_dword v2, v1, s[32:35], s3 offen offset:{n * 4}"))
        tail += [Label("Lend"), raw("s_endpgm")]
        rest = s1a0 + ([] if o.early else s1b)
        for l in range(NL - 1):
            rest = rest + s2 + s3 + s4a + s4b + s1a + s1b
        rest = rest + s2 + s3 + ([] if o.tail4 else s4a) + s4bl + tail
        traces = [[x for x in pro if x.note != skip] + rest for skip in ("gx", "gy")]
        for tr in traces:
            resolve_waits(tr)
        for tr in traces:
            errs, mv, ml = check(tr)
            if errs and not o.now and o.slots <= 6:
                for x in errs[:20]:
                    print(x, file=sys.stderr)
                raise SystemExit("hazard/dependency errors")
        if o.early:
            prog = pro + s1a0 + s2 + s3 + s4a + s4b + s1a + s1b + s4bl + tail + self.ool
        else:
            prog = pro + s1a0 + s1b + s2 + s3 + s4a + s4b + s1a + s4bl + tail + self.ool
        txt = f".globl {KNAME}\n.p2align 8\n.type {KNAME},@function\n{KNAME}:\n" + emit(prog) + "\n"
        txt = "; stamps: " + " ".join(self.names) + "\n" + txt
        return txt, kd(KNAME, 512, 102, 256)


def main():
    ap = argparse.ArgumentParser()
    ap.add_argument("-o", default="standalone__cross_network_dcn__recsys.s")
    ap.add_argument("--slots", type=int, default=6)
    ap.add_argument("--wflags", default="sc1")
    ap.add_argument("--xflags", default="")
    ap.add_argument("--oflags", default="nt")
    ap.add_argument("--rflags", default="")
    ap.add_argument("--xsflags", default="sc1")
    ap.add_argument("--xlflags", default="")
    ap.add_argument("--bar_lead", type=int, default=6)
    ap.add_argument("--xw", type=int, default=4)
    ap.add_argument("--x0split", type=int, nargs=4, default=[4, 4, 8, 0])
    ap.add_argument("--sigb_at", type=float, default=0.45)
    ap.add_argument("--polla_at", type=float, default=0.6)
    ap.add_argument("--siga_at", type=float, default=0.45)
    ap.add_argument("--pollw_at", type=float, default=0.3)
    ap.add_argument("--pollb_gap", type=int, default=386)
    ap.add_argument("--dma_end", type=int, default=440)
    ap.add_argument("--stamps", action="store_true")
    ap.add_argument("--revb", type=int, default=1)
    ap.add_argument("--jitter", type=int, default=0, help="diagnostic: probability/256 of a delay per phase")
    ap.add_argument("--init", default="", help="accumulator start value (hex float bits)")
    ap.add_argument("--tail4", type=int, default=0)
    ap.add_argument("--nself", type=int, default=8)
    ap.add_argument("--rawlate", type=int, default=0)
    ap.add_argument("--ns2", type=int, default=24)
    ap.add_argument("--selfw", type=int, default=1)
    ap.add_argument("--selfp", type=int, nargs=5, default=[16, 4, 8, 0, -7],
                    help="raw DMAs before the prep stores, piece before which to signal, x0A DMAs before the signal, x0B DMAs before the poll, x0B lead")
    ap.add_argument("--wbunch", type=int, default=1)
    ap.add_argument("--bias_end", type=int, default=0)
    ap.add_argument("--quadg", type=int, default=1)
    ap.add_argument("--dmagroup", type=int, default=1)
    ap.add_argument("--poll0", type=int, default=1)
    ap.add_argument("--nox", action="store_true", help="diagnostic")
    ap.add_argument("--nost", action="store_true", help="diagnostic")
    ap.add_argument("--nodma", action="store_true", help="diagnostic")
    ap.add_argument("--nobias", action="store_true", help="diagnostic")
    ap.add_argument("--shift", type=int, default=0)
    ap.add_argument("--cpfsplit", type=int, default=1)
    ap.add_argument("--backoff", type=int, default=0)
    ap.add_argument("--w0prep", type=int, default=0)
    ap.add_argument("--nb_pro", type=int, default=6, help="early mode: x0 B-half DMAs issued before the first MFMA")
    ap.add_argument("--dmapair", type=int, default=10)
    ap.add_argument("--dbgout", type=int, default=-1)
    ap.add_argument("--tailpk", type=int, default=1)
    ap.add_argument("--gather", type=int, default=1)
    ap.add_argument("--wsig2", type=int, default=0)
    ap.add_argument("--stagger", type=int, default=-1, help="workgroup-id bit selecting the late group")
    ap.add_argument("--ynb", type=int, default=4)
    ap.add_argument("--sig0_at", type=float, default=0.1)
    ap.add_argument("--poll0_at", type=float, default=0.7)
    ap.add_argument("--verbose", action="store_true")
    ap.add_argument("--gload", type=int, default=1)
    ap.add_argument("--pace", type=float, default=0.1)
    ap.add_argument("--early", type=int, default=1)
    ap.add_argument("--pub0_end", type=int, default=40)
    ap.add_argument("--earlyprep", type=int, default=0)
    ap.add_argument("--lateprep", type=int, default=400)
    ap.add_argument("--preps_at", type=int, default=330)
    ap.add_argument("--prepl_at", type=float, default=0.1)
    ap.add_argument("--wdelay", type=int, default=2)
    ap.add_argument("--short_at", type=int, default=72)
    ap.add_argument("--pkmul", type=int, default=0)
    ap.add_argument("--pkadd", type=int, default=0)
    ap.add_argument("--apub", type=int, default=0, help="publish x0's A half in the prologue")
    ap.add_argument("--cpf", type=int, default=4, help="code prefetch loads per wave (16 KB each)")
    ap.add_argument("--desync", type=int, default=0, help="diagnostic")
    ap.add_argument("--direct", type=int, nargs=2, default=[16, 16])
    ap.add_argument("--siga2_at", type=float, default=0.15)
    ap.add_argument("--puba_end", type=int, default=200)
    ap.add_argument("--sg", type=int, nargs=4, default=[-1, 0, 390, 82])
    ap.add_argument("--delay", type=int, default=0, help="diagnostic")
    ap.add_argument("--touch", type=int, default=0, help="diagnostic")
    ap.add_argument("--pstamps", type=int, default=0, help="phase stamps in layer N-1")
    ap.add_argument("--xbase", type=int, default=32)
    ap.add_argument("--xbufs", type=int, default=6)
    ap.add_argument("--now", action="store_true", help="diagnostic: no W loads in the loop")
    ap.add_argument("--noxch", action="store_true", help="diagnostic: no exchange traffic")
    ap.add_argument("--noepi", action="store_true", help="diagnostic: no epilogue/bias in the loop")
    o = ap.parse_args()
    for k in ("wflags", "xflags", "oflags", "rflags", "xsflags", "xlflags"):
        v = getattr(o, k)
        setattr(o, k, (" " + v.replace(",", " ")) if v and v != "none" else "")
    mtxt, mkd = Main(o).build()
    opts = " ".join(a for a in sys.argv[1:] if not a.endswith(".s") and a != "-o")
    s = HEADER.format(opts=opts)
    s += f"; @launch grid=(256,1,1) block=(256,1,1) lds={LDS_TOTAL}\n"
    s += '.amdgcn_target "amdgcn-amd-amdhsa--gfx950"\n.text\n'
    s += mtxt + mkd
    open(o.o, "w").write(s)
    print(o.o, len(s), "bytes")


if __name__ == "__main__":
    main()
```

```python
import argparse
import sys
from asmir import *

KNAME = "standalone__cross_network_dcn__recsys_kernel"
NL = 6
D = 1024
NB = 16384
MB = 1 << 20

HEADER = """; Kernarg layout for this problem (48 bytes, ptrs only, base s[0:1]):
;   offset  40: d_ws      268435456 bytes workspace
; Generated by gen/gen3.py (hand-written generator). Options: {opts}
"""

LDS_BIAS = 131072
LDS_STAGE = LDS_BIAS + NL * 512 * 4
LDS_TOTAL = LDS_STAGE + 8192
WS_FLAGS = 15 * MB
WS_XCH = 32 * MB
WS_STAMP = 16 * MB


def kd(name, vgpr, sgpr, accum):
    return f""".section .rodata,"a"
.p2align 6
.amdhsa_kernel {name}
  .amdhsa_next_free_vgpr {vgpr}
  .amdhsa_next_free_sgpr {sgpr}
  .amdhsa_accum_offset {accum}
  .amdhsa_group_segment_fixed_size 0
  .amdhsa_kernarg_size 48
  .amdhsa_user_sgpr_count 2
  .amdhsa_user_sgpr_kernarg_segment_ptr 1
  .amdhsa_system_sgpr_workgroup_id_x 1
  .amdhsa_float_denorm_mode_32 3
.end_amdhsa_kernel
"""


def srd(base, lo, hi, nbytes):
    return [salu("s_mov_b32", f"s{base}", lo), salu("s_mov_b32", f"s{base + 1}", hi),
            salu("s_mov_b32", f"s{base + 2}", hex(nbytes)), salu("s_mov_b32", f"s{base + 3}", "0x20000")]


def srd_off(base, lo, hi, off, nbytes):
    return [salu("s_add_u32", f"s{base}", lo, off), salu("s_addc_u32", f"s{base + 1}", hi, 0),
            salu("s_mov_b32", f"s{base + 2}", hex(nbytes)), salu("s_mov_b32", f"s{base + 3}", "0x20000")]


def sload(d, off, n=2):
    return I(f"s_load_dwordx{n} {d}, s[0:1], {off}", "smem", wr=[d])


def tagged(ins, tag):
    ins.wr = set(ins.wr) | {tag}
    return ins


def dma(voff, srdn, soff, off, flags, tag):
    o = f" offset:{off}" if off else ""
    return tagged(I(f"buffer_load_dwordx4 {voff}, {srdn}, {soff} offen{o}{flags} lds", "vld", rd=[voff]), tag)


def hoist(ins):
    ins.note = "hoist"
    return ins


def space(n):
    return [I("", "space") for _ in range(n)]


def insert_at(stream, frac, items, ok):
    i = int(len(stream) * frac)
    while 0 < i < len(stream) and not ok(stream[i - 1]):
        i += 1
    return stream[:i] + items + stream[i:]


class Main:
    def __init__(self, o):
        self.o = o
        self.sX, self.sW, self.sO, self.sB = "s[8:11]", "s[12:15]", "s[16:19]", "s[20:23]"
        self.sE, self.sR, self.sD = "s[32:35]", "s[40:43]", "s[44:47]"
        self.sC, self.sFm, self.sFp = "s[56:59]", "s[60:63]", "s[64:67]"
        self.sWoff, self.sL, self.sMask, self.sNeed = "s24", "s25", "s26", "s27"
        self.sRow, self.sXs, self.sXl, self.sFlag = "s28", "s29", "s30", "s31"
        self.sRaw, self.sDst, self.sLds, self.sBias, self.sStage, self.sSpin, self.sWave, self.sPNeed = (
            "s48", "s49", "s50", "s51", "s52", "s53", "s54", "s55")
        self.vW, self.vXw, self.vB = "v0", "v3", "v4"
        self.vXr = ["v1", "v2"]
        self.vL = "v1"
        self.t = ["v5", "v6", "v7"]
        self.Q = [8, 12]
        self.vP, self.vG = "v16", "v17"
        self.vS = ["v18", "v19"]
        self.RQ = [20, 24]
        self.NS = o.slots
        self.aX0 = 0
        self.aXF = 128
        self.aW = 192
        self.aACC = self.aW + 8 * min(self.NS, 6)
        self.nA = 256 - self.aACC
        self.vACC = self.nA
        NS = self.NS
        nshort = (-128) % NS
        nlong = (128 - nshort * (NS - 1)) // NS
        first = min(nlong, o.short_at // NS)
        seq = list(range(NS)) * first + list(range(NS - 1)) * nshort + list(range(NS)) * (nlong - first)
        assert len(seq) == 128
        self.slot = seq
        site = {}
        for s2 in range(-128, 256):
            p = s2 - 1
            while seq[p % 128] != seq[s2 % 128]:
                p -= 1
            site[s2] = max(p, site.get(s2 - 1, -10 ** 9))
        if o.wbunch > 1:
            k = o.wbunch
            for s2 in site:
                site[s2] = ((site[s2] // k) + 1) * k - 1
        self.site = site
        self.loads_at = {}
        for s2 in range(0, 256):
            self.loads_at.setdefault(site[s2], []).append(s2)
        self.small = self.vACC < 28
        if self.small:
            self.vP = self.vB
            q0 = [int(self.acc_tile(nt, 0, 0, 1)[1:]) for nt in range(4)]
            self.vG, self.vS, self.RQ = f"v{q0[0]}", [f"v{q0[0] + 1}", f"v{q0[0] + 2}"], [q0[1], q0[2]]
        self.init = "1.0" if not o.init else "s23"
        self.stampn = 0
        self.names = []
        self.ool = []

    def acc(self, p, i, n=1):
        h = self.nA // 2
        nv = 128 - h
        if i < nv:
            assert i + n <= nv
            return R("v", self.vACC + p * nv + i, n)
        return R("a", self.aACC + p * h + (i - nv), n)

    def acc_tile(self, nt, bt, r=0, n=4):
        return self.acc(nt >> 2, ((nt & 3) * 8 + bt) * 4 + r, n)

    def x0reg(self, kbl, bt, j=0, n=4):
        return R("a", self.aX0 + (kbl * 8 + bt) * 4 + j, n)

    def xf(self, bt, c):
        return R("a", self.aXF + (bt * 2 + c) * 4, 4)

    def wslot(self, s, c):
        if self.slot[s % 128] >= 6:
            return R("a", ((self.slot[s % 128] - 6) * 2 + c) * 4, 4)
        return R("a", self.aW + (self.slot[s % 128] * 2 + c) * 4, 4)

    def wload(self, s, c, dst=None):
        if self.o.gload:
            d = dst or self.wslot(s, c)
            off = (s & 3) * 2048 + c * 1024 - 4096
            return I(f"global_load_dwordx4 {d}, {self.vW}, s[70:71] offset:{off}{self.o.wflags}", "vld",
                     rd=[self.vW, "s[70:71]"], wr=[d])
        return bload(dst or self.wslot(s, c), self.vW, self.sW, self.sWoff, (s & 1) * 2048 + c * 1024, flags=self.o.wflags)

    def wstep(self, s):
        if self.o.gload:
            if (s & 3) != 3:
                return []
            d = 8192 if (s % 128) != 127 else 8192 + 2 * MB - 256 * 1024
            both = I(f"s_add_u32 s70, s70, {d}\n s_addc_u32 s71, s71, 0", "salu", rd=["s[70:71]"], wr=["s[70:71]"])
            both.states = 2
            return [both]
        if not s & 1:
            return []
        return [salu("s_add_u32", self.sWoff, self.sWoff, 4096 if (s % 128) != 127 else 4096 + 2 * MB - 256 * 1024)]

    def xread(self, bt, c, rho, ss):
        return dsread(self.xf(bt, c), self.vXr[ss >> 1], (ss & 1) * 32768 + bt * 4096 + rho * 2048 + c * 1024)

    def stamp(self, name="x"):
        if not self.o.stamps:
            return []
        if self.o.pstamps and name in ("kernarg", "x0A_issued", "stores_issued", "signalled", "x0_issued", "x0_part", "flag_seen"):
            return []
        n = self.stampn
        self.stampn += 1
        self.names.append(name)
        assert n < 15
        return [raw(f"s_memtime s[{72 + 2 * n}:{73 + 2 * n}]", "other")]

    def lstamp(self, name, lval):
        if not self.o.pstamps:
            return []
        n = self.stampn
        return [raw(f"s_cmp_eq_u32 s25, {lval}"), raw(f"s_cbranch_scc0 Lns{n}")] + self.stamp(name) + [Label(f"Lns{n}")]

    def epi_unit(self, kbl, bt, q, pk=False):
        s = []
        accs = [self.acc_tile(2 * kbl + t, bt, r, 1) for t in range(2) for r in range(4)]
        hi, lo, m = self.t
        for j in range(4):
            a0, a1 = accs[2 * j], accs[2 * j + 1]
            if self.o.pkmul or pk:
                s.append(valu("v_accvgpr_read_b32", "v7", self.x0reg(kbl, bt, j, 1)))
                ap = f"v[{a0[1:]}:{a1[1:]}]"
                if a0[0] == "a":
                    tp = int(self.acc_tile(3, 0, 0, 1)[1:]) if pk else 28
                    s.append(valu("v_accvgpr_read_b32", f"v{tp}", a0))
                    s.append(valu("v_accvgpr_read_b32", f"v{tp + 1}", a1))
                    ap = R("v", tp, 2)
                s.append(valu("v_lshlrev_b32", "v6", 16, "v7"))
                s.append(valu("v_and_b32", "v7", self.sMask, "v7"))
                s.append(valu("v_pk_mul_f32", "v[6:7]", "v[6:7]", ap))
                s.append(valu("v_cvt_pk_bf16_f32", f"v{q + j}", "v6", "v7"))
                continue
            s.append(valu("v_accvgpr_read_b32", hi, self.x0reg(kbl, bt, j, 1)))
            if a0[0] == "a":
                s.append(valu("v_accvgpr_read_b32", m, a0))
                a0 = m
            s.append(valu("v_lshlrev_b32", lo, 16, hi))
            s.append(valu("v_and_b32", hi, self.sMask, hi))
            s.append(valu("v_mul_f32", lo, lo, a0))
            if a1[0] == "a":
                s.append(valu("v_accvgpr_read_b32", m, a1))
                a1 = m
            s.append(valu("v_mul_f32", hi, hi, a1))
            s.append(valu("v_cvt_pk_bf16_f32", f"v{q + j}", lo, hi))
        return s

    def xstore(self, src, p, u, tmp, state):
        if self.o.noxch or self.o.nost:
            return []
        s = []
        off = p * 16384 + u * 1024
        if state.get("g") != off >> 12:
            state["g"] = off >> 12
            s.append(salu("s_add_u32", tmp, self.sXs, off & ~4095))
        s.append(tagged(bstore(src, self.vXw, self.sE, tmp, off & 4095, flags=self.o.xsflags), f"xs{p}"))
        return s

    def xnext(self, reg, back):
        n = self.o.xbufs
        if n == 1:
            return [salu("s_sub_u32", reg, reg, back)]
        if n == 2:
            return [salu("s_sub_u32", reg, reg, back), salu("s_xor_b32", reg, reg, hex(32 * MB))]
        return [salu("s_add_u32", reg, reg, hex(32 * MB - back))]

    def epi_stream(self, p, ndirect=16, one=False):
        s = []
        st = {}
        for bt in range(8):
            for c in range(2):
                q = self.Q[0 if one else c]
                s += self.epi_unit(2 * p + c, bt, q)
                s.append(dswrite(self.vXw, R("v", q, 4), bt * 4096 + p * 2048 + c * 1024))
                if bt * 2 + c < ndirect:
                    s += self.xstore(R("v", q, 4), p, bt * 2 + c, "s68", st)
        return s

    def pub_stream(self, p, lo, hi):
        s = []
        st = {}
        if self.o.noxch or lo >= hi:
            return s
        if self.small:
            q = R("v", self.Q[1], 4)
            for u in range(lo, hi):
                s.append(dsread(q, self.vXw, (u >> 1) * 4096 + p * 2048 + (u & 1) * 1024))
                s += space(7)
                s.append(Wait(lg=[q]))
                s += self.xstore(q, p, u, "s69", st) + space(2)
            return s

        def rd(u):
            return dsread(R("v", self.RQ[u & 1], 4), self.vXw, (u >> 1) * 4096 + p * 2048 + (u & 1) * 1024)

        s.append(rd(lo))
        s += space(6)
        for u in range(lo, hi):
            if u + 1 < hi:
                s.append(rd(u + 1))
            s.append(Wait(lg=[R("v", self.RQ[u & 1], 4)]))
            s += self.xstore(R("v", self.RQ[u & 1], 4), p, u, "s69", st)
        return s

    def pub_guard(self, st):
        return st

    def x0pub_stream(self, p, lo=0, hi=16):
        s = []
        st = {}
        for u in range(lo, hi):
            s += self.xstore(self.x0reg(2 * p + (u & 1), u >> 1), p, u, "s68", st)
        return s

    def xch_dma(self, p):
        if self.o.gather:
            return self.xch_dma_g(p)
        s = [raw(f"s_add_u32 m0, {self.sLds}, {p * 2048}", "salu", rd=[self.sLds])] + space(1)
        for bt in range(8):
            for c in range(2):
                if not self.o.noxch:
                    s.append(dma(self.vXw, self.sE, self.sXl, c * 1024, self.o.xlflags, f"xl{p}"))
            if bt < 7:
                s.append(raw("s_add_u32 m0, m0, 4096", "salu"))
            if bt == 7 and p == 1:
                s += self.xnext(self.sXl, 15 * 2048)
            else:
                s.append(salu("s_add_u32", self.sXl, self.sXl, 2048))
        return s

    def xch_dma_g(self, p):
        t0, t1 = self.t[0], self.t[1]
        vL = self.vL
        if self.o.quadg:
            X = self.vXw
            self.ool += [Label(f"Lgat{p}"),
                         raw(f"v_lshrrev_b32 {t0}, 4, {X}"), raw(f"v_and_b32 {t0}, 0x20, {t0}"), raw(f"v_xor_b32 {t0}, {t0}, {X}"),
                         raw(f"v_and_b32 {t0}, 0x30, {t0}"), raw(f"v_bfe_u32 {t1}, {X}, 6, 4"),
                         raw(f"v_lshl_add_u32 {t1}, {t1}, 11, {t0}"), raw(f"s_branch Lgatr{p}")]
        else:
            self.ool += [Label(f"Lgat{p}"),
                         raw(f"v_and_b32 {t0}, 0xf0, {vL}"), raw(f"v_lshrrev_b32 {t1}, 4, {vL}"),
                         raw(f"v_and_b32 {t1}, 0x30, {t1}"), raw(f"v_lshl_add_u32 {t1}, {t0}, 7, {t1}"),
                         raw(f"s_branch Lgatr{p}")]
        sel = I(f"v_mov_b32 {t1}, {self.vXw}\n s_cmp_eq_u32 {self.sL}, 0\n s_cbranch_scc1 Lgat{p}\nLgatr{p}:", "valu",
                rd=[self.vXw], wr=[t0, t1])
        s = [sel, raw(f"s_add_u32 m0, {self.sLds}, {p * 2048}", "salu", rd=[self.sLds])] + space(1)
        for bt in range(8):
            for c in range(2):
                if not self.o.noxch and not self.o.nodma:
                    s.append(dma(t1, self.sX, self.sXl, 0, self.o.xlflags, f"xl{p}"))
                s.append(raw(f"s_add_u32 m0, m0, {1024 if c == 0 else 3072}", "salu"))
                s.append(salu("s_add_u32", self.sXl, self.sXl, "s20" if c == 0 else "s21" if bt < 7 else "s22"))
            if bt < 7 and (bt + 1) % self.o.dmagroup == 0:
                s += space(self.o.dmapair * self.o.dmagroup)
        return s

    def xr_gathered(self):
        if not self.o.quadg:
            return []
        t0, X, r0, r1 = self.t[0], self.vXw, self.vXr[0], self.vXr[1]
        self.ool += [Label("Lxrg"),
                     raw(f"v_lshrrev_b32 {t0}, 2, {X}"), raw(f"v_and_b32 {t0}, 0x20, {t0}"),
                     raw(f"v_lshrrev_b32 {r1}, 4, {X}"), raw(f"v_xor_b32 {t0}, {t0}, {r1}"),
                     raw(f"v_and_b32 {t0}, 0x30, {t0}"), raw(f"v_bfe_u32 {r0}, {X}, 4, 4"),
                     raw(f"v_lshl_add_u32 {r0}, {r0}, 6, {t0}"), raw(f"v_add_u32 {r1}, 0x10000, {r0}"),
                     raw("s_branch Lxrgr")]
        return [I(f"s_cmp_eq_u32 {self.sL}, 0\n s_cbranch_scc1 Lxrg\nLxrgr:", "valu", rd=[X], wr=[t0, r0, r1])]

    def xr_plain(self):
        if not self.o.quadg:
            return []
        return [valu("v_and_b32", self.vXr[0], 0x3ff, self.vXw), valu("v_add_u32", self.vXr[1], 65536, self.vXr[0])]

    def xch_switch(self):
        return [salu("s_mov_b32", "s34", hex(256 * MB)),
                salu("s_mov_b32", "s8", "s32"), salu("s_mov_b32", "s9", "s33"), salu("s_mov_b32", "s10", "s34"),
                salu("s_mov_b32", "s20", 1024), salu("s_mov_b32", "s21", 1024), salu("s_mov_b32", "s22", 1024),
                salu("s_xor_b32", self.sXl, self.sXs, 1 << 17)]

    def calc_vG(self, vG):
        t0, t1 = self.t[0], self.t[1]
        return [valu("v_lshrrev_b32", t0, 7, self.vL), valu("v_lshlrev_b32", t1, 4, t0),
                valu("v_xor_b32", t1, t1, self.vL), valu("v_and_b32", t1, 0x70, t1),
                valu("v_lshl_add_u32", vG, t0, 11, t1)]

    def calc_vS(self, vS):
        t0, t1 = self.t[0], self.t[1]
        vL = self.vL
        return [valu("v_lshrrev_b32", t0, 4, vL), valu("v_and_b32", t0, 0x30, t0), valu("v_xor_b32", t0, t0, vL),
                valu("v_and_b32", t0, 0x70, t0), valu("v_and_b32", t1, 0xf0, vL),
                valu("v_lshl_add_u32", t0, t1, 3, t0), valu("v_add_u32", vS[0], self.sLds, t0),
                valu("v_xor_b32", vS[1], 64, vS[0])]

    def out_setup(self):
        return self.calc_vG(self.vG) + self.calc_vS(self.vS)

    def x0h_dma(self, p, lo, hi, vG):
        r = []
        for i in range(lo, hi):
            r.append(raw(f"s_add_u32 m0, {self.sLds}, {(i >> 1) * 4096 + p * 2048 + (i & 1) * 1024}", "salu"))
            r.append(salu("s_add_u32", "s3", self.sRow, i * 16384 + p * 128))
            r.append(dma(vG, self.sX, "s3", 0, self.o.xflags, f"x0_{p}_{i >> 1}"))
        return r

    def x0h_read(self, p, bt, vS):
        return [Wait(vm=[f"x0_{p}_{bt}"])] + [dsread(self.x0reg(2 * p + c, bt), vS[c], bt * 4096 + p * 2048)
                                              for c in range(2)]

    def x0h_write(self, p, bt):
        return [Wait(lg=[self.x0reg(2 * p + c, bt) for c in range(2)])] + [
            dswrite(self.vXw, self.x0reg(2 * p + c, bt), bt * 4096 + p * 2048 + c * 1024) for c in range(2)]

    def wreg0(self, s, c):
        if s < 16 - self.NS:
            return self.acc(1, (s * 2 + c) * 4, 4)
        return self.wslot(s, c)

    def out_stream(self, p):
        s = []
        pend = []
        for bt in range(8):
            for c in range(2):
                q = self.Q[c]
                u = self.epi_unit(2 * p + c, bt, q, pk=(p == 1 and self.o.tailpk))
                if c == 0 and pend:
                    u = u[:12] + pend + u[12:]
                    pend = []
                s += u
                if p == 0 and bt == 0 and c == 0:
                    s += self.out_setup()
                s.append(dswrite(self.vS[c], R("v", q, 4), bt * 4096))
            for i in range(2):
                s.append(dsread(R("v", self.RQ[i], 4), self.vXw, bt * 4096 + i * 1024))
            for i in range(2):
                pend.append(Wait(lg=[R("v", self.RQ[i], 4)]))
                pend.append(salu("s_add_u32", "s3", self.sRow, bt * 32768 + i * 16384))
                pend.append(bstore(R("v", self.RQ[i], 4), self.vG, self.sO, "s3", p * 128, flags=self.o.oflags))
        return s + pend

    def out_stream4(self, kbl):
        s = []
        pend = []
        p, c = kbl >> 1, kbl & 1
        for bt in range(8):
            q = self.Q[bt & 1]
            u = self.epi_unit(kbl, bt, q, pk=(kbl == 3 and self.o.tailpk))
            s += u[:12] + pend + u[12:]
            pend = []
            if kbl == 0 and bt == 0:
                s += self.out_setup()
            s.append(dswrite(self.vS[c], R("v", q, 4), bt * 4096))
            if c:
                rq = [int(self.acc_tile(1, 0, 0, 1)[1:]), int(self.acc_tile(0, 1, 0, 1)[1:])]
                for i in range(2):
                    s.append(dsread(R("v", rq[i], 4), self.vXw, bt * 4096 + i * 1024))
                for i in range(2):
                    pend.append(Wait(lg=[R("v", rq[i], 4)]))
                    pend.append(salu("s_add_u32", "s3", self.sRow, bt * 32768 + i * 16384))
                    pend.append(bstore(R("v", rq[i], 4), self.vG, self.sO, "s3", p * 128, flags=self.o.oflags))
        return s + pend

    def calc_vB(self):
        return [valu("v_bfe_u32", self.vB, self.vXw, 8, 2),
                valu("v_lshl_add_u32", self.vB, self.vB, 5, self.sBias)]

    def bias_stream(self, p, one=False):
        s = []
        if one:
            q = self.Q[0]
            for nt in range(4 * p, 4 * p + 4):
                s.append(dsread(R("v", q, 4), self.vB, (nt >> 1) * 128 + (nt & 1) * 16))
                s += space(7)
                s.append(Wait(lg=[R("v", q, 4)]))
                cnt = 0
                for bt in range(8):
                    for r in range(4):
                        a = self.acc_tile(nt, bt, r, 1)
                        if a[0] == "a":
                            t = self.t[cnt & 1]
                            s += [valu("v_accvgpr_read_b32", t, a), valu("v_add_f32", t, t, f"v{q + r}"),
                                  valu("v_accvgpr_write_b32", a, t)]
                        else:
                            s.append(valu("v_add_f32", a, a, f"v{q + r}"))
                        cnt += 1
            return s
        if self.o.nobias:
            return [valu("v_add_f32", self.acc_tile(4 * p, 0, 0, 1), self.acc_tile(4 * p, 0, 0, 1), 0) for _ in range(8)]

        def rd(nt):
            return dsread(R("v", self.Q[nt & 1], 4), self.vB, (nt >> 1) * 128 + (nt & 1) * 16)

        s.append(rd(4 * p))
        s += space(8)
        for nt in range(4 * p, 4 * p + 4):
            q = self.Q[nt & 1]
            cnt = 0
            for bt in range(8):
                for r in range(4):
                    if cnt == 0:
                        s.append(Wait(lg=[R("v", q, 4)]))
                    a = self.acc_tile(nt, bt, r, 1)
                    if self.o.pkadd and a[0] == "v":
                        if not r & 1:
                            ap = self.acc_tile(nt, bt, r, 2)
                            s.append(valu("v_pk_add_f32", ap, ap, R("v", q + r, 2)))
                    elif a[0] == "a":
                        t = self.t[cnt & 1]
                        s.append(valu("v_accvgpr_read_b32", t, a))
                        s.append(valu("v_add_f32", t, t, f"v{q + r}"))
                        s.append(valu("v_accvgpr_write_b32", a, t))
                    else:
                        s.append(valu("v_add_f32", a, a, f"v{q + r}"))
                    cnt += 1
                    if cnt == 1 and nt + 1 < 4 * p + 4:
                        s.append(rd(nt + 1))
        return s

    def prep_load(self):
        t0, t1 = self.t[0], self.t[1]
        s = [valu("v_lshrrev_b32", t0, 6, self.vL),
             valu("v_and_b32", t1, 48, self.vL),
             valu("v_lshl_add_u32", t0, t0, 11, t1),
             raw(f"s_mov_b32 m0, {self.sStage}", "salu", rd=[self.sStage]),
             salu("s_add_u32", "s3", self.sRaw, 32768 - 1024)]
        s.append(dma(t0, self.sR, self.sRaw, 0, self.o.rflags, "raw"))
        s.append(dma(t0, self.sR, "s3", 1024, self.o.rflags, "raw"))
        s.append(salu("s_add_u32", self.sRaw, self.sRaw, D * D * 2))
        return s

    def prep_store(self, sp=0):
        t0 = self.t[0]
        t1 = self.t[2]
        s = [valu("v_and_b32", t0, 0x300, self.vXw),
             valu("v_and_b32", t1, 0x3ff, self.vXw),
             valu("v_add3_u32", t0, t0, t1, self.sStage),
             Wait(vm=["raw"])]
        for t in range(2):
            for h in range(2):
                s.append(I(f"ds_read_b64_tr_b16 {R('v', self.Q[t] + 2 * h, 2)}, {t0} offset:{h * 256 + t * 8}", "dsr",
                           rd=[t0], wr=[R("v", self.Q[t] + 2 * h, 2)]))
        dst = self.sDst
        if sp and self.o.tail4:
            dst = "s69"
            s.append(I(f"s_cmp_eq_u32 {self.sL}, {NL - 2}\n s_cselect_b32 s69, s24, 0\n s_add_u32 s69, s69, {self.sDst}",
                       "salu", rd=[self.sL, "s24", self.sDst], wr=["s69"]))
        s += space(sp)
        for t in range(2):
            s.append(Wait(lg=[R("v", self.Q[t], 4)]))
            s.append(tagged(bstore(R("v", self.Q[t], 4), t1, self.sW, dst, t * 2048, flags=" sc1"), "pst"))
        s.append(salu("s_add_u32", self.sDst, self.sDst, D * D * 2))
        return s

    def wsignal(self):
        t = self.t[2]
        return [valu("v_mov_b32", t, 1),
                I(f"buffer_atomic_add {t}, {self.vW}, {self.sC}, 0 offen sc1", "vst", rd=[t, self.vW])]

    def psignal(self, p):
        t = self.t[2]
        return [salu("s_add_u32", self.sFlag, self.sFlag, 1), Wait(vm=[f"xs{p}"]),
                valu("v_mov_b32", t, self.sFlag),
                bstore(t, self.vL, self.sFm, 0, w="dword", flags=" sc1")]

    def wpoll_load(self):
        v = self.vP
        return [valu("v_lshlrev_b32", v, 2, self.vXw), valu("v_and_b32", v, 0xc0, v),
                bload(v, v, self.sD, 0, w="dword", flags=" sc1")]

    def ppoll_load(self):
        return [I(f"buffer_load_dword {self.vP}, off, {self.sFp}, 0 sc1", "vld", wr=[self.vP])]

    def poll_check(self, name, need, inc, loader):
        v = self.vP
        spin = [Label(f"Lspin_{name}"), raw(f"s_add_u32 {self.sSpin}, {self.sSpin}, 1")]
        if self.o.backoff:
            spin.append(raw(f"s_sleep {self.o.backoff}"))
        spin += [raw(x.text) for x in loader()]
        spin += [raw(f"s_cmp_ge_u32 {self.sSpin}, 0x100000"),
                 raw(f"s_cbranch_scc1 Lgiveup_{name}"),
                 raw("s_waitcnt vmcnt(0)"),
                 raw(f"v_cmp_gt_i32 vcc, {need}, {v}"),
                 raw("s_and_b64 vcc, exec, vcc"),
                 raw(f"s_cbranch_vccnz Lspin_{name}"),
                 Label(f"Lgiveup_{name}"),
                 raw("s_waitcnt vmcnt(0)"),
                 raw(f"s_branch Lok_{name}")]
        self.ool += spin
        return [Wait(vm=[v]), I(f"v_cmp_gt_i32 vcc, {need}, {v}", "valu", rd=[v, need]),
                raw(f"s_and_b64 vcc, exec, vcc\n s_cbranch_vccnz Lspin_{name}\nLok_{name}:", "branch"),
                salu("s_add_u32", need, need, inc)]

    def phase(self, s0, nts, rho, next_rho, stream=(), bar=False, last=False, start=0, end=None, pre_bar=(),
              fixed=(), extra=(), wreg=None, skip_below=0, post_bar=()):
        o = self.o
        NS = self.NS
        NT = len(nts)
        L = NT * 16
        mf = []
        gaps = [[] for _ in range(4 * L)]
        fwd = list(range(8))
        keepx = o.revb and s0 in (0, 96)
        rev = o.revb and s0 in (16, 112)
        flip = 1 if (o.revb and 16 <= s0 <= 96) else 0
        wreg = wreg or self.wslot
        for ss in range(4):
            base = ss * L
            for k, nt in enumerate(nts):
                s = s0 + ss * NT + k
                order = fwd if ((ss + k + flip) & 1) == 0 else fwd[::-1]
                for j, bt in enumerate(order):
                    for i in range(2):
                        c = i ^ (j & 1)
                        mf.append(mfma(16, self.acc_tile(nt, bt), wreg(s, c), self.xf(bt, c)))
                g = base + k * 16
                at = self.loads_at.get(s, [])
                for n, sn in enumerate(at):
                    if (last and sn >= 128) or o.now or sn < skip_below:
                        continue
                    ga, gb, gc = g + (14 if n == 0 else 15), g + 15, g + 18
                    if o.wdelay and g + 16 < 4 * L and (o.wdelay == 2 or k == NT - 1):
                        ga, gb, gc = g + 17 + 4 * n, g + 19 + 4 * n, g + 20 + 4 * n
                    elif o.wdelay and g + 16 < 4 * L and len(at) == 1:
                        gb, gc = g + 17, g + 19
                    elif not (g + 18 < 4 * L and n == len(at) - 1):
                        gc = g + 15
                    gaps[ga].append(hoist(self.wload(sn, 1)))
                    gaps[gb].append(hoist(self.wload(sn, 0)))
                    gaps[gc] += self.wstep(sn)
                if k < NT - 1:
                    gaps[g + 15].append(Wait(vm=[wreg(s + 1, 0), wreg(s + 1, 1)]))
                if k == 0:
                    for j in range(o.xw, 8, o.xw):
                        gaps[g + 2 * j - 1].append(
                            Wait(lg=[self.xf(order[jj], c) for jj in range(j, min(8, j + o.xw)) for c in range(2)]))
            nrho, nss = (rho, 2 - ss if rev else ss + 1) if ss < 3 else (next_rho, 0)
            if ss == 3 and keepx:
                nrho = None
                s = s0 + 4 * NT
                gaps[base + L - 1].append(Wait(vm=[wreg(s, 0), wreg(s, 1)]))
            gl = base + L - 16
            if ss == 3 and bar:
                gaps[gl - o.bar_lead] += list(pre_bar) + [Wait(all_lg=True), barrier()]
                gaps[gl - o.bar_lead + 1] += list(post_bar)
            if nrho is not None:
                for j, bt in enumerate(order):
                    for i in range(2):
                        c = i ^ (j & 1)
                        if not o.nox:
                            gaps[gl + 2 * j + i].append(hoist(self.xread(bt, c, nrho, nss)))
                s = s0 + (ss + 1) * NT
                gaps[base + L - 1].append(Wait(vm=[wreg(s, 0), wreg(s, 1)],
                                               lg=[self.xf(order[jj], c) for jj in range(o.xw) for c in range(2)]))
        for gi, inss in fixed:
            gaps[gi] += inss
        hi = end if end is not None else (4 * L - 16 - o.bar_lead if bar else 4 * L - 1)
        for st, lo2, hi2 in extra:
            self.place(gaps, list(st), lo2, hi2)
        self.place(gaps, list(stream), start, hi)
        out = []
        if o.jitter:
            n = self.njit = getattr(self, "njit", 0) + 1
            out.append(raw(f"s_mul_i32 s23, s23, 1664525\n s_add_u32 s23, s23, 1013904223\n s_lshr_b32 s101, s23, 24\n"
                           f" s_cmp_ge_u32 s101, {o.jitter}\n s_cbranch_scc1 Ljit{n}\n s_bfe_u32 s101, s23, 0x40010\nLjs{n}:\n s_sleep 20\n"
                           f" s_sub_u32 s101, s101, 1\n s_cbranch_scc0 Ljs{n}\nLjit{n}:", "salu"))
        for i, m in enumerate(mf):
            out.append(m)
            gaps[i] = self.merge([], gaps[i])
            out += gaps[i]
        if o.verbose:
            print(f"; phase s0={s0} mfma={len(mf)} modelled excess={sum(self.gap_excess(g) for g in gaps)}", file=sys.stderr)
        return out

    @staticmethod
    def gap_excess(items):
        slots = 0
        ex = 0
        free = 2
        seenv = False
        for x in items:
            k = x.kind
            if k in ("valu", "nop"):
                slots += 1
                seenv = True
                continue
            if k in ("dsr", "vld", "dsw", "vst") and seenv:
                ex += 8
            if k == "dsr":
                slots += 1
            elif k == "vld":
                slots += 1 if x.text.startswith("global") else 2
            elif k == "dsw":
                ex += 12
                free -= 2
            elif k == "vst":
                ex += (20 if x.big else 4) + 4 * slots + (8 if free < 2 else 0)
                free = 3 if x.big else free - 1
            elif k == "barrier":
                ex += 24
        return ex + 4 * max(0, slots - max(free, 0))

    @staticmethod
    def merge(items, fixed):
        k = 0
        lead, rest = [], []
        stop = False
        for x in fixed:
            if not stop and x.kind in ("dsr", "vld") and getattr(x, "note", "") == "hoist":
                lead.append(x)
            else:
                rest.append(x)
                if x.kind not in ("wait",):
                    stop = True
        items = [x for x in items if x.kind != "space"]
        j = 0
        while j < len(items) and items[j].kind in ("salu", "wait"):
            j += 1
        if j < len(items) and items[j].kind == "vst":
            return items[:j + 1] + lead + items[j + 1:] + rest
        return lead + items + rest

    def place(self, gaps, stream, lo, hi):
        if not stream:
            return
        n, G = len(stream), hi - lo
        KMAX = 8
        INF = float("inf")
        dp = [INF] * (n + 1)
        dp[0] = 0.0
        back = []
        NG = len(gaps)
        cnt = lambda g, kind: sum(1 for x in gaps[g] if x.kind == kind) if g < NG else 0
        for g in range(G):
            fixed = gaps[lo + g]
            base = self.gap_excess(self.merge([], fixed))
            wpen = 7 * sum(cnt(lo + g + d, "dsr") for d in (1, 2, 3)) + 4 * cnt(lo + g, "dsr")
            spen = 12 * cnt(lo + g + 1, "vld") + 6 * cnt(lo + g, "vld") + 4 * cnt(lo + g + 2, "vld")
            nd = [INF] * (n + 1)
            bk = [0] * (n + 1)
            tgt = n * (g + 1) / G
            for i in range(n + 1):
                if dp[i] == INF:
                    continue
                for k in range(0, min(KMAX, n - i) + 1):
                    c = dp[i]
                    if k:
                        its = stream[i:i + k]
                        if k > 1 and its[-2].kind == "space":
                            break
                        c += self.gap_excess(self.merge(its, fixed)) - base
                        c += sum(wpen if x.kind == "dsw" else spen if x.kind == "vst" else 0 for x in its)
                    c += self.o.pace * ((i + k - tgt) / max(1.0, n / G)) ** 2 + 0.02 * k * k
                    if c < nd[i + k]:
                        nd[i + k] = c
                        bk[i + k] = k
            dp = nd
            back.append(bk)
        assert dp[n] < INF
        i = n
        for g in range(G - 1, -1, -1):
            k = back[g][i]
            gaps[lo + g] = self.merge(stream[i - k:i], gaps[lo + g])
            i -= k

    def prologue(self):
        o = self.o
        vL = self.vL
        b = []
        b.append(salu("s_cmp_ge_u32", "s2", 256))
        b.append(raw("s_cbranch_scc1 Lend", "branch"))
        b += self.stamp("start")
        if o.stamps:
            b.append(raw("s_memrealtime s[36:37]"))
        b += [nop(0) for _ in range(o.shift)]
        b += [sload("s[56:59]", 0, 4), sload("s[60:63]", 16, 4), sload("s[64:67]", 32, 4)]
        b.append(valu("v_lshrrev_b32", "v9", 6, "v0"))
        b.append(valu("v_and_b32", "v10", 63, "v0"))
        b.append(valu("v_readfirstlane_b32", self.sWave, "v9"))
        b.append(valu("v_lshlrev_b32", vL, 4, "v10"))
        if o.cpf:
            b.append(raw("s_getpc_b64 s[4:5]", "salu"))
            b.append(Label("Lpc"))
            b.append(valu("v_lshlrev_b32", "v11", 6, "v0"))
            if o.cpfsplit:
                b += [salu("s_bfe_u32", "s3", "s2", "0x20003"), salu("s_lshl_b32", "s3", "s3", 14),
                      valu("v_add_u32", "v11", "s3", "v11")]
            for i in range(1 if o.cpfsplit else o.cpf):
                b.append(raw(f"v_min_u32 v12, Lend-Lpc, v11", "valu", rd=["v11"], wr=["v12"]))
                b.append(I(f"global_load_dword v{60 + i}, v12, s[4:5]", "vld", rd=["v12"], wr=[f"v{60 + i}"]))
                b.append(valu("v_add_u32", "v11", 16384, "v11"))
        b.append(valu("v_lshrrev_b32", "v11", 7, "v0"))
        b.append(valu("v_and_b32", "v12", 127, "v0"))
        b.append(valu("v_lshlrev_b32", "v12", 3, "v12"))
        b.append(valu("v_lshl_add_u32", "v30", "v11", 11, "v12"))
        b.append(valu("v_lshlrev_b32", "v31", 4, "v0"))
        b.append(valu("v_add_u32", "v31", LDS_BIAS, "v31"))
        b.append(valu("v_add_u32", self.vXr[1], 65536, vL))
        b.append(valu("v_lshl_add_u32", self.vXw, "v9", 15, vL))
        b.append(valu("v_lshl_add_u32", self.vW, "v9", 18, vL))
        nb0 = len(b)
        b.append(valu("v_lshrrev_b32", "v11", 4, "v10"))
        b.append(valu("v_and_b32", "v12", 15, "v10"))
        b.append(valu("v_xor_b32", "v13", "v11", "v12"))
        b.append(valu("v_lshlrev_b32", "v13", 4, "v13"))
        b.append(valu("v_lshl_add_u32", "v20", "v11", 11, "v13"))
        for i in range(1, 4):
            b.append(valu("v_xor_b32", f"v{20 + i}", 64 * i, "v20"))
        b.append(valu("v_lshl_add_u32", "v24", "v12", 8, "v13"))
        b.append(valu("v_lshl_add_u32", "v24", "v9", 15, "v24"))
        for i in range(1, 4):
            b.append(valu("v_xor_b32", f"v{24 + i}", 64 * i, "v24"))
        if o.early == 1:
            del b[nb0:]
        b.append(salu("s_and_b32", "s7", "s2", 1))
        b.append(salu("s_lshr_b32", self.sRow, "s2", 1))
        b.append(salu("s_lshl_b32", self.sRow, self.sRow, 18))
        b.append(salu("s_lshl_b32", "s6", "s7", 10))
        b.append(salu("s_add_u32", self.sRow, self.sRow, "s6"))
        b.append(salu("s_lshl_b32", "s6", self.sWave, 8))
        b.append(salu("s_add_u32", self.sRow, self.sRow, "s6"))
        b.append(salu("s_mov_b32", self.sMask, "0xffff0000"))
        b.append(salu("s_lshl_b32", self.sWoff, "s7", 20))
        b.append(salu("s_mov_b32", self.sL, 0))
        b.append(salu("s_mov_b32", self.sSpin, 0))
        b.append(salu("s_mov_b32", self.sFlag, -1 if o.gather else 0))
        b.append(salu("s_mov_b32", self.sNeed, 64))
        b.append(salu("s_mov_b32", self.sPNeed, -1 if o.gather else 1))
        b.append(salu("s_lshl_b32", self.sLds, self.sWave, 15))
        b.append(salu("s_lshl_b32", self.sXs, "s2", 17))
        b.append(salu("s_add_u32", self.sXs, self.sXs, o.xbase * MB))
        b.append(salu("s_xor_b32", self.sXl, self.sXs, 1 << 17))
        b.append(salu("s_lshr_b32", "s4", "s2", 3))
        b.append(salu("s_and_b32", "s5", "s2", 7))
        b.append(salu("s_lshl_b32", self.sRaw, "s4", 16))
        b.append(salu("s_lshl_b32", "s6", "s5", 8))
        b.append(salu("s_add_u32", self.sRaw, self.sRaw, "s6"))
        b.append(salu("s_lshl_b32", "s6", self.sWave, 6))
        b.append(salu("s_add_u32", self.sRaw, self.sRaw, "s6"))
        b.append(salu("s_lshl_b32", self.sDst, "s5", 18))
        b.append(salu("s_and_b32", "s6", "s4", 1))
        b.append(salu("s_lshl_b32", "s6", "s6", 10))
        b.append(salu("s_add_u32", self.sDst, self.sDst, "s6"))
        b.append(salu("s_lshr_b32", "s6", "s4", 4))
        b.append(salu("s_lshr_b32", "s5", "s5", 2))
        b.append(salu("s_xor_b32", "s5", "s5", "s6"))
        b.append(salu("s_bfe_u32", "s6", "s4", "0x10001"))
        b.append(salu("s_lshl_b32", "s3", "s5", 1))
        b.append(salu("s_add_u32", "s3", "s3", "s6"))
        b.append(salu("s_lshl_b32", "s3", "s3", 16))
        b.append(salu("s_add_u32", self.sDst, self.sDst, "s3"))
        b.append(salu("s_bfe_u32", "s4", "s4", "0x20002"))
        b.append(salu("s_xor_b32", "s5", "s5", "s6"))
        b.append(salu("s_lshr_b32", "s3", self.sWave, 1))
        b.append(salu("s_lshl_b32", "s3", "s3", 4))
        if o.revb:
            assert not o.tail4 and not o.w0prep
            b += [salu("s_lshr_b32", "s6", self.sWave, 1), salu("s_mul_i32", "s6", "s6", 3), salu("s_xor_b32", "s6", "s6", "s4"),
                  salu("s_lshl_b32", "s6", "s6", 2)]
        else:
            b.append(salu("s_lshl_b32", "s6", "s4", 2))
        b.append(salu("s_add_u32", "s3", "s3", "s6"))
        b.append(salu("s_and_b32", "s6", self.sWave, 1))
        b.append(salu("s_lshl_b32", "s6", "s6", 1))
        b.append(salu("s_add_u32", "s3", "s3", "s6"))
        b.append(salu("s_lshl_b32", "s4", "s4", 3))
        b.append(salu("s_lshl_b32", "s6", self.sWave, 1))
        b.append(salu("s_add_u32", "s4", "s4", "s6"))
        b.append(salu("s_cmp_eq_u32", "s5", 0))
        b.append(salu("s_cselect_b32", "s3", "s3", "s4"))
        b.append(salu("s_lshl_b32", "s3", "s3", 11))
        b.append(salu("s_add_u32", self.sDst, self.sDst, "s3"))
        b.append(salu("s_lshl_b32", self.sStage, self.sWave, 11))
        b.append(salu("s_add_u32", self.sStage, self.sStage, LDS_STAGE))
        b.append(salu("s_lshl_b32", self.sBias, self.sWave, 9))
        b.append(salu("s_add_u32", self.sBias, self.sBias, LDS_BIAS))
        b.append(Wait(all_lg=True))
        b += self.stamp("kernarg")
        b += srd(40, "s58", "s59", NL * D * D * 2)

        def only(ins, w0):
            n = self.nseg = getattr(self, "nseg", 0) + 1
            for x in ins:
                x.note = "gy" if w0 else "gx"
            return [salu("s_cmp_eq_u32", self.sWave, 0), raw(f"s_cbranch_scc{0 if w0 else 1} Lseg{n}", "branch")] + \
                ins + [Label(f"Lseg{n}")]

        if o.w0prep:
            t0, t1 = self.t[0], self.t[1]
            r = [valu("v_lshrrev_b32", t0, 6, vL), valu("v_and_b32", t1, 48, vL), valu("v_lshl_add_u32", t0, t0, 11, t1)]
            for q in range(4):
                r += [raw(f"s_mov_b32 m0, {LDS_STAGE + q * 2048}", "salu"), salu("s_add_u32", "s3", self.sRaw, q * 64),
                      dma(t0, self.sR, "s3", 0, o.rflags, f"raw{q}"),
                      salu("s_add_u32", "s3", self.sRaw, q * 64 + 32768 - 1024),
                      dma(t0, self.sR, "s3", 1024, o.rflags, f"raw{q}")]
            b += only(r, True)
            b.append(salu("s_add_u32", self.sRaw, self.sRaw, D * D * 2))
        else:
            b += self.prep_load()
        b += srd(20, "s60", "s61", NL * D * 2)
        tb = 32
        b.append(salu("s_lshl_b32", "s3", "s7", 10))
        for m in range(3):
            b.append(bload(R("v", tb + 2 * m, 2), "v30", self.sB, "s3", w="dwordx2"))
            b.append(salu("s_add_u32", "s3", "s3", 4096))
        if o.jitter:
            b += [raw("s_memrealtime s[100:101]"), raw("s_waitcnt lgkmcnt(0)"), raw("s_lshl_b32 s23, s2, 2"),
                  raw(f"s_add_u32 s23, s23, {self.sWave}"), raw("s_mul_i32 s23, s23, 0x9e3779b1"), raw("s_add_u32 s23, s23, s100")]
        if o.init:
            b.append(salu("s_mov_b32", "s23", o.init))
        b += srd(8, "s56", "s57", NB * D * 2)
        b += srd(16, "s62", "s63", NB * D * 2)
        b += srd(12, "s66", "s67", NL * D * D * 2)
        b += srd(32, "s66", "s67", 0 if o.gather else 256 * MB)
        b += srd(44, "s64", "s65", 256)
        b += [salu("s_add_u32", self.sWoff, self.sWoff, 4096), salu("s_add_u32", "s70", "s66", self.sWoff),
              salu("s_addc_u32", "s71", "s67", 0), salu("s_sub_u32", self.sWoff, self.sWoff, 4096)]
        if o.tail4:
            b += [salu("s_and_b32", "s24", self.sWave, 1), salu("s_mul_i32", "s24", "s24", 6 * 2048),
                  salu("s_bfe_u32", "s3", "s2", "0x20005"), salu("s_lshl_b32", "s3", "s3", 12),
                  salu("s_sub_u32", "s24", "s24", "s3"),
                  salu("s_lshr_b32", "s3", "s2", 7), salu("s_lshr_b32", "s6", "s2", 2), salu("s_xor_b32", "s3", "s3", "s6"),
                  salu("s_lshr_b32", "s6", "s2", 4), salu("s_and_b32", "s3", "s3", "s6"), salu("s_bitcmp1_b32", "s3", 0),
                  salu("s_cselect_b32", "s24", "s24", 0)]
        b.append(salu("s_and_b32", "s3", "s2", 3))
        b.append(salu("s_lshl_b32", "s3", "s3", 6))
        b += srd_off(56, "s44", "s45", "s3", 4)
        b.append(salu("s_lshl_b32", "s3", "s2", 2))
        b.append(salu("s_add_u32", "s3", "s3", self.sWave))
        b.append(salu("s_lshl_b32", "s3", "s3", 7))
        b.append(salu("s_add_u32", "s3", "s3", WS_FLAGS))
        b += srd_off(60, "s32", "s33", "s3", 4)
        b.append(salu("s_xor_b32", "s3", "s3", 512))
        b += srd_off(64, "s32", "s33", "s3", 4)
        if o.delay:
            for _ in range(o.delay):
                b.append(raw("s_sleep 127"))
        if o.touch:
            for l in range(6):
                b.append(salu("s_add_u32", "s3", self.sXs, l * 32 * MB))
                if o.touch == 1:
                    b.append(bload(f"v{60 + l}", self.vXw, self.sE, "s3", w="dword"))
                else:
                    b.append(bstore(f"v{60 + l}", self.vXw, self.sE, "s3", w="dword", flags=" sc1"))
            b.append(Wait(all_vm=True))
        def x0dma(lo, hi):
            r = []
            for i in range(lo, hi):
                r.append(raw(f"s_add_u32 m0, {self.sLds}, {i * 1024}", "salu"))
                r.append(salu("s_add_u32", "s3", self.sRow, i * 8192))
                r.append(dma(f"v{20 + (i & 3)}", self.sX, "s3", 0, o.xflags, f"x0_{i >> 2}"))
            return r

        def x0fix(bt):
            r = [Wait(vm=[f"x0_{bt}"])]
            for kbl in range(4):
                r.append(dsread(self.x0reg(kbl, bt), f"v{24 + kbl}", bt * 4096))
            r.append(Wait(all_lg=True))
            for kbl in range(4):
                r.append(dswrite(self.vXw, self.x0reg(kbl, bt), bt * 4096 + kbl * 1024))
            if o.apub:
                r += self.x0pub_stream(0, 2 * bt, 2 * bt + 2)
            return r

        def accinit(pred):
            r = []
            for p in range(2):
                for i in range(128):
                    a = self.acc(p, i)
                    if pred(a):
                        r.append(valu("v_accvgpr_write_b32" if a[0] == "a" else "v_mov_b32", a, self.init))
            return r

        if o.early == 1 and o.selfw:
            return b + self.prologue_self(accinit, tb)
        if o.early == 1:
            return b + self.prologue_early(accinit, tb)
        late = lambda a: a[0] == "v" and 32 <= int(a[1:]) < 72
        final = lambda a: a[0] == "v" and int(a[1:]) < 32
        na, nb, ahead, npoll = o.x0split

        def biascvt():
            r = []
            for m in range(3):
                r.append(Wait(vm=[R("v", tb + 2 * m, 2)]))
                for j in range(2):
                    src = f"v{tb + 2 * m + j}"
                    r.append(valu("v_lshlrev_b32", f"v{40 + 4 * m + 2 * j}", 16, src))
                    r.append(valu("v_and_b32", f"v{41 + 4 * m + 2 * j}", self.sMask, src))
                r.append(dswrite("v31", R("v", 40 + 4 * m, 4), m * 4096))
            return r + [Wait(all_lg=True)]

        if o.w0prep:
            t0, t1, t2 = self.t
            r = [valu("v_lshlrev_b32", t1, 3, vL), valu("v_mov_b32", t2, 0), salu("s_mov_b32", "s62", 512),
                 tagged(bstore(t2, t1, self.sFm, 0, w="dword", flags=" sc1"), "pst"), salu("s_mov_b32", "s62", 4)]
            b += only(r, True)
            b += only(x0dma(0, nb), False)
            b += accinit(lambda a: not late(a) and not final(a))
            r = [valu("v_and_b32", t0, 0x300, vL), valu("v_add3_u32", t0, t0, vL, self.sStage)]
            qs = [8, 40, 48, 64]
            for q in range(4):
                r.append(Wait(vm=[f"raw{q}"]))
                for t in range(2):
                    for h in range(2):
                        d = R("v", qs[q] + 4 * t + 2 * h, 2)
                        r.append(I(f"ds_read_b64_tr_b16 {d}, {t0} offset:{q * 2048 + h * 256 + t * 8}", "dsr", rd=[t0], wr=[d]))
            for q in range(4):
                r += [salu("s_cmp_eq_u32", "s5", 0),
                      salu("s_cselect_b32", "s3", ((q >> 1) * 16 + 2 * (q & 1)) * 2048, "s6") if q > 1 else
                      salu("s_mov_b32", "s3", 2 * q * 2048),
                      salu("s_add_u32", "s3", "s3", self.sDst), salu("s_mov_b32", "s6", 2 * (q + 1) * 2048)]
                for t in range(2):
                    r.append(Wait(lg=[R("v", qs[q] + 4 * t, 4)]))
                    r.append(tagged(bstore(R("v", qs[q] + 4 * t, 4), vL, self.sW, "s3", t * 2048, flags=" sc1"), "pst"))
            r += x0dma(0, na) + [Wait(vm=["pst"])] + self.wsignal() + x0dma(na, nb)
            b += only(r, True)
            b.append(salu("s_add_u32", self.sDst, self.sDst, D * D * 2))
            b += self.stamp("signalled")
            b += biascvt() + accinit(late)
        else:
            b.append(valu("v_mov_b32", self.t[2], 0))
            b.append(tagged(bstore(self.t[2], vL, self.sFm, 0, w="dword", flags=" sc1"), "pst"))
            b += x0dma(0, na)
            b += accinit(lambda a: not late(a) and not final(a))
            b += self.prep_store()
            b += self.stamp("stores_issued")
            b += x0dma(na, nb)
            b += biascvt() + accinit(late)
            b += [Wait(vm=["pst"]), barrier()] + self.wsignal()
            b += self.stamp("signalled")
        def wring():
            r = []
            for s in [x for x in range(128) if self.site[x] < 0]:
                r += [self.wload(s, 1), self.wload(s, 0)] + self.wstep(s)
            return r

        def path(name, nb2, npoll, stamps):
            st = self.stamp if stamps else (lambda n: [])
            r = x0dma(nb, nb2)
            issued = max(nb, nb2)
            checked = False
            poll_before = None
            for bt in range(8):
                want = min(32, 4 * (bt + 1 + ahead))
                if bt == npoll:
                    r += self.wpoll_load()
                    poll_before = (issued + 3) // 4 if npoll else 0
                if want > issued and (npoll or checked):
                    r += x0dma(issued, want)
                    issued = want
                if poll_before is not None and not checked and bt >= poll_before:
                    r += st("x0_part")
                    r += self.poll_check(name, self.sNeed, 64, self.wpoll_load)
                    r += st("flag_seen")
                    checked = True
                    if npoll:
                        r += x0dma(issued, 32) + wring()
                        issued = 32
                    else:
                        r += wring() + x0dma(issued, want)
                        issued = max(issued, want)
                r += x0fix(bt)
            assert checked and issued == 32
            return r

        if o.stagger < 0:
            b += path("pro", nb, npoll, True)
        else:
            px = path("prox", nb, npoll, True)
            n0 = self.stampn
            self.stampn -= 2 if o.stamps and not o.pstamps else 0
            self.names = self.names[:self.stampn]
            py = path("proy", o.ynb, 0, True)
            assert self.stampn == n0
            for x in px:
                x.note = "gx"
            for x in py:
                x.note = "gy"
            b += [salu("s_bitcmp1_b32", "s2", o.stagger), raw("s_cbranch_scc1 Lgy", "branch")]
            b += px + [raw("s_branch Lgjoin", "branch"), Label("Lgy")] + py + [Label("Lgjoin")]
        b += accinit(final)
        if o.gather:
            b += [salu("s_xor_b32", self.sXl, self.sRow, 1024), salu("s_mov_b32", "s20", 64),
                  salu("s_mov_b32", "s21", 32768 - 64), salu("s_mov_b32", "s22", hex((128 - 64 - 7 * 32768) & 0xffffffff))]
        b += [Wait(all_lg=True), barrier()]
        for j in range(8):
            for i in range(2):
                b.append(self.xread(j, i ^ (j & 1), 0, 0))
        b.append(Wait(lg=[self.xf(j, c) for j in range(o.xw) for c in range(2)], vm=[self.wslot(0, 0), self.wslot(0, 1)]))
        if o.desync:
            b += [raw("s_lshr_b32 s3, s2, 1"), raw("s_and_b32 s3, s3, 15"), Label("Lds"), raw(f"s_sleep {o.desync}"),
                  raw("s_sub_u32 s3, s3, 1"), raw("s_cbranch_scc0 Lds")]
        b += self.stamp("pro_done")
        return b

    def prologue_self(self, accinit, tb):
        o = self.o
        vL = self.vL
        t0, t1 = self.t[0], self.t[1]
        b = []
        vG, vS, vR, vT = "v20", ["v21", "v22"], "v23", ["v24", "v25"]
        wbuf = set(r for s in range(16 - self.NS) for c in range(2) for r in regs(self.wreg0(s, c)))
        late = lambda a: a[0] == "v" and 32 <= int(a[1:]) < 64
        final = lambda a: a[0] == "v" and int(a[1:]) < 32
        ns1, psig, na, nB0, lead = o.selfp
        b += [valu("v_lshrrev_b32", t0, 2, vL), valu("v_and_b32", t0, 0x40, t0), valu("v_xor_b32", t0, t0, vL),
              valu("v_and_b32", t0, 0x70, t0), valu("v_lshrrev_b32", t1, 7, vL), valu("v_lshl_add_u32", vR, t1, 11, t0),
              salu("s_and_b32", "s69", self.sRow, 2047), salu("s_lshl_b32", "s3", "s7", 20),
              salu("s_add_u32", "s69", "s69", "s3")]

        def rawdma(lo, hi):
            r = []
            for n in range(lo, min(hi, 4 * o.nself)):
                p, i = n >> 2, n & 3
                r.append(raw(f"s_add_u32 m0, {self.sLds}, {(2 * (p & 3) + (i >> 1)) * 4096 + (p >> 2) * 2048 + (i & 1) * 1024}", "salu"))
                r.append(salu("s_add_u32", "s3", "s69", (128 * (p >> 1) + 32 * (p & 1) + 8 * i) * 2048))
                r.append(dma(vR, self.sR, "s3", 0, "", f"sw{p}"))
            return r

        def trans(p):
            if p >= o.nself:
                return []
            r = [Wait(vm=[f"sw{p}"])]
            for nt in range(4):
                d = int(regs(self.wreg0((p >> 1) * 4 + nt, p & 1))[0][1:])
                k = self.wreg0((p >> 1) * 4 + nt, p & 1)[0]
                for h in range(2):
                    dd = R(k, d + 2 * h, 2)
                    r.append(I(f"ds_read_b64_tr_b16 {dd}, {vT[nt >> 1]} offset:{(p & 3) * 8192 + (p >> 2) * 2048 + h * 512 + (nt & 1) * 8}", "dsr",
                               rd=[vT[nt >> 1]], wr=[dd]))
            return r

        b += rawdma(0, ns1)
        b.append(valu("v_mov_b32", self.t[2], 0))
        b.append(tagged(bstore(self.t[2], vL, self.sFm, 0, w="dword", flags=" sc1"), "pst"))
        b += self.calc_vG(vG) + self.calc_vS(vS)
        b += [valu("v_lshrrev_b32", t0, 1, vL), valu("v_and_b32", t0, 0x40, t0), valu("v_and_b32", t1, 0x30, vL),
              valu("v_or_b32", t0, t0, t1), valu("v_and_b32", t1, 0xc0, vL), valu("v_lshl_add_u32", t0, t1, 1, t0),
              valu("v_and_b32", t1, 0x100, vL), valu("v_lshl_add_u32", t0, t1, 2, t0),
              valu("v_and_b32", t1, 0x200, vL), valu("v_lshl_add_u32", t0, t1, 3, t0),
              valu("v_add_u32", vT[0], self.sLds, t0), valu("v_xor_b32", vT[1], 64, vT[0])]
        b += accinit(lambda a: not late(a) and not final(a) and a not in wbuf)
        b += self.prep_store()
        ns2 = max(ns1, o.ns2)
        b += rawdma(ns1, ns2)
        b += self.stamp("stores_issued")
        for m in range(3):
            b.append(Wait(vm=[R("v", tb + 2 * m, 2)]))
            for j in range(2):
                src = f"v{tb + 2 * m + j}"
                b.append(valu("v_lshlrev_b32", f"v{40 + 4 * m + 2 * j}", 16, src))
                b.append(valu("v_and_b32", f"v{41 + 4 * m + 2 * j}", self.sMask, src))
            b.append(dswrite("v31", R("v", 40 + 4 * m, 4), m * 4096))
        b.append(Wait(all_lg=True))
        b += accinit(late)
        issued = 0
        pdone = lambda p: [self.wreg0((p >> 1) * 4 + nt, p & 1) for nt in range(4)]
        assert ns2 >= 16 and psig <= ns2 // 4
        nearly = 8 if not o.rawlate else ns2 // 4
        for p in range(nearly + 1):
            if p == psig:
                b += [Wait(vm=["pst"]), barrier()] + self.wsignal()
                b += self.stamp("signalled")
                if not o.rawlate:
                    b += rawdma(ns2, 32)
            if p < nearly and (p < 4 or p < psig):
                b += trans(p)
            if p:
                want = min(16, 4 * p) if p > psig else min(4 * p, na)
                if want > issued:
                    b.append(Wait(lg=pdone(min(p - 1, 3))))
                    b += self.x0h_dma(0, issued, want, vG)
                    issued = want
            if p >= 4 and p >= psig:
                break
        b.append(Wait(lg=pdone(3)))
        b += self.x0h_dma(0, issued, 16, vG)
        if o.rawlate:
            b += rawdma(ns2, 32)
        for p in range(max(4, psig), nearly):
            b += trans(p)
        lateT = [x for p in range(max(nearly, psig), 8) for x in trans(p)]
        b += self.stamp("x0A_issued")
        nB = 0
        polled = False
        for bt in range(min(0, -lead), 9):
            want = min(16, 2 * (bt + lead + 1)) if bt < 8 else (o.nb_pro if o.nb_pro else 16)
            if nB < want and nB == 0:
                b += lateT + [Wait(all_lg=True)]
                lateT = []
            while nB < want:
                if nB == nB0:
                    b += self.wpoll_load()
                    polled = True
                b += self.x0h_dma(1, nB, nB + 1, vG)
                nB += 1
            if 0 <= bt < 8:
                b += self.x0h_read(0, bt, vS)
            if 0 < bt < 8:
                b += self.x0h_write(0, bt - 1)
            if bt == 7:
                b += self.x0h_write(0, 7)
        b += lateT
        if not polled:
            b += self.wpoll_load()
        self.nB_done = nB
        b.append(valu("v_mov_b32", "v8", vG))
        b += self.stamp("x0_part")
        b += accinit(final)
        b += [I(f"s_add_u32 s70, s70, {4096 * o.nself}\n s_addc_u32 s71, s71, 0", "salu", rd=["s[70:71]"], wr=["s[70:71]"]),
              salu("s_xor_b32", self.sXl, self.sRow, 1024), salu("s_mov_b32", "s20", 64),
              salu("s_mov_b32", "s21", 32768 - 64), salu("s_mov_b32", "s22", hex((128 - 64 - 7 * 32768) & 0xffffffff))]
        b += [Wait(all_lg=True), barrier()]
        b += [self.xread(j, i ^ (j & 1), 0, 0) for j in range(8) for i in range(2)]
        b.append(Wait(lg=[self.xf(j, c) for j in range(o.xw) for c in range(2)]))
        b += self.stamp("pro_done")
        return b

    def prologue_early(self, accinit, tb):
        o = self.o
        vL = self.vL
        b = []
        vG, vS = "v20", ["v21", "v22"]
        wbuf = set(r for s in range(16 - self.NS) for c in range(2) for r in regs(self.wreg0(s, c)))
        late = lambda a: a[0] == "v" and 32 <= int(a[1:]) < 64
        final = lambda a: a[0] == "v" and int(a[1:]) < 32
        na, nb, npoll, nB0 = o.x0split
        b.append(valu("v_mov_b32", self.t[2], 0))
        b.append(tagged(bstore(self.t[2], vL, self.sFm, 0, w="dword", flags=" sc1"), "pst"))
        b += self.calc_vG(vG) + self.calc_vS(vS)
        b += self.x0h_dma(0, 0, na, vG)
        b += accinit(lambda a: not late(a) and not final(a) and a not in wbuf)
        b += self.prep_store()
        b += self.stamp("stores_issued")
        b += self.x0h_dma(0, na, nb, vG)
        for m in range(3):
            b.append(Wait(vm=[R("v", tb + 2 * m, 2)]))
            for j in range(2):
                src = f"v{tb + 2 * m + j}"
                b.append(valu("v_lshlrev_b32", f"v{40 + 4 * m + 2 * j}", 16, src))
                b.append(valu("v_and_b32", f"v{41 + 4 * m + 2 * j}", self.sMask, src))
            b.append(dswrite("v31", R("v", 40 + 4 * m, 4), m * 4096))
        b.append(Wait(all_lg=True))
        b += accinit(late)
        b += [Wait(vm=["pst"]), barrier()] + self.wsignal()
        b += self.stamp("signalled")
        b += self.x0h_dma(0, nb, 16, vG)
        def only0(ins):
            if not o.poll0:
                return ins
            n = self.nseg = getattr(self, "nseg", 0) + 1
            for x in ins:
                x.note = "gy"
            return [salu("s_cmp_eq_u32", self.sWave, 0), raw(f"s_cbranch_scc0 Lseg{n}", "branch")] + ins + [Label(f"Lseg{n}")]

        for bt in range(8):
            if bt == npoll:
                b += only0(self.wpoll_load()) + self.x0h_dma(1, 0, nB0, vG)
            b += self.x0h_read(0, bt, vS)
            if bt:
                b += self.x0h_write(0, bt - 1)
        if npoll >= 8:
            b += only0(self.wpoll_load()) + self.x0h_dma(1, 0, nB0, vG)
        b += self.x0h_write(0, 7)
        b += self.stamp("x0_part")
        chk = self.poll_check("pro", self.sNeed, 64, self.wpoll_load)
        if o.poll0:
            b += only0(chk[:-1]) + chk[-1:]
            chk = []
        b += [Wait(all_lg=True), barrier()]
        xr = [self.xread(j, i ^ (j & 1), 0, 0) for j in range(8) for i in range(2)]
        if not o.poll0:
            b += xr + chk
            xr = []
        b += self.stamp("flag_seen")
        for s in range(16):
            b += [self.wload(s, 1, self.wreg0(s, 1)), self.wload(s, 0, self.wreg0(s, 0))]
            b += self.wstep(s)
            if s == 3:
                b += xr
        b += self.x0h_dma(1, nB0, max(nB0, o.nb_pro) if o.gather else 16, vG)
        b.append(valu("v_mov_b32", "v8", vG))
        b += accinit(final)
        if o.gather:
            b += [salu("s_xor_b32", self.sXl, self.sRow, 1024), salu("s_mov_b32", "s20", 64),
                  salu("s_mov_b32", "s21", 32768 - 64), salu("s_mov_b32", "s22", hex((128 - 64 - 7 * 32768) & 0xffffffff))]
        b.append(Wait(lg=[self.xf(j, c) for j in range(o.xw) for c in range(2)], vm=[self.wreg0(0, 0), self.wreg0(0, 1)]))
        b += self.stamp("pro_done")
        return b

    def build(self):
        o = self.o
        A, B, AB = [0, 1, 2, 3], [4, 5, 6, 7], list(range(8))
        e = (lambda s: []) if o.noepi else (lambda s: s)
        unit_end = lambda x: x.kind in ("vst", "dsw") and x.rd & {"v12"}
        safe_bias = lambda x: x.kind == "valu" and "add_f32" in x.text and not x.wr & set(self.t)
        pro = self.prologue()
        PL = o.pstamps - 1
        dA, dB = o.direct
        g0, g1, g2, g3 = o.sg
        ep = o.earlyprep
        if o.gather and o.early == 1:
            ini = []
            for s in range(16 - self.NS):
                ini.append(([valu("v_mov_b32", r, self.init) for c in range(2) for r in regs(self.wreg0(s, c))],
                            16 * s + 18, 16 * s + 30))
            nB1 = o.x0split[3]
            late = self.x0h_dma(1, max(nB1, o.nb_pro), 16, "v8")
            fx = []
            if o.selfw:
                late = self.x0h_dma(1, self.nB_done, 16, "v8")
                chk = self.poll_check("pro", self.sNeed, 64, self.wpoll_load)
                if o.nself < 8:
                    wl = []
                    for s in range(2 * o.nself, 16):
                        wl += [self.wload(s, 1, self.wreg0(s, 1)), self.wload(s, 0, self.wreg0(s, 0))] + self.wstep(s)
                    late = chk + wl + late
                else:
                    fx = [(self.site[16] * 16 + 2, chk)]
            s1a0 = self.phase(0, A, 0, 0, late, wreg=self.wreg0, skip_below=16, extra=ini, end=o.pub0_end, fixed=fx)
            s1a0 += self.stamp("s1a0")
            vS = [f"v{self.Q[0]}", f"v{self.Q[0] + 1}"]
            fix = self.calc_vS(vS)
            for bt in range(8):
                fix += self.x0h_read(1, bt, vS) + space(3)
                if bt:
                    fix += self.x0h_write(1, bt - 1)
            fix += space(4) + self.x0h_write(1, 7)
            s1a0 += self.phase(16, B, 0, 1, fix + self.calc_vB() + e(self.bias_stream(0)), bar=True,
                               pre_bar=[salu("s_add_u32", self.sPNeed, self.sPNeed, 1)])
            s1a0 += self.stamp("s1b0")
            if o.stamps:
                s1a0.append(raw(f"s_lshl_b32 {self.sSpin}, {self.sSpin}, 8"))
        elif o.gather:
            assert not o.early
            s1a0 = self.phase(0, A, 0, 0, []) + self.stamp("s1a0")
        elif o.early == 2:
            s1a0 = self.phase(0, A, 0, 0, self.x0pub_stream(0), end=o.pub0_end) + self.stamp("s1a0")
            st = insert_at(self.calc_vB() + e(self.bias_stream(0)), o.sig0_at, self.psignal(0), safe_bias)
            st = insert_at(st, o.poll0_at, self.ppoll_load(), safe_bias)
            if o.wsig2:
                st = st + self.prep_load()
            s1a0 += self.phase(16, B, 0, 1, st, bar=True, extra=[(self.x0pub_stream(1), 0, 230)],
                               pre_bar=self.poll_check("pa0", self.sPNeed, 1, self.ppoll_load))
            s1a0 += self.stamp("s1b0")
        elif o.early:
            ini = []
            for s in range(16 - self.NS):
                ini.append(([valu("v_mov_b32", r, self.init) for c in range(2) for r in regs(self.wreg0(s, c))],
                            16 * s + 18, 16 * s + 30))
            s1a0 = self.phase(0, A, 0, 0, self.x0pub_stream(0), wreg=self.wreg0, skip_below=16, extra=ini,
                              end=o.pub0_end) + self.stamp("s1a0")
            vS = [f"v{self.Q[0]}", f"v{self.Q[0] + 1}"]
            fix = self.calc_vS(vS)
            for bt in range(8):
                fix += self.x0h_read(1, bt, vS)
                if bt:
                    fix += self.x0h_write(1, bt - 1) + self.x0pub_stream(1, 2 * bt - 2, 2 * bt)
                if bt == 1:
                    fix += self.psignal(0)
            fix += self.x0h_write(1, 7) + self.x0pub_stream(1, 14, 16)
            st = insert_at(self.calc_vB() + e(self.bias_stream(0)), 0.6, self.ppoll_load(), safe_bias)
            s1a0 += self.phase(16, B, 0, 1, fix + st, bar=True,
                               pre_bar=self.poll_check("pa0", self.sPNeed, 1, self.ppoll_load))
            s1a0 += self.stamp("s1b0")
        else:
            s1a0 = self.phase(0, A, 0, 0, (self.prep_load() if ep else []) + self.x0pub_stream(0) +
                              self.x0pub_stream(1, 0, dB) + (self.psignal(0) if dA == 16 else [])) + self.stamp("s1a0")
        lp = o.lateprep
        st = (self.prep_store() if ep else [] if lp else self.prep_load()) + self.calc_vB() + e(
            self.bias_stream(0, one=self.small and dB < 16))
        if o.wsig2:
            st = st + self.prep_load()
        if dA < 16:
            st = insert_at(st, o.siga2_at, self.psignal(0), safe_bias)
        if dB == 16 and not o.early:
            st = insert_at(st, o.sigb_at, self.psignal(1), safe_bias)
        fx2 = [(o.pollb_gap, self.ppoll_load()), (g3 + 1 if o.db2 else 1, self.xnext(self.sXs, 0))]
        if dB < 16 or o.early:
            fx2.append((g3, self.psignal(1)))
        if g0 < 0:
            st = insert_at(st, o.polla_at, self.ppoll_load(), safe_bias)
            pb1 = self.poll_check("pa", self.sPNeed, 1, self.ppoll_load)
            g1 = -1
        else:
            assert not o.early
            pb1 = []
            fx2 += [(g0, self.ppoll_load()), (g1, self.poll_check("pa", self.sPNeed, 1, self.ppoll_load))]
        if ep:
            pb1 = [Wait(vm=["pst"])] + pb1
            fx2.append((3, self.wsignal()))
        s1b = [Label("Ls1b")] + self.phase(16, B, 0, 1, st, bar=True, pre_bar=pb1, end=o.bias_end or None,
                                            extra=[(self.pub_stream(1, dB, 16 - o.db2), 0, 232)])
        s2 = self.phase(32, AB, 1, 0, self.xch_dma(0) + ([] if ep or lp else self.prep_store()), bar=True, start=g1 + 1, end=g2, fixed=fx2,
                        post_bar=self.xr_gathered(),
                        extra=[(self.prep_store(10) if o.wsig2 else self.prep_load() if lp else [], lp, lp + (30 if o.wsig2 else 12)),
                               (self.pub_guard(self.pub_stream(1, 16 - o.db2, 16)), 2, max(3, g3 - 40))],
                        pre_bar=[Wait(vm=["xl0", "pst"] if o.wsig2 else ["xl0"])] + self.poll_check("pb", self.sPNeed, 1, self.ppoll_load))
        s3 = self.phase(64, AB, 0, 1, self.xch_dma(1), bar=True, end=o.dma_end, pre_bar=[Wait(vm=["xl1", "pst"])],
                        extra=[(self.wsignal(), 2, 6)] if o.wsig2 else
                        [(self.prep_store(10) if lp else [], o.preps_at, o.preps_at + 30)])
        s1b[1:1] = self.lstamp("pre", PL) if PL > 0 else []
        s1b += self.lstamp("s1b", PL)
        s2 += self.lstamp("s2", PL)
        s3 += self.lstamp("s3", PL)
        if o.tail4:
            s3 += [salu("s_cmp_eq_u32", self.sL, NL - 1), raw("s_cbranch_scc1 Llast", "branch")]
        s4a = self.phase(96, A, 1, 1, ([] if ep or o.wsig2 else self.wsignal()) + (self.calc_vB() if self.small else []) + e(self.bias_stream(1)),
                         end=o.bias_end or None)
        if o.gather:
            s4a += self.xch_switch()
        s4a += self.lstamp("s4a", PL)
        s4a += [salu("s_add_u32", self.sBias, self.sBias, 2048), salu("s_add_u32", self.sL, self.sL, 1)]
        if not o.tail4:
            s4a += [salu("s_cmp_eq_u32", self.sL, NL), raw("s_cbranch_scc1 Llast", "branch")]
        st = insert_at(e(self.epi_stream(0, dA)), o.pollw_at, self.wpoll_load(), unit_end)
        chk = (self.site[128] - 112) * 16 + 2
        s4b = self.phase(112, B, 1, 0, st, bar=True, post_bar=self.xr_plain(),
                         fixed=[(chk, self.poll_check("w", self.sNeed, 64, self.wpoll_load))])
        s4b += self.lstamp("s4b", PL + 1)
        st = e(self.epi_stream(1, dB, one=self.small and dA < 16))
        if dA == 16:
            st = insert_at(st, o.siga_at, self.psignal(0), unit_end)
        if ep:
            st = insert_at(st, o.prepl_at, self.prep_load(), unit_end)
        s1a = self.phase(0, A, 0, 0, st, extra=[(self.pub_stream(0, dA, 16), 0, o.puba_end)])
        if o.stamps:
            s1a += [raw(f"s_cmp_eq_u32 s25, {max(1, o.pstamps)}"), raw("s_cbranch_scc0 Lnostamp")] + self.stamp("layer1") + [
                raw("s_memrealtime s[4:5]"), Label("Lnostamp")]
        if o.early:
            assert lp
            s2 = [Label("Lloop")] + s2
            s1b += [raw("s_branch Lloop", "branch")]
        else:
            s1a += [raw("s_branch Ls1b", "branch")]
        s4bl = [Label("Llast")] + self.stamp("4.75layers") + ([raw("s_memrealtime s[6:7]")] if o.stamps else [])
        if o.tail4:
            s4bl += self.phase(96, [0, 1], 1, 1, self.calc_vB() + self.bias_stream(1), last=True)
            s4bl += self.phase(104, [2, 3], 1, 1, self.out_stream4(0), last=True)
            s4bl += self.phase(112, [4, 5], 1, 1, self.out_stream4(1), last=True)
            s4bl += self.phase(120, [6, 7], 1, None, self.out_stream4(2), last=True)
            tail = self.stamp("s4b_last") + [nop(7)] + self.out_stream4(3)
        else:
            s4bl += self.phase(112, B, 1, None, self.out_stream(0), last=True)
            tail = self.stamp("s4b_last") + [nop(7)] + [x for x in self.out_stream(1) if x.kind != "space"]
        if o.stamps:
            tail += self.stamp("tail_issued")
            tail += [Wait(all_vm=True)]
            tail += self.stamp("tail_drained")
            tail.append(raw("s_memrealtime s[38:39]"))
            tail.append(raw("s_waitcnt lgkmcnt(0)"))
            tail.append(raw("v_cmp_eq_u32 vcc, 0, v0"))
            tail.append(raw("s_and_saveexec_b64 s[68:69], vcc"))
            tail.append(raw("s_cbranch_execz Lend"))
            if o.dbgout >= 0:
                tail += [raw(f"s_cmp_lg_u32 s2, {o.dbgout}"), raw("s_cbranch_scc1 Lend"), raw("v_mov_b32 v1, 0")]
                tail += [raw("s_sub_u32 s3, s38, s36"), raw("v_mov_b32 v2, s3"),
                         raw("buffer_store_dword v2, v1, s[44:47], 0 offen offset:4"),
                         raw("s_sub_u32 s3, s6, s4"), raw("v_mov_b32 v2, s3"),
                         raw("buffer_store_dword v2, v1, s[44:47], 0 offen offset:8"),
                         raw("v_mov_b32 v2, s53"), raw("buffer_store_dword v2, v1, s[44:47], 0 offen offset:12")]
                for n in range(1, min(self.stampn, 13)):
                    tail += [raw(f"s_sub_u32 s3, s{72 + 2 * n}, s{70 + 2 * n}"), raw("v_mov_b32 v2, s3"),
                             raw(f"buffer_store_dword v2, v1, s[44:47], 0 offen offset:{12 + 4 * n}")]
            else:
                tail.append(raw("s_lshl_b32 s3, s2, 8"))
                tail.append(raw(f"s_add_u32 s3, s3, {WS_STAMP}"))
                tail.append(raw("v_mov_b32 v1, 0"))
                for n, i in enumerate(list(range(36, 40)) + list(range(72, 102)) + [4, 5, 6, 7, 53]):
                    tail.append(raw(f"v_mov_b32 v2, s{i}"))
                    tail.append(raw(f"buffer_store_dword v2, v1, s[32:35], s3 offen offset:{n * 4}"))
        tail += [Label("Lend"), raw("s_endpgm")]
        rest = s1a0 + ([] if o.early else s1b)
        for l in range(NL - 1):
            rest = rest + s2 + s3 + s4a + s4b + s1a + s1b
        rest = rest + s2 + s3 + ([] if o.tail4 else s4a) + s4bl + tail
        traces = [[x for x in pro if x.note != skip] + rest for skip in ("gx", "gy")]
        for tr in traces:
            resolve_waits(tr)
        for tr in traces:
            errs, mv, ml = check(tr)
            if errs and not o.now and o.slots <= 6:
                for x in errs[:20]:
                    print(x, file=sys.stderr)
                raise SystemExit("hazard/dependency errors")
        if o.early:
            prog = pro + s1a0 + s2 + s3 + s4a + s4b + s1a + s1b + s4bl + tail + self.ool
        else:
            prog = pro + s1a0 + s1b + s2 + s3 + s4a + s4b + s1a + s4bl + tail + self.ool
        txt = f".globl {KNAME}\n.p2align 8\n.type {KNAME},@function\n{KNAME}:\n" + emit(prog) + "\n"
        txt = "; stamps: " + " ".join(self.names) + "\n" + txt
        return txt, kd(KNAME, 512, 102, 256)


def main():
    ap = argparse.ArgumentParser()
    ap.add_argument("-o", default="standalone__cross_network_dcn__recsys.s")
    ap.add_argument("--slots", type=int, default=6)
    ap.add_argument("--wflags", default="sc1")
    ap.add_argument("--xflags", default="")
    ap.add_argument("--oflags", default="nt")
    ap.add_argument("--rflags", default="")
    ap.add_argument("--xsflags", default="sc1")
    ap.add_argument("--xlflags", default="")
    ap.add_argument("--bar_lead", type=int, default=6)
    ap.add_argument("--xw", type=int, default=4)
    ap.add_argument("--x0split", type=int, nargs=4, default=[4, 4, 8, 0])
    ap.add_argument("--sigb_at", type=float, default=0.45)
    ap.add_argument("--polla_at", type=float, default=0.85)
    ap.add_argument("--siga_at", type=float, default=0.45)
    ap.add_argument("--pollw_at", type=float, default=0.3)
    ap.add_argument("--pollb_gap", type=int, default=386)
    ap.add_argument("--dma_end", type=int, default=440)
    ap.add_argument("--stamps", action="store_true")
    ap.add_argument("--db2", type=int, default=4, help="B units published in S2")
    ap.add_argument("--revb", type=int, default=1)
    ap.add_argument("--jitter", type=int, default=0, help="diagnostic: probability/256 of a delay per phase")
    ap.add_argument("--init", default="", help="accumulator start value (hex float bits)")
    ap.add_argument("--tail4", type=int, default=0)
    ap.add_argument("--nself", type=int, default=8)
    ap.add_argument("--rawlate", type=int, default=0)
    ap.add_argument("--ns2", type=int, default=24)
    ap.add_argument("--selfw", type=int, default=1)
    ap.add_argument("--selfp", type=int, nargs=5, default=[16, 4, 8, 0, -7],
                    help="raw DMAs before the prep stores, piece before which to signal, x0A DMAs before the signal, x0B DMAs before the poll, x0B lead")
    ap.add_argument("--wbunch", type=int, default=1)
    ap.add_argument("--bias_end", type=int, default=0)
    ap.add_argument("--quadg", type=int, default=1)
    ap.add_argument("--dmagroup", type=int, default=1)
    ap.add_argument("--poll0", type=int, default=1)
    ap.add_argument("--nox", action="store_true", help="diagnostic")
    ap.add_argument("--nost", action="store_true", help="diagnostic")
    ap.add_argument("--nodma", action="store_true", help="diagnostic")
    ap.add_argument("--nobias", action="store_true", help="diagnostic")
    ap.add_argument("--shift", type=int, default=0)
    ap.add_argument("--cpfsplit", type=int, default=1)
    ap.add_argument("--backoff", type=int, default=0)
    ap.add_argument("--w0prep", type=int, default=0)
    ap.add_argument("--nb_pro", type=int, default=6, help="early mode: x0 B-half DMAs issued before the first MFMA")
    ap.add_argument("--dmapair", type=int, default=10)
    ap.add_argument("--dbgout", type=int, default=-1)
    ap.add_argument("--tailpk", type=int, default=1)
    ap.add_argument("--gather", type=int, default=1)
    ap.add_argument("--wsig2", type=int, default=0)
    ap.add_argument("--stagger", type=int, default=-1, help="workgroup-id bit selecting the late group")
    ap.add_argument("--ynb", type=int, default=4)
    ap.add_argument("--sig0_at", type=float, default=0.1)
    ap.add_argument("--poll0_at", type=float, default=0.7)
    ap.add_argument("--verbose", action="store_true")
    ap.add_argument("--gload", type=int, default=1)
    ap.add_argument("--pace", type=float, default=0.1)
    ap.add_argument("--early", type=int, default=1)
    ap.add_argument("--pub0_end", type=int, default=40)
    ap.add_argument("--earlyprep", type=int, default=0)
    ap.add_argument("--lateprep", type=int, default=400)
    ap.add_argument("--preps_at", type=int, default=330)
    ap.add_argument("--prepl_at", type=float, default=0.1)
    ap.add_argument("--wdelay", type=int, default=2)
    ap.add_argument("--short_at", type=int, default=72)
    ap.add_argument("--pkmul", type=int, default=0)
    ap.add_argument("--pkadd", type=int, default=0)
    ap.add_argument("--apub", type=int, default=0, help="publish x0's A half in the prologue")
    ap.add_argument("--cpf", type=int, default=4, help="code prefetch loads per wave (16 KB each)")
    ap.add_argument("--desync", type=int, default=0, help="diagnostic")
    ap.add_argument("--direct", type=int, nargs=2, default=[12, 4])
    ap.add_argument("--siga2_at", type=float, default=0.08)
    ap.add_argument("--puba_end", type=int, default=160)
    ap.add_argument("--sg", type=int, nargs=4, default=[-1, 0, 390, 150])
    ap.add_argument("--delay", type=int, default=0, help="diagnostic")
    ap.add_argument("--touch", type=int, default=0, help="diagnostic")
    ap.add_argument("--pstamps", type=int, default=0, help="phase stamps in layer N-1")
    ap.add_argument("--xbase", type=int, default=32)
    ap.add_argument("--xbufs", type=int, default=6)
    ap.add_argument("--now", action="store_true", help="diagnostic: no W loads in the loop")
    ap.add_argument("--noxch", action="store_true", help="diagnostic: no exchange traffic")
    ap.add_argument("--noepi", action="store_true", help="diagnostic: no epilogue/bias in the loop")
    o = ap.parse_args()
    for k in ("wflags", "xflags", "oflags", "rflags", "xsflags", "xlflags"):
        v = getattr(o, k)
        setattr(o, k, (" " + v.replace(",", " ")) if v and v != "none" else "")
    mtxt, mkd = Main(o).build()
    opts = " ".join(a for a in sys.argv[1:] if not a.endswith(".s") and a != "-o")
    s = HEADER.format(opts=opts)
    s += f"; @launch grid=(256,1,1) block=(256,1,1) lds={LDS_TOTAL}\n"
    s += '.amdgcn_target "amdgcn-amd-amdhsa--gfx950"\n.text\n'
    s += mtxt + mkd
    open(o.o, "w").write(s)
    print(o.o, len(s), "bytes")


if __name__ == "__main__":
    main()
```

```python
import argparse
import sys
from asmir import *

KNAME = "standalone__cross_network_dcn__recsys_kernel"
NL = 6
D = 1024
NB = 16384
MB = 1 << 20

HEADER = """; Kernarg layout for this problem (48 bytes, ptrs only, base s[0:1]):
;   offset  40: d_ws      268435456 bytes workspace
; Generated by gen/gen3.py (hand-written generator). Options: {opts}
"""

LDS_BIAS = 131072
LDS_STAGE = LDS_BIAS + NL * 512 * 4
LDS_TOTAL = LDS_STAGE + 8192
WS_FLAGS = 15 * MB
WS_XCH = 32 * MB
WS_STAMP = 16 * MB


def kd(name, vgpr, sgpr, accum):
    return f""".section .rodata,"a"
.p2align 6
.amdhsa_kernel {name}
  .amdhsa_next_free_vgpr {vgpr}
  .amdhsa_next_free_sgpr {sgpr}
  .amdhsa_accum_offset {accum}
  .amdhsa_group_segment_fixed_size 0
  .amdhsa_kernarg_size 48
  .amdhsa_user_sgpr_count 2
  .amdhsa_user_sgpr_kernarg_segment_ptr 1
  .amdhsa_system_sgpr_workgroup_id_x 1
  .amdhsa_float_denorm_mode_32 3
.end_amdhsa_kernel
"""


def srd(base, lo, hi, nbytes):
    return [salu("s_mov_b32", f"s{base}", lo), salu("s_mov_b32", f"s{base + 1}", hi),
            salu("s_mov_b32", f"s{base + 2}", hex(nbytes)), salu("s_mov_b32", f"s{base + 3}", "0x20000")]


def srd_off(base, lo, hi, off, nbytes):
    return [salu("s_add_u32", f"s{base}", lo, off), salu("s_addc_u32", f"s{base + 1}", hi, 0),
            salu("s_mov_b32", f"s{base + 2}", hex(nbytes)), salu("s_mov_b32", f"s{base + 3}", "0x20000")]


def sload(d, off, n=2):
    return I(f"s_load_dwordx{n} {d}, s[0:1], {off}", "smem", wr=[d])


def tagged(ins, tag):
    ins.wr = set(ins.wr) | {tag}
    return ins


def dma(voff, srdn, soff, off, flags, tag):
    o = f" offset:{off}" if off else ""
    return tagged(I(f"buffer_load_dwordx4 {voff}, {srdn}, {soff} offen{o}{flags} lds", "vld", rd=[voff]), tag)


def hoist(ins):
    ins.note = "hoist"
    return ins


def space(n):
    return [I("", "space") for _ in range(n)]


def insert_at(stream, frac, items, ok):
    i = int(len(stream) * frac)
    while 0 < i < len(stream) and not ok(stream[i - 1]):
        i += 1
    return stream[:i] + items + stream[i:]


class Main:
    def __init__(self, o):
        self.o = o
        self.sX, self.sW, self.sO, self.sB = "s[8:11]", "s[12:15]", "s[16:19]", "s[20:23]"
        self.sE, self.sR, self.sD = "s[32:35]", "s[40:43]", "s[44:47]"
        self.sC, self.sFm, self.sFp = "s[56:59]", "s[60:63]", "s[64:67]"
        self.sWoff, self.sL, self.sMask, self.sNeed = "s24", "s25", "s26", "s27"
        self.sRow, self.sXs, self.sXl, self.sFlag = "s28", "s29", "s30", "s31"
        self.sRaw, self.sDst, self.sLds, self.sBias, self.sStage, self.sSpin, self.sWave, self.sPNeed = (
            "s48", "s49", "s50", "s51", "s52", "s53", "s54", "s55")
        self.vW, self.vXw, self.vB = "v0", "v3", "v4"
        self.vXr = ["v1", "v2"]
        self.vL = "v1"
        self.t = ["v5", "v6", "v7"]
        self.Q = [8, 12]
        self.vP, self.vG = "v16", "v17"
        self.vS = ["v18", "v19"]
        self.RQ = [20, 24]
        self.NS = o.slots
        self.aX0 = 0
        self.aXF = 128
        self.aW = 192
        self.aACC = self.aW + 8 * min(self.NS, 6)
        self.nA = 256 - self.aACC
        self.vACC = self.nA
        NS = self.NS
        nshort = (-128) % NS
        nlong = (128 - nshort * (NS - 1)) // NS
        first = min(nlong, o.short_at // NS)
        seq = list(range(NS)) * first + list(range(NS - 1)) * nshort + list(range(NS)) * (nlong - first)
        assert len(seq) == 128
        self.slot = seq
        site = {}
        for s2 in range(-128, 256):
            p = s2 - 1
            while seq[p % 128] != seq[s2 % 128]:
                p -= 1
            site[s2] = max(p, site.get(s2 - 1, -10 ** 9))
        if o.wbunch > 1:
            k = o.wbunch
            for s2 in site:
                site[s2] = ((site[s2] // k) + 1) * k - 1
        self.site = site
        self.loads_at = {}
        for s2 in range(0, 256):
            self.loads_at.setdefault(site[s2], []).append(s2)
        self.small = self.vACC < 28
        if self.small:
            self.vP = self.vB
            q0 = [int(self.acc_tile(nt, 0, 0, 1)[1:]) for nt in range(4)]
            self.vG, self.vS, self.RQ = f"v{q0[0]}", [f"v{q0[0] + 1}", f"v{q0[0] + 2}"], [q0[1], q0[2]]
        self.init = "1.0" if not o.init else "s23"
        self.stampn = 0
        self.names = []
        self.ool = []

    def acc(self, p, i, n=1):
        h = self.nA // 2
        nv = 128 - h
        if i < nv:
            assert i + n <= nv
            return R("v", self.vACC + p * nv + i, n)
        return R("a", self.aACC + p * h + (i - nv), n)

    def acc_tile(self, nt, bt, r=0, n=4):
        return self.acc(nt >> 2, ((nt & 3) * 8 + bt) * 4 + r, n)

    def x0reg(self, kbl, bt, j=0, n=4):
        return R("a", self.aX0 + (kbl * 8 + bt) * 4 + j, n)

    def xf(self, bt, c):
        return R("a", self.aXF + (bt * 2 + c) * 4, 4)

    def wslot(self, s, c):
        if self.slot[s % 128] >= 6:
            return R("a", ((self.slot[s % 128] - 6) * 2 + c) * 4, 4)
        return R("a", self.aW + (self.slot[s % 128] * 2 + c) * 4, 4)

    def wload(self, s, c, dst=None):
        if self.o.gload:
            d = dst or self.wslot(s, c)
            off = (s & 3) * 2048 + c * 1024 - 4096
            return I(f"global_load_dwordx4 {d}, {self.vW}, s[70:71] offset:{off}{self.o.wflags}", "vld",
                     rd=[self.vW, "s[70:71]"], wr=[d])
        return bload(dst or self.wslot(s, c), self.vW, self.sW, self.sWoff, (s & 1) * 2048 + c * 1024, flags=self.o.wflags)

    def wstep(self, s):
        if self.o.gload:
            if (s & 3) != 3:
                return []
            d = 8192 if (s % 128) != 127 else 8192 + 2 * MB - 256 * 1024
            both = I(f"s_add_u32 s70, s70, {d}\n s_addc_u32 s71, s71, 0", "salu", rd=["s[70:71]"], wr=["s[70:71]"])
            both.states = 2
            return [both]
        if not s & 1:
            return []
        return [salu("s_add_u32", self.sWoff, self.sWoff, 4096 if (s % 128) != 127 else 4096 + 2 * MB - 256 * 1024)]

    def xread(self, bt, c, rho, ss):
        return dsread(self.xf(bt, c), self.vXr[ss >> 1], (ss & 1) * 32768 + bt * 4096 + rho * 2048 + c * 1024)

    def stamp(self, name="x"):
        if not self.o.stamps:
            return []
        if self.o.pstamps and name in ("kernarg", "x0A_issued", "stores_issued", "signalled", "x0_issued", "x0_part", "flag_seen"):
            return []
        n = self.stampn
        self.stampn += 1
        self.names.append(name)
        assert n < 15
        return [raw(f"s_memtime s[{72 + 2 * n}:{73 + 2 * n}]", "other")]

    def lstamp(self, name, lval):
        if not self.o.pstamps:
            return []
        n = self.stampn
        return [raw(f"s_cmp_eq_u32 s25, {lval}"), raw(f"s_cbranch_scc0 Lns{n}")] + self.stamp(name) + [Label(f"Lns{n}")]

    def epi_unit(self, kbl, bt, q, pk=False):
        s = []
        accs = [self.acc_tile(2 * kbl + t, bt, r, 1) for t in range(2) for r in range(4)]
        hi, lo, m = self.t
        for j in range(4):
            a0, a1 = accs[2 * j], accs[2 * j + 1]
            if self.o.pkmul or pk:
                s.append(valu("v_accvgpr_read_b32", "v7", self.x0reg(kbl, bt, j, 1)))
                ap = f"v[{a0[1:]}:{a1[1:]}]"
                if a0[0] == "a":
                    tp = int(self.acc_tile(3, 0, 0, 1)[1:]) if pk else 28
                    s.append(valu("v_accvgpr_read_b32", f"v{tp}", a0))
                    s.append(valu("v_accvgpr_read_b32", f"v{tp + 1}", a1))
                    ap = R("v", tp, 2)
                s.append(valu("v_lshlrev_b32", "v6", 16, "v7"))
                s.append(valu("v_and_b32", "v7", self.sMask, "v7"))
                s.append(valu("v_pk_mul_f32", "v[6:7]", "v[6:7]", ap))
                s.append(valu("v_cvt_pk_bf16_f32", f"v{q + j}", "v6", "v7"))
                continue
            s.append(valu("v_accvgpr_read_b32", hi, self.x0reg(kbl, bt, j, 1)))
            if a0[0] == "a":
                s.append(valu("v_accvgpr_read_b32", m, a0))
                a0 = m
            s.append(valu("v_lshlrev_b32", lo, 16, hi))
            s.append(valu("v_and_b32", hi, self.sMask, hi))
            s.append(valu("v_mul_f32", lo, lo, a0))
            if a1[0] == "a":
                s.append(valu("v_accvgpr_read_b32", m, a1))
                a1 = m
            s.append(valu("v_mul_f32", hi, hi, a1))
            s.append(valu("v_cvt_pk_bf16_f32", f"v{q + j}", lo, hi))
        return s

    def xstore(self, src, p, u, tmp, state):
        if self.o.noxch or self.o.nost:
            return []
        s = []
        off = p * 16384 + u * 1024
        if state.get("g") != off >> 12:
            state["g"] = off >> 12
            s.append(salu("s_add_u32", tmp, self.sXs, off & ~4095))
        s.append(tagged(bstore(src, self.vXw, self.sE, tmp, off & 4095, flags=self.o.xsflags), f"xs{p}"))
        return s

    def xnext(self, reg, back):
        n = self.o.xbufs
        if n == 1:
            return [salu("s_sub_u32", reg, reg, back)]
        if n == 2:
            return [salu("s_sub_u32", reg, reg, back), salu("s_xor_b32", reg, reg, hex(32 * MB))]
        return [salu("s_add_u32", reg, reg, hex(32 * MB - back))]

    def epi_stream(self, p, ndirect=16, one=False, units=None):
        s = []
        st = {}
        for n, u in enumerate(range(16) if units is None else units):
            bt, c = u >> 1, u & 1
            q = self.Q[0 if one else n & 1]
            s += self.epi_unit(2 * p + c, bt, q)
            s.append(dswrite(self.vXw, R("v", q, 4), bt * 4096 + p * 2048 + c * 1024))
            if n < ndirect:
                s += self.xstore(R("v", q, 4), p, u, "s68", st)
        return s

    def pub_stream(self, p, lo, hi, units=None):
        s = []
        st = {}
        if self.o.noxch or lo >= hi:
            return s
        if self.small:
            q = R("v", self.Q[1], 4)
            for u in (units or range(16))[lo:hi]:
                s.append(dsread(q, self.vXw, (u >> 1) * 4096 + p * 2048 + (u & 1) * 1024))
                s += space(7)
                s.append(Wait(lg=[q]))
                s += self.xstore(q, p, u, "s69", st) + space(2)
            return s

        def rd(u):
            return dsread(R("v", self.RQ[u & 1], 4), self.vXw, (u >> 1) * 4096 + p * 2048 + (u & 1) * 1024)

        s.append(rd(lo))
        s += space(6)
        for u in range(lo, hi):
            if u + 1 < hi:
                s.append(rd(u + 1))
            s.append(Wait(lg=[R("v", self.RQ[u & 1], 4)]))
            s += self.xstore(R("v", self.RQ[u & 1], 4), p, u, "s69", st)
        return s

    def pub_guard(self, st):
        return st

    def x0pub_stream(self, p, lo=0, hi=16):
        s = []
        st = {}
        for u in range(lo, hi):
            s += self.xstore(self.x0reg(2 * p + (u & 1), u >> 1), p, u, "s68", st)
        return s

    def xch_dma(self, p):
        if self.o.gather:
            return self.xch_dma_g(p)
        s = [raw(f"s_add_u32 m0, {self.sLds}, {p * 2048}", "salu", rd=[self.sLds])] + space(1)
        for bt in range(8):
            for c in range(2):
                if not self.o.noxch:
                    s.append(dma(self.vXw, self.sE, self.sXl, c * 1024, self.o.xlflags, f"xl{p}"))
            if bt < 7:
                s.append(raw("s_add_u32 m0, m0, 4096", "salu"))
            if bt == 7 and p == 1:
                s += self.xnext(self.sXl, 15 * 2048)
            else:
                s.append(salu("s_add_u32", self.sXl, self.sXl, 2048))
        return s

    def xch_dma_g(self, p):
        t0, t1 = self.t[0], self.t[1]
        vL = self.vL
        if self.o.quadg:
            X = self.vXw
            self.ool += [Label(f"Lgat{p}"),
                         raw(f"v_lshrrev_b32 {t0}, 4, {X}"), raw(f"v_and_b32 {t0}, 0x20, {t0}"), raw(f"v_xor_b32 {t0}, {t0}, {X}"),
                         raw(f"v_and_b32 {t0}, 0x30, {t0}"), raw(f"v_bfe_u32 {t1}, {X}, 6, 4"),
                         raw(f"v_lshl_add_u32 {t1}, {t1}, 11, {t0}"), raw(f"s_branch Lgatr{p}")]
        else:
            self.ool += [Label(f"Lgat{p}"),
                         raw(f"v_and_b32 {t0}, 0xf0, {vL}"), raw(f"v_lshrrev_b32 {t1}, 4, {vL}"),
                         raw(f"v_and_b32 {t1}, 0x30, {t1}"), raw(f"v_lshl_add_u32 {t1}, {t0}, 7, {t1}"),
                         raw(f"s_branch Lgatr{p}")]
        sel = I(f"v_mov_b32 {t1}, {self.vXw}\n s_cmp_eq_u32 {self.sL}, 0\n s_cbranch_scc1 Lgat{p}\nLgatr{p}:", "valu",
                rd=[self.vXw], wr=[t0, t1])
        s = [sel, raw(f"s_add_u32 m0, {self.sLds}, {p * 2048}", "salu", rd=[self.sLds])] + space(1)
        for bt in range(8):
            for c in range(2):
                if not self.o.noxch and not self.o.nodma:
                    s.append(dma(t1, self.sX, self.sXl, 0, self.o.xlflags, f"xl{p}"))
                s.append(raw(f"s_add_u32 m0, m0, {1024 if c == 0 else 3072}", "salu"))
                s.append(salu("s_add_u32", self.sXl, self.sXl, "s20" if c == 0 else "s21" if bt < 7 else "s22"))
            if bt < 7 and (bt + 1) % self.o.dmagroup == 0:
                s += space(self.o.dmapair * self.o.dmagroup)
        return s

    def xr_gathered(self):
        if not self.o.quadg:
            return []
        t0, X, r0, r1 = self.t[0], self.vXw, self.vXr[0], self.vXr[1]
        self.ool += [Label("Lxrg"),
                     raw(f"v_lshrrev_b32 {t0}, 2, {X}"), raw(f"v_and_b32 {t0}, 0x20, {t0}"),
                     raw(f"v_lshrrev_b32 {r1}, 4, {X}"), raw(f"v_xor_b32 {t0}, {t0}, {r1}"),
                     raw(f"v_and_b32 {t0}, 0x30, {t0}"), raw(f"v_bfe_u32 {r0}, {X}, 4, 4"),
                     raw(f"v_lshl_add_u32 {r0}, {r0}, 6, {t0}"), raw(f"v_add_u32 {r1}, 0x10000, {r0}"),
                     raw("s_branch Lxrgr")]
        return [I(f"s_cmp_eq_u32 {self.sL}, 0\n s_cbranch_scc1 Lxrg\nLxrgr:", "valu", rd=[X], wr=[t0, r0, r1])]

    def xr_plain(self):
        if not self.o.quadg:
            return []
        return [valu("v_and_b32", self.vXr[0], 0x3ff, self.vXw), valu("v_add_u32", self.vXr[1], 65536, self.vXr[0])]

    def xch_switch(self):
        return [salu("s_mov_b32", "s34", hex(256 * MB)),
                salu("s_mov_b32", "s8", "s32"), salu("s_mov_b32", "s9", "s33"), salu("s_mov_b32", "s10", "s34"),
                salu("s_mov_b32", "s20", 1024), salu("s_mov_b32", "s21", 1024), salu("s_mov_b32", "s22", 1024),
                salu("s_xor_b32", self.sXl, self.sXs, 1 << 17)]

    def calc_vG(self, vG):
        t0, t1 = self.t[0], self.t[1]
        return [valu("v_lshrrev_b32", t0, 7, self.vL), valu("v_lshlrev_b32", t1, 4, t0),
                valu("v_xor_b32", t1, t1, self.vL), valu("v_and_b32", t1, 0x70, t1),
                valu("v_lshl_add_u32", vG, t0, 11, t1)]

    def calc_vS(self, vS):
        t0, t1 = self.t[0], self.t[1]
        vL = self.vL
        return [valu("v_lshrrev_b32", t0, 4, vL), valu("v_and_b32", t0, 0x30, t0), valu("v_xor_b32", t0, t0, vL),
                valu("v_and_b32", t0, 0x70, t0), valu("v_and_b32", t1, 0xf0, vL),
                valu("v_lshl_add_u32", t0, t1, 3, t0), valu("v_add_u32", vS[0], self.sLds, t0),
                valu("v_xor_b32", vS[1], 64, vS[0])]

    def out_setup(self):
        return self.calc_vG(self.vG) + self.calc_vS(self.vS)

    def x0h_dma(self, p, lo, hi, vG):
        r = []
        for i in range(lo, hi):
            r.append(raw(f"s_add_u32 m0, {self.sLds}, {(i >> 1) * 4096 + p * 2048 + (i & 1) * 1024}", "salu"))
            r.append(salu("s_add_u32", "s3", self.sRow, i * 16384 + p * 128))
            r.append(dma(vG, self.sX, "s3", 0, self.o.xflags, f"x0_{p}_{i >> 1}"))
        return r

    def x0h_read(self, p, bt, vS):
        return [Wait(vm=[f"x0_{p}_{bt}"])] + [dsread(self.x0reg(2 * p + c, bt), vS[c], bt * 4096 + p * 2048)
                                              for c in range(2)]

    def x0h_write(self, p, bt):
        return [Wait(lg=[self.x0reg(2 * p + c, bt) for c in range(2)])] + [
            dswrite(self.vXw, self.x0reg(2 * p + c, bt), bt * 4096 + p * 2048 + c * 1024) for c in range(2)]

    def wreg0(self, s, c):
        if s < 16 - self.NS:
            return self.acc(1, (s * 2 + c) * 4, 4)
        return self.wslot(s, c)

    def out_stream(self, p):
        s = []
        pend = []
        for bt in range(8):
            for c in range(2):
                q = self.Q[c]
                u = self.epi_unit(2 * p + c, bt, q, pk=(p == 1 and self.o.tailpk))
                if c == 0 and pend:
                    u = u[:12] + pend + u[12:]
                    pend = []
                s += u
                if p == 0 and bt == 0 and c == 0:
                    s += self.out_setup()
                s.append(dswrite(self.vS[c], R("v", q, 4), bt * 4096))
            for i in range(2):
                s.append(dsread(R("v", self.RQ[i], 4), self.vXw, bt * 4096 + i * 1024))
            for i in range(2):
                pend.append(Wait(lg=[R("v", self.RQ[i], 4)]))
                pend.append(salu("s_add_u32", "s3", self.sRow, bt * 32768 + i * 16384))
                pend.append(bstore(R("v", self.RQ[i], 4), self.vG, self.sO, "s3", p * 128, flags=self.o.oflags))
        return s + pend

    def out_stream4(self, kbl):
        s = []
        pend = []
        p, c = kbl >> 1, kbl & 1
        for bt in range(8):
            q = self.Q[bt & 1]
            u = self.epi_unit(kbl, bt, q, pk=(kbl == 3 and self.o.tailpk))
            s += u[:12] + pend + u[12:]
            pend = []
            if kbl == 0 and bt == 0:
                s += self.out_setup()
            s.append(dswrite(self.vS[c], R("v", q, 4), bt * 4096))
            if c:
                rq = [int(self.acc_tile(1, 0, 0, 1)[1:]), int(self.acc_tile(0, 1, 0, 1)[1:])]
                for i in range(2):
                    s.append(dsread(R("v", rq[i], 4), self.vXw, bt * 4096 + i * 1024))
                for i in range(2):
                    pend.append(Wait(lg=[R("v", rq[i], 4)]))
                    pend.append(salu("s_add_u32", "s3", self.sRow, bt * 32768 + i * 16384))
                    pend.append(bstore(R("v", rq[i], 4), self.vG, self.sO, "s3", p * 128, flags=self.o.oflags))
        return s + pend

    def calc_vB(self):
        return [valu("v_bfe_u32", self.vB, self.vXw, 8, 2),
                valu("v_lshl_add_u32", self.vB, self.vB, 5, self.sBias)]

    def bias_stream(self, p, one=False):
        s = []
        if one:
            q = self.Q[0]
            for nt in range(4 * p, 4 * p + 4):
                s.append(dsread(R("v", q, 4), self.vB, (nt >> 1) * 128 + (nt & 1) * 16))
                s += space(7)
                s.append(Wait(lg=[R("v", q, 4)]))
                cnt = 0
                for bt in range(8):
                    for r in range(4):
                        a = self.acc_tile(nt, bt, r, 1)
                        if a[0] == "a":
                            t = self.t[cnt & 1]
                            s += [valu("v_accvgpr_read_b32", t, a), valu("v_add_f32", t, t, f"v{q + r}"),
                                  valu("v_accvgpr_write_b32", a, t)]
                        else:
                            s.append(valu("v_add_f32", a, a, f"v{q + r}"))
                        cnt += 1
            return s
        if self.o.nobias:
            return [valu("v_add_f32", self.acc_tile(4 * p, 0, 0, 1), self.acc_tile(4 * p, 0, 0, 1), 0) for _ in range(8)]

        def rd(nt):
            return dsread(R("v", self.Q[nt & 1], 4), self.vB, (nt >> 1) * 128 + (nt & 1) * 16)

        s.append(rd(4 * p))
        s += space(8)
        for nt in range(4 * p, 4 * p + 4):
            q = self.Q[nt & 1]
            cnt = 0
            for bt in range(8):
                for r in range(4):
                    if cnt == 0:
                        s.append(Wait(lg=[R("v", q, 4)]))
                    a = self.acc_tile(nt, bt, r, 1)
                    if self.o.pkadd and a[0] == "v":
                        if not r & 1:
                            ap = self.acc_tile(nt, bt, r, 2)
                            s.append(valu("v_pk_add_f32", ap, ap, R("v", q + r, 2)))
                    elif a[0] == "a":
                        t = self.t[cnt & 1]
                        s.append(valu("v_accvgpr_read_b32", t, a))
                        s.append(valu("v_add_f32", t, t, f"v{q + r}"))
                        s.append(valu("v_accvgpr_write_b32", a, t))
                    else:
                        s.append(valu("v_add_f32", a, a, f"v{q + r}"))
                    cnt += 1
                    if cnt == 1 and nt + 1 < 4 * p + 4:
                        s.append(rd(nt + 1))
        return s

    def prep_load(self):
        t0, t1 = self.t[0], self.t[1]
        s = [valu("v_lshrrev_b32", t0, 6, self.vL),
             valu("v_and_b32", t1, 48, self.vL),
             valu("v_lshl_add_u32", t0, t0, 11, t1),
             raw(f"s_mov_b32 m0, {self.sStage}", "salu", rd=[self.sStage]),
             salu("s_add_u32", "s3", self.sRaw, 32768 - 1024)]
        s.append(dma(t0, self.sR, self.sRaw, 0, self.o.rflags, "raw"))
        s.append(dma(t0, self.sR, "s3", 1024, self.o.rflags, "raw"))
        s.append(salu("s_add_u32", self.sRaw, self.sRaw, D * D * 2))
        return s

    def prep_store(self, sp=0):
        t0 = self.t[0]
        t1 = self.t[2]
        s = [valu("v_and_b32", t0, 0x300, self.vXw),
             valu("v_and_b32", t1, 0x3ff, self.vXw),
             valu("v_add3_u32", t0, t0, t1, self.sStage),
             Wait(vm=["raw"])]
        for t in range(2):
            for h in range(2):
                s.append(I(f"ds_read_b64_tr_b16 {R('v', self.Q[t] + 2 * h, 2)}, {t0} offset:{h * 256 + t * 8}", "dsr",
                           rd=[t0], wr=[R("v", self.Q[t] + 2 * h, 2)]))
        dst = self.sDst
        if sp and self.o.tail4:
            dst = "s69"
            s.append(I(f"s_cmp_eq_u32 {self.sL}, {NL - 2}\n s_cselect_b32 s69, s24, 0\n s_add_u32 s69, s69, {self.sDst}",
                       "salu", rd=[self.sL, "s24", self.sDst], wr=["s69"]))
        s += space(sp)
        for t in range(2):
            s.append(Wait(lg=[R("v", self.Q[t], 4)]))
            s.append(tagged(bstore(R("v", self.Q[t], 4), t1, self.sW, dst, t * 2048, flags=" sc1"), "pst"))
        s.append(salu("s_add_u32", self.sDst, self.sDst, D * D * 2))
        return s

    def wsignal(self):
        t = self.t[2]
        return [valu("v_mov_b32", t, 1),
                I(f"buffer_atomic_add {t}, {self.vW}, {self.sC}, 0 offen sc1", "vst", rd=[t, self.vW])]

    def psignal(self, p):
        t = self.t[2]
        return [salu("s_add_u32", self.sFlag, self.sFlag, 1), Wait(vm=[f"xs{p}"]),
                valu("v_mov_b32", t, self.sFlag),
                bstore(t, self.vL, self.sFm, 0, w="dword", flags=" sc1")]

    def wpoll_load(self):
        v = self.vP
        return [valu("v_lshlrev_b32", v, 2, self.vXw), valu("v_and_b32", v, 0xc0, v),
                bload(v, v, self.sD, 0, w="dword", flags=" sc1")]

    def ppoll_load(self):
        return [I(f"buffer_load_dword {self.vP}, off, {self.sFp}, 0 sc1", "vld", wr=[self.vP])]

    def poll_check(self, name, need, inc, loader):
        v = self.vP
        spin = [Label(f"Lspin_{name}"), raw(f"s_add_u32 {self.sSpin}, {self.sSpin}, 1")]
        if self.o.backoff:
            spin.append(raw(f"s_sleep {self.o.backoff}"))
        spin += [raw(x.text) for x in loader()]
        spin += [raw(f"s_cmp_ge_u32 {self.sSpin}, 0x100000"),
                 raw(f"s_cbranch_scc1 Lgiveup_{name}"),
                 raw("s_waitcnt vmcnt(0)"),
                 raw(f"v_cmp_gt_i32 vcc, {need}, {v}"),
                 raw("s_and_b64 vcc, exec, vcc"),
                 raw(f"s_cbranch_vccnz Lspin_{name}"),
                 Label(f"Lgiveup_{name}"),
                 raw("s_waitcnt vmcnt(0)"),
                 raw(f"s_branch Lok_{name}")]
        self.ool += spin
        return [Wait(vm=[v]), I(f"v_cmp_gt_i32 vcc, {need}, {v}", "valu", rd=[v, need]),
                raw(f"s_and_b64 vcc, exec, vcc\n s_cbranch_vccnz Lspin_{name}\nLok_{name}:", "branch"),
                salu("s_add_u32", need, need, inc)]

    def phase(self, s0, nts, rho, next_rho, stream=(), bar=False, last=False, start=0, end=None, pre_bar=(),
              fixed=(), extra=(), wreg=None, skip_below=0, post_bar=()):
        o = self.o
        NS = self.NS
        NT = len(nts)
        L = NT * 16
        mf = []
        gaps = [[] for _ in range(4 * L)]
        fwd = list(range(8))
        keepx = o.revb and s0 in (0, 96)
        rev = o.revb and s0 in (16, 112)
        flip = 1 if (o.revb and 16 <= s0 <= 96) else 0
        wreg = wreg or self.wslot
        for ss in range(4):
            base = ss * L
            for k, nt in enumerate(nts):
                s = s0 + ss * NT + k
                order = fwd if ((ss + k + flip) & 1) == 0 else fwd[::-1]
                for j, bt in enumerate(order):
                    for i in range(2):
                        c = i ^ (j & 1)
                        mf.append(mfma(16, self.acc_tile(nt, bt), wreg(s, c), self.xf(bt, c)))
                g = base + k * 16
                at = self.loads_at.get(s, [])
                for n, sn in enumerate(at):
                    if (last and sn >= 128) or o.now or sn < skip_below:
                        continue
                    ga, gb, gc = g + (14 if n == 0 else 15), g + 15, g + 18
                    if o.wdelay and g + 16 < 4 * L and (o.wdelay == 2 or k == NT - 1):
                        ga, gb, gc = g + 17 + 4 * n, g + 19 + 4 * n, g + 20 + 4 * n
                    elif o.wdelay and g + 16 < 4 * L and len(at) == 1:
                        gb, gc = g + 17, g + 19
                    elif not (g + 18 < 4 * L and n == len(at) - 1):
                        gc = g + 15
                    gaps[ga].append(hoist(self.wload(sn, 1)))
                    gaps[gb].append(hoist(self.wload(sn, 0)))
                    gaps[gc] += self.wstep(sn)
                if k < NT - 1:
                    gaps[g + 15].append(Wait(vm=[wreg(s + 1, 0), wreg(s + 1, 1)]))
                if k == 0:
                    for j in range(o.xw, 8, o.xw):
                        gaps[g + 2 * j - 1].append(
                            Wait(lg=[self.xf(order[jj], c) for jj in range(j, min(8, j + o.xw)) for c in range(2)]))
            nrho, nss = (rho, 2 - ss if rev else ss + 1) if ss < 3 else (next_rho, 0)
            if ss == 3 and keepx:
                nrho = None
                s = s0 + 4 * NT
                gaps[base + L - 1].append(Wait(vm=[wreg(s, 0), wreg(s, 1)]))
            gl = base + L - 16
            if ss == 3 and bar:
                gaps[gl - o.bar_lead] += list(pre_bar) + [Wait(all_lg=True), barrier()]
                gaps[gl - o.bar_lead + 1] += list(post_bar)
            if nrho is not None:
                for j, bt in enumerate(order):
                    for i in range(2):
                        c = i ^ (j & 1)
                        if not o.nox:
                            gaps[gl + 2 * j + i].append(hoist(self.xread(bt, c, nrho, nss)))
                s = s0 + (ss + 1) * NT
                gaps[base + L - 1].append(Wait(vm=[wreg(s, 0), wreg(s, 1)],
                                               lg=[self.xf(order[jj], c) for jj in range(o.xw) for c in range(2)]))
        for gi, inss in fixed:
            gaps[gi] += inss
        hi = end if end is not None else (4 * L - 16 - o.bar_lead if bar else 4 * L - 1)
        for st, lo2, hi2 in extra:
            self.place(gaps, list(st), lo2, hi2)
        self.place(gaps, list(stream), start, hi)
        out = []
        if o.jitter:
            n = self.njit = getattr(self, "njit", 0) + 1
            out.append(raw(f"s_mul_i32 s23, s23, 1664525\n s_add_u32 s23, s23, 1013904223\n s_lshr_b32 s101, s23, 24\n"
                           f" s_cmp_ge_u32 s101, {o.jitter}\n s_cbranch_scc1 Ljit{n}\n s_bfe_u32 s101, s23, 0x40010\nLjs{n}:\n s_sleep 20\n"
                           f" s_sub_u32 s101, s101, 1\n s_cbranch_scc0 Ljs{n}\nLjit{n}:", "salu"))
        for i, m in enumerate(mf):
            out.append(m)
            gaps[i] = self.merge([], gaps[i])
            out += gaps[i]
        if o.verbose:
            print(f"; phase s0={s0} mfma={len(mf)} modelled excess={sum(self.gap_excess(g) for g in gaps)}", file=sys.stderr)
        return out

    @staticmethod
    def gap_excess(items):
        slots = 0
        ex = 0
        free = 2
        seenv = False
        for x in items:
            k = x.kind
            if k in ("valu", "nop"):
                slots += 1
                seenv = True
                continue
            if k in ("dsr", "vld", "dsw", "vst") and seenv:
                ex += 8
            if k == "dsr":
                slots += 1
            elif k == "vld":
                slots += 1 if x.text.startswith("global") else 2
            elif k == "dsw":
                ex += 12
                free -= 2
            elif k == "vst":
                ex += (20 if x.big else 4) + 4 * slots + (8 if free < 2 else 0)
                free = 3 if x.big else free - 1
            elif k == "barrier":
                ex += 24
        return ex + 4 * max(0, slots - max(free, 0))

    @staticmethod
    def merge(items, fixed):
        k = 0
        lead, rest = [], []
        stop = False
        for x in fixed:
            if not stop and x.kind in ("dsr", "vld") and getattr(x, "note", "") == "hoist":
                lead.append(x)
            else:
                rest.append(x)
                if x.kind not in ("wait",):
                    stop = True
        items = [x for x in items if x.kind != "space"]
        j = 0
        while j < len(items) and items[j].kind in ("salu", "wait"):
            j += 1
        if j < len(items) and items[j].kind == "vst":
            return items[:j + 1] + lead + items[j + 1:] + rest
        return lead + items + rest

    def place(self, gaps, stream, lo, hi):
        if not stream:
            return
        n, G = len(stream), hi - lo
        KMAX = 8
        INF = float("inf")
        dp = [INF] * (n + 1)
        dp[0] = 0.0
        back = []
        NG = len(gaps)
        cnt = lambda g, kind: sum(1 for x in gaps[g] if x.kind == kind) if g < NG else 0
        for g in range(G):
            fixed = gaps[lo + g]
            base = self.gap_excess(self.merge([], fixed))
            wpen = 7 * sum(cnt(lo + g + d, "dsr") for d in (1, 2, 3)) + 4 * cnt(lo + g, "dsr")
            spen = 12 * cnt(lo + g + 1, "vld") + 6 * cnt(lo + g, "vld") + 4 * cnt(lo + g + 2, "vld")
            nd = [INF] * (n + 1)
            bk = [0] * (n + 1)
            tgt = n * (g + 1) / G
            for i in range(n + 1):
                if dp[i] == INF:
                    continue
                for k in range(0, min(KMAX, n - i) + 1):
                    c = dp[i]
                    if k:
                        its = stream[i:i + k]
                        if k > 1 and its[-2].kind == "space":
                            break
                        c += self.gap_excess(self.merge(its, fixed)) - base
                        c += sum(wpen if x.kind == "dsw" else spen if x.kind == "vst" else 0 for x in its)
                    c += self.o.pace * ((i + k - tgt) / max(1.0, n / G)) ** 2 + 0.02 * k * k
                    if c < nd[i + k]:
                        nd[i + k] = c
                        bk[i + k] = k
            dp = nd
            back.append(bk)
        assert dp[n] < INF
        i = n
        for g in range(G - 1, -1, -1):
            k = back[g][i]
            gaps[lo + g] = self.merge(stream[i - k:i], gaps[lo + g])
            i -= k

    def prologue(self):
        o = self.o
        vL = self.vL
        b = []
        b.append(salu("s_cmp_ge_u32", "s2", 256))
        b.append(raw("s_cbranch_scc1 Lend", "branch"))
        b += self.stamp("start")
        if o.stamps:
            b.append(raw("s_memrealtime s[36:37]"))
        b += [nop(0) for _ in range(o.shift)]
        b += [sload("s[56:59]", 0, 4), sload("s[60:63]", 16, 4), sload("s[64:67]", 32, 4)]
        b.append(valu("v_lshrrev_b32", "v9", 6, "v0"))
        b.append(valu("v_and_b32", "v10", 63, "v0"))
        b.append(valu("v_readfirstlane_b32", self.sWave, "v9"))
        b.append(valu("v_lshlrev_b32", vL, 4, "v10"))
        if o.cpf:
            b.append(raw("s_getpc_b64 s[4:5]", "salu"))
            b.append(Label("Lpc"))
            b.append(valu("v_lshlrev_b32", "v11", 6, "v0"))
            if o.cpfsplit:
                b += [salu("s_bfe_u32", "s3", "s2", "0x20003"), salu("s_lshl_b32", "s3", "s3", 14),
                      valu("v_add_u32", "v11", "s3", "v11")]
            for i in range(1 if o.cpfsplit else o.cpf):
                b.append(raw(f"v_min_u32 v12, Lend-Lpc, v11", "valu", rd=["v11"], wr=["v12"]))
                b.append(I(f"global_load_dword v{60 + i}, v12, s[4:5]", "vld", rd=["v12"], wr=[f"v{60 + i}"]))
                b.append(valu("v_add_u32", "v11", 16384, "v11"))
        b.append(valu("v_lshrrev_b32", "v11", 7, "v0"))
        b.append(valu("v_and_b32", "v12", 127, "v0"))
        b.append(valu("v_lshlrev_b32", "v12", 3, "v12"))
        b.append(valu("v_lshl_add_u32", "v30", "v11", 11, "v12"))
        b.append(valu("v_lshlrev_b32", "v31", 4, "v0"))
        b.append(valu("v_add_u32", "v31", LDS_BIAS, "v31"))
        b.append(valu("v_add_u32", self.vXr[1], 65536, vL))
        b.append(valu("v_lshl_add_u32", self.vXw, "v9", 15, vL))
        b.append(valu("v_lshl_add_u32", self.vW, "v9", 18, vL))
        nb0 = len(b)
        b.append(valu("v_lshrrev_b32", "v11", 4, "v10"))
        b.append(valu("v_and_b32", "v12", 15, "v10"))
        b.append(valu("v_xor_b32", "v13", "v11", "v12"))
        b.append(valu("v_lshlrev_b32", "v13", 4, "v13"))
        b.append(valu("v_lshl_add_u32", "v20", "v11", 11, "v13"))
        for i in range(1, 4):
            b.append(valu("v_xor_b32", f"v{20 + i}", 64 * i, "v20"))
        b.append(valu("v_lshl_add_u32", "v24", "v12", 8, "v13"))
        b.append(valu("v_lshl_add_u32", "v24", "v9", 15, "v24"))
        for i in range(1, 4):
            b.append(valu("v_xor_b32", f"v{24 + i}", 64 * i, "v24"))
        if o.early == 1:
            del b[nb0:]
        b.append(salu("s_and_b32", "s7", "s2", 1))
        b.append(salu("s_lshr_b32", self.sRow, "s2", 1))
        b.append(salu("s_lshl_b32", self.sRow, self.sRow, 18))
        b.append(salu("s_lshl_b32", "s6", "s7", 10))
        b.append(salu("s_add_u32", self.sRow, self.sRow, "s6"))
        b.append(salu("s_lshl_b32", "s6", self.sWave, 8))
        b.append(salu("s_add_u32", self.sRow, self.sRow, "s6"))
        b.append(salu("s_mov_b32", self.sMask, "0xffff0000"))
        b.append(salu("s_lshl_b32", self.sWoff, "s7", 20))
        b.append(salu("s_mov_b32", self.sL, 0))
        b.append(salu("s_mov_b32", self.sSpin, 0))
        b.append(salu("s_mov_b32", self.sFlag, -1 if o.gather else 0))
        b.append(salu("s_mov_b32", self.sNeed, 64))
        b.append(salu("s_mov_b32", self.sPNeed, -1 if o.gather else 1))
        b.append(salu("s_lshl_b32", self.sLds, self.sWave, 15))
        b.append(salu("s_lshl_b32", self.sXs, "s2", 17))
        b.append(salu("s_add_u32", self.sXs, self.sXs, o.xbase * MB))
        b.append(salu("s_xor_b32", self.sXl, self.sXs, 1 << 17))
        b.append(salu("s_lshr_b32", "s4", "s2", 3))
        b.append(salu("s_and_b32", "s5", "s2", 7))
        b.append(salu("s_lshl_b32", self.sRaw, "s4", 16))
        b.append(salu("s_lshl_b32", "s6", "s5", 8))
        b.append(salu("s_add_u32", self.sRaw, self.sRaw, "s6"))
        b.append(salu("s_lshl_b32", "s6", self.sWave, 6))
        b.append(salu("s_add_u32", self.sRaw, self.sRaw, "s6"))
        b.append(salu("s_lshl_b32", self.sDst, "s5", 18))
        b.append(salu("s_and_b32", "s6", "s4", 1))
        b.append(salu("s_lshl_b32", "s6", "s6", 10))
        b.append(salu("s_add_u32", self.sDst, self.sDst, "s6"))
        b.append(salu("s_lshr_b32", "s6", "s4", 4))
        b.append(salu("s_lshr_b32", "s5", "s5", 2))
        b.append(salu("s_xor_b32", "s5", "s5", "s6"))
        b.append(salu("s_bfe_u32", "s6", "s4", "0x10001"))
        b.append(salu("s_lshl_b32", "s3", "s5", 1))
        b.append(salu("s_add_u32", "s3", "s3", "s6"))
        b.append(salu("s_lshl_b32", "s3", "s3", 16))
        b.append(salu("s_add_u32", self.sDst, self.sDst, "s3"))
        b.append(salu("s_bfe_u32", "s4", "s4", "0x20002"))
        b.append(salu("s_xor_b32", "s5", "s5", "s6"))
        b.append(salu("s_lshr_b32", "s3", self.sWave, 1))
        b.append(salu("s_lshl_b32", "s3", "s3", 4))
        if o.revb:
            assert not o.tail4 and not o.w0prep
            b += [salu("s_lshr_b32", "s6", self.sWave, 1), salu("s_mul_i32", "s6", "s6", 3), salu("s_xor_b32", "s6", "s6", "s4"),
                  salu("s_lshl_b32", "s6", "s6", 2)]
        else:
            b.append(salu("s_lshl_b32", "s6", "s4", 2))
        b.append(salu("s_add_u32", "s3", "s3", "s6"))
        b.append(salu("s_and_b32", "s6", self.sWave, 1))
        b.append(salu("s_lshl_b32", "s6", "s6", 1))
        b.append(salu("s_add_u32", "s3", "s3", "s6"))
        b.append(salu("s_lshl_b32", "s4", "s4", 3))
        b.append(salu("s_lshl_b32", "s6", self.sWave, 1))
        b.append(salu("s_add_u32", "s4", "s4", "s6"))
        b.append(salu("s_cmp_eq_u32", "s5", 0))
        b.append(salu("s_cselect_b32", "s3", "s3", "s4"))
        b.append(salu("s_lshl_b32", "s3", "s3", 11))
        b.append(salu("s_add_u32", self.sDst, self.sDst, "s3"))
        b.append(salu("s_lshl_b32", self.sStage, self.sWave, 11))
        b.append(salu("s_add_u32", self.sStage, self.sStage, LDS_STAGE))
        b.append(salu("s_lshl_b32", self.sBias, self.sWave, 9))
        b.append(salu("s_add_u32", self.sBias, self.sBias, LDS_BIAS))
        b.append(Wait(all_lg=True))
        b += self.stamp("kernarg")
        b += srd(40, "s58", "s59", NL * D * D * 2)

        def only(ins, w0):
            n = self.nseg = getattr(self, "nseg", 0) + 1
            for x in ins:
                x.note = "gy" if w0 else "gx"
            return [salu("s_cmp_eq_u32", self.sWave, 0), raw(f"s_cbranch_scc{0 if w0 else 1} Lseg{n}", "branch")] + \
                ins + [Label(f"Lseg{n}")]

        if o.w0prep:
            t0, t1 = self.t[0], self.t[1]
            r = [valu("v_lshrrev_b32", t0, 6, vL), valu("v_and_b32", t1, 48, vL), valu("v_lshl_add_u32", t0, t0, 11, t1)]
            for q in range(4):
                r += [raw(f"s_mov_b32 m0, {LDS_STAGE + q * 2048}", "salu"), salu("s_add_u32", "s3", self.sRaw, q * 64),
                      dma(t0, self.sR, "s3", 0, o.rflags, f"raw{q}"),
                      salu("s_add_u32", "s3", self.sRaw, q * 64 + 32768 - 1024),
                      dma(t0, self.sR, "s3", 1024, o.rflags, f"raw{q}")]
            b += only(r, True)
            b.append(salu("s_add_u32", self.sRaw, self.sRaw, D * D * 2))
        else:
            b += self.prep_load()
        b += srd(20, "s60", "s61", NL * D * 2)
        tb = 32
        b.append(salu("s_lshl_b32", "s3", "s7", 10))
        for m in range(3):
            b.append(bload(R("v", tb + 2 * m, 2), "v30", self.sB, "s3", w="dwordx2"))
            b.append(salu("s_add_u32", "s3", "s3", 4096))
        if o.jitter:
            b += [raw("s_memrealtime s[100:101]"), raw("s_waitcnt lgkmcnt(0)"), raw("s_lshl_b32 s23, s2, 2"),
                  raw(f"s_add_u32 s23, s23, {self.sWave}"), raw("s_mul_i32 s23, s23, 0x9e3779b1"), raw("s_add_u32 s23, s23, s100")]
        if o.init:
            b.append(salu("s_mov_b32", "s23", o.init))
        b += srd(8, "s56", "s57", NB * D * 2)
        b += srd(16, "s62", "s63", NB * D * 2)
        b += srd(12, "s66", "s67", NL * D * D * 2)
        b += srd(32, "s66", "s67", 0 if o.gather else 256 * MB)
        b += srd(44, "s64", "s65", 256)
        b += [salu("s_add_u32", self.sWoff, self.sWoff, 4096), salu("s_add_u32", "s70", "s66", self.sWoff),
              salu("s_addc_u32", "s71", "s67", 0), salu("s_sub_u32", self.sWoff, self.sWoff, 4096)]
        if o.tail4:
            b += [salu("s_and_b32", "s24", self.sWave, 1), salu("s_mul_i32", "s24", "s24", 6 * 2048),
                  salu("s_bfe_u32", "s3", "s2", "0x20005"), salu("s_lshl_b32", "s3", "s3", 12),
                  salu("s_sub_u32", "s24", "s24", "s3"),
                  salu("s_lshr_b32", "s3", "s2", 7), salu("s_lshr_b32", "s6", "s2", 2), salu("s_xor_b32", "s3", "s3", "s6"),
                  salu("s_lshr_b32", "s6", "s2", 4), salu("s_and_b32", "s3", "s3", "s6"), salu("s_bitcmp1_b32", "s3", 0),
                  salu("s_cselect_b32", "s24", "s24", 0)]
        b.append(salu("s_and_b32", "s3", "s2", 3))
        b.append(salu("s_lshl_b32", "s3", "s3", 6))
        b += srd_off(56, "s44", "s45", "s3", 4)
        b.append(salu("s_lshl_b32", "s3", "s2", 2))
        b.append(salu("s_add_u32", "s3", "s3", self.sWave))
        b.append(salu("s_lshl_b32", "s3", "s3", 7))
        b.append(salu("s_add_u32", "s3", "s3", WS_FLAGS))
        b += srd_off(60, "s32", "s33", "s3", 4)
        b.append(salu("s_xor_b32", "s3", "s3", 512))
        b += srd_off(64, "s32", "s33", "s3", 4)
        if o.delay:
            for _ in range(o.delay):
                b.append(raw("s_sleep 127"))
        if o.touch:
            for l in range(6):
                b.append(salu("s_add_u32", "s3", self.sXs, l * 32 * MB))
                if o.touch == 1:
                    b.append(bload(f"v{60 + l}", self.vXw, self.sE, "s3", w="dword"))
                else:
                    b.append(bstore(f"v{60 + l}", self.vXw, self.sE, "s3", w="dword", flags=" sc1"))
            b.append(Wait(all_vm=True))
        def x0dma(lo, hi):
            r = []
            for i in range(lo, hi):
                r.append(raw(f"s_add_u32 m0, {self.sLds}, {i * 1024}", "salu"))
                r.append(salu("s_add_u32", "s3", self.sRow, i * 8192))
                r.append(dma(f"v{20 + (i & 3)}", self.sX, "s3", 0, o.xflags, f"x0_{i >> 2}"))
            return r

        def x0fix(bt):
            r = [Wait(vm=[f"x0_{bt}"])]
            for kbl in range(4):
                r.append(dsread(self.x0reg(kbl, bt), f"v{24 + kbl}", bt * 4096))
            r.append(Wait(all_lg=True))
            for kbl in range(4):
                r.append(dswrite(self.vXw, self.x0reg(kbl, bt), bt * 4096 + kbl * 1024))
            if o.apub:
                r += self.x0pub_stream(0, 2 * bt, 2 * bt + 2)
            return r

        def accinit(pred):
            r = []
            for p in range(2):
                for i in range(128):
                    a = self.acc(p, i)
                    if pred(a):
                        r.append(valu("v_accvgpr_write_b32" if a[0] == "a" else "v_mov_b32", a, self.init))
            return r

        if o.early == 1 and o.selfw:
            return b + self.prologue_self(accinit, tb)
        if o.early == 1:
            return b + self.prologue_early(accinit, tb)
        late = lambda a: a[0] == "v" and 32 <= int(a[1:]) < 72
        final = lambda a: a[0] == "v" and int(a[1:]) < 32
        na, nb, ahead, npoll = o.x0split

        def biascvt():
            r = []
            for m in range(3):
                r.append(Wait(vm=[R("v", tb + 2 * m, 2)]))
                for j in range(2):
                    src = f"v{tb + 2 * m + j}"
                    r.append(valu("v_lshlrev_b32", f"v{40 + 4 * m + 2 * j}", 16, src))
                    r.append(valu("v_and_b32", f"v{41 + 4 * m + 2 * j}", self.sMask, src))
                r.append(dswrite("v31", R("v", 40 + 4 * m, 4), m * 4096))
            return r + [Wait(all_lg=True)]

        if o.w0prep:
            t0, t1, t2 = self.t
            r = [valu("v_lshlrev_b32", t1, 3, vL), valu("v_mov_b32", t2, 0), salu("s_mov_b32", "s62", 512),
                 tagged(bstore(t2, t1, self.sFm, 0, w="dword", flags=" sc1"), "pst"), salu("s_mov_b32", "s62", 4)]
            b += only(r, True)
            b += only(x0dma(0, nb), False)
            b += accinit(lambda a: not late(a) and not final(a))
            r = [valu("v_and_b32", t0, 0x300, vL), valu("v_add3_u32", t0, t0, vL, self.sStage)]
            qs = [8, 40, 48, 64]
            for q in range(4):
                r.append(Wait(vm=[f"raw{q}"]))
                for t in range(2):
                    for h in range(2):
                        d = R("v", qs[q] + 4 * t + 2 * h, 2)
                        r.append(I(f"ds_read_b64_tr_b16 {d}, {t0} offset:{q * 2048 + h * 256 + t * 8}", "dsr", rd=[t0], wr=[d]))
            for q in range(4):
                r += [salu("s_cmp_eq_u32", "s5", 0),
                      salu("s_cselect_b32", "s3", ((q >> 1) * 16 + 2 * (q & 1)) * 2048, "s6") if q > 1 else
                      salu("s_mov_b32", "s3", 2 * q * 2048),
                      salu("s_add_u32", "s3", "s3", self.sDst), salu("s_mov_b32", "s6", 2 * (q + 1) * 2048)]
                for t in range(2):
                    r.append(Wait(lg=[R("v", qs[q] + 4 * t, 4)]))
                    r.append(tagged(bstore(R("v", qs[q] + 4 * t, 4), vL, self.sW, "s3", t * 2048, flags=" sc1"), "pst"))
            r += x0dma(0, na) + [Wait(vm=["pst"])] + self.wsignal() + x0dma(na, nb)
            b += only(r, True)
            b.append(salu("s_add_u32", self.sDst, self.sDst, D * D * 2))
            b += self.stamp("signalled")
            b += biascvt() + accinit(late)
        else:
            b.append(valu("v_mov_b32", self.t[2], 0))
            b.append(tagged(bstore(self.t[2], vL, self.sFm, 0, w="dword", flags=" sc1"), "pst"))
            b += x0dma(0, na)
            b += accinit(lambda a: not late(a) and not final(a))
            b += self.prep_store()
            b += self.stamp("stores_issued")
            b += x0dma(na, nb)
            b += biascvt() + accinit(late)
            b += [Wait(vm=["pst"]), barrier()] + self.wsignal()
            b += self.stamp("signalled")
        def wring():
            r = []
            for s in [x for x in range(128) if self.site[x] < 0]:
                r += [self.wload(s, 1), self.wload(s, 0)] + self.wstep(s)
            return r

        def path(name, nb2, npoll, stamps):
            st = self.stamp if stamps else (lambda n: [])
            r = x0dma(nb, nb2)
            issued = max(nb, nb2)
            checked = False
            poll_before = None
            for bt in range(8):
                want = min(32, 4 * (bt + 1 + ahead))
                if bt == npoll:
                    r += self.wpoll_load()
                    poll_before = (issued + 3) // 4 if npoll else 0
                if want > issued and (npoll or checked):
                    r += x0dma(issued, want)
                    issued = want
                if poll_before is not None and not checked and bt >= poll_before:
                    r += st("x0_part")
                    r += self.poll_check(name, self.sNeed, 64, self.wpoll_load)
                    r += st("flag_seen")
                    checked = True
                    if npoll:
                        r += x0dma(issued, 32) + wring()
                        issued = 32
                    else:
                        r += wring() + x0dma(issued, want)
                        issued = max(issued, want)
                r += x0fix(bt)
            assert checked and issued == 32
            return r

        if o.stagger < 0:
            b += path("pro", nb, npoll, True)
        else:
            px = path("prox", nb, npoll, True)
            n0 = self.stampn
            self.stampn -= 2 if o.stamps and not o.pstamps else 0
            self.names = self.names[:self.stampn]
            py = path("proy", o.ynb, 0, True)
            assert self.stampn == n0
            for x in px:
                x.note = "gx"
            for x in py:
                x.note = "gy"
            b += [salu("s_bitcmp1_b32", "s2", o.stagger), raw("s_cbranch_scc1 Lgy", "branch")]
            b += px + [raw("s_branch Lgjoin", "branch"), Label("Lgy")] + py + [Label("Lgjoin")]
        b += accinit(final)
        if o.gather:
            b += [salu("s_xor_b32", self.sXl, self.sRow, 1024), salu("s_mov_b32", "s20", 64),
                  salu("s_mov_b32", "s21", 32768 - 64), salu("s_mov_b32", "s22", hex((128 - 64 - 7 * 32768) & 0xffffffff))]
        b += [Wait(all_lg=True), barrier()]
        for j in range(8):
            for i in range(2):
                b.append(self.xread(j, i ^ (j & 1), 0, 0))
        b.append(Wait(lg=[self.xf(j, c) for j in range(o.xw) for c in range(2)], vm=[self.wslot(0, 0), self.wslot(0, 1)]))
        if o.desync:
            b += [raw("s_lshr_b32 s3, s2, 1"), raw("s_and_b32 s3, s3, 15"), Label("Lds"), raw(f"s_sleep {o.desync}"),
                  raw("s_sub_u32 s3, s3, 1"), raw("s_cbranch_scc0 Lds")]
        b += self.stamp("pro_done")
        return b

    def prologue_self(self, accinit, tb):
        o = self.o
        vL = self.vL
        t0, t1 = self.t[0], self.t[1]
        b = []
        vG, vS, vR, vT = "v20", ["v21", "v22"], "v23", ["v24", "v25"]
        wbuf = set(r for s in range(16 - self.NS) for c in range(2) for r in regs(self.wreg0(s, c)))
        late = lambda a: a[0] == "v" and 32 <= int(a[1:]) < 64
        final = lambda a: a[0] == "v" and int(a[1:]) < 32
        ns1, psig, na, nB0, lead = o.selfp
        b += [valu("v_lshrrev_b32", t0, 2, vL), valu("v_and_b32", t0, 0x40, t0), valu("v_xor_b32", t0, t0, vL),
              valu("v_and_b32", t0, 0x70, t0), valu("v_lshrrev_b32", t1, 7, vL), valu("v_lshl_add_u32", vR, t1, 11, t0),
              salu("s_and_b32", "s69", self.sRow, 2047), salu("s_lshl_b32", "s3", "s7", 20),
              salu("s_add_u32", "s69", "s69", "s3")]

        def rawdma(lo, hi):
            r = []
            for n in range(lo, min(hi, 4 * o.nself)):
                p, i = n >> 2, n & 3
                r.append(raw(f"s_add_u32 m0, {self.sLds}, {(2 * (p & 3) + (i >> 1)) * 4096 + (p >> 2) * 2048 + (i & 1) * 1024}", "salu"))
                r.append(salu("s_add_u32", "s3", "s69", (128 * (p >> 1) + 32 * (p & 1) + 8 * i) * 2048))
                r.append(dma(vR, self.sR, "s3", 0, "", f"sw{p}"))
            return r

        def trans(p):
            if p >= o.nself:
                return []
            r = [Wait(vm=[f"sw{p}"])]
            for nt in range(4):
                d = int(regs(self.wreg0((p >> 1) * 4 + nt, p & 1))[0][1:])
                k = self.wreg0((p >> 1) * 4 + nt, p & 1)[0]
                for h in range(2):
                    dd = R(k, d + 2 * h, 2)
                    r.append(I(f"ds_read_b64_tr_b16 {dd}, {vT[nt >> 1]} offset:{(p & 3) * 8192 + (p >> 2) * 2048 + h * 512 + (nt & 1) * 8}", "dsr",
                               rd=[vT[nt >> 1]], wr=[dd]))
            return r

        b += rawdma(0, ns1)
        b.append(valu("v_mov_b32", self.t[2], 0))
        b.append(tagged(bstore(self.t[2], vL, self.sFm, 0, w="dword", flags=" sc1"), "pst"))
        b += self.calc_vG(vG) + self.calc_vS(vS)
        b += [valu("v_lshrrev_b32", t0, 1, vL), valu("v_and_b32", t0, 0x40, t0), valu("v_and_b32", t1, 0x30, vL),
              valu("v_or_b32", t0, t0, t1), valu("v_and_b32", t1, 0xc0, vL), valu("v_lshl_add_u32", t0, t1, 1, t0),
              valu("v_and_b32", t1, 0x100, vL), valu("v_lshl_add_u32", t0, t1, 2, t0),
              valu("v_and_b32", t1, 0x200, vL), valu("v_lshl_add_u32", t0, t1, 3, t0),
              valu("v_add_u32", vT[0], self.sLds, t0), valu("v_xor_b32", vT[1], 64, vT[0])]
        b += accinit(lambda a: not late(a) and not final(a) and a not in wbuf)
        b += self.prep_store()
        ns2 = max(ns1, o.ns2)
        b += rawdma(ns1, ns2)
        b += self.stamp("stores_issued")
        for m in range(3):
            b.append(Wait(vm=[R("v", tb + 2 * m, 2)]))
            for j in range(2):
                src = f"v{tb + 2 * m + j}"
                b.append(valu("v_lshlrev_b32", f"v{40 + 4 * m + 2 * j}", 16, src))
                b.append(valu("v_and_b32", f"v{41 + 4 * m + 2 * j}", self.sMask, src))
            b.append(dswrite("v31", R("v", 40 + 4 * m, 4), m * 4096))
        b.append(Wait(all_lg=True))
        b += accinit(late)
        issued = 0
        pdone = lambda p: [self.wreg0((p >> 1) * 4 + nt, p & 1) for nt in range(4)]
        assert ns2 >= 16 and psig <= ns2 // 4
        nearly = 8 if not o.rawlate else ns2 // 4
        for p in range(nearly + 1):
            if p == psig:
                b += [Wait(vm=["pst"]), barrier()] + self.wsignal()
                b += self.stamp("signalled")
                if not o.rawlate:
                    b += rawdma(ns2, 32)
            if p < nearly and (p < 4 or p < psig):
                b += trans(p)
            if p:
                want = min(16, 4 * p) if p > psig else min(4 * p, na)
                if want > issued:
                    b.append(Wait(lg=pdone(min(p - 1, 3))))
                    b += self.x0h_dma(0, issued, want, vG)
                    issued = want
            if p >= 4 and p >= psig:
                break
        b.append(Wait(lg=pdone(3)))
        b += self.x0h_dma(0, issued, 16, vG)
        if o.rawlate:
            b += rawdma(ns2, 32)
        for p in range(max(4, psig), nearly):
            b += trans(p)
        lateT = [x for p in range(max(nearly, psig), 8) for x in trans(p)]
        b += self.stamp("x0A_issued")
        nB = 0
        polled = False
        for bt in range(min(0, -lead), 9):
            want = min(16, 2 * (bt + lead + 1)) if bt < 8 else (o.nb_pro if o.nb_pro else 16)
            if nB < want and nB == 0:
                b += lateT + [Wait(all_lg=True)]
                lateT = []
            while nB < want:
                if nB == nB0:
                    b += self.wpoll_load()
                    polled = True
                b += self.x0h_dma(1, nB, nB + 1, vG)
                nB += 1
            if 0 <= bt < 8:
                b += self.x0h_read(0, bt, vS)
            if 0 < bt < 8:
                b += self.x0h_write(0, bt - 1)
            if bt == 7:
                b += self.x0h_write(0, 7)
        b += lateT
        if not polled:
            b += self.wpoll_load()
        self.nB_done = nB
        b.append(valu("v_mov_b32", "v8", vG))
        b += self.stamp("x0_part")
        b += accinit(final)
        b += [I(f"s_add_u32 s70, s70, {4096 * o.nself}\n s_addc_u32 s71, s71, 0", "salu", rd=["s[70:71]"], wr=["s[70:71]"]),
              salu("s_xor_b32", self.sXl, self.sRow, 1024), salu("s_mov_b32", "s20", 64),
              salu("s_mov_b32", "s21", 32768 - 64), salu("s_mov_b32", "s22", hex((128 - 64 - 7 * 32768) & 0xffffffff))]
        b += [Wait(all_lg=True), barrier()]
        b += [self.xread(j, i ^ (j & 1), 0, 0) for j in range(8) for i in range(2)]
        b.append(Wait(lg=[self.xf(j, c) for j in range(o.xw) for c in range(2)]))
        b += self.stamp("pro_done")
        return b

    def prologue_early(self, accinit, tb):
        o = self.o
        vL = self.vL
        b = []
        vG, vS = "v20", ["v21", "v22"]
        wbuf = set(r for s in range(16 - self.NS) for c in range(2) for r in regs(self.wreg0(s, c)))
        late = lambda a: a[0] == "v" and 32 <= int(a[1:]) < 64
        final = lambda a: a[0] == "v" and int(a[1:]) < 32
        na, nb, npoll, nB0 = o.x0split
        b.append(valu("v_mov_b32", self.t[2], 0))
        b.append(tagged(bstore(self.t[2], vL, self.sFm, 0, w="dword", flags=" sc1"), "pst"))
        b += self.calc_vG(vG) + self.calc_vS(vS)
        b += self.x0h_dma(0, 0, na, vG)
        b += accinit(lambda a: not late(a) and not final(a) and a not in wbuf)
        b += self.prep_store()
        b += self.stamp("stores_issued")
        b += self.x0h_dma(0, na, nb, vG)
        for m in range(3):
            b.append(Wait(vm=[R("v", tb + 2 * m, 2)]))
            for j in range(2):
                src = f"v{tb + 2 * m + j}"
                b.append(valu("v_lshlrev_b32", f"v{40 + 4 * m + 2 * j}", 16, src))
                b.append(valu("v_and_b32", f"v{41 + 4 * m + 2 * j}", self.sMask, src))
            b.append(dswrite("v31", R("v", 40 + 4 * m, 4), m * 4096))
        b.append(Wait(all_lg=True))
        b += accinit(late)
        b += [Wait(vm=["pst"]), barrier()] + self.wsignal()
        b += self.stamp("signalled")
        b += self.x0h_dma(0, nb, 16, vG)
        def only0(ins):
            if not o.poll0:
                return ins
            n = self.nseg = getattr(self, "nseg", 0) + 1
            for x in ins:
                x.note = "gy"
            return [salu("s_cmp_eq_u32", self.sWave, 0), raw(f"s_cbranch_scc0 Lseg{n}", "branch")] + ins + [Label(f"Lseg{n}")]

        for bt in range(8):
            if bt == npoll:
                b += only0(self.wpoll_load()) + self.x0h_dma(1, 0, nB0, vG)
            b += self.x0h_read(0, bt, vS)
            if bt:
                b += self.x0h_write(0, bt - 1)
        if npoll >= 8:
            b += only0(self.wpoll_load()) + self.x0h_dma(1, 0, nB0, vG)
        b += self.x0h_write(0, 7)
        b += self.stamp("x0_part")
        chk = self.poll_check("pro", self.sNeed, 64, self.wpoll_load)
        if o.poll0:
            b += only0(chk[:-1]) + chk[-1:]
            chk = []
        b += [Wait(all_lg=True), barrier()]
        xr = [self.xread(j, i ^ (j & 1), 0, 0) for j in range(8) for i in range(2)]
        if not o.poll0:
            b += xr + chk
            xr = []
        b += self.stamp("flag_seen")
        for s in range(16):
            b += [self.wload(s, 1, self.wreg0(s, 1)), self.wload(s, 0, self.wreg0(s, 0))]
            b += self.wstep(s)
            if s == 3:
                b += xr
        b += self.x0h_dma(1, nB0, max(nB0, o.nb_pro) if o.gather else 16, vG)
        b.append(valu("v_mov_b32", "v8", vG))
        b += accinit(final)
        if o.gather:
            b += [salu("s_xor_b32", self.sXl, self.sRow, 1024), salu("s_mov_b32", "s20", 64),
                  salu("s_mov_b32", "s21", 32768 - 64), salu("s_mov_b32", "s22", hex((128 - 64 - 7 * 32768) & 0xffffffff))]
        b.append(Wait(lg=[self.xf(j, c) for j in range(o.xw) for c in range(2)], vm=[self.wreg0(0, 0), self.wreg0(0, 1)]))
        b += self.stamp("pro_done")
        return b

    def build(self):
        o = self.o
        A, B, AB = [0, 1, 2, 3], [4, 5, 6, 7], list(range(8))
        e = (lambda s: []) if o.noepi else (lambda s: s)
        unit_end = lambda x: x.kind in ("vst", "dsw")
        safe_bias = lambda x: x.kind == "valu" and "add_f32" in x.text and not x.wr & set(self.t)
        pro = self.prologue()
        PL = o.pstamps - 1
        dA, dB = o.direct
        g0, g1, g2, g3 = o.sg
        ep = o.earlyprep
        if o.gather and o.early == 1:
            ini = []
            for s in range(16 - self.NS):
                ini.append(([valu("v_mov_b32", r, self.init) for c in range(2) for r in regs(self.wreg0(s, c))],
                            16 * s + 18, 16 * s + 30))
            nB1 = o.x0split[3]
            late = self.x0h_dma(1, max(nB1, o.nb_pro), 16, "v8")
            fx = []
            if o.selfw:
                late = self.x0h_dma(1, self.nB_done, 16, "v8")
                chk = self.poll_check("pro", self.sNeed, 64, self.wpoll_load)
                if o.nself < 8:
                    wl = []
                    for s in range(2 * o.nself, 16):
                        wl += [self.wload(s, 1, self.wreg0(s, 1)), self.wload(s, 0, self.wreg0(s, 0))] + self.wstep(s)
                    late = chk + wl + late
                else:
                    fx = [(self.site[16] * 16 + 2, chk)]
            s1a0 = self.phase(0, A, 0, 0, late, wreg=self.wreg0, skip_below=16, extra=ini, end=o.pub0_end, fixed=fx)
            s1a0 += self.stamp("s1a0")
            vS = [f"v{self.Q[0]}", f"v{self.Q[0] + 1}"]
            fix = self.calc_vS(vS)
            for bt in range(8):
                fix += self.x0h_read(1, bt, vS) + space(3)
                if bt:
                    fix += self.x0h_write(1, bt - 1)
            fix += space(4) + self.x0h_write(1, 7)
            s1a0 += self.phase(16, B, 0, 1, fix + self.calc_vB() + e(self.bias_stream(0)), bar=True,
                               pre_bar=[salu("s_add_u32", self.sPNeed, self.sPNeed, 1)])
            s1a0 += self.stamp("s1b0")
            if o.stamps:
                s1a0.append(raw(f"s_lshl_b32 {self.sSpin}, {self.sSpin}, 8"))
        elif o.gather:
            assert not o.early
            s1a0 = self.phase(0, A, 0, 0, []) + self.stamp("s1a0")
        elif o.early == 2:
            s1a0 = self.phase(0, A, 0, 0, self.x0pub_stream(0), end=o.pub0_end) + self.stamp("s1a0")
            st = insert_at(self.calc_vB() + e(self.bias_stream(0)), o.sig0_at, self.psignal(0), safe_bias)
            st = insert_at(st, o.poll0_at, self.ppoll_load(), safe_bias)
            if o.wsig2:
                st = st + self.prep_load()
            s1a0 += self.phase(16, B, 0, 1, st, bar=True, extra=[(self.x0pub_stream(1), 0, 230)],
                               pre_bar=self.poll_check("pa0", self.sPNeed, 1, self.ppoll_load))
            s1a0 += self.stamp("s1b0")
        elif o.early:
            ini = []
            for s in range(16 - self.NS):
                ini.append(([valu("v_mov_b32", r, self.init) for c in range(2) for r in regs(self.wreg0(s, c))],
                            16 * s + 18, 16 * s + 30))
            s1a0 = self.phase(0, A, 0, 0, self.x0pub_stream(0), wreg=self.wreg0, skip_below=16, extra=ini,
                              end=o.pub0_end) + self.stamp("s1a0")
            vS = [f"v{self.Q[0]}", f"v{self.Q[0] + 1}"]
            fix = self.calc_vS(vS)
            for bt in range(8):
                fix += self.x0h_read(1, bt, vS)
                if bt:
                    fix += self.x0h_write(1, bt - 1) + self.x0pub_stream(1, 2 * bt - 2, 2 * bt)
                if bt == 1:
                    fix += self.psignal(0)
            fix += self.x0h_write(1, 7) + self.x0pub_stream(1, 14, 16)
            st = insert_at(self.calc_vB() + e(self.bias_stream(0)), 0.6, self.ppoll_load(), safe_bias)
            s1a0 += self.phase(16, B, 0, 1, fix + st, bar=True,
                               pre_bar=self.poll_check("pa0", self.sPNeed, 1, self.ppoll_load))
            s1a0 += self.stamp("s1b0")
        else:
            s1a0 = self.phase(0, A, 0, 0, (self.prep_load() if ep else []) + self.x0pub_stream(0) +
                              self.x0pub_stream(1, 0, dB) + (self.psignal(0) if dA == 16 else [])) + self.stamp("s1a0")
        lp = o.lateprep
        st = (self.prep_store() if ep else [] if lp else self.prep_load()) + self.calc_vB() + e(
            self.bias_stream(0, one=self.small and dB < 16))
        if o.wsig2:
            st = st + self.prep_load()
        if dA < 16:
            st = insert_at(st, o.siga2_at, self.psignal(0), safe_bias)
        if dB == 16 and not o.early:
            st = insert_at(st, o.sigb_at, self.psignal(1), safe_bias)
        fx2 = [(o.pollb_gap, self.ppoll_load()), (g3 + 1 if o.db2 else 1, self.xnext(self.sXs, 0))]
        if dB < 16 or o.early:
            fx2.append((g3, self.psignal(1)))
        if g0 < 0:
            st = insert_at(st, o.polla_at, self.ppoll_load(), safe_bias)
            pb1 = self.poll_check("pa", self.sPNeed, 1, self.ppoll_load)
            g1 = -1
        else:
            assert not o.early
            pb1 = []
            fx2 += [(g0, self.ppoll_load()), (g1, self.poll_check("pa", self.sPNeed, 1, self.ppoll_load))]
        if ep:
            pb1 = [Wait(vm=["pst"])] + pb1
            fx2.append((3, self.wsignal()))
        s1b = [Label("Ls1b")] + self.phase(16, B, 0, 1, st, bar=True, pre_bar=pb1, end=o.bias_end or None,
                                            extra=[(self.pub_stream(1, dB, 16 - o.db2), 0, 232)])
        s2 = self.phase(32, AB, 1, 0, self.xch_dma(0) + ([] if ep or lp else self.prep_store()), bar=True, start=max(g1 + 1, o.dma_start), end=g2, fixed=fx2,
                        post_bar=self.xr_gathered(),
                        extra=[(self.prep_store(10) if o.wsig2 else self.prep_load() if lp else [], lp, lp + (30 if o.wsig2 else 12)),
                               (self.pub_guard(self.pub_stream(1, 16 - o.db2, 16)), 2, max(3, g3 - 40))],
                        pre_bar=[Wait(vm=["xl0", "pst"] if o.wsig2 else ["xl0"])] + self.poll_check("pb", self.sPNeed, 1, self.ppoll_load))
        s3 = self.phase(64, AB, 0, 1, self.xch_dma(1), bar=True, end=o.dma_end, pre_bar=[Wait(vm=["xl1", "pst"])],
                        extra=[(self.wsignal(), 2, 6)] if o.wsig2 else
                        [(self.prep_store(10) if lp else [], o.preps_at, o.preps_at + 30)])
        s1b[1:1] = self.lstamp("pre", PL) if PL > 0 else []
        s1b += self.lstamp("s1b", PL)
        s2 += self.lstamp("s2", PL)
        s3 += self.lstamp("s3", PL)
        if o.tail4:
            s3 += [salu("s_cmp_eq_u32", self.sL, NL - 1), raw("s_cbranch_scc1 Llast", "branch")]
        preA = [2 * i for i in range(o.prea)]
        restA = [u for u in range(16) if u not in preA]
        s4a = self.phase(96, A, 1, 1, ([] if ep or o.wsig2 else self.wsignal()) + (self.calc_vB() if self.small else []) + e(self.bias_stream(1)),
                         end=220 if preA else (o.bias_end or None),
                         extra=[(e(self.epi_stream(0, 0, units=preA)), 256 - 30, 256)])
        if o.gather:
            s4a += self.xch_switch()
        s4a += self.lstamp("s4a", PL)
        s4a += [salu("s_add_u32", self.sBias, self.sBias, 2048), salu("s_add_u32", self.sL, self.sL, 1)]
        if not o.tail4:
            s4a += [salu("s_cmp_eq_u32", self.sL, NL), raw("s_cbranch_scc1 Llast", "branch")]
        st = insert_at(e(self.epi_stream(0, dA, units=restA)), o.pollw_at, self.wpoll_load(), unit_end)
        chk = (self.site[128] - 112) * 16 + 2
        s4b = self.phase(112, B, 1, 0, st, bar=True, post_bar=self.xr_plain(),
                         fixed=[(chk, self.poll_check("w", self.sNeed, 64, self.wpoll_load))])
        s4b += self.lstamp("s4b", PL + 1)
        st = e(self.epi_stream(1, dB, one=self.small and dA < 16))
        if dA == 16:
            st = insert_at(st, o.siga_at, self.psignal(0), unit_end)
        if ep:
            st = insert_at(st, o.prepl_at, self.prep_load(), unit_end)
        s1a = self.phase(0, A, 0, 0, st, extra=[(self.pub_stream(0, dA, 16, restA + preA), 0, o.puba_end)])
        if o.stamps:
            s1a += [raw(f"s_cmp_eq_u32 s25, {max(1, o.pstamps)}"), raw("s_cbranch_scc0 Lnostamp")] + self.stamp("layer1") + [
                raw("s_memrealtime s[4:5]"), Label("Lnostamp")]
        if o.early:
            assert lp
            s2 = [Label("Lloop")] + s2
            s1b += [raw("s_branch Lloop", "branch")]
        else:
            s1a += [raw("s_branch Ls1b", "branch")]
        s4bl = [Label("Llast")] + self.stamp("4.75layers") + ([raw("s_memrealtime s[6:7]")] if o.stamps else [])
        if o.tail4:
            s4bl += self.phase(96, [0, 1], 1, 1, self.calc_vB() + self.bias_stream(1), last=True)
            s4bl += self.phase(104, [2, 3], 1, 1, self.out_stream4(0), last=True)
            s4bl += self.phase(112, [4, 5], 1, 1, self.out_stream4(1), last=True)
            s4bl += self.phase(120, [6, 7], 1, None, self.out_stream4(2), last=True)
            tail = self.stamp("s4b_last") + [nop(7)] + self.out_stream4(3)
        else:
            s4bl += self.phase(112, B, 1, None, self.out_stream(0), last=True)
            tail = self.stamp("s4b_last") + [nop(7)] + [x for x in self.out_stream(1) if x.kind != "space"]
        if o.stamps:
            tail += self.stamp("tail_issued")
            tail += [Wait(all_vm=True)]
            tail += self.stamp("tail_drained")
            tail.append(raw("s_memrealtime s[38:39]"))
            tail.append(raw("s_waitcnt lgkmcnt(0)"))
            tail.append(raw("v_cmp_eq_u32 vcc, 0, v0"))
            tail.append(raw("s_and_saveexec_b64 s[68:69], vcc"))
            tail.append(raw("s_cbranch_execz Lend"))
            if o.dbgout >= 0:
                tail += [raw(f"s_cmp_lg_u32 s2, {o.dbgout}"), raw("s_cbranch_scc1 Lend"), raw("v_mov_b32 v1, 0")]
                tail += [raw("s_sub_u32 s3, s38, s36"), raw("v_mov_b32 v2, s3"),
                         raw("buffer_store_dword v2, v1, s[44:47], 0 offen offset:4"),
                         raw("s_sub_u32 s3, s6, s4"), raw("v_mov_b32 v2, s3"),
                         raw("buffer_store_dword v2, v1, s[44:47], 0 offen offset:8"),
                         raw("v_mov_b32 v2, s53"), raw("buffer_store_dword v2, v1, s[44:47], 0 offen offset:12")]
                for n in range(1, min(self.stampn, 13)):
                    tail += [raw(f"s_sub_u32 s3, s{72 + 2 * n}, s{70 + 2 * n}"), raw("v_mov_b32 v2, s3"),
                             raw(f"buffer_store_dword v2, v1, s[44:47], 0 offen offset:{12 + 4 * n}")]
            else:
                tail.append(raw("s_lshl_b32 s3, s2, 8"))
                tail.append(raw(f"s_add_u32 s3, s3, {WS_STAMP}"))
                tail.append(raw("v_mov_b32 v1, 0"))
                for n, i in enumerate(list(range(36, 40)) + list(range(72, 102)) + [4, 5, 6, 7, 53]):
                    tail.append(raw(f"v_mov_b32 v2, s{i}"))
                    tail.append(raw(f"buffer_store_dword v2, v1, s[32:35], s3 offen offset:{n * 4}"))
        tail += [Label("Lend"), raw("s_endpgm")]
        rest = s1a0 + ([] if o.early else s1b)
        for l in range(NL - 1):
            rest = rest + s2 + s3 + s4a + s4b + s1a + s1b
        rest = rest + s2 + s3 + ([] if o.tail4 else s4a) + s4bl + tail
        traces = [[x for x in pro if x.note != skip] + rest for skip in ("gx", "gy")]
        for tr in traces:
            resolve_waits(tr)
        for tr in traces:
            errs, mv, ml = check(tr)
            if errs and not o.now and o.slots <= 6:
                for x in errs[:20]:
                    print(x, file=sys.stderr)
                raise SystemExit("hazard/dependency errors")
        if o.early:
            prog = pro + s1a0 + s2 + s3 + s4a + s4b + s1a + s1b + s4bl + tail + self.ool
        else:
            prog = pro + s1a0 + s1b + s2 + s3 + s4a + s4b + s1a + s4bl + tail + self.ool
        txt = f".globl {KNAME}\n.p2align 8\n.type {KNAME},@function\n{KNAME}:\n" + emit(prog) + "\n"
        txt = "; stamps: " + " ".join(self.names) + "\n" + txt
        return txt, kd(KNAME, 512, 102, 256)


def main():
    ap = argparse.ArgumentParser()
    ap.add_argument("-o", default="standalone__cross_network_dcn__recsys.s")
    ap.add_argument("--slots", type=int, default=6)
    ap.add_argument("--wflags", default="sc1")
    ap.add_argument("--xflags", default="")
    ap.add_argument("--oflags", default="nt")
    ap.add_argument("--rflags", default="")
    ap.add_argument("--xsflags", default="sc1")
    ap.add_argument("--xlflags", default="")
    ap.add_argument("--bar_lead", type=int, default=6)
    ap.add_argument("--xw", type=int, default=4)
    ap.add_argument("--x0split", type=int, nargs=4, default=[4, 4, 8, 0])
    ap.add_argument("--sigb_at", type=float, default=0.45)
    ap.add_argument("--polla_at", type=float, default=0.85)
    ap.add_argument("--siga_at", type=float, default=0.45)
    ap.add_argument("--pollw_at", type=float, default=0.3)
    ap.add_argument("--pollb_gap", type=int, default=386)
    ap.add_argument("--dma_end", type=int, default=440)
    ap.add_argument("--stamps", action="store_true")
    ap.add_argument("--dma_start", type=int, default=0)
    ap.add_argument("--prea", type=int, default=0)
    ap.add_argument("--db2", type=int, default=4, help="B units published in S2")
    ap.add_argument("--revb", type=int, default=1)
    ap.add_argument("--jitter", type=int, default=0, help="diagnostic: probability/256 of a delay per phase")
    ap.add_argument("--init", default="", help="accumulator start value (hex float bits)")
    ap.add_argument("--tail4", type=int, default=0)
    ap.add_argument("--nself", type=int, default=8)
    ap.add_argument("--rawlate", type=int, default=0)
    ap.add_argument("--ns2", type=int, default=24)
    ap.add_argument("--selfw", type=int, default=1)
    ap.add_argument("--selfp", type=int, nargs=5, default=[16, 4, 8, 0, -7],
                    help="raw DMAs before the prep stores, piece before which to signal, x0A DMAs before the signal, x0B DMAs before the poll, x0B lead")
    ap.add_argument("--wbunch", type=int, default=1)
    ap.add_argument("--bias_end", type=int, default=0)
    ap.add_argument("--quadg", type=int, default=1)
    ap.add_argument("--dmagroup", type=int, default=1)
    ap.add_argument("--poll0", type=int, default=1)
    ap.add_argument("--nox", action="store_true", help="diagnostic")
    ap.add_argument("--nost", action="store_true", help="diagnostic")
    ap.add_argument("--nodma", action="store_true", help="diagnostic")
    ap.add_argument("--nobias", action="store_true", help="diagnostic")
    ap.add_argument("--shift", type=int, default=0)
    ap.add_argument("--cpfsplit", type=int, default=1)
    ap.add_argument("--backoff", type=int, default=0)
    ap.add_argument("--w0prep", type=int, default=0)
    ap.add_argument("--nb_pro", type=int, default=6, help="early mode: x0 B-half DMAs issued before the first MFMA")
    ap.add_argument("--dmapair", type=int, default=10)
    ap.add_argument("--dbgout", type=int, default=-1)
    ap.add_argument("--tailpk", type=int, default=1)
    ap.add_argument("--gather", type=int, default=1)
    ap.add_argument("--wsig2", type=int, default=0)
    ap.add_argument("--stagger", type=int, default=-1, help="workgroup-id bit selecting the late group")
    ap.add_argument("--ynb", type=int, default=4)
    ap.add_argument("--sig0_at", type=float, default=0.1)
    ap.add_argument("--poll0_at", type=float, default=0.7)
    ap.add_argument("--verbose", action="store_true")
    ap.add_argument("--gload", type=int, default=1)
    ap.add_argument("--pace", type=float, default=0.1)
    ap.add_argument("--early", type=int, default=1)
    ap.add_argument("--pub0_end", type=int, default=40)
    ap.add_argument("--earlyprep", type=int, default=0)
    ap.add_argument("--lateprep", type=int, default=400)
    ap.add_argument("--preps_at", type=int, default=330)
    ap.add_argument("--prepl_at", type=float, default=0.1)
    ap.add_argument("--wdelay", type=int, default=2)
    ap.add_argument("--short_at", type=int, default=72)
    ap.add_argument("--pkmul", type=int, default=0)
    ap.add_argument("--pkadd", type=int, default=0)
    ap.add_argument("--apub", type=int, default=0, help="publish x0's A half in the prologue")
    ap.add_argument("--cpf", type=int, default=4, help="code prefetch loads per wave (16 KB each)")
    ap.add_argument("--desync", type=int, default=0, help="diagnostic")
    ap.add_argument("--direct", type=int, nargs=2, default=[12, 4])
    ap.add_argument("--siga2_at", type=float, default=0.08)
    ap.add_argument("--puba_end", type=int, default=160)
    ap.add_argument("--sg", type=int, nargs=4, default=[-1, 0, 390, 150])
    ap.add_argument("--delay", type=int, default=0, help="diagnostic")
    ap.add_argument("--touch", type=int, default=0, help="diagnostic")
    ap.add_argument("--pstamps", type=int, default=0, help="phase stamps in layer N-1")
    ap.add_argument("--xbase", type=int, default=32)
    ap.add_argument("--xbufs", type=int, default=6)
    ap.add_argument("--now", action="store_true", help="diagnostic: no W loads in the loop")
    ap.add_argument("--noxch", action="store_true", help="diagnostic: no exchange traffic")
    ap.add_argument("--noepi", action="store_true", help="diagnostic: no epilogue/bias in the loop")
    o = ap.parse_args()
    for k in ("wflags", "xflags", "oflags", "rflags", "xsflags", "xlflags"):
        v = getattr(o, k)
        setattr(o, k, (" " + v.replace(",", " ")) if v and v != "none" else "")
    mtxt, mkd = Main(o).build()
    opts = " ".join(a for a in sys.argv[1:] if not a.endswith(".s") and a != "-o")
    s = HEADER.format(opts=opts)
    s += f"; @launch grid=(256,1,1) block=(256,1,1) lds={LDS_TOTAL}\n"
    s += '.amdgcn_target "amdgcn-amd-amdhsa--gfx950"\n.text\n'
    s += mtxt + mkd
    open(o.o, "w").write(s)
    print(o.o, len(s), "bytes")


if __name__ == "__main__":
    main()
```

```python
import argparse
import sys
from asmir import *

KNAME = "standalone__cross_network_dcn__recsys_kernel"
NL = 6
D = 1024
NB = 16384
MB = 1 << 20

HEADER = """; Kernarg layout for this problem (48 bytes, ptrs only, base s[0:1]):
;   offset  40: d_ws      268435456 bytes workspace
; Generated by gen/gen3.py (hand-written generator). Options: {opts}
"""

LDS_BIAS = 131072
LDS_STAGE = LDS_BIAS + NL * 512 * 4
LDS_TOTAL = LDS_STAGE + 8192
WS_FLAGS = 15 * MB
WS_XCH = 32 * MB
WS_STAMP = 16 * MB


def kd(name, vgpr, sgpr, accum):
    return f""".section .rodata,"a"
.p2align 6
.amdhsa_kernel {name}
  .amdhsa_next_free_vgpr {vgpr}
  .amdhsa_next_free_sgpr {sgpr}
  .amdhsa_accum_offset {accum}
  .amdhsa_group_segment_fixed_size 0
  .amdhsa_kernarg_size 48
  .amdhsa_user_sgpr_count 2
  .amdhsa_user_sgpr_kernarg_segment_ptr 1
  .amdhsa_system_sgpr_workgroup_id_x 1
  .amdhsa_float_denorm_mode_32 3
.end_amdhsa_kernel
"""


def srd(base, lo, hi, nbytes):
    return [salu("s_mov_b32", f"s{base}", lo), salu("s_mov_b32", f"s{base + 1}", hi),
            salu("s_mov_b32", f"s{base + 2}", hex(nbytes)), salu("s_mov_b32", f"s{base + 3}", "0x20000")]


def srd_off(base, lo, hi, off, nbytes):
    return [salu("s_add_u32", f"s{base}", lo, off), salu("s_addc_u32", f"s{base + 1}", hi, 0),
            salu("s_mov_b32", f"s{base + 2}", hex(nbytes)), salu("s_mov_b32", f"s{base + 3}", "0x20000")]


def sload(d, off, n=2):
    return I(f"s_load_dwordx{n} {d}, s[0:1], {off}", "smem", wr=[d])


def tagged(ins, tag):
    ins.wr = set(ins.wr) | {tag}
    return ins


def dma(voff, srdn, soff, off, flags, tag):
    o = f" offset:{off}" if off else ""
    return tagged(I(f"buffer_load_dwordx4 {voff}, {srdn}, {soff} offen{o}{flags} lds", "vld", rd=[voff]), tag)


def hoist(ins):
    ins.note = "hoist"
    return ins


def space(n):
    return [I("", "space") for _ in range(n)]


def insert_at(stream, frac, items, ok):
    i = int(len(stream) * frac)
    while 0 < i < len(stream) and not ok(stream[i - 1]):
        i += 1
    return stream[:i] + items + stream[i:]


class Main:
    def __init__(self, o):
        self.o = o
        self.sX, self.sW, self.sO, self.sB = "s[8:11]", "s[12:15]", "s[16:19]", "s[20:23]"
        self.sE, self.sR, self.sD = "s[32:35]", "s[40:43]", "s[44:47]"
        self.sC, self.sFm, self.sFp = "s[56:59]", "s[60:63]", "s[64:67]"
        self.sWoff, self.sL, self.sMask, self.sNeed = "s24", "s25", "s26", "s27"
        self.sRow, self.sXs, self.sXl, self.sFlag = "s28", "s29", "s30", "s31"
        self.sRaw, self.sDst, self.sLds, self.sBias, self.sStage, self.sSpin, self.sWave, self.sPNeed = (
            "s48", "s49", "s50", "s51", "s52", "s53", "s54", "s55")
        self.vW, self.vXw, self.vB = "v0", "v3", "v4"
        self.vXr = ["v1", "v2"]
        self.vL = "v1"
        self.t = ["v5", "v6", "v7"]
        self.Q = [8, 12]
        self.vP, self.vG = "v16", "v17"
        self.vS = ["v18", "v19"]
        self.RQ = [20, 24]
        self.NS = o.slots
        self.aX0 = 0
        self.aXF = 128
        self.aW = 192
        self.aACC = self.aW + 8 * min(self.NS, 6)
        self.nA = 256 - self.aACC
        self.vACC = self.nA
        NS = self.NS
        nshort = (-128) % NS
        nlong = (128 - nshort * (NS - 1)) // NS
        first = min(nlong, o.short_at // NS)
        seq = list(range(NS)) * first + list(range(NS - 1)) * nshort + list(range(NS)) * (nlong - first)
        assert len(seq) == 128
        self.slot = seq
        site = {}
        for s2 in range(-128, 256):
            p = s2 - 1
            while seq[p % 128] != seq[s2 % 128]:
                p -= 1
            site[s2] = max(p, site.get(s2 - 1, -10 ** 9))
        if o.wbunch > 1:
            k = o.wbunch
            for s2 in site:
                site[s2] = ((site[s2] // k) + 1) * k - 1
        self.site = site
        self.loads_at = {}
        for s2 in range(0, 256):
            self.loads_at.setdefault(site[s2], []).append(s2)
        self.small = self.vACC < 28
        if self.small:
            self.vP = self.vB
            q0 = [int(self.acc_tile(nt, 0, 0, 1)[1:]) for nt in range(4)]
            self.vG, self.vS, self.RQ = f"v{q0[0]}", [f"v{q0[0] + 1}", f"v{q0[0] + 2}"], [q0[1], q0[2]]
        self.init = "1.0" if not o.init else "s23"
        self.stampn = 0
        self.names = []
        self.ool = []

    def acc(self, p, i, n=1):
        h = self.nA // 2
        nv = 128 - h
        if i < nv:
            assert i + n <= nv
            return R("v", self.vACC + p * nv + i, n)
        return R("a", self.aACC + p * h + (i - nv), n)

    def acc_tile(self, nt, bt, r=0, n=4):
        return self.acc(nt >> 2, ((nt & 3) * 8 + bt) * 4 + r, n)

    def x0reg(self, kbl, bt, j=0, n=4):
        return R("a", self.aX0 + (kbl * 8 + bt) * 4 + j, n)

    def xf(self, bt, c):
        return R("a", self.aXF + (bt * 2 + c) * 4, 4)

    def wslot(self, s, c):
        if self.slot[s % 128] >= 6:
            return R("a", ((self.slot[s % 128] - 6) * 2 + c) * 4, 4)
        return R("a", self.aW + (self.slot[s % 128] * 2 + c) * 4, 4)

    def wload(self, s, c, dst=None):
        if self.o.gload:
            d = dst or self.wslot(s, c)
            off = (s & 3) * 2048 + c * 1024 - 4096
            if self.o.wdma and not dst:
                return I(f"global_load_lds_dwordx4 {self.vW}, s[70:71] offset:{off}", "vld", rd=[self.vW, "s[70:71]"], wr=[d])
            return I(f"global_load_dwordx4 {d}, {self.vW}, s[70:71] offset:{off}{self.o.wflags}", "vld",
                     rd=[self.vW, "s[70:71]"], wr=[d])
        return bload(dst or self.wslot(s, c), self.vW, self.sW, self.sWoff, (s & 1) * 2048 + c * 1024, flags=self.o.wflags)

    def wstep(self, s):
        if self.o.gload:
            if (s & 3) != 3:
                return []
            d = 8192 if (s % 128) != 127 else 8192 + 2 * MB - 256 * 1024
            both = I(f"s_add_u32 s70, s70, {d}\n s_addc_u32 s71, s71, 0", "salu", rd=["s[70:71]"], wr=["s[70:71]"])
            both.states = 2
            return [both]
        if not s & 1:
            return []
        return [salu("s_add_u32", self.sWoff, self.sWoff, 4096 if (s % 128) != 127 else 4096 + 2 * MB - 256 * 1024)]

    def xread(self, bt, c, rho, ss):
        return dsread(self.xf(bt, c), self.vXr[ss >> 1], (ss & 1) * 32768 + bt * 4096 + rho * 2048 + c * 1024)

    def stamp(self, name="x"):
        if not self.o.stamps:
            return []
        if self.o.pstamps and name in ("kernarg", "x0A_issued", "stores_issued", "signalled", "x0_issued", "x0_part", "flag_seen"):
            return []
        n = self.stampn
        self.stampn += 1
        self.names.append(name)
        assert n < 15
        return [raw(f"s_memtime s[{72 + 2 * n}:{73 + 2 * n}]", "other")]

    def lstamp(self, name, lval):
        if not self.o.pstamps:
            return []
        n = self.stampn
        return [raw(f"s_cmp_eq_u32 s25, {lval}"), raw(f"s_cbranch_scc0 Lns{n}")] + self.stamp(name) + [Label(f"Lns{n}")]

    def epi_unit(self, kbl, bt, q, pk=False):
        s = []
        accs = [self.acc_tile(2 * kbl + t, bt, r, 1) for t in range(2) for r in range(4)]
        hi, lo, m = self.t
        for j in range(4):
            a0, a1 = accs[2 * j], accs[2 * j + 1]
            if self.o.pkmul or pk:
                s.append(valu("v_accvgpr_read_b32", "v7", self.x0reg(kbl, bt, j, 1)))
                ap = f"v[{a0[1:]}:{a1[1:]}]"
                if a0[0] == "a":
                    tp = int(self.acc_tile(3, 0, 0, 1)[1:]) if pk else 28
                    s.append(valu("v_accvgpr_read_b32", f"v{tp}", a0))
                    s.append(valu("v_accvgpr_read_b32", f"v{tp + 1}", a1))
                    ap = R("v", tp, 2)
                s.append(valu("v_lshlrev_b32", "v6", 16, "v7"))
                s.append(valu("v_and_b32", "v7", self.sMask, "v7"))
                s.append(valu("v_pk_mul_f32", "v[6:7]", "v[6:7]", ap))
                s.append(valu("v_cvt_pk_bf16_f32", f"v{q + j}", "v6", "v7"))
                continue
            s.append(valu("v_accvgpr_read_b32", hi, self.x0reg(kbl, bt, j, 1)))
            if a0[0] == "a":
                s.append(valu("v_accvgpr_read_b32", m, a0))
                a0 = m
            s.append(valu("v_lshlrev_b32", lo, 16, hi))
            s.append(valu("v_and_b32", hi, self.sMask, hi))
            s.append(valu("v_mul_f32", lo, lo, a0))
            if a1[0] == "a":
                s.append(valu("v_accvgpr_read_b32", m, a1))
                a1 = m
            s.append(valu("v_mul_f32", hi, hi, a1))
            s.append(valu("v_cvt_pk_bf16_f32", f"v{q + j}", lo, hi))
        return s

    def xstore(self, src, p, u, tmp, state):
        if self.o.noxch or self.o.nost:
            return []
        s = []
        off = p * 16384 + u * 1024
        if state.get("g") != off >> 12:
            state["g"] = off >> 12
            s.append(salu("s_add_u32", tmp, self.sXs, off & ~4095))
        s.append(tagged(bstore(src, self.vXw, self.sE, tmp, off & 4095, flags=self.o.xsflags), f"xs{p}"))
        return s

    def xnext(self, reg, back):
        n = self.o.xbufs
        if n == 1:
            return [salu("s_sub_u32", reg, reg, back)]
        if n == 2:
            return [salu("s_sub_u32", reg, reg, back), salu("s_xor_b32", reg, reg, hex(32 * MB))]
        return [salu("s_add_u32", reg, reg, hex(32 * MB - back))]

    def epi_stream(self, p, ndirect=16, one=False, units=None):
        s = []
        st = {}
        for n, u in enumerate(range(16) if units is None else units):
            bt, c = u >> 1, u & 1
            q = self.Q[0 if one else n & 1]
            s += self.epi_unit(2 * p + c, bt, q)
            s.append(dswrite(self.vXw, R("v", q, 4), bt * 4096 + p * 2048 + c * 1024))
            if n < ndirect:
                s += self.xstore(R("v", q, 4), p, u, "s68", st)
        return s

    def pub_stream(self, p, lo, hi, units=None):
        s = []
        st = {}
        if self.o.noxch or lo >= hi:
            return s
        if self.small:
            q = R("v", self.Q[1], 4)
            for u in (units or range(16))[lo:hi]:
                s.append(dsread(q, self.vXw, (u >> 1) * 4096 + p * 2048 + (u & 1) * 1024))
                s += space(7)
                s.append(Wait(lg=[q]))
                s += self.xstore(q, p, u, "s69", st) + space(2)
            return s

        def rd(u):
            return dsread(R("v", self.RQ[u & 1], 4), self.vXw, (u >> 1) * 4096 + p * 2048 + (u & 1) * 1024)

        s.append(rd(lo))
        s += space(6)
        for u in range(lo, hi):
            if u + 1 < hi:
                s.append(rd(u + 1))
            s.append(Wait(lg=[R("v", self.RQ[u & 1], 4)]))
            s += self.xstore(R("v", self.RQ[u & 1], 4), p, u, "s69", st)
        return s

    def pub_guard(self, st):
        return st

    def x0pub_stream(self, p, lo=0, hi=16):
        s = []
        st = {}
        for u in range(lo, hi):
            s += self.xstore(self.x0reg(2 * p + (u & 1), u >> 1), p, u, "s68", st)
        return s

    def xch_dma(self, p):
        if self.o.wdma:
            return []
        if self.o.gather:
            return self.xch_dma_g(p)
        s = [raw(f"s_add_u32 m0, {self.sLds}, {p * 2048}", "salu", rd=[self.sLds])] + space(1)
        for bt in range(8):
            for c in range(2):
                if not self.o.noxch:
                    s.append(dma(self.vXw, self.sE, self.sXl, c * 1024, self.o.xlflags, f"xl{p}"))
            if bt < 7:
                s.append(raw("s_add_u32 m0, m0, 4096", "salu"))
            if bt == 7 and p == 1:
                s += self.xnext(self.sXl, 15 * 2048)
            else:
                s.append(salu("s_add_u32", self.sXl, self.sXl, 2048))
        return s

    def xch_dma_g(self, p):
        t0, t1 = self.t[0], self.t[1]
        vL = self.vL
        if self.o.quadg:
            X = self.vXw
            self.ool += [Label(f"Lgat{p}"),
                         raw(f"v_lshrrev_b32 {t0}, 4, {X}"), raw(f"v_and_b32 {t0}, 0x20, {t0}"), raw(f"v_xor_b32 {t0}, {t0}, {X}"),
                         raw(f"v_and_b32 {t0}, 0x30, {t0}"), raw(f"v_bfe_u32 {t1}, {X}, 6, 4"),
                         raw(f"v_lshl_add_u32 {t1}, {t1}, 11, {t0}"), raw(f"s_branch Lgatr{p}")]
        else:
            self.ool += [Label(f"Lgat{p}"),
                         raw(f"v_and_b32 {t0}, 0xf0, {vL}"), raw(f"v_lshrrev_b32 {t1}, 4, {vL}"),
                         raw(f"v_and_b32 {t1}, 0x30, {t1}"), raw(f"v_lshl_add_u32 {t1}, {t0}, 7, {t1}"),
                         raw(f"s_branch Lgatr{p}")]
        sel = I(f"v_mov_b32 {t1}, {self.vXw}\n s_cmp_eq_u32 {self.sL}, 0\n s_cbranch_scc1 Lgat{p}\nLgatr{p}:", "valu",
                rd=[self.vXw], wr=[t0, t1])
        s = [sel, raw(f"s_add_u32 m0, {self.sLds}, {p * 2048}", "salu", rd=[self.sLds])] + space(1)
        for bt in range(8):
            for c in range(2):
                if not self.o.noxch and not self.o.nodma:
                    s.append(dma(t1, self.sX, self.sXl, 0, self.o.xlflags, f"xl{p}"))
                s.append(raw(f"s_add_u32 m0, m0, {1024 if c == 0 else 3072}", "salu"))
                s.append(salu("s_add_u32", self.sXl, self.sXl, "s20" if c == 0 else "s21" if bt < 7 else "s22"))
            if bt < 7 and (bt + 1) % self.o.dmagroup == 0:
                s += space(self.o.dmapair * self.o.dmagroup)
        return s

    def xr_gathered(self):
        if not self.o.quadg:
            return []
        t0, X, r0, r1 = self.t[0], self.vXw, self.vXr[0], self.vXr[1]
        self.ool += [Label("Lxrg"),
                     raw(f"v_lshrrev_b32 {t0}, 2, {X}"), raw(f"v_and_b32 {t0}, 0x20, {t0}"),
                     raw(f"v_lshrrev_b32 {r1}, 4, {X}"), raw(f"v_xor_b32 {t0}, {t0}, {r1}"),
                     raw(f"v_and_b32 {t0}, 0x30, {t0}"), raw(f"v_bfe_u32 {r0}, {X}, 4, 4"),
                     raw(f"v_lshl_add_u32 {r0}, {r0}, 6, {t0}"), raw(f"v_add_u32 {r1}, 0x10000, {r0}"),
                     raw("s_branch Lxrgr")]
        return [I(f"s_cmp_eq_u32 {self.sL}, 0\n s_cbranch_scc1 Lxrg\nLxrgr:", "valu", rd=[X], wr=[t0, r0, r1])]

    def xr_plain(self):
        if not self.o.quadg:
            return []
        return [valu("v_and_b32", self.vXr[0], 0x3ff, self.vXw), valu("v_add_u32", self.vXr[1], 65536, self.vXr[0])]

    def xch_switch(self):
        return [salu("s_mov_b32", "s34", hex(256 * MB)),
                salu("s_mov_b32", "s8", "s32"), salu("s_mov_b32", "s9", "s33"), salu("s_mov_b32", "s10", "s34"),
                salu("s_mov_b32", "s20", 1024), salu("s_mov_b32", "s21", 1024), salu("s_mov_b32", "s22", 1024),
                salu("s_xor_b32", self.sXl, self.sXs, 1 << 17)]

    def calc_vG(self, vG):
        t0, t1 = self.t[0], self.t[1]
        return [valu("v_lshrrev_b32", t0, 7, self.vL), valu("v_lshlrev_b32", t1, 4, t0),
                valu("v_xor_b32", t1, t1, self.vL), valu("v_and_b32", t1, 0x70, t1),
                valu("v_lshl_add_u32", vG, t0, 11, t1)]

    def calc_vS(self, vS):
        t0, t1 = self.t[0], self.t[1]
        vL = self.vL
        return [valu("v_lshrrev_b32", t0, 4, vL), valu("v_and_b32", t0, 0x30, t0), valu("v_xor_b32", t0, t0, vL),
                valu("v_and_b32", t0, 0x70, t0), valu("v_and_b32", t1, 0xf0, vL),
                valu("v_lshl_add_u32", t0, t1, 3, t0), valu("v_add_u32", vS[0], self.sLds, t0),
                valu("v_xor_b32", vS[1], 64, vS[0])]

    def out_setup(self):
        return self.calc_vG(self.vG) + self.calc_vS(self.vS)

    def x0h_dma(self, p, lo, hi, vG):
        r = []
        for i in range(lo, hi):
            r.append(raw(f"s_add_u32 m0, {self.sLds}, {(i >> 1) * 4096 + p * 2048 + (i & 1) * 1024}", "salu"))
            r.append(salu("s_add_u32", "s3", self.sRow, i * 16384 + p * 128))
            r.append(dma(vG, self.sX, "s3", 0, self.o.xflags, f"x0_{p}_{i >> 1}"))
        return r

    def x0h_read(self, p, bt, vS):
        return [Wait(vm=[f"x0_{p}_{bt}"])] + [dsread(self.x0reg(2 * p + c, bt), vS[c], bt * 4096 + p * 2048)
                                              for c in range(2)]

    def x0h_write(self, p, bt):
        return [Wait(lg=[self.x0reg(2 * p + c, bt) for c in range(2)])] + [
            dswrite(self.vXw, self.x0reg(2 * p + c, bt), bt * 4096 + p * 2048 + c * 1024) for c in range(2)]

    def wreg0(self, s, c):
        if s < 16 - self.NS:
            return self.acc(1, (s * 2 + c) * 4, 4)
        return self.wslot(s, c)

    def out_stream(self, p):
        s = []
        pend = []
        for bt in range(8):
            for c in range(2):
                q = self.Q[c]
                u = self.epi_unit(2 * p + c, bt, q, pk=(p == 1 and self.o.tailpk))
                if c == 0 and pend:
                    u = u[:12] + pend + u[12:]
                    pend = []
                s += u
                if p == 0 and bt == 0 and c == 0:
                    s += self.out_setup()
                s.append(dswrite(self.vS[c], R("v", q, 4), bt * 4096))
            for i in range(2):
                s.append(dsread(R("v", self.RQ[i], 4), self.vXw, bt * 4096 + i * 1024))
            for i in range(2):
                pend.append(Wait(lg=[R("v", self.RQ[i], 4)]))
                pend.append(salu("s_add_u32", "s3", self.sRow, bt * 32768 + i * 16384))
                pend.append(bstore(R("v", self.RQ[i], 4), self.vG, self.sO, "s3", p * 128, flags=self.o.oflags))
        return s + pend

    def out_stream4(self, kbl):
        s = []
        pend = []
        p, c = kbl >> 1, kbl & 1
        for bt in range(8):
            q = self.Q[bt & 1]
            u = self.epi_unit(kbl, bt, q, pk=(kbl == 3 and self.o.tailpk))
            s += u[:12] + pend + u[12:]
            pend = []
            if kbl == 0 and bt == 0:
                s += self.out_setup()
            s.append(dswrite(self.vS[c], R("v", q, 4), bt * 4096))
            if c:
                rq = [int(self.acc_tile(1, 0, 0, 1)[1:]), int(self.acc_tile(0, 1, 0, 1)[1:])]
                for i in range(2):
                    s.append(dsread(R("v", rq[i], 4), self.vXw, bt * 4096 + i * 1024))
                for i in range(2):
                    pend.append(Wait(lg=[R("v", rq[i], 4)]))
                    pend.append(salu("s_add_u32", "s3", self.sRow, bt * 32768 + i * 16384))
                    pend.append(bstore(R("v", rq[i], 4), self.vG, self.sO, "s3", p * 128, flags=self.o.oflags))
        return s + pend

    def calc_vB(self):
        return [valu("v_bfe_u32", self.vB, self.vXw, 8, 2),
                valu("v_lshl_add_u32", self.vB, self.vB, 5, self.sBias)]

    def bias_stream(self, p, one=False):
        s = []
        if one:
            q = self.Q[0]
            for nt in range(4 * p, 4 * p + 4):
                s.append(dsread(R("v", q, 4), self.vB, (nt >> 1) * 128 + (nt & 1) * 16))
                s += space(7)
                s.append(Wait(lg=[R("v", q, 4)]))
                cnt = 0
                for bt in range(8):
                    for r in range(4):
                        a = self.acc_tile(nt, bt, r, 1)
                        if a[0] == "a":
                            t = self.t[cnt & 1]
                            s += [valu("v_accvgpr_read_b32", t, a), valu("v_add_f32", t, t, f"v{q + r}"),
                                  valu("v_accvgpr_write_b32", a, t)]
                        else:
                            s.append(valu("v_add_f32", a, a, f"v{q + r}"))
                        cnt += 1
            return s
        if self.o.nobias:
            return [valu("v_add_f32", self.acc_tile(4 * p, 0, 0, 1), self.acc_tile(4 * p, 0, 0, 1), 0) for _ in range(8)]

        def rd(nt):
            return dsread(R("v", self.Q[nt & 1], 4), self.vB, (nt >> 1) * 128 + (nt & 1) * 16)

        s.append(rd(4 * p))
        s += space(8)
        for nt in range(4 * p, 4 * p + 4):
            q = self.Q[nt & 1]
            cnt = 0
            for bt in range(8):
                for r in range(4):
                    if cnt == 0:
                        s.append(Wait(lg=[R("v", q, 4)]))
                    a = self.acc_tile(nt, bt, r, 1)
                    if self.o.pkadd and a[0] == "v":
                        if not r & 1:
                            ap = self.acc_tile(nt, bt, r, 2)
                            s.append(valu("v_pk_add_f32", ap, ap, R("v", q + r, 2)))
                    elif a[0] == "a":
                        t = self.t[cnt & 1]
                        s.append(valu("v_accvgpr_read_b32", t, a))
                        s.append(valu("v_add_f32", t, t, f"v{q + r}"))
                        s.append(valu("v_accvgpr_write_b32", a, t))
                    else:
                        s.append(valu("v_add_f32", a, a, f"v{q + r}"))
                    cnt += 1
                    if cnt == 1 and nt + 1 < 4 * p + 4:
                        s.append(rd(nt + 1))
        return s

    def prep_load(self):
        if self.o.wdma and getattr(self, "pl0", 0):
            return []
        self.pl0 = 1
        t0, t1 = self.t[0], self.t[1]
        s = [valu("v_lshrrev_b32", t0, 6, self.vL),
             valu("v_and_b32", t1, 48, self.vL),
             valu("v_lshl_add_u32", t0, t0, 11, t1),
             raw(f"s_mov_b32 m0, {self.sStage}", "salu", rd=[self.sStage]),
             salu("s_add_u32", "s3", self.sRaw, 32768 - 1024)]
        s.append(dma(t0, self.sR, self.sRaw, 0, self.o.rflags, "raw"))
        s.append(dma(t0, self.sR, "s3", 1024, self.o.rflags, "raw"))
        s.append(salu("s_add_u32", self.sRaw, self.sRaw, D * D * 2))
        return s

    def prep_store(self, sp=0):
        t0 = self.t[0]
        t1 = self.t[2]
        s = [valu("v_and_b32", t0, 0x300, self.vXw),
             valu("v_and_b32", t1, 0x3ff, self.vXw),
             valu("v_add3_u32", t0, t0, t1, self.sStage),
             Wait(vm=["raw"])]
        for t in range(2):
            for h in range(2):
                s.append(I(f"ds_read_b64_tr_b16 {R('v', self.Q[t] + 2 * h, 2)}, {t0} offset:{h * 256 + t * 8}", "dsr",
                           rd=[t0], wr=[R("v", self.Q[t] + 2 * h, 2)]))
        dst = self.sDst
        if sp and self.o.tail4:
            dst = "s69"
            s.append(I(f"s_cmp_eq_u32 {self.sL}, {NL - 2}\n s_cselect_b32 s69, s24, 0\n s_add_u32 s69, s69, {self.sDst}",
                       "salu", rd=[self.sL, "s24", self.sDst], wr=["s69"]))
        s += space(sp)
        for t in range(2):
            s.append(Wait(lg=[R("v", self.Q[t], 4)]))
            s.append(tagged(bstore(R("v", self.Q[t], 4), t1, self.sW, dst, t * 2048, flags=" sc1"), "pst"))
        s.append(salu("s_add_u32", self.sDst, self.sDst, D * D * 2))
        return s

    def wsignal(self):
        t = self.t[2]
        return [valu("v_mov_b32", t, 1),
                I(f"buffer_atomic_add {t}, {self.vW}, {self.sC}, 0 offen sc1", "vst", rd=[t, self.vW])]

    def psignal(self, p):
        t = self.t[2]
        return [salu("s_add_u32", self.sFlag, self.sFlag, 1), Wait(vm=[f"xs{p}"]),
                valu("v_mov_b32", t, self.sFlag),
                bstore(t, self.vL, self.sFm, 0, w="dword", flags=" sc1")]

    def wpoll_load(self):
        v = self.vP
        return [valu("v_lshlrev_b32", v, 2, self.vXw), valu("v_and_b32", v, 0xc0, v),
                bload(v, v, self.sD, 0, w="dword", flags=" sc1")]

    def ppoll_load(self):
        return [I(f"buffer_load_dword {self.vP}, off, {self.sFp}, 0 sc1", "vld", wr=[self.vP])]

    def poll_check(self, name, need, inc, loader):
        v = self.vP
        spin = [Label(f"Lspin_{name}"), raw(f"s_add_u32 {self.sSpin}, {self.sSpin}, 1")]
        if self.o.backoff:
            spin.append(raw(f"s_sleep {self.o.backoff}"))
        spin += [raw(x.text) for x in loader()]
        spin += [raw(f"s_cmp_ge_u32 {self.sSpin}, 0x100000"),
                 raw(f"s_cbranch_scc1 Lgiveup_{name}"),
                 raw("s_waitcnt vmcnt(0)"),
                 raw(f"v_cmp_gt_i32 vcc, {need}, {v}"),
                 raw("s_and_b64 vcc, exec, vcc"),
                 raw(f"s_cbranch_vccnz Lspin_{name}"),
                 Label(f"Lgiveup_{name}"),
                 raw("s_waitcnt vmcnt(0)"),
                 raw(f"s_branch Lok_{name}")]
        self.ool += spin
        return [Wait(vm=[v]), I(f"v_cmp_gt_i32 vcc, {need}, {v}", "valu", rd=[v, need]),
                raw(f"s_and_b64 vcc, exec, vcc\n s_cbranch_vccnz Lspin_{name}\nLok_{name}:", "branch"),
                salu("s_add_u32", need, need, inc)]

    def phase(self, s0, nts, rho, next_rho, stream=(), bar=False, last=False, start=0, end=None, pre_bar=(),
              fixed=(), extra=(), wreg=None, skip_below=0, post_bar=()):
        o = self.o
        NS = self.NS
        NT = len(nts)
        L = NT * 16
        mf = []
        gaps = [[] for _ in range(4 * L)]
        fwd = list(range(8))
        keepx = o.revb and s0 in (0, 96)
        rev = o.revb and s0 in (16, 112)
        flip = 1 if (o.revb and 16 <= s0 <= 96) else 0
        wreg = wreg or self.wslot
        for ss in range(4):
            base = ss * L
            for k, nt in enumerate(nts):
                s = s0 + ss * NT + k
                order = fwd if ((ss + k + flip) & 1) == 0 else fwd[::-1]
                for j, bt in enumerate(order):
                    for i in range(2):
                        c = i ^ (j & 1)
                        mf.append(mfma(16, self.acc_tile(nt, bt), wreg(s, c), self.xf(bt, c)))
                g = base + k * 16
                at = self.loads_at.get(s, [])
                for n, sn in enumerate(at):
                    if (last and sn >= 128) or o.now or sn < skip_below:
                        continue
                    ga, gb, gc = g + (14 if n == 0 else 15), g + 15, g + 18
                    if o.wdelay and g + 16 < 4 * L and (o.wdelay == 2 or k == NT - 1):
                        ga, gb, gc = g + 17 + 4 * n, g + 19 + 4 * n, g + 20 + 4 * n
                    elif o.wdelay and g + 16 < 4 * L and len(at) == 1:
                        gb, gc = g + 17, g + 19
                    elif not (g + 18 < 4 * L and n == len(at) - 1):
                        gc = g + 15
                    gaps[ga].append(hoist(self.wload(sn, 1)))
                    gaps[gb].append(hoist(self.wload(sn, 0)))
                    gaps[gc] += self.wstep(sn)
                if k < NT - 1:
                    gaps[g + 15].append(Wait(vm=[wreg(s + 1, 0), wreg(s + 1, 1)]))
                if k == 0:
                    for j in range(o.xw, 8, o.xw):
                        gaps[g + 2 * j - 1].append(
                            Wait(lg=[self.xf(order[jj], c) for jj in range(j, min(8, j + o.xw)) for c in range(2)]))
            nrho, nss = (rho, 2 - ss if rev else ss + 1) if ss < 3 else (next_rho, 0)
            if ss == 3 and keepx:
                nrho = None
                s = s0 + 4 * NT
                gaps[base + L - 1].append(Wait(vm=[wreg(s, 0), wreg(s, 1)]))
            gl = base + L - 16
            if ss == 3 and bar:
                gaps[gl - o.bar_lead] += list(pre_bar) + [Wait(all_lg=True), barrier()]
                gaps[gl - o.bar_lead + 1] += list(post_bar)
            if nrho is not None:
                for j, bt in enumerate(order):
                    for i in range(2):
                        c = i ^ (j & 1)
                        if not o.nox:
                            gaps[gl + 2 * j + i].append(hoist(self.xread(bt, c, nrho, nss)))
                s = s0 + (ss + 1) * NT
                gaps[base + L - 1].append(Wait(vm=[wreg(s, 0), wreg(s, 1)],
                                               lg=[self.xf(order[jj], c) for jj in range(o.xw) for c in range(2)]))
        for gi, inss in fixed:
            gaps[gi] += inss
        hi = end if end is not None else (4 * L - 16 - o.bar_lead if bar else 4 * L - 1)
        for st, lo2, hi2 in extra:
            self.place(gaps, list(st), lo2, hi2)
        self.place(gaps, list(stream), start, hi)
        out = []
        if o.jitter:
            n = self.njit = getattr(self, "njit", 0) + 1
            out.append(raw(f"s_mul_i32 s23, s23, 1664525\n s_add_u32 s23, s23, 1013904223\n s_lshr_b32 s101, s23, 24\n"
                           f" s_cmp_ge_u32 s101, {o.jitter}\n s_cbranch_scc1 Ljit{n}\n s_bfe_u32 s101, s23, 0x40010\nLjs{n}:\n s_sleep 20\n"
                           f" s_sub_u32 s101, s101, 1\n s_cbranch_scc0 Ljs{n}\nLjit{n}:", "salu"))
        for i, m in enumerate(mf):
            out.append(m)
            gaps[i] = self.merge([], gaps[i])
            out += gaps[i]
        if o.verbose:
            print(f"; phase s0={s0} mfma={len(mf)} modelled excess={sum(self.gap_excess(g) for g in gaps)}", file=sys.stderr)
        return out

    @staticmethod
    def gap_excess(items):
        slots = 0
        ex = 0
        free = 2
        seenv = False
        for x in items:
            k = x.kind
            if k in ("valu", "nop"):
                slots += 1
                seenv = True
                continue
            if k in ("dsr", "vld", "dsw", "vst") and seenv:
                ex += 8
            if k == "dsr":
                slots += 1
            elif k == "vld":
                slots += 1 if x.text.startswith("global") else 2
            elif k == "dsw":
                ex += 12
                free -= 2
            elif k == "vst":
                ex += (20 if x.big else 4) + 4 * slots + (8 if free < 2 else 0)
                free = 3 if x.big else free - 1
            elif k == "barrier":
                ex += 24
        return ex + 4 * max(0, slots - max(free, 0))

    @staticmethod
    def merge(items, fixed):
        k = 0
        lead, rest = [], []
        stop = False
        for x in fixed:
            if not stop and x.kind in ("dsr", "vld") and getattr(x, "note", "") == "hoist":
                lead.append(x)
            else:
                rest.append(x)
                if x.kind not in ("wait",):
                    stop = True
        items = [x for x in items if x.kind != "space"]
        j = 0
        while j < len(items) and items[j].kind in ("salu", "wait"):
            j += 1
        if j < len(items) and items[j].kind == "vst":
            return items[:j + 1] + lead + items[j + 1:] + rest
        return lead + items + rest

    def place(self, gaps, stream, lo, hi):
        if not stream:
            return
        n, G = len(stream), hi - lo
        KMAX = 8
        INF = float("inf")
        dp = [INF] * (n + 1)
        dp[0] = 0.0
        back = []
        NG = len(gaps)
        cnt = lambda g, kind: sum(1 for x in gaps[g] if x.kind == kind) if g < NG else 0
        for g in range(G):
            fixed = gaps[lo + g]
            base = self.gap_excess(self.merge([], fixed))
            wpen = 7 * sum(cnt(lo + g + d, "dsr") for d in (1, 2, 3)) + 4 * cnt(lo + g, "dsr")
            spen = 12 * cnt(lo + g + 1, "vld") + 6 * cnt(lo + g, "vld") + 4 * cnt(lo + g + 2, "vld")
            nd = [INF] * (n + 1)
            bk = [0] * (n + 1)
            tgt = n * (g + 1) / G
            for i in range(n + 1):
                if dp[i] == INF:
                    continue
                for k in range(0, min(KMAX, n - i) + 1):
                    c = dp[i]
                    if k:
                        its = stream[i:i + k]
                        if k > 1 and its[-2].kind == "space":
                            break
                        c += self.gap_excess(self.merge(its, fixed)) - base
                        c += sum(wpen if x.kind == "dsw" else spen if x.kind == "vst" else 0 for x in its)
                    c += self.o.pace * ((i + k - tgt) / max(1.0, n / G)) ** 2 + 0.02 * k * k
                    if c < nd[i + k]:
                        nd[i + k] = c
                        bk[i + k] = k
            dp = nd
            back.append(bk)
        assert dp[n] < INF
        i = n
        for g in range(G - 1, -1, -1):
            k = back[g][i]
            gaps[lo + g] = self.merge(stream[i - k:i], gaps[lo + g])
            i -= k

    def prologue(self):
        o = self.o
        vL = self.vL
        b = []
        b.append(salu("s_cmp_ge_u32", "s2", 256))
        b.append(raw("s_cbranch_scc1 Lend", "branch"))
        if o.pair8:
            b += [raw("s_lshr_b32 s3, s2, 3"), raw("s_xor_b32 s3, s3, s2"), raw("s_and_b32 s3, s3, 1"), raw("s_mul_i32 s3, s3, 9"),
                  raw("s_xor_b32 s2, s2, s3")]
        b += self.stamp("start")
        if o.stamps:
            b.append(raw("s_memrealtime s[36:37]"))
        b += [nop(0) for _ in range(o.shift)]
        b += [sload("s[56:59]", 0, 4), sload("s[60:63]", 16, 4), sload("s[64:67]", 32, 4)]
        b.append(valu("v_lshrrev_b32", "v9", 6, "v0"))
        b.append(valu("v_and_b32", "v10", 63, "v0"))
        b.append(valu("v_readfirstlane_b32", self.sWave, "v9"))
        b.append(valu("v_lshlrev_b32", vL, 4, "v10"))
        if o.cpf:
            b.append(raw("s_getpc_b64 s[4:5]", "salu"))
            b.append(Label("Lpc"))
            b.append(valu("v_lshlrev_b32", "v11", 6, "v0"))
            if o.cpfsplit:
                b += [salu("s_bfe_u32", "s3", "s2", "0x20003"), salu("s_lshl_b32", "s3", "s3", 14),
                      valu("v_add_u32", "v11", "s3", "v11")]
            for i in range(1 if o.cpfsplit else o.cpf):
                b.append(raw(f"v_min_u32 v12, Lend-Lpc, v11", "valu", rd=["v11"], wr=["v12"]))
                b.append(I(f"global_load_dword v{60 + i}, v12, s[4:5]", "vld", rd=["v12"], wr=[f"v{60 + i}"]))
                b.append(valu("v_add_u32", "v11", 16384, "v11"))
        b.append(valu("v_lshrrev_b32", "v11", 7, "v0"))
        b.append(valu("v_and_b32", "v12", 127, "v0"))
        b.append(valu("v_lshlrev_b32", "v12", 3, "v12"))
        b.append(valu("v_lshl_add_u32", "v30", "v11", 11, "v12"))
        b.append(valu("v_lshlrev_b32", "v31", 4, "v0"))
        b.append(valu("v_add_u32", "v31", LDS_BIAS, "v31"))
        b.append(valu("v_add_u32", self.vXr[1], 65536, vL))
        b.append(valu("v_lshl_add_u32", self.vXw, "v9", 15, vL))
        b.append(valu("v_lshl_add_u32", self.vW, "v9", 18, vL))
        nb0 = len(b)
        b.append(valu("v_lshrrev_b32", "v11", 4, "v10"))
        b.append(valu("v_and_b32", "v12", 15, "v10"))
        b.append(valu("v_xor_b32", "v13", "v11", "v12"))
        b.append(valu("v_lshlrev_b32", "v13", 4, "v13"))
        b.append(valu("v_lshl_add_u32", "v20", "v11", 11, "v13"))
        for i in range(1, 4):
            b.append(valu("v_xor_b32", f"v{20 + i}", 64 * i, "v20"))
        b.append(valu("v_lshl_add_u32", "v24", "v12", 8, "v13"))
        b.append(valu("v_lshl_add_u32", "v24", "v9", 15, "v24"))
        for i in range(1, 4):
            b.append(valu("v_xor_b32", f"v{24 + i}", 64 * i, "v24"))
        if o.early == 1:
            del b[nb0:]
        b.append(salu("s_and_b32", "s7", "s2", 1))
        b.append(salu("s_lshr_b32", self.sRow, "s2", 1))
        b.append(salu("s_lshl_b32", self.sRow, self.sRow, 18))
        b.append(salu("s_lshl_b32", "s6", "s7", 10))
        b.append(salu("s_add_u32", self.sRow, self.sRow, "s6"))
        b.append(salu("s_lshl_b32", "s6", self.sWave, 8))
        b.append(salu("s_add_u32", self.sRow, self.sRow, "s6"))
        b.append(salu("s_mov_b32", self.sMask, "0xffff0000"))
        b.append(salu("s_lshl_b32", self.sWoff, "s7", 20))
        b.append(salu("s_mov_b32", self.sL, 0))
        b.append(salu("s_mov_b32", self.sSpin, 0))
        b.append(salu("s_mov_b32", self.sFlag, -1 if o.gather else 0))
        b.append(salu("s_mov_b32", self.sNeed, 64))
        b.append(salu("s_mov_b32", self.sPNeed, -1 if o.gather else 1))
        b.append(salu("s_lshl_b32", self.sLds, self.sWave, 15))
        b.append(salu("s_lshl_b32", self.sXs, "s2", 17))
        b.append(salu("s_add_u32", self.sXs, self.sXs, o.xbase * MB))
        b.append(salu("s_xor_b32", self.sXl, self.sXs, 1 << 17))
        b.append(salu("s_lshr_b32", "s4", "s2", 3))
        b.append(salu("s_and_b32", "s5", "s2", 7))
        b.append(salu("s_lshl_b32", self.sRaw, "s4", 16))
        b.append(salu("s_lshl_b32", "s6", "s5", 8))
        b.append(salu("s_add_u32", self.sRaw, self.sRaw, "s6"))
        b.append(salu("s_lshl_b32", "s6", self.sWave, 6))
        b.append(salu("s_add_u32", self.sRaw, self.sRaw, "s6"))
        b.append(salu("s_lshl_b32", self.sDst, "s5", 18))
        b.append(salu("s_and_b32", "s6", "s4", 1))
        b.append(salu("s_lshl_b32", "s6", "s6", 10))
        b.append(salu("s_add_u32", self.sDst, self.sDst, "s6"))
        b.append(salu("s_lshr_b32", "s6", "s4", 4))
        b.append(salu("s_lshr_b32", "s5", "s5", 2))
        b.append(salu("s_xor_b32", "s5", "s5", "s6"))
        b.append(salu("s_bfe_u32", "s6", "s4", "0x10001"))
        b.append(salu("s_lshl_b32", "s3", "s5", 1))
        b.append(salu("s_add_u32", "s3", "s3", "s6"))
        b.append(salu("s_lshl_b32", "s3", "s3", 16))
        b.append(salu("s_add_u32", self.sDst, self.sDst, "s3"))
        b.append(salu("s_bfe_u32", "s4", "s4", "0x20002"))
        b.append(salu("s_xor_b32", "s5", "s5", "s6"))
        b.append(salu("s_lshr_b32", "s3", self.sWave, 1))
        b.append(salu("s_lshl_b32", "s3", "s3", 4))
        if o.revb:
            assert not o.tail4 and not o.w0prep
            b += [salu("s_lshr_b32", "s6", self.sWave, 1), salu("s_mul_i32", "s6", "s6", 3), salu("s_xor_b32", "s6", "s6", "s4"),
                  salu("s_lshl_b32", "s6", "s6", 2)]
        else:
            b.append(salu("s_lshl_b32", "s6", "s4", 2))
        b.append(salu("s_add_u32", "s3", "s3", "s6"))
        b.append(salu("s_and_b32", "s6", self.sWave, 1))
        b.append(salu("s_lshl_b32", "s6", "s6", 1))
        b.append(salu("s_add_u32", "s3", "s3", "s6"))
        b.append(salu("s_lshl_b32", "s4", "s4", 3))
        b.append(salu("s_lshl_b32", "s6", self.sWave, 1))
        b.append(salu("s_add_u32", "s4", "s4", "s6"))
        b.append(salu("s_cmp_eq_u32", "s5", 0))
        b.append(salu("s_cselect_b32", "s3", "s3", "s4"))
        b.append(salu("s_lshl_b32", "s3", "s3", 11))
        b.append(salu("s_add_u32", self.sDst, self.sDst, "s3"))
        b.append(salu("s_lshl_b32", self.sStage, self.sWave, 11))
        b.append(salu("s_add_u32", self.sStage, self.sStage, LDS_STAGE))
        b.append(salu("s_lshl_b32", self.sBias, self.sWave, 9))
        b.append(salu("s_add_u32", self.sBias, self.sBias, LDS_BIAS))
        b.append(Wait(all_lg=True))
        b += self.stamp("kernarg")
        b += srd(40, "s58", "s59", NL * D * D * 2)

        def only(ins, w0):
            n = self.nseg = getattr(self, "nseg", 0) + 1
            for x in ins:
                x.note = "gy" if w0 else "gx"
            return [salu("s_cmp_eq_u32", self.sWave, 0), raw(f"s_cbranch_scc{0 if w0 else 1} Lseg{n}", "branch")] + \
                ins + [Label(f"Lseg{n}")]

        if o.w0prep:
            t0, t1 = self.t[0], self.t[1]
            r = [valu("v_lshrrev_b32", t0, 6, vL), valu("v_and_b32", t1, 48, vL), valu("v_lshl_add_u32", t0, t0, 11, t1)]
            for q in range(4):
                r += [raw(f"s_mov_b32 m0, {LDS_STAGE + q * 2048}", "salu"), salu("s_add_u32", "s3", self.sRaw, q * 64),
                      dma(t0, self.sR, "s3", 0, o.rflags, f"raw{q}"),
                      salu("s_add_u32", "s3", self.sRaw, q * 64 + 32768 - 1024),
                      dma(t0, self.sR, "s3", 1024, o.rflags, f"raw{q}")]
            b += only(r, True)
            b.append(salu("s_add_u32", self.sRaw, self.sRaw, D * D * 2))
        else:
            b += self.prep_load()
        b += srd(20, "s60", "s61", NL * D * 2)
        tb = 32
        b.append(salu("s_lshl_b32", "s3", "s7", 10))
        for m in range(3):
            b.append(bload(R("v", tb + 2 * m, 2), "v30", self.sB, "s3", w="dwordx2"))
            b.append(salu("s_add_u32", "s3", "s3", 4096))
        if o.jitter:
            b += [raw("s_memrealtime s[100:101]"), raw("s_waitcnt lgkmcnt(0)"), raw("s_lshl_b32 s23, s2, 2"),
                  raw(f"s_add_u32 s23, s23, {self.sWave}"), raw("s_mul_i32 s23, s23, 0x9e3779b1"), raw("s_add_u32 s23, s23, s100")]
        if o.init:
            b.append(salu("s_mov_b32", "s23", o.init))
        b += srd(8, "s56", "s57", NB * D * 2)
        b += srd(16, "s62", "s63", NB * D * 2)
        b += srd(12, "s66", "s67", NL * D * D * 2)
        b += srd(32, "s66", "s67", 0 if o.gather else 256 * MB)
        b += srd(44, "s64", "s65", 256)
        b += [salu("s_add_u32", self.sWoff, self.sWoff, 4096), salu("s_add_u32", "s70", "s66", self.sWoff),
              salu("s_addc_u32", "s71", "s67", 0), salu("s_sub_u32", self.sWoff, self.sWoff, 4096)]
        if o.tail4:
            b += [salu("s_and_b32", "s24", self.sWave, 1), salu("s_mul_i32", "s24", "s24", 6 * 2048),
                  salu("s_bfe_u32", "s3", "s2", "0x20005"), salu("s_lshl_b32", "s3", "s3", 12),
                  salu("s_sub_u32", "s24", "s24", "s3"),
                  salu("s_lshr_b32", "s3", "s2", 7), salu("s_lshr_b32", "s6", "s2", 2), salu("s_xor_b32", "s3", "s3", "s6"),
                  salu("s_lshr_b32", "s6", "s2", 4), salu("s_and_b32", "s3", "s3", "s6"), salu("s_bitcmp1_b32", "s3", 0),
                  salu("s_cselect_b32", "s24", "s24", 0)]
        b.append(salu("s_and_b32", "s3", "s2", 3))
        b.append(salu("s_lshl_b32", "s3", "s3", 6))
        b += srd_off(56, "s44", "s45", "s3", 4)
        b.append(salu("s_lshl_b32", "s3", "s2", 2))
        b.append(salu("s_add_u32", "s3", "s3", self.sWave))
        b.append(salu("s_lshl_b32", "s3", "s3", 7))
        b.append(salu("s_add_u32", "s3", "s3", WS_FLAGS))
        b += srd_off(60, "s32", "s33", "s3", 4)
        b.append(salu("s_xor_b32", "s3", "s3", 512))
        b += srd_off(64, "s32", "s33", "s3", 4)
        if o.delay:
            for _ in range(o.delay):
                b.append(raw("s_sleep 127"))
        if o.touch:
            for l in range(6):
                b.append(salu("s_add_u32", "s3", self.sXs, l * 32 * MB))
                if o.touch == 1:
                    b.append(bload(f"v{60 + l}", self.vXw, self.sE, "s3", w="dword"))
                else:
                    b.append(bstore(f"v{60 + l}", self.vXw, self.sE, "s3", w="dword", flags=" sc1"))
            b.append(Wait(all_vm=True))
        def x0dma(lo, hi):
            r = []
            for i in range(lo, hi):
                r.append(raw(f"s_add_u32 m0, {self.sLds}, {i * 1024}", "salu"))
                r.append(salu("s_add_u32", "s3", self.sRow, i * 8192))
                r.append(dma(f"v{20 + (i & 3)}", self.sX, "s3", 0, o.xflags, f"x0_{i >> 2}"))
            return r

        def x0fix(bt):
            r = [Wait(vm=[f"x0_{bt}"])]
            for kbl in range(4):
                r.append(dsread(self.x0reg(kbl, bt), f"v{24 + kbl}", bt * 4096))
            r.append(Wait(all_lg=True))
            for kbl in range(4):
                r.append(dswrite(self.vXw, self.x0reg(kbl, bt), bt * 4096 + kbl * 1024))
            if o.apub:
                r += self.x0pub_stream(0, 2 * bt, 2 * bt + 2)
            return r

        def accinit(pred):
            r = []
            for p in range(2):
                for i in range(128):
                    a = self.acc(p, i)
                    if pred(a):
                        r.append(valu("v_accvgpr_write_b32" if a[0] == "a" else "v_mov_b32", a, self.init))
            return r

        if o.early == 1 and o.selfw:
            return b + self.prologue_self(accinit, tb)
        if o.early == 1:
            return b + self.prologue_early(accinit, tb)
        late = lambda a: a[0] == "v" and 32 <= int(a[1:]) < 72
        final = lambda a: a[0] == "v" and int(a[1:]) < 32
        na, nb, ahead, npoll = o.x0split

        def biascvt():
            r = []
            for m in range(3):
                r.append(Wait(vm=[R("v", tb + 2 * m, 2)]))
                for j in range(2):
                    src = f"v{tb + 2 * m + j}"
                    r.append(valu("v_lshlrev_b32", f"v{40 + 4 * m + 2 * j}", 16, src))
                    r.append(valu("v_and_b32", f"v{41 + 4 * m + 2 * j}", self.sMask, src))
                r.append(dswrite("v31", R("v", 40 + 4 * m, 4), m * 4096))
            return r + [Wait(all_lg=True)]

        if o.w0prep:
            t0, t1, t2 = self.t
            r = [valu("v_lshlrev_b32", t1, 3, vL), valu("v_mov_b32", t2, 0), salu("s_mov_b32", "s62", 512),
                 tagged(bstore(t2, t1, self.sFm, 0, w="dword", flags=" sc1"), "pst"), salu("s_mov_b32", "s62", 4)]
            b += only(r, True)
            b += only(x0dma(0, nb), False)
            b += accinit(lambda a: not late(a) and not final(a))
            r = [valu("v_and_b32", t0, 0x300, vL), valu("v_add3_u32", t0, t0, vL, self.sStage)]
            qs = [8, 40, 48, 64]
            for q in range(4):
                r.append(Wait(vm=[f"raw{q}"]))
                for t in range(2):
                    for h in range(2):
                        d = R("v", qs[q] + 4 * t + 2 * h, 2)
                        r.append(I(f"ds_read_b64_tr_b16 {d}, {t0} offset:{q * 2048 + h * 256 + t * 8}", "dsr", rd=[t0], wr=[d]))
            for q in range(4):
                r += [salu("s_cmp_eq_u32", "s5", 0),
                      salu("s_cselect_b32", "s3", ((q >> 1) * 16 + 2 * (q & 1)) * 2048, "s6") if q > 1 else
                      salu("s_mov_b32", "s3", 2 * q * 2048),
                      salu("s_add_u32", "s3", "s3", self.sDst), salu("s_mov_b32", "s6", 2 * (q + 1) * 2048)]
                for t in range(2):
                    r.append(Wait(lg=[R("v", qs[q] + 4 * t, 4)]))
                    r.append(tagged(bstore(R("v", qs[q] + 4 * t, 4), vL, self.sW, "s3", t * 2048, flags=" sc1"), "pst"))
            r += x0dma(0, na) + [Wait(vm=["pst"])] + self.wsignal() + x0dma(na, nb)
            b += only(r, True)
            b.append(salu("s_add_u32", self.sDst, self.sDst, D * D * 2))
            b += self.stamp("signalled")
            b += biascvt() + accinit(late)
        else:
            b.append(valu("v_mov_b32", self.t[2], 0))
            b.append(tagged(bstore(self.t[2], vL, self.sFm, 0, w="dword", flags=" sc1"), "pst"))
            b += x0dma(0, na)
            b += accinit(lambda a: not late(a) and not final(a))
            b += self.prep_store()
            b += self.stamp("stores_issued")
            b += x0dma(na, nb)
            b += biascvt() + accinit(late)
            b += [Wait(vm=["pst"]), barrier()] + self.wsignal()
            b += self.stamp("signalled")
        def wring():
            r = []
            for s in [x for x in range(128) if self.site[x] < 0]:
                r += [self.wload(s, 1), self.wload(s, 0)] + self.wstep(s)
            return r

        def path(name, nb2, npoll, stamps):
            st = self.stamp if stamps else (lambda n: [])
            r = x0dma(nb, nb2)
            issued = max(nb, nb2)
            checked = False
            poll_before = None
            for bt in range(8):
                want = min(32, 4 * (bt + 1 + ahead))
                if bt == npoll:
                    r += self.wpoll_load()
                    poll_before = (issued + 3) // 4 if npoll else 0
                if want > issued and (npoll or checked):
                    r += x0dma(issued, want)
                    issued = want
                if poll_before is not None and not checked and bt >= poll_before:
                    r += st("x0_part")
                    r += self.poll_check(name, self.sNeed, 64, self.wpoll_load)
                    r += st("flag_seen")
                    checked = True
                    if npoll:
                        r += x0dma(issued, 32) + wring()
                        issued = 32
                    else:
                        r += wring() + x0dma(issued, want)
                        issued = max(issued, want)
                r += x0fix(bt)
            assert checked and issued == 32
            return r

        if o.stagger < 0:
            b += path("pro", nb, npoll, True)
        else:
            px = path("prox", nb, npoll, True)
            n0 = self.stampn
            self.stampn -= 2 if o.stamps and not o.pstamps else 0
            self.names = self.names[:self.stampn]
            py = path("proy", o.ynb, 0, True)
            assert self.stampn == n0
            for x in px:
                x.note = "gx"
            for x in py:
                x.note = "gy"
            b += [salu("s_bitcmp1_b32", "s2", o.stagger), raw("s_cbranch_scc1 Lgy", "branch")]
            b += px + [raw("s_branch Lgjoin", "branch"), Label("Lgy")] + py + [Label("Lgjoin")]
        b += accinit(final)
        if o.gather:
            b += [salu("s_xor_b32", self.sXl, self.sRow, 1024), salu("s_mov_b32", "s20", 64),
                  salu("s_mov_b32", "s21", 32768 - 64), salu("s_mov_b32", "s22", hex((128 - 64 - 7 * 32768) & 0xffffffff))]
        b += [Wait(all_lg=True), barrier()]
        for j in range(8):
            for i in range(2):
                b.append(self.xread(j, i ^ (j & 1), 0, 0))
        b.append(Wait(lg=[self.xf(j, c) for j in range(o.xw) for c in range(2)], vm=[self.wslot(0, 0), self.wslot(0, 1)]))
        if o.desync:
            b += [raw("s_lshr_b32 s3, s2, 1"), raw("s_and_b32 s3, s3, 15"), Label("Lds"), raw(f"s_sleep {o.desync}"),
                  raw("s_sub_u32 s3, s3, 1"), raw("s_cbranch_scc0 Lds")]
        b += self.stamp("pro_done")
        return b

    def prologue_self(self, accinit, tb):
        o = self.o
        vL = self.vL
        t0, t1 = self.t[0], self.t[1]
        b = []
        vG, vS, vR, vT = "v20", ["v21", "v22"], "v23", ["v24", "v25"]
        wbuf = set(r for s in range(16 - self.NS) for c in range(2) for r in regs(self.wreg0(s, c)))
        late = lambda a: a[0] == "v" and 32 <= int(a[1:]) < 64
        final = lambda a: a[0] == "v" and int(a[1:]) < 32
        ns1, psig, na, nB0, lead = o.selfp
        b += [valu("v_lshrrev_b32", t0, 2, vL), valu("v_and_b32", t0, 0x40, t0), valu("v_xor_b32", t0, t0, vL),
              valu("v_and_b32", t0, 0x70, t0), valu("v_lshrrev_b32", t1, 7, vL), valu("v_lshl_add_u32", vR, t1, 11, t0),
              salu("s_and_b32", "s69", self.sRow, 2047), salu("s_lshl_b32", "s3", "s7", 20),
              salu("s_add_u32", "s69", "s69", "s3")]

        def rawdma(lo, hi):
            r = []
            for n in range(lo, min(hi, 4 * o.nself)):
                p, i = n >> 2, n & 3
                r.append(raw(f"s_add_u32 m0, {self.sLds}, {(2 * (p & 3) + (i >> 1)) * 4096 + (p >> 2) * 2048 + (i & 1) * 1024}", "salu"))
                r.append(salu("s_add_u32", "s3", "s69", (128 * (p >> 1) + 32 * (p & 1) + 8 * i) * 2048))
                r.append(dma(vR, self.sR, "s3", 0, "", f"sw{p}"))
            return r

        def trans(p):
            if p >= o.nself:
                return []
            r = [Wait(vm=[f"sw{p}"])]
            for nt in range(4):
                d = int(regs(self.wreg0((p >> 1) * 4 + nt, p & 1))[0][1:])
                k = self.wreg0((p >> 1) * 4 + nt, p & 1)[0]
                for h in range(2):
                    dd = R(k, d + 2 * h, 2)
                    r.append(I(f"ds_read_b64_tr_b16 {dd}, {vT[nt >> 1]} offset:{(p & 3) * 8192 + (p >> 2) * 2048 + h * 512 + (nt & 1) * 8}", "dsr",
                               rd=[vT[nt >> 1]], wr=[dd]))
            return r

        b += rawdma(0, ns1)
        b.append(valu("v_mov_b32", self.t[2], 0))
        b.append(tagged(bstore(self.t[2], vL, self.sFm, 0, w="dword", flags=" sc1"), "pst"))
        b += self.calc_vG(vG) + self.calc_vS(vS)
        b += [valu("v_lshrrev_b32", t0, 1, vL), valu("v_and_b32", t0, 0x40, t0), valu("v_and_b32", t1, 0x30, vL),
              valu("v_or_b32", t0, t0, t1), valu("v_and_b32", t1, 0xc0, vL), valu("v_lshl_add_u32", t0, t1, 1, t0),
              valu("v_and_b32", t1, 0x100, vL), valu("v_lshl_add_u32", t0, t1, 2, t0),
              valu("v_and_b32", t1, 0x200, vL), valu("v_lshl_add_u32", t0, t1, 3, t0),
              valu("v_add_u32", vT[0], self.sLds, t0), valu("v_xor_b32", vT[1], 64, vT[0])]
        b += accinit(lambda a: not late(a) and not final(a) and a not in wbuf)
        b += self.prep_store()
        ns2 = max(ns1, o.ns2)
        b += rawdma(ns1, ns2)
        b += self.stamp("stores_issued")
        for m in range(3):
            b.append(Wait(vm=[R("v", tb + 2 * m, 2)]))
            for j in range(2):
                src = f"v{tb + 2 * m + j}"
                b.append(valu("v_lshlrev_b32", f"v{40 + 4 * m + 2 * j}", 16, src))
                b.append(valu("v_and_b32", f"v{41 + 4 * m + 2 * j}", self.sMask, src))
            b.append(dswrite("v31", R("v", 40 + 4 * m, 4), m * 4096))
        b.append(Wait(all_lg=True))
        b += accinit(late)
        issued = 0
        pdone = lambda p: [self.wreg0((p >> 1) * 4 + nt, p & 1) for nt in range(4)]
        assert ns2 >= 16 and psig <= ns2 // 4
        nearly = 8 if not o.rawlate else ns2 // 4
        for p in range(nearly + 1):
            if p == psig:
                b += [Wait(vm=["pst"]), barrier()] + self.wsignal()
                b += self.stamp("signalled")
                if not o.rawlate:
                    b += rawdma(ns2, 32)
            if p < nearly and (p < 4 or p < psig):
                b += trans(p)
            if p:
                want = min(16, 4 * p) if p > psig else min(4 * p, na)
                if want > issued:
                    b.append(Wait(lg=pdone(min(p - 1, 3))))
                    b += self.x0h_dma(0, issued, want, vG)
                    issued = want
            if p >= 4 and p >= psig:
                break
        b.append(Wait(lg=pdone(3)))
        b += self.x0h_dma(0, issued, 16, vG)
        if o.rawlate:
            b += rawdma(ns2, 32)
        for p in range(max(4, psig), nearly):
            b += trans(p)
        lateT = [x for p in range(max(nearly, psig), 8) for x in trans(p)]
        b += self.stamp("x0A_issued")
        nB = 0
        polled = False
        for bt in range(min(0, -lead), 9):
            want = min(16, 2 * (bt + lead + 1)) if bt < 8 else (o.nb_pro if o.nb_pro else 16)
            if nB < want and nB == 0:
                b += lateT + [Wait(all_lg=True)]
                lateT = []
            while nB < want:
                if nB == nB0:
                    b += self.wpoll_load()
                    polled = True
                b += self.x0h_dma(1, nB, nB + 1, vG)
                nB += 1
            if 0 <= bt < 8:
                b += self.x0h_read(0, bt, vS)
            if 0 < bt < 8:
                b += self.x0h_write(0, bt - 1)
            if bt == 7:
                b += self.x0h_write(0, 7)
        b += lateT
        if not polled:
            b += self.wpoll_load()
        self.nB_done = nB
        b.append(valu("v_mov_b32", "v8", vG))
        b += self.stamp("x0_part")
        if o.wdma:
            b.append(raw(f"s_mov_b32 m0, {LDS_TOTAL + 4096}", "salu"))
        b += accinit(final)
        b += [I(f"s_add_u32 s70, s70, {4096 * o.nself}\n s_addc_u32 s71, s71, 0", "salu", rd=["s[70:71]"], wr=["s[70:71]"]),
              salu("s_xor_b32", self.sXl, self.sRow, 1024), salu("s_mov_b32", "s20", 64),
              salu("s_mov_b32", "s21", 32768 - 64), salu("s_mov_b32", "s22", hex((128 - 64 - 7 * 32768) & 0xffffffff))]
        b += [Wait(all_lg=True), barrier()]
        b += [self.xread(j, i ^ (j & 1), 0, 0) for j in range(8) for i in range(2)]
        b.append(Wait(lg=[self.xf(j, c) for j in range(o.xw) for c in range(2)]))
        b += self.stamp("pro_done")
        return b

    def prologue_early(self, accinit, tb):
        o = self.o
        vL = self.vL
        b = []
        vG, vS = "v20", ["v21", "v22"]
        wbuf = set(r for s in range(16 - self.NS) for c in range(2) for r in regs(self.wreg0(s, c)))
        late = lambda a: a[0] == "v" and 32 <= int(a[1:]) < 64
        final = lambda a: a[0] == "v" and int(a[1:]) < 32
        na, nb, npoll, nB0 = o.x0split
        b.append(valu("v_mov_b32", self.t[2], 0))
        b.append(tagged(bstore(self.t[2], vL, self.sFm, 0, w="dword", flags=" sc1"), "pst"))
        b += self.calc_vG(vG) + self.calc_vS(vS)
        b += self.x0h_dma(0, 0, na, vG)
        b += accinit(lambda a: not late(a) and not final(a) and a not in wbuf)
        b += self.prep_store()
        b += self.stamp("stores_issued")
        b += self.x0h_dma(0, na, nb, vG)
        for m in range(3):
            b.append(Wait(vm=[R("v", tb + 2 * m, 2)]))
            for j in range(2):
                src = f"v{tb + 2 * m + j}"
                b.append(valu("v_lshlrev_b32", f"v{40 + 4 * m + 2 * j}", 16, src))
                b.append(valu("v_and_b32", f"v{41 + 4 * m + 2 * j}", self.sMask, src))
            b.append(dswrite("v31", R("v", 40 + 4 * m, 4), m * 4096))
        b.append(Wait(all_lg=True))
        b += accinit(late)
        b += [Wait(vm=["pst"]), barrier()] + self.wsignal()
        b += self.stamp("signalled")
        b += self.x0h_dma(0, nb, 16, vG)
        def only0(ins):
            if not o.poll0:
                return ins
            n = self.nseg = getattr(self, "nseg", 0) + 1
            for x in ins:
                x.note = "gy"
            return [salu("s_cmp_eq_u32", self.sWave, 0), raw(f"s_cbranch_scc0 Lseg{n}", "branch")] + ins + [Label(f"Lseg{n}")]

        for bt in range(8):
            if bt == npoll:
                b += only0(self.wpoll_load()) + self.x0h_dma(1, 0, nB0, vG)
            b += self.x0h_read(0, bt, vS)
            if bt:
                b += self.x0h_write(0, bt - 1)
        if npoll >= 8:
            b += only0(self.wpoll_load()) + self.x0h_dma(1, 0, nB0, vG)
        b += self.x0h_write(0, 7)
        b += self.stamp("x0_part")
        chk = self.poll_check("pro", self.sNeed, 64, self.wpoll_load)
        if o.poll0:
            b += only0(chk[:-1]) + chk[-1:]
            chk = []
        b += [Wait(all_lg=True), barrier()]
        xr = [self.xread(j, i ^ (j & 1), 0, 0) for j in range(8) for i in range(2)]
        if not o.poll0:
            b += xr + chk
            xr = []
        b += self.stamp("flag_seen")
        for s in range(16):
            b += [self.wload(s, 1, self.wreg0(s, 1)), self.wload(s, 0, self.wreg0(s, 0))]
            b += self.wstep(s)
            if s == 3:
                b += xr
        b += self.x0h_dma(1, nB0, max(nB0, o.nb_pro) if o.gather else 16, vG)
        b.append(valu("v_mov_b32", "v8", vG))
        b += accinit(final)
        if o.gather:
            b += [salu("s_xor_b32", self.sXl, self.sRow, 1024), salu("s_mov_b32", "s20", 64),
                  salu("s_mov_b32", "s21", 32768 - 64), salu("s_mov_b32", "s22", hex((128 - 64 - 7 * 32768) & 0xffffffff))]
        b.append(Wait(lg=[self.xf(j, c) for j in range(o.xw) for c in range(2)], vm=[self.wreg0(0, 0), self.wreg0(0, 1)]))
        b += self.stamp("pro_done")
        return b

    def build(self):
        o = self.o
        A, B, AB = [0, 1, 2, 3], [4, 5, 6, 7], list(range(8))
        e = (lambda s: []) if o.noepi else (lambda s: s)
        unit_end = lambda x: x.kind in ("vst", "dsw")
        safe_bias = lambda x: x.kind == "valu" and "add_f32" in x.text and not x.wr & set(self.t)
        pro = self.prologue()
        PL = o.pstamps - 1
        dA, dB = o.direct
        g0, g1, g2, g3 = o.sg
        ep = o.earlyprep
        if o.gather and o.early == 1:
            ini = []
            for s in range(16 - self.NS):
                ini.append(([valu("v_mov_b32", r, self.init) for c in range(2) for r in regs(self.wreg0(s, c))],
                            16 * s + 18, 16 * s + 30))
            nB1 = o.x0split[3]
            late = self.x0h_dma(1, max(nB1, o.nb_pro), 16, "v8")
            fx = []
            if o.selfw:
                late = self.x0h_dma(1, self.nB_done, 16, "v8")
                chk = self.poll_check("pro", self.sNeed, 64, self.wpoll_load)
                if o.nself < 8:
                    wl = []
                    for s in range(2 * o.nself, 16):
                        wl += [self.wload(s, 1, self.wreg0(s, 1)), self.wload(s, 0, self.wreg0(s, 0))] + self.wstep(s)
                    late = chk + wl + late
                else:
                    fx = [(self.site[16] * 16 + 2, chk)]
            s1a0 = self.phase(0, A, 0, 0, late, wreg=self.wreg0, skip_below=16, extra=ini, end=o.pub0_end, fixed=fx)
            s1a0 += self.stamp("s1a0")
            vS = [f"v{self.Q[0]}", f"v{self.Q[0] + 1}"]
            fix = self.calc_vS(vS)
            for bt in range(8):
                fix += self.x0h_read(1, bt, vS) + space(3)
                if bt:
                    fix += self.x0h_write(1, bt - 1)
            fix += space(4) + self.x0h_write(1, 7)
            s1a0 += self.phase(16, B, 0, 1, fix + self.calc_vB() + e(self.bias_stream(0)), bar=True,
                               pre_bar=[salu("s_add_u32", self.sPNeed, self.sPNeed, 1)])
            s1a0 += self.stamp("s1b0")
            if o.stamps:
                s1a0.append(raw(f"s_lshl_b32 {self.sSpin}, {self.sSpin}, 8"))
        elif o.gather:
            assert not o.early
            s1a0 = self.phase(0, A, 0, 0, []) + self.stamp("s1a0")
        elif o.early == 2:
            s1a0 = self.phase(0, A, 0, 0, self.x0pub_stream(0), end=o.pub0_end) + self.stamp("s1a0")
            st = insert_at(self.calc_vB() + e(self.bias_stream(0)), o.sig0_at, self.psignal(0), safe_bias)
            st = insert_at(st, o.poll0_at, self.ppoll_load(), safe_bias)
            if o.wsig2:
                st = st + self.prep_load()
            s1a0 += self.phase(16, B, 0, 1, st, bar=True, extra=[(self.x0pub_stream(1), 0, 230)],
                               pre_bar=self.poll_check("pa0", self.sPNeed, 1, self.ppoll_load))
            s1a0 += self.stamp("s1b0")
        elif o.early:
            ini = []
            for s in range(16 - self.NS):
                ini.append(([valu("v_mov_b32", r, self.init) for c in range(2) for r in regs(self.wreg0(s, c))],
                            16 * s + 18, 16 * s + 30))
            s1a0 = self.phase(0, A, 0, 0, self.x0pub_stream(0), wreg=self.wreg0, skip_below=16, extra=ini,
                              end=o.pub0_end) + self.stamp("s1a0")
            vS = [f"v{self.Q[0]}", f"v{self.Q[0] + 1}"]
            fix = self.calc_vS(vS)
            for bt in range(8):
                fix += self.x0h_read(1, bt, vS)
                if bt:
                    fix += self.x0h_write(1, bt - 1) + self.x0pub_stream(1, 2 * bt - 2, 2 * bt)
                if bt == 1:
                    fix += self.psignal(0)
            fix += self.x0h_write(1, 7) + self.x0pub_stream(1, 14, 16)
            st = insert_at(self.calc_vB() + e(self.bias_stream(0)), 0.6, self.ppoll_load(), safe_bias)
            s1a0 += self.phase(16, B, 0, 1, fix + st, bar=True,
                               pre_bar=self.poll_check("pa0", self.sPNeed, 1, self.ppoll_load))
            s1a0 += self.stamp("s1b0")
        else:
            s1a0 = self.phase(0, A, 0, 0, (self.prep_load() if ep else []) + self.x0pub_stream(0) +
                              self.x0pub_stream(1, 0, dB) + (self.psignal(0) if dA == 16 else [])) + self.stamp("s1a0")
        lp = o.lateprep
        st = (self.prep_store() if ep else [] if lp else self.prep_load()) + self.calc_vB() + e(
            self.bias_stream(0, one=self.small and dB < 16))
        if o.wsig2:
            st = st + self.prep_load()
        if dA < 16:
            st = insert_at(st, o.siga2_at, self.psignal(0), safe_bias)
        if dB == 16 and not o.early:
            st = insert_at(st, o.sigb_at, self.psignal(1), safe_bias)
        fx2 = [(o.pollb_gap, self.ppoll_load()), (g3 + 1 if o.db2 else 1, self.xnext(self.sXs, 0))]
        if dB < 16 or o.early:
            fx2.append((g3, self.psignal(1)))
        if g0 < 0:
            st = insert_at(st, o.polla_at, self.ppoll_load(), safe_bias)
            pb1 = self.poll_check("pa", self.sPNeed, 1, self.ppoll_load)
            g1 = -1
        else:
            assert not o.early
            pb1 = []
            fx2 += [(g0, self.ppoll_load()), (g1, self.poll_check("pa", self.sPNeed, 1, self.ppoll_load))]
        if ep:
            pb1 = [Wait(vm=["pst"])] + pb1
            fx2.append((3, self.wsignal()))
        s1b = [Label("Ls1b")] + self.phase(16, B, 0, 1, st, bar=True, pre_bar=pb1, end=o.bias_end or None,
                                            extra=[(self.pub_stream(1, dB, 16 - o.db2), 0, 232)])
        s2 = self.phase(32, AB, 1, 0, self.xch_dma(0) + ([] if ep or lp else self.prep_store()), bar=True, start=max(g1 + 1, o.dma_start), end=g2, fixed=fx2,
                        post_bar=self.xr_gathered(),
                        extra=[(self.prep_store(10) if o.wsig2 else self.prep_load() if lp else [], lp, lp + (30 if o.wsig2 else 12)),
                               (self.pub_guard(self.pub_stream(1, 16 - o.db2, 16)), 2, max(3, g3 - 40))],
                        pre_bar=[Wait(vm=["xl0", "pst"] if o.wsig2 else ["xl0"])] + self.poll_check("pb", self.sPNeed, 1, self.ppoll_load))
        s3 = self.phase(64, AB, 0, 1, self.xch_dma(1), bar=True, end=o.dma_end, pre_bar=[Wait(vm=["xl1", "pst"])],
                        extra=[(self.wsignal(), 2, 6)] if o.wsig2 else
                        [(self.prep_store(10) if lp else [], o.preps_at, o.preps_at + 30)])
        s1b[1:1] = self.lstamp("pre", PL) if PL > 0 else []
        s1b += self.lstamp("s1b", PL)
        s2 += self.lstamp("s2", PL)
        s3 += self.lstamp("s3", PL)
        if o.tail4:
            s3 += [salu("s_cmp_eq_u32", self.sL, NL - 1), raw("s_cbranch_scc1 Llast", "branch")]
        preA = [2 * i for i in range(o.prea)]
        restA = [u for u in range(16) if u not in preA]
        s4a = self.phase(96, A, 1, 1, ([] if ep or o.wsig2 else self.wsignal()) + (self.calc_vB() if self.small else []) + e(self.bias_stream(1)),
                         end=220 if preA else (o.bias_end or None),
                         extra=[(e(self.epi_stream(0, 0, units=preA)), 256 - 30, 256)])
        if o.gather:
            s4a += self.xch_switch()
        s4a += self.lstamp("s4a", PL)
        s4a += [salu("s_add_u32", self.sBias, self.sBias, 2048), salu("s_add_u32", self.sL, self.sL, 1)]
        if not o.tail4:
            s4a += [salu("s_cmp_eq_u32", self.sL, NL), raw("s_cbranch_scc1 Llast", "branch")]
        st = insert_at(e(self.epi_stream(0, dA, units=restA)), o.pollw_at, self.wpoll_load(), unit_end)
        chk = (self.site[128] - 112) * 16 + 2
        s4b = self.phase(112, B, 1, 0, st, bar=True, post_bar=self.xr_plain(),
                         fixed=[(chk, self.poll_check("w", self.sNeed, 64, self.wpoll_load))])
        s4b += self.lstamp("s4b", PL + 1)
        st = e(self.epi_stream(1, dB, one=self.small and dA < 16))
        if dA == 16:
            st = insert_at(st, o.siga_at, self.psignal(0), unit_end)
        if ep:
            st = insert_at(st, o.prepl_at, self.prep_load(), unit_end)
        s1a = self.phase(0, A, 0, 0, st, extra=[(self.pub_stream(0, dA, 16, restA + preA), 0, o.puba_end)])
        if o.stamps:
            s1a += [raw(f"s_cmp_eq_u32 s25, {max(1, o.pstamps)}"), raw("s_cbranch_scc0 Lnostamp")] + self.stamp("layer1") + [
                raw("s_memrealtime s[4:5]"), Label("Lnostamp")]
        if o.early:
            assert lp
            s2 = [Label("Lloop")] + s2
            s1b += [raw("s_branch Lloop", "branch")]
        else:
            s1a += [raw("s_branch Ls1b", "branch")]
        s4bl = [Label("Llast")] + self.stamp("4.75layers") + ([raw("s_memrealtime s[6:7]")] if o.stamps else [])
        if o.tail4:
            s4bl += self.phase(96, [0, 1], 1, 1, self.calc_vB() + self.bias_stream(1), last=True)
            s4bl += self.phase(104, [2, 3], 1, 1, self.out_stream4(0), last=True)
            s4bl += self.phase(112, [4, 5], 1, 1, self.out_stream4(1), last=True)
            s4bl += self.phase(120, [6, 7], 1, None, self.out_stream4(2), last=True)
            tail = self.stamp("s4b_last") + [nop(7)] + self.out_stream4(3)
        else:
            s4bl += self.phase(112, B, 1, None, self.out_stream(0), last=True)
            tail = self.stamp("s4b_last") + [nop(7)] + [x for x in self.out_stream(1) if x.kind != "space"]
        if o.stamps:
            tail += self.stamp("tail_issued")
            tail += [Wait(all_vm=True)]
            tail += self.stamp("tail_drained")
            tail.append(raw("s_memrealtime s[38:39]"))
            tail.append(raw("s_waitcnt lgkmcnt(0)"))
            tail.append(raw("v_cmp_eq_u32 vcc, 0, v0"))
            tail.append(raw("s_and_saveexec_b64 s[68:69], vcc"))
            tail.append(raw("s_cbranch_execz Lend"))
            if o.dbgout >= 0:
                tail += [raw(f"s_cmp_lg_u32 s2, {o.dbgout}"), raw("s_cbranch_scc1 Lend"), raw("v_mov_b32 v1, 0")]
                tail += [raw("s_sub_u32 s3, s38, s36"), raw("v_mov_b32 v2, s3"),
                         raw("buffer_store_dword v2, v1, s[44:47], 0 offen offset:4"),
                         raw("s_sub_u32 s3, s6, s4"), raw("v_mov_b32 v2, s3"),
                         raw("buffer_store_dword v2, v1, s[44:47], 0 offen offset:8"),
                         raw("v_mov_b32 v2, s53"), raw("buffer_store_dword v2, v1, s[44:47], 0 offen offset:12")]
                for n in range(1, min(self.stampn, 13)):
                    tail += [raw(f"s_sub_u32 s3, s{72 + 2 * n}, s{70 + 2 * n}"), raw("v_mov_b32 v2, s3"),
                             raw(f"buffer_store_dword v2, v1, s[44:47], 0 offen offset:{12 + 4 * n}")]
            else:
                tail.append(raw("s_lshl_b32 s3, s2, 8"))
                tail.append(raw(f"s_add_u32 s3, s3, {WS_STAMP}"))
                tail.append(raw("v_mov_b32 v1, 0"))
                for n, i in enumerate(list(range(36, 40)) + list(range(72, 102)) + [4, 5, 6, 7, 53]):
                    tail.append(raw(f"v_mov_b32 v2, s{i}"))
                    tail.append(raw(f"buffer_store_dword v2, v1, s[32:35], s3 offen offset:{n * 4}"))
        tail += [Label("Lend"), raw("s_endpgm")]
        rest = s1a0 + ([] if o.early else s1b)
        for l in range(NL - 1):
            rest = rest + s2 + s3 + s4a + s4b + s1a + s1b
        rest = rest + s2 + s3 + ([] if o.tail4 else s4a) + s4bl + tail
        traces = [[x for x in pro if x.note != skip] + rest for skip in ("gx", "gy")]
        for tr in traces:
            resolve_waits(tr)
        for tr in traces:
            errs, mv, ml = check(tr)
            if errs and not o.now and o.slots <= 6:
                for x in errs[:20]:
                    print(x, file=sys.stderr)
                raise SystemExit("hazard/dependency errors")
        if o.early:
            prog = pro + s1a0 + s2 + s3 + s4a + s4b + s1a + s1b + s4bl + tail + self.ool
        else:
            prog = pro + s1a0 + s1b + s2 + s3 + s4a + s4b + s1a + s4bl + tail + self.ool
        txt = f".globl {KNAME}\n.p2align 8\n.type {KNAME},@function\n{KNAME}:\n" + emit(prog) + "\n"
        if self.names:
            txt = "; stamps: " + " ".join(self.names) + "\n" + txt
        return txt, kd(KNAME, 512, 102, 256)


def main():
    ap = argparse.ArgumentParser()
    ap.add_argument("-o", default="standalone__cross_network_dcn__recsys.s")
    ap.add_argument("--slots", type=int, default=6)
    ap.add_argument("--wflags", default="sc1")
    ap.add_argument("--xflags", default="")
    ap.add_argument("--oflags", default="nt")
    ap.add_argument("--rflags", default="")
    ap.add_argument("--xsflags", default="sc1")
    ap.add_argument("--xlflags", default="")
    ap.add_argument("--bar_lead", type=int, default=6)
    ap.add_argument("--xw", type=int, default=4)
    ap.add_argument("--x0split", type=int, nargs=4, default=[4, 4, 8, 0])
    ap.add_argument("--sigb_at", type=float, default=0.45)
    ap.add_argument("--polla_at", type=float, default=0.85)
    ap.add_argument("--siga_at", type=float, default=0.45)
    ap.add_argument("--pollw_at", type=float, default=0.3)
    ap.add_argument("--pollb_gap", type=int, default=386)
    ap.add_argument("--dma_end", type=int, default=440)
    ap.add_argument("--stamps", action="store_true")
    ap.add_argument("--wdma", type=int, default=0, help="diagnostic")
    ap.add_argument("--pair8", type=int, default=0, help="diagnostic")
    ap.add_argument("--dma_start", type=int, default=0)
    ap.add_argument("--prea", type=int, default=0)
    ap.add_argument("--db2", type=int, default=4, help="B units published in S2")
    ap.add_argument("--revb", type=int, default=1)
    ap.add_argument("--jitter", type=int, default=0, help="diagnostic: probability/256 of a delay per phase")
    ap.add_argument("--init", default="", help="accumulator start value (hex float bits)")
    ap.add_argument("--tail4", type=int, default=0)
    ap.add_argument("--nself", type=int, default=8)
    ap.add_argument("--rawlate", type=int, default=0)
    ap.add_argument("--ns2", type=int, default=24)
    ap.add_argument("--selfw", type=int, default=1)
    ap.add_argument("--selfp", type=int, nargs=5, default=[16, 4, 8, 0, -7],
                    help="raw DMAs before the prep stores, piece before which to signal, x0A DMAs before the signal, x0B DMAs before the poll, x0B lead")
    ap.add_argument("--wbunch", type=int, default=1)
    ap.add_argument("--bias_end", type=int, default=0)
    ap.add_argument("--quadg", type=int, default=1)
    ap.add_argument("--dmagroup", type=int, default=1)
    ap.add_argument("--poll0", type=int, default=1)
    ap.add_argument("--nox", action="store_true", help="diagnostic")
    ap.add_argument("--nost", action="store_true", help="diagnostic")
    ap.add_argument("--nodma", action="store_true", help="diagnostic")
    ap.add_argument("--nobias", action="store_true", help="diagnostic")
    ap.add_argument("--shift", type=int, default=0)
    ap.add_argument("--cpfsplit", type=int, default=1)
    ap.add_argument("--backoff", type=int, default=0)
    ap.add_argument("--w0prep", type=int, default=0)
    ap.add_argument("--nb_pro", type=int, default=6, help="early mode: x0 B-half DMAs issued before the first MFMA")
    ap.add_argument("--dmapair", type=int, default=10)
    ap.add_argument("--dbgout", type=int, default=-1)
    ap.add_argument("--tailpk", type=int, default=1)
    ap.add_argument("--gather", type=int, default=1)
    ap.add_argument("--wsig2", type=int, default=0)
    ap.add_argument("--stagger", type=int, default=-1, help="workgroup-id bit selecting the late group")
    ap.add_argument("--ynb", type=int, default=4)
    ap.add_argument("--sig0_at", type=float, default=0.1)
    ap.add_argument("--poll0_at", type=float, default=0.7)
    ap.add_argument("--verbose", action="store_true")
    ap.add_argument("--gload", type=int, default=1)
    ap.add_argument("--pace", type=float, default=0.1)
    ap.add_argument("--early", type=int, default=1)
    ap.add_argument("--pub0_end", type=int, default=40)
    ap.add_argument("--earlyprep", type=int, default=0)
    ap.add_argument("--lateprep", type=int, default=400)
    ap.add_argument("--preps_at", type=int, default=330)
    ap.add_argument("--prepl_at", type=float, default=0.1)
    ap.add_argument("--wdelay", type=int, default=2)
    ap.add_argument("--short_at", type=int, default=72)
    ap.add_argument("--pkmul", type=int, default=0)
    ap.add_argument("--pkadd", type=int, default=0)
    ap.add_argument("--apub", type=int, default=0, help="publish x0's A half in the prologue")
    ap.add_argument("--cpf", type=int, default=4, help="code prefetch loads per wave (16 KB each)")
    ap.add_argument("--desync", type=int, default=0, help="diagnostic")
    ap.add_argument("--direct", type=int, nargs=2, default=[12, 4])
    ap.add_argument("--siga2_at", type=float, default=0.08)
    ap.add_argument("--puba_end", type=int, default=160)
    ap.add_argument("--sg", type=int, nargs=4, default=[-1, 0, 390, 150])
    ap.add_argument("--delay", type=int, default=0, help="diagnostic")
    ap.add_argument("--touch", type=int, default=0, help="diagnostic")
    ap.add_argument("--pstamps", type=int, default=0, help="phase stamps in layer N-1")
    ap.add_argument("--xbase", type=int, default=32)
    ap.add_argument("--xbufs", type=int, default=6)
    ap.add_argument("--now", action="store_true", help="diagnostic: no W loads in the loop")
    ap.add_argument("--noxch", action="store_true", help="diagnostic: no exchange traffic")
    ap.add_argument("--noepi", action="store_true", help="diagnostic: no epilogue/bias in the loop")
    o = ap.parse_args()
    for k in ("wflags", "xflags", "oflags", "rflags", "xsflags", "xlflags"):
        v = getattr(o, k)
        setattr(o, k, (" " + v.replace(",", " ")) if v and v != "none" else "")
    mtxt, mkd = Main(o).build()
    opts = " ".join(a for a in sys.argv[1:] if not a.endswith(".s") and a != "-o")
    s = HEADER.format(opts=opts)
    s += f"; @launch grid=(256,1,1) block=(256,1,1) lds={163840 if o.wdma else LDS_TOTAL}\n"
    s += '.amdgcn_target "amdgcn-amd-amdhsa--gfx950"\n.text\n'
    s += mtxt + mkd
    open(o.o, "w").write(s)
    print(o.o, len(s), "bytes")


if __name__ == "__main__":
    main()
```

```python
import argparse
import sys
from asmir import *

KNAME = "standalone__cross_network_dcn__recsys_kernel"
NL = 6
D = 1024
NB = 16384
MB = 1 << 20

HEADER = """; Kernarg layout for this problem (48 bytes, ptrs only, base s[0:1]):
;   offset  40: d_ws      268435456 bytes workspace
; Generated by gen/gen3.py (hand-written generator). Options: {opts}
"""

LDS_BIAS = 131072
LDS_STAGE = LDS_BIAS + NL * 512 * 4
LDS_TOTAL = LDS_STAGE + 8192
WS_FLAGS = 15 * MB
WS_XCH = 32 * MB
WS_STAMP = 16 * MB


def kd(name, vgpr, sgpr, accum):
    return f""".section .rodata,"a"
.p2align 6
.amdhsa_kernel {name}
  .amdhsa_next_free_vgpr {vgpr}
  .amdhsa_next_free_sgpr {sgpr}
  .amdhsa_accum_offset {accum}
  .amdhsa_group_segment_fixed_size 0
  .amdhsa_kernarg_size 48
  .amdhsa_user_sgpr_count 2
  .amdhsa_user_sgpr_kernarg_segment_ptr 1
  .amdhsa_system_sgpr_workgroup_id_x 1
  .amdhsa_float_denorm_mode_32 3
.end_amdhsa_kernel
"""


def srd(base, lo, hi, nbytes):
    return [salu("s_mov_b32", f"s{base}", lo), salu("s_mov_b32", f"s{base + 1}", hi),
            salu("s_mov_b32", f"s{base + 2}", hex(nbytes)), salu("s_mov_b32", f"s{base + 3}", "0x20000")]


def srd_off(base, lo, hi, off, nbytes):
    return [salu("s_add_u32", f"s{base}", lo, off), salu("s_addc_u32", f"s{base + 1}", hi, 0),
            salu("s_mov_b32", f"s{base + 2}", hex(nbytes)), salu("s_mov_b32", f"s{base + 3}", "0x20000")]


def sload(d, off, n=2):
    return I(f"s_load_dwordx{n} {d}, s[0:1], {off}", "smem", wr=[d])


def tagged(ins, tag):
    ins.wr = set(ins.wr) | {tag}
    return ins


def dma(voff, srdn, soff, off, flags, tag):
    o = f" offset:{off}" if off else ""
    return tagged(I(f"buffer_load_dwordx4 {voff}, {srdn}, {soff} offen{o}{flags} lds", "vld", rd=[voff]), tag)


def hoist(ins):
    ins.note = "hoist"
    return ins


def space(n):
    return [I("", "space") for _ in range(n)]


def insert_at(stream, frac, items, ok):
    i = int(len(stream) * frac)
    while 0 < i < len(stream) and not ok(stream[i - 1]):
        i += 1
    return stream[:i] + items + stream[i:]


class Main:
    def __init__(self, o):
        self.o = o
        self.sX, self.sW, self.sO, self.sB = "s[8:11]", "s[12:15]", "s[16:19]", "s[20:23]"
        self.sE, self.sR, self.sD = "s[32:35]", "s[40:43]", "s[44:47]"
        self.sC, self.sFm, self.sFp = "s[56:59]", "s[60:63]", "s[64:67]"
        self.sWoff, self.sL, self.sMask, self.sNeed = "s24", "s25", "s26", "s27"
        self.sRow, self.sXs, self.sXl, self.sFlag = "s28", "s29", "s30", "s31"
        self.sRaw, self.sDst, self.sLds, self.sBias, self.sStage, self.sSpin, self.sWave, self.sPNeed = (
            "s48", "s49", "s50", "s51", "s52", "s53", "s54", "s55")
        self.vW, self.vXw, self.vB = "v0", "v3", "v4"
        self.vXr = ["v1", "v2"]
        self.vL = "v1"
        self.t = ["v5", "v6", "v7"]
        self.Q = [8, 12]
        self.vP, self.vG = "v16", "v17"
        self.vS = ["v18", "v19"]
        self.RQ = [20, 24]
        self.NS = o.slots
        self.aX0 = 0
        self.aXF = 128
        self.aW = 192
        self.aACC = self.aW + 8 * min(self.NS, 6)
        self.nA = 256 - self.aACC
        self.vACC = self.nA
        NS = self.NS
        nshort = (-128) % NS
        nlong = (128 - nshort * (NS - 1)) // NS
        first = min(nlong, o.short_at // NS)
        seq = list(range(NS)) * first + list(range(NS - 1)) * nshort + list(range(NS)) * (nlong - first)
        assert len(seq) == 128
        self.slot = seq
        site = {}
        for s2 in range(-128, 256):
            p = s2 - 1
            while seq[p % 128] != seq[s2 % 128]:
                p -= 1
            site[s2] = max(p, site.get(s2 - 1, -10 ** 9))
        if o.wbunch > 1:
            k = o.wbunch
            for s2 in site:
                site[s2] = ((site[s2] // k) + 1) * k - 1
        self.site = site
        self.loads_at = {}
        for s2 in range(0, 256):
            self.loads_at.setdefault(site[s2], []).append(s2)
        self.small = self.vACC < 28
        if self.small:
            self.vP = self.vB
            q0 = [int(self.acc_tile(nt, 0, 0, 1)[1:]) for nt in range(4)]
            self.vG, self.vS, self.RQ = f"v{q0[0]}", [f"v{q0[0] + 1}", f"v{q0[0] + 2}"], [q0[1], q0[2]]
        self.init = "1.0" if not o.init else "s23"
        self.stampn = 0
        self.names = []
        self.ool = []

    def acc(self, p, i, n=1):
        h = self.nA // 2
        nv = 128 - h
        if i < nv:
            assert i + n <= nv
            return R("v", self.vACC + p * nv + i, n)
        return R("a", self.aACC + p * h + (i - nv), n)

    def acc_tile(self, nt, bt, r=0, n=4):
        return self.acc(nt >> 2, ((nt & 3) * 8 + bt) * 4 + r, n)

    def x0reg(self, kbl, bt, j=0, n=4):
        return R("a", self.aX0 + (kbl * 8 + bt) * 4 + j, n)

    def xf(self, bt, c):
        return R("a", self.aXF + (bt * 2 + c) * 4, 4)

    def wslot(self, s, c):
        if self.slot[s % 128] >= 6:
            return R("a", ((self.slot[s % 128] - 6) * 2 + c) * 4, 4)
        return R("a", self.aW + (self.slot[s % 128] * 2 + c) * 4, 4)

    def wload(self, s, c, dst=None):
        if self.o.gload:
            d = dst or self.wslot(s, c)
            off = (s & 3) * 2048 + c * 1024 - 4096
            if self.o.wdma and not dst:
                return I(f"global_load_lds_dwordx4 {self.vW}, s[70:71] offset:{off}", "vld", rd=[self.vW, "s[70:71]"], wr=[d])
            return I(f"global_load_dwordx4 {d}, {self.vW}, s[70:71] offset:{off}{self.o.wflags}", "vld",
                     rd=[self.vW, "s[70:71]"], wr=[d])
        return bload(dst or self.wslot(s, c), self.vW, self.sW, self.sWoff, (s & 1) * 2048 + c * 1024, flags=self.o.wflags)

    def wstep(self, s):
        if self.o.gload:
            if (s & 3) != 3:
                return []
            d = 8192 if (s % 128) != 127 else 8192 + 2 * MB - 256 * 1024
            both = I(f"s_add_u32 s70, s70, {d}\n s_addc_u32 s71, s71, 0", "salu", rd=["s[70:71]"], wr=["s[70:71]"])
            both.states = 2
            return [both]
        if not s & 1:
            return []
        return [salu("s_add_u32", self.sWoff, self.sWoff, 4096 if (s % 128) != 127 else 4096 + 2 * MB - 256 * 1024)]

    def xread(self, bt, c, rho, ss):
        return dsread(self.xf(bt, c), self.vXr[ss >> 1], (ss & 1) * 32768 + bt * 4096 + rho * 2048 + c * 1024)

    def stamp(self, name="x"):
        if not self.o.stamps:
            return []
        if self.o.pstamps and name in ("kernarg", "x0A_issued", "stores_issued", "signalled", "x0_issued", "x0_part", "flag_seen"):
            return []
        n = self.stampn
        self.stampn += 1
        self.names.append(name)
        assert n < 15
        return [raw(f"s_memtime s[{72 + 2 * n}:{73 + 2 * n}]", "other")]

    def lstamp(self, name, lval):
        if not self.o.pstamps:
            return []
        n = self.stampn
        return [raw(f"s_cmp_eq_u32 s25, {lval}"), raw(f"s_cbranch_scc0 Lns{n}")] + self.stamp(name) + [Label(f"Lns{n}")]

    def epi_unit(self, kbl, bt, q, pk=False):
        s = []
        accs = [self.acc_tile(2 * kbl + t, bt, r, 1) for t in range(2) for r in range(4)]
        hi, lo, m = self.t
        for j in range(4):
            a0, a1 = accs[2 * j], accs[2 * j + 1]
            if self.o.pkmul or pk:
                s.append(valu("v_accvgpr_read_b32", "v7", self.x0reg(kbl, bt, j, 1)))
                ap = f"v[{a0[1:]}:{a1[1:]}]"
                if a0[0] == "a":
                    tp = int(self.acc_tile(3, 0, 0, 1)[1:]) if pk else 28
                    s.append(valu("v_accvgpr_read_b32", f"v{tp}", a0))
                    s.append(valu("v_accvgpr_read_b32", f"v{tp + 1}", a1))
                    ap = R("v", tp, 2)
                s.append(valu("v_lshlrev_b32", "v6", 16, "v7"))
                s.append(valu("v_and_b32", "v7", self.sMask, "v7"))
                s.append(valu("v_pk_mul_f32", "v[6:7]", "v[6:7]", ap))
                s.append(valu("v_cvt_pk_bf16_f32", f"v{q + j}", "v6", "v7"))
                continue
            s.append(valu("v_accvgpr_read_b32", hi, self.x0reg(kbl, bt, j, 1)))
            if a0[0] == "a":
                s.append(valu("v_accvgpr_read_b32", m, a0))
                a0 = m
            s.append(valu("v_lshlrev_b32", lo, 16, hi))
            s.append(valu("v_and_b32", hi, self.sMask, hi))
            s.append(valu("v_mul_f32", lo, lo, a0))
            if a1[0] == "a":
                s.append(valu("v_accvgpr_read_b32", m, a1))
                a1 = m
            s.append(valu("v_mul_f32", hi, hi, a1))
            s.append(valu("v_cvt_pk_bf16_f32", f"v{q + j}", lo, hi))
        return s

    def xstore(self, src, p, u, tmp, state):
        if self.o.noxch or self.o.nost:
            return []
        s = []
        off = p * 16384 + u * 1024
        if state.get("g") != off >> 12:
            state["g"] = off >> 12
            s.append(salu("s_add_u32", tmp, self.sXs, off & ~4095))
        s.append(tagged(bstore(src, self.vXw, self.sE, tmp, off & 4095, flags=self.o.xsflags), f"xs{p}"))
        return s

    def xnext(self, reg, back):
        n = self.o.xbufs
        if n == 1:
            return [salu("s_sub_u32", reg, reg, back)]
        if n == 2:
            return [salu("s_sub_u32", reg, reg, back), salu("s_xor_b32", reg, reg, hex(32 * MB))]
        return [salu("s_add_u32", reg, reg, hex(32 * MB - back))]

    def epi_stream(self, p, ndirect=16, one=False, units=None):
        s = []
        st = {}
        for n, u in enumerate(range(16) if units is None else units):
            bt, c = u >> 1, u & 1
            q = self.Q[0 if one else n & 1]
            s += self.epi_unit(2 * p + c, bt, q)
            s.append(dswrite(self.vXw, R("v", q, 4), bt * 4096 + p * 2048 + c * 1024))
            if n < ndirect:
                s += self.xstore(R("v", q, 4), p, u, "s68", st)
        return s

    def pub_stream(self, p, lo, hi, units=None):
        s = []
        st = {}
        if self.o.noxch or lo >= hi:
            return s
        if self.small:
            q = R("v", self.Q[1], 4)
            for u in (units or range(16))[lo:hi]:
                s.append(dsread(q, self.vXw, (u >> 1) * 4096 + p * 2048 + (u & 1) * 1024))
                s += space(7)
                s.append(Wait(lg=[q]))
                s += self.xstore(q, p, u, "s69", st) + space(2)
            return s

        def rd(u):
            return dsread(R("v", self.RQ[u & 1], 4), self.vXw, (u >> 1) * 4096 + p * 2048 + (u & 1) * 1024)

        s.append(rd(lo))
        s += space(6)
        for u in range(lo, hi):
            if u + 1 < hi:
                s.append(rd(u + 1))
            s.append(Wait(lg=[R("v", self.RQ[u & 1], 4)]))
            s += self.xstore(R("v", self.RQ[u & 1], 4), p, u, "s69", st)
        return s

    def pub_guard(self, st):
        return st

    def x0pub_stream(self, p, lo=0, hi=16):
        s = []
        st = {}
        for u in range(lo, hi):
            s += self.xstore(self.x0reg(2 * p + (u & 1), u >> 1), p, u, "s68", st)
        return s

    def xch_dma(self, p):
        if self.o.wdma:
            return []
        if self.o.gather:
            return self.xch_dma_g(p)
        s = [raw(f"s_add_u32 m0, {self.sLds}, {p * 2048}", "salu", rd=[self.sLds])] + space(1)
        for bt in range(8):
            for c in range(2):
                if not self.o.noxch:
                    s.append(dma(self.vXw, self.sE, self.sXl, c * 1024, self.o.xlflags, f"xl{p}"))
            if bt < 7:
                s.append(raw("s_add_u32 m0, m0, 4096", "salu"))
            if bt == 7 and p == 1:
                s += self.xnext(self.sXl, 15 * 2048)
            else:
                s.append(salu("s_add_u32", self.sXl, self.sXl, 2048))
        return s

    def xch_dma_g(self, p):
        t0, t1 = self.t[0], self.t[1]
        vL = self.vL
        if self.o.quadg:
            X = self.vXw
            self.ool += [Label(f"Lgat{p}"),
                         raw(f"v_lshrrev_b32 {t0}, 4, {X}"), raw(f"v_and_b32 {t0}, 0x20, {t0}"), raw(f"v_xor_b32 {t0}, {t0}, {X}"),
                         raw(f"v_and_b32 {t0}, 0x30, {t0}"), raw(f"v_bfe_u32 {t1}, {X}, 6, 4"),
                         raw(f"v_lshl_add_u32 {t1}, {t1}, 11, {t0}"), raw(f"s_branch Lgatr{p}")]
        else:
            self.ool += [Label(f"Lgat{p}"),
                         raw(f"v_and_b32 {t0}, 0xf0, {vL}"), raw(f"v_lshrrev_b32 {t1}, 4, {vL}"),
                         raw(f"v_and_b32 {t1}, 0x30, {t1}"), raw(f"v_lshl_add_u32 {t1}, {t0}, 7, {t1}"),
                         raw(f"s_branch Lgatr{p}")]
        sel = I(f"v_mov_b32 {t1}, {self.vXw}\n s_cmp_eq_u32 {self.sL}, 0\n s_cbranch_scc1 Lgat{p}\nLgatr{p}:", "valu",
                rd=[self.vXw], wr=[t0, t1])
        s = [sel, raw(f"s_add_u32 m0, {self.sLds}, {p * 2048}", "salu", rd=[self.sLds])] + space(1)
        for bt in range(8):
            for c in range(2):
                if not self.o.noxch and not self.o.nodma:
                    s.append(dma(t1, self.sX, self.sXl, 0, self.o.xlflags, f"xl{p}"))
                s.append(raw(f"s_add_u32 m0, m0, {1024 if c == 0 else 3072}", "salu"))
                s.append(salu("s_add_u32", self.sXl, self.sXl, "s20" if c == 0 else "s21" if bt < 7 else "s22"))
            if bt < 7 and (bt + 1) % self.o.dmagroup == 0:
                s += space(self.o.dmapair * self.o.dmagroup)
        return s

    def xr_gathered(self):
        if not self.o.quadg:
            return []
        t0, X, r0, r1 = self.t[0], self.vXw, self.vXr[0], self.vXr[1]
        self.ool += [Label("Lxrg"),
                     raw(f"v_lshrrev_b32 {t0}, 2, {X}"), raw(f"v_and_b32 {t0}, 0x20, {t0}"),
                     raw(f"v_lshrrev_b32 {r1}, 4, {X}"), raw(f"v_xor_b32 {t0}, {t0}, {r1}"),
                     raw(f"v_and_b32 {t0}, 0x30, {t0}"), raw(f"v_bfe_u32 {r0}, {X}, 4, 4"),
                     raw(f"v_lshl_add_u32 {r0}, {r0}, 6, {t0}"), raw(f"v_add_u32 {r1}, 0x10000, {r0}"),
                     raw("s_branch Lxrgr")]
        return [I(f"s_cmp_eq_u32 {self.sL}, 0\n s_cbranch_scc1 Lxrg\nLxrgr:", "valu", rd=[X], wr=[t0, r0, r1])]

    def xr_plain(self):
        if not self.o.quadg:
            return []
        return [valu("v_and_b32", self.vXr[0], 0x3ff, self.vXw), valu("v_add_u32", self.vXr[1], 65536, self.vXr[0])]

    def xch_switch(self):
        return [salu("s_mov_b32", "s34", hex(256 * MB)),
                salu("s_mov_b32", "s8", "s32"), salu("s_mov_b32", "s9", "s33"), salu("s_mov_b32", "s10", "s34"),
                salu("s_mov_b32", "s20", 1024), salu("s_mov_b32", "s21", 1024), salu("s_mov_b32", "s22", 1024),
                salu("s_xor_b32", self.sXl, self.sXs, 1 << 17)]

    def calc_vG(self, vG):
        t0, t1 = self.t[0], self.t[1]
        return [valu("v_lshrrev_b32", t0, 7, self.vL), valu("v_lshlrev_b32", t1, 4, t0),
                valu("v_xor_b32", t1, t1, self.vL), valu("v_and_b32", t1, 0x70, t1),
                valu("v_lshl_add_u32", vG, t0, 11, t1)]

    def calc_vS(self, vS):
        t0, t1 = self.t[0], self.t[1]
        vL = self.vL
        return [valu("v_lshrrev_b32", t0, 4, vL), valu("v_and_b32", t0, 0x30, t0), valu("v_xor_b32", t0, t0, vL),
                valu("v_and_b32", t0, 0x70, t0), valu("v_and_b32", t1, 0xf0, vL),
                valu("v_lshl_add_u32", t0, t1, 3, t0), valu("v_add_u32", vS[0], self.sLds, t0),
                valu("v_xor_b32", vS[1], 64, vS[0])]

    def out_setup(self):
        return self.calc_vG(self.vG) + self.calc_vS(self.vS)

    def x0h_dma(self, p, lo, hi, vG):
        r = []
        for i in range(lo, hi):
            r.append(raw(f"s_add_u32 m0, {self.sLds}, {(i >> 1) * 4096 + p * 2048 + (i & 1) * 1024}", "salu"))
            r.append(salu("s_add_u32", "s3", self.sRow, i * 16384 + p * 128))
            r.append(dma(vG, self.sX, "s3", 0, self.o.xflags, f"x0_{p}_{i >> 1}"))
        return r

    def x0h_read(self, p, bt, vS):
        return [Wait(vm=[f"x0_{p}_{bt}"])] + [dsread(self.x0reg(2 * p + c, bt), vS[c], bt * 4096 + p * 2048)
                                              for c in range(2)]

    def x0h_write(self, p, bt):
        return [Wait(lg=[self.x0reg(2 * p + c, bt) for c in range(2)])] + [
            dswrite(self.vXw, self.x0reg(2 * p + c, bt), bt * 4096 + p * 2048 + c * 1024) for c in range(2)]

    def wreg0(self, s, c):
        if s < 16 - self.NS:
            return self.acc(1, (s * 2 + c) * 4, 4)
        return self.wslot(s, c)

    def out_stream(self, p):
        s = []
        pend = []
        for bt in range(8):
            for c in range(2):
                q = self.Q[c]
                u = self.epi_unit(2 * p + c, bt, q, pk=(p == 1 and self.o.tailpk))
                if c == 0 and pend:
                    u = u[:12] + pend + u[12:]
                    pend = []
                s += u
                if p == 0 and bt == 0 and c == 0:
                    s += self.out_setup()
                s.append(dswrite(self.vS[c], R("v", q, 4), bt * 4096))
            for i in range(2):
                s.append(dsread(R("v", self.RQ[i], 4), self.vXw, bt * 4096 + i * 1024))
            for i in range(2):
                pend.append(Wait(lg=[R("v", self.RQ[i], 4)]))
                pend.append(salu("s_add_u32", "s3", self.sRow, bt * 32768 + i * 16384))
                pend.append(bstore(R("v", self.RQ[i], 4), self.vG, self.sO, "s3", p * 128, flags=self.o.oflags))
        return s + pend

    def out_stream4(self, kbl):
        s = []
        pend = []
        p, c = kbl >> 1, kbl & 1
        for bt in range(8):
            q = self.Q[bt & 1]
            u = self.epi_unit(kbl, bt, q, pk=(kbl == 3 and self.o.tailpk))
            s += u[:12] + pend + u[12:]
            pend = []
            if kbl == 0 and bt == 0:
                s += self.out_setup()
            s.append(dswrite(self.vS[c], R("v", q, 4), bt * 4096))
            if c:
                rq = [int(self.acc_tile(1, 0, 0, 1)[1:]), int(self.acc_tile(0, 1, 0, 1)[1:])]
                for i in range(2):
                    s.append(dsread(R("v", rq[i], 4), self.vXw, bt * 4096 + i * 1024))
                for i in range(2):
                    pend.append(Wait(lg=[R("v", rq[i], 4)]))
                    pend.append(salu("s_add_u32", "s3", self.sRow, bt * 32768 + i * 16384))
                    pend.append(bstore(R("v", rq[i], 4), self.vG, self.sO, "s3", p * 128, flags=self.o.oflags))
        return s + pend

    def calc_vB(self):
        return [valu("v_bfe_u32", self.vB, self.vXw, 8, 2),
                valu("v_lshl_add_u32", self.vB, self.vB, 5, self.sBias)]

    def bias_stream(self, p, one=False):
        s = []
        if one:
            q = self.Q[0]
            for nt in range(4 * p, 4 * p + 4):
                s.append(dsread(R("v", q, 4), self.vB, (nt >> 1) * 128 + (nt & 1) * 16))
                s += space(7)
                s.append(Wait(lg=[R("v", q, 4)]))
                cnt = 0
                for bt in range(8):
                    for r in range(4):
                        a = self.acc_tile(nt, bt, r, 1)
                        if a[0] == "a":
                            t = self.t[cnt & 1]
                            s += [valu("v_accvgpr_read_b32", t, a), valu("v_add_f32", t, t, f"v{q + r}"),
                                  valu("v_accvgpr_write_b32", a, t)]
                        else:
                            s.append(valu("v_add_f32", a, a, f"v{q + r}"))
                        cnt += 1
            return s
        if self.o.nobias:
            return [valu("v_add_f32", self.acc_tile(4 * p, 0, 0, 1), self.acc_tile(4 * p, 0, 0, 1), 0) for _ in range(8)]

        def rd(nt):
            return dsread(R("v", self.Q[nt & 1], 4), self.vB, (nt >> 1) * 128 + (nt & 1) * 16)

        s.append(rd(4 * p))
        s += space(8)
        for nt in range(4 * p, 4 * p + 4):
            q = self.Q[nt & 1]
            cnt = 0
            for bt in range(8):
                for r in range(4):
                    if cnt == 0:
                        s.append(Wait(lg=[R("v", q, 4)]))
                    a = self.acc_tile(nt, bt, r, 1)
                    if self.o.pkadd and a[0] == "v":
                        if not r & 1:
                            ap = self.acc_tile(nt, bt, r, 2)
                            s.append(valu("v_pk_add_f32", ap, ap, R("v", q + r, 2)))
                    elif a[0] == "a":
                        t = self.t[cnt & 1]
                        s.append(valu("v_accvgpr_read_b32", t, a))
                        s.append(valu("v_add_f32", t, t, f"v{q + r}"))
                        s.append(valu("v_accvgpr_write_b32", a, t))
                    else:
                        s.append(valu("v_add_f32", a, a, f"v{q + r}"))
                    cnt += 1
                    if cnt == 1 and nt + 1 < 4 * p + 4:
                        s.append(rd(nt + 1))
        return s

    def prep_load(self):
        if self.o.wdma and getattr(self, "pl0", 0):
            return []
        self.pl0 = 1
        t0, t1 = self.t[0], self.t[1]
        s = [valu("v_lshrrev_b32", t0, 6, self.vL),
             valu("v_and_b32", t1, 48, self.vL),
             valu("v_lshl_add_u32", t0, t0, 11, t1),
             raw(f"s_mov_b32 m0, {self.sStage}", "salu", rd=[self.sStage]),
             salu("s_add_u32", "s3", self.sRaw, 32768 - 1024)]
        s.append(dma(t0, self.sR, self.sRaw, 0, self.o.rflags, "raw"))
        s.append(dma(t0, self.sR, "s3", 1024, self.o.rflags, "raw"))
        s.append(salu("s_add_u32", self.sRaw, self.sRaw, D * D * 2))
        return s

    def prep_store(self, sp=0):
        t0 = self.t[0]
        t1 = self.t[2]
        s = [valu("v_and_b32", t0, 0x300, self.vXw),
             valu("v_and_b32", t1, 0x3ff, self.vXw),
             valu("v_add3_u32", t0, t0, t1, self.sStage),
             Wait(vm=["raw"])]
        for t in range(2):
            for h in range(2):
                s.append(I(f"ds_read_b64_tr_b16 {R('v', self.Q[t] + 2 * h, 2)}, {t0} offset:{h * 256 + t * 8}", "dsr",
                           rd=[t0], wr=[R("v", self.Q[t] + 2 * h, 2)]))
        dst = self.sDst
        if sp and self.o.tail4:
            dst = "s69"
            s.append(I(f"s_cmp_eq_u32 {self.sL}, {NL - 2}\n s_cselect_b32 s69, s24, 0\n s_add_u32 s69, s69, {self.sDst}",
                       "salu", rd=[self.sL, "s24", self.sDst], wr=["s69"]))
        s += space(sp)
        for t in range(2):
            s.append(Wait(lg=[R("v", self.Q[t], 4)]))
            s.append(tagged(bstore(R("v", self.Q[t], 4), t1, self.sW, dst, t * 2048, flags=" sc1"), "pst"))
        s.append(salu("s_add_u32", self.sDst, self.sDst, D * D * 2))
        return s

    def wsignal(self):
        t = self.t[2]
        return [valu("v_mov_b32", t, 1),
                I(f"buffer_atomic_add {t}, {self.vW}, {self.sC}, 0 offen sc1", "vst", rd=[t, self.vW])]

    def psignal(self, p):
        t = self.t[2]
        return [salu("s_add_u32", self.sFlag, self.sFlag, 1), Wait(vm=[f"xs{p}"]),
                valu("v_mov_b32", t, self.sFlag),
                bstore(t, self.vL, self.sFm, 0, w="dword", flags=" sc1")]

    def wpoll_load(self):
        v = self.vP
        return [valu("v_lshlrev_b32", v, 2, self.vXw), valu("v_and_b32", v, 0xc0, v),
                bload(v, v, self.sD, 0, w="dword", flags=" sc1")]

    def ppoll_load(self):
        return [I(f"buffer_load_dword {self.vP}, off, {self.sFp}, 0 sc1", "vld", wr=[self.vP])]

    def poll_check(self, name, need, inc, loader):
        v = self.vP
        spin = [Label(f"Lspin_{name}"), raw(f"s_add_u32 {self.sSpin}, {self.sSpin}, 1")]
        if self.o.backoff:
            spin.append(raw(f"s_sleep {self.o.backoff}"))
        spin += [raw(x.text) for x in loader()]
        spin += [raw(f"s_cmp_ge_u32 {self.sSpin}, 0x100000"),
                 raw(f"s_cbranch_scc1 Lgiveup_{name}"),
                 raw("s_waitcnt vmcnt(0)"),
                 raw(f"v_cmp_gt_i32 vcc, {need}, {v}"),
                 raw("s_and_b64 vcc, exec, vcc"),
                 raw(f"s_cbranch_vccnz Lspin_{name}"),
                 Label(f"Lgiveup_{name}"),
                 raw("s_waitcnt vmcnt(0)"),
                 raw(f"s_branch Lok_{name}")]
        self.ool += spin
        return [Wait(vm=[v]), I(f"v_cmp_gt_i32 vcc, {need}, {v}", "valu", rd=[v, need]),
                raw(f"s_and_b64 vcc, exec, vcc\n s_cbranch_vccnz Lspin_{name}\nLok_{name}:", "branch"),
                salu("s_add_u32", need, need, inc)]

    def phase(self, s0, nts, rho, next_rho, stream=(), bar=False, last=False, start=0, end=None, pre_bar=(),
              fixed=(), extra=(), wreg=None, skip_below=0, post_bar=()):
        o = self.o
        NS = self.NS
        NT = len(nts)
        L = NT * 16
        mf = []
        gaps = [[] for _ in range(4 * L)]
        fwd = list(range(8))
        keepx = o.revb and s0 in (0, 96)
        rev = o.revb and s0 in (16, 112)
        flip = 1 if (o.revb and 16 <= s0 <= 96) else 0
        wreg = wreg or self.wslot
        for ss in range(4):
            base = ss * L
            for k, nt in enumerate(nts):
                s = s0 + ss * NT + k
                order = fwd if ((ss + k + flip) & 1) == 0 else fwd[::-1]
                for j, bt in enumerate(order):
                    for i in range(2):
                        c = i ^ (j & 1)
                        mf.append(mfma(16, self.acc_tile(nt, bt), wreg(s, c), self.xf(bt, c)))
                g = base + k * 16
                at = self.loads_at.get(s, [])
                for n, sn in enumerate(at):
                    if (last and sn >= 128) or o.now or sn < skip_below:
                        continue
                    ga, gb, gc = g + (14 if n == 0 else 15), g + 15, g + 18
                    if o.wdelay and g + 16 < 4 * L and (o.wdelay == 2 or k == NT - 1):
                        ga, gb, gc = g + 17 + 4 * n, g + 19 + 4 * n, g + 20 + 4 * n
                    elif o.wdelay and g + 16 < 4 * L and len(at) == 1:
                        gb, gc = g + 17, g + 19
                    elif not (g + 18 < 4 * L and n == len(at) - 1):
                        gc = g + 15
                    gaps[ga].append(hoist(self.wload(sn, 1)))
                    gaps[gb].append(hoist(self.wload(sn, 0)))
                    gaps[gc] += self.wstep(sn)
                if k < NT - 1:
                    gaps[g + 15].append(Wait(vm=[wreg(s + 1, 0), wreg(s + 1, 1)]))
                if k == 0:
                    for j in range(o.xw, 8, o.xw):
                        gaps[g + 2 * j - 1].append(
                            Wait(lg=[self.xf(order[jj], c) for jj in range(j, min(8, j + o.xw)) for c in range(2)]))
            nrho, nss = (rho, 2 - ss if rev else ss + 1) if ss < 3 else (next_rho, 0)
            if ss == 3 and keepx:
                nrho = None
                s = s0 + 4 * NT
                gaps[base + L - 1].append(Wait(vm=[wreg(s, 0), wreg(s, 1)]))
            gl = base + L - 16
            if ss == 3 and bar:
                gaps[gl - o.bar_lead] += list(pre_bar) + [Wait(all_lg=True), barrier()]
                gaps[gl - o.bar_lead + 1] += list(post_bar)
            if nrho is not None:
                for j, bt in enumerate(order):
                    for i in range(2):
                        c = i ^ (j & 1)
                        if not o.nox:
                            gaps[gl + 2 * j + i].append(hoist(self.xread(bt, c, nrho, nss)))
                s = s0 + (ss + 1) * NT
                gaps[base + L - 1].append(Wait(vm=[wreg(s, 0), wreg(s, 1)],
                                               lg=[self.xf(order[jj], c) for jj in range(o.xw) for c in range(2)]))
        for gi, inss in fixed:
            gaps[gi] += inss
        hi = end if end is not None else (4 * L - 16 - o.bar_lead if bar else 4 * L - 1)
        for st, lo2, hi2 in extra:
            self.place(gaps, list(st), lo2, hi2)
        self.place(gaps, list(stream), start, hi)
        out = []
        if o.jitter:
            n = self.njit = getattr(self, "njit", 0) + 1
            out.append(raw(f"s_mul_i32 s23, s23, 1664525\n s_add_u32 s23, s23, 1013904223\n s_lshr_b32 s101, s23, 24\n"
                           f" s_cmp_ge_u32 s101, {o.jitter}\n s_cbranch_scc1 Ljit{n}\n s_bfe_u32 s101, s23, 0x40010\nLjs{n}:\n s_sleep 20\n"
                           f" s_sub_u32 s101, s101, 1\n s_cbranch_scc0 Ljs{n}\nLjit{n}:", "salu"))
        for i, m in enumerate(mf):
            out.append(m)
            gaps[i] = self.merge([], gaps[i])
            out += gaps[i]
        if o.verbose:
            print(f"; phase s0={s0} mfma={len(mf)} modelled excess={sum(self.gap_excess(g) for g in gaps)}", file=sys.stderr)
        return out

    @staticmethod
    def gap_excess(items):
        slots = 0
        ex = 0
        free = 2
        seenv = False
        for x in items:
            k = x.kind
            if k in ("valu", "nop"):
                slots += 1
                seenv = True
                continue
            if k in ("dsr", "vld", "dsw", "vst") and seenv:
                ex += 8
            if k == "dsr":
                slots += 1
            elif k == "vld":
                slots += 1 if x.text.startswith("global") else 2
            elif k == "dsw":
                ex += 12
                free -= 2
            elif k == "vst":
                ex += (20 if x.big else 4) + 4 * slots + (8 if free < 2 else 0)
                free = 3 if x.big else free - 1
            elif k == "barrier":
                ex += 24
        return ex + 4 * max(0, slots - max(free, 0))

    @staticmethod
    def merge(items, fixed):
        k = 0
        lead, rest = [], []
        stop = False
        for x in fixed:
            if not stop and x.kind in ("dsr", "vld") and getattr(x, "note", "") == "hoist":
                lead.append(x)
            else:
                rest.append(x)
                if x.kind not in ("wait",):
                    stop = True
        items = [x for x in items if x.kind != "space"]
        j = 0
        while j < len(items) and items[j].kind in ("salu", "wait"):
            j += 1
        if j < len(items) and items[j].kind == "vst":
            return items[:j + 1] + lead + items[j + 1:] + rest
        return lead + items + rest

    def place(self, gaps, stream, lo, hi):
        if not stream:
            return
        n, G = len(stream), hi - lo
        KMAX = 8
        INF = float("inf")
        dp = [INF] * (n + 1)
        dp[0] = 0.0
        back = []
        NG = len(gaps)
        cnt = lambda g, kind: sum(1 for x in gaps[g] if x.kind == kind) if g < NG else 0
        for g in range(G):
            fixed = gaps[lo + g]
            base = self.gap_excess(self.merge([], fixed))
            wpen = 7 * sum(cnt(lo + g + d, "dsr") for d in (1, 2, 3)) + 4 * cnt(lo + g, "dsr")
            spen = 12 * cnt(lo + g + 1, "vld") + 6 * cnt(lo + g, "vld") + 4 * cnt(lo + g + 2, "vld")
            nd = [INF] * (n + 1)
            bk = [0] * (n + 1)
            tgt = n * (g + 1) / G
            for i in range(n + 1):
                if dp[i] == INF:
                    continue
                for k in range(0, min(KMAX, n - i) + 1):
                    c = dp[i]
                    if k:
                        its = stream[i:i + k]
                        if k > 1 and its[-2].kind == "space":
                            break
                        c += self.gap_excess(self.merge(its, fixed)) - base
                        c += sum(wpen if x.kind == "dsw" else spen if x.kind == "vst" else 0 for x in its)
                    c += self.o.pace * ((i + k - tgt) / max(1.0, n / G)) ** 2 + 0.02 * k * k
                    if c < nd[i + k]:
                        nd[i + k] = c
                        bk[i + k] = k
            dp = nd
            back.append(bk)
        assert dp[n] < INF
        i = n
        for g in range(G - 1, -1, -1):
            k = back[g][i]
            gaps[lo + g] = self.merge(stream[i - k:i], gaps[lo + g])
            i -= k

    def prologue(self):
        o = self.o
        vL = self.vL
        b = []
        b.append(salu("s_cmp_ge_u32", "s2", 256))
        b.append(raw("s_cbranch_scc1 Lend", "branch"))
        if o.pair8:
            b += [raw("s_lshr_b32 s3, s2, 3"), raw("s_xor_b32 s3, s3, s2"), raw("s_and_b32 s3, s3, 1"), raw("s_mul_i32 s3, s3, 9"),
                  raw("s_xor_b32 s2, s2, s3")]
        b += self.stamp("start")
        if o.stamps:
            b.append(raw("s_memrealtime s[36:37]"))
        b += [nop(0) for _ in range(o.shift)]
        b += [sload("s[56:59]", 0, 4), sload("s[60:63]", 16, 4), sload("s[64:67]", 32, 4)]
        b.append(valu("v_lshrrev_b32", "v9", 6, "v0"))
        b.append(valu("v_and_b32", "v10", 63, "v0"))
        b.append(valu("v_readfirstlane_b32", self.sWave, "v9"))
        b.append(valu("v_lshlrev_b32", vL, 4, "v10"))
        if o.cpf:
            b.append(raw("s_getpc_b64 s[4:5]", "salu"))
            b.append(Label("Lpc"))
            b.append(valu("v_lshlrev_b32", "v11", 6, "v0"))
            if o.cpfsplit:
                b += [salu("s_bfe_u32", "s3", "s2", "0x20003"), salu("s_lshl_b32", "s3", "s3", 14),
                      valu("v_add_u32", "v11", "s3", "v11")]
            for i in range(1 if o.cpfsplit else o.cpf):
                b.append(raw(f"v_min_u32 v12, Lcend-4-Lpc, v11", "valu", rd=["v11"], wr=["v12"]))
                b.append(I(f"global_load_dword v{60 + i}, v12, s[4:5]", "vld", rd=["v12"], wr=[f"v{60 + i}"]))
                b.append(valu("v_add_u32", "v11", 16384, "v11"))
        b.append(valu("v_lshrrev_b32", "v11", 7, "v0"))
        b.append(valu("v_and_b32", "v12", 127, "v0"))
        b.append(valu("v_lshlrev_b32", "v12", 3, "v12"))
        b.append(valu("v_lshl_add_u32", "v30", "v11", 11, "v12"))
        b.append(valu("v_lshlrev_b32", "v31", 4, "v0"))
        b.append(valu("v_add_u32", "v31", LDS_BIAS, "v31"))
        b.append(valu("v_add_u32", self.vXr[1], 65536, vL))
        b.append(valu("v_lshl_add_u32", self.vXw, "v9", 15, vL))
        b.append(valu("v_lshl_add_u32", self.vW, "v9", 18, vL))
        nb0 = len(b)
        b.append(valu("v_lshrrev_b32", "v11", 4, "v10"))
        b.append(valu("v_and_b32", "v12", 15, "v10"))
        b.append(valu("v_xor_b32", "v13", "v11", "v12"))
        b.append(valu("v_lshlrev_b32", "v13", 4, "v13"))
        b.append(valu("v_lshl_add_u32", "v20", "v11", 11, "v13"))
        for i in range(1, 4):
            b.append(valu("v_xor_b32", f"v{20 + i}", 64 * i, "v20"))
        b.append(valu("v_lshl_add_u32", "v24", "v12", 8, "v13"))
        b.append(valu("v_lshl_add_u32", "v24", "v9", 15, "v24"))
        for i in range(1, 4):
            b.append(valu("v_xor_b32", f"v{24 + i}", 64 * i, "v24"))
        if o.early == 1:
            del b[nb0:]
        b.append(salu("s_and_b32", "s7", "s2", 1))
        b.append(salu("s_lshr_b32", self.sRow, "s2", 1))
        b.append(salu("s_lshl_b32", self.sRow, self.sRow, 18))
        b.append(salu("s_lshl_b32", "s6", "s7", 10))
        b.append(salu("s_add_u32", self.sRow, self.sRow, "s6"))
        b.append(salu("s_lshl_b32", "s6", self.sWave, 8))
        b.append(salu("s_add_u32", self.sRow, self.sRow, "s6"))
        b.append(salu("s_mov_b32", self.sMask, "0xffff0000"))
        b.append(salu("s_lshl_b32", self.sWoff, "s7", 20))
        b.append(salu("s_mov_b32", self.sL, 0))
        b.append(salu("s_mov_b32", self.sSpin, 0))
        b.append(salu("s_mov_b32", self.sFlag, -1 if o.gather else 0))
        b.append(salu("s_mov_b32", self.sNeed, 64))
        b.append(salu("s_mov_b32", self.sPNeed, -1 if o.gather else 1))
        b.append(salu("s_lshl_b32", self.sLds, self.sWave, 15))
        b.append(salu("s_lshl_b32", self.sXs, "s2", 17))
        b.append(salu("s_add_u32", self.sXs, self.sXs, o.xbase * MB))
        b.append(salu("s_xor_b32", self.sXl, self.sXs, 1 << 17))
        b.append(salu("s_lshr_b32", "s4", "s2", 3))
        b.append(salu("s_and_b32", "s5", "s2", 7))
        b.append(salu("s_lshl_b32", self.sRaw, "s4", 16))
        b.append(salu("s_lshl_b32", "s6", "s5", 8))
        b.append(salu("s_add_u32", self.sRaw, self.sRaw, "s6"))
        b.append(salu("s_lshl_b32", "s6", self.sWave, 6))
        b.append(salu("s_add_u32", self.sRaw, self.sRaw, "s6"))
        b.append(salu("s_lshl_b32", self.sDst, "s5", 18))
        b.append(salu("s_and_b32", "s6", "s4", 1))
        b.append(salu("s_lshl_b32", "s6", "s6", 10))
        b.append(salu("s_add_u32", self.sDst, self.sDst, "s6"))
        b.append(salu("s_lshr_b32", "s6", "s4", 4))
        b.append(salu("s_lshr_b32", "s5", "s5", 2))
        b.append(salu("s_xor_b32", "s5", "s5", "s6"))
        b.append(salu("s_bfe_u32", "s6", "s4", "0x10001"))
        b.append(salu("s_lshl_b32", "s3", "s5", 1))
        b.append(salu("s_add_u32", "s3", "s3", "s6"))
        b.append(salu("s_lshl_b32", "s3", "s3", 16))
        b.append(salu("s_add_u32", self.sDst, self.sDst, "s3"))
        b.append(salu("s_bfe_u32", "s4", "s4", "0x20002"))
        b.append(salu("s_xor_b32", "s5", "s5", "s6"))
        b.append(salu("s_lshr_b32", "s3", self.sWave, 1))
        b.append(salu("s_lshl_b32", "s3", "s3", 4))
        if o.revb:
            assert not o.tail4 and not o.w0prep
            b += [salu("s_lshr_b32", "s6", self.sWave, 1), salu("s_mul_i32", "s6", "s6", 3), salu("s_xor_b32", "s6", "s6", "s4"),
                  salu("s_lshl_b32", "s6", "s6", 2)]
        else:
            b.append(salu("s_lshl_b32", "s6", "s4", 2))
        b.append(salu("s_add_u32", "s3", "s3", "s6"))
        b.append(salu("s_and_b32", "s6", self.sWave, 1))
        b.append(salu("s_lshl_b32", "s6", "s6", 1))
        b.append(salu("s_add_u32", "s3", "s3", "s6"))
        b.append(salu("s_lshl_b32", "s4", "s4", 3))
        b.append(salu("s_lshl_b32", "s6", self.sWave, 1))
        b.append(salu("s_add_u32", "s4", "s4", "s6"))
        b.append(salu("s_cmp_eq_u32", "s5", 0))
        b.append(salu("s_cselect_b32", "s3", "s3", "s4"))
        b.append(salu("s_lshl_b32", "s3", "s3", 11))
        b.append(salu("s_add_u32", self.sDst, self.sDst, "s3"))
        b.append(salu("s_lshl_b32", self.sStage, self.sWave, 11))
        b.append(salu("s_add_u32", self.sStage, self.sStage, LDS_STAGE))
        b.append(salu("s_lshl_b32", self.sBias, self.sWave, 9))
        b.append(salu("s_add_u32", self.sBias, self.sBias, LDS_BIAS))
        selfw = o.early == 1 and o.selfw
        later = []
        if selfw and o.lean:
            need = {self.sRaw, self.sStage, self.sLds, self.sRow, "s7", self.vL, self.sWave}
            i0 = next(i for i, x in enumerate(b) if x.text.startswith("v_lshrrev_b32 v11, 7, v0"))
            rest = b[i0:]
            del b[i0:]
            keep = [False] * len(rest)
            live = set(need)
            for i in range(len(rest) - 1, -1, -1):
                if rest[i].wr & live:
                    keep[i] = True
                    live = (live - rest[i].wr) | rest[i].rd
            front = [I(x.text, x.kind, rd=(), wr=()) for x, k in zip(rest, keep) if k]
            for f, x in zip(front, [x for x, k in zip(rest, keep) if k]):
                f.rd, f.wr = set(x.rd), set(x.wr)
            b += front
            later = [x for x in rest if not (x.wr & (need - {"s7"}))]
        pl = [] if o.w0prep else self.prep_load()
        npre = next((i for i, x in enumerate(pl) if x.kind == "vld"), 0)
        if selfw:
            b += self.selfw_setup()
        b += pl[:npre] + srd(40, "s58", "s59", NL * D * D * 2)[2:]
        b.append(Wait(all_lg=True))
        b += self.stamp("kernarg")
        b += srd(40, "s58", "s59", NL * D * D * 2)[:2]

        def only(ins, w0):
            n = self.nseg = getattr(self, "nseg", 0) + 1
            for x in ins:
                x.note = "gy" if w0 else "gx"
            return [salu("s_cmp_eq_u32", self.sWave, 0), raw(f"s_cbranch_scc{0 if w0 else 1} Lseg{n}", "branch")] + \
                ins + [Label(f"Lseg{n}")]

        if o.w0prep:
            t0, t1 = self.t[0], self.t[1]
            r = [valu("v_lshrrev_b32", t0, 6, vL), valu("v_and_b32", t1, 48, vL), valu("v_lshl_add_u32", t0, t0, 11, t1)]
            for q in range(4):
                r += [raw(f"s_mov_b32 m0, {LDS_STAGE + q * 2048}", "salu"), salu("s_add_u32", "s3", self.sRaw, q * 64),
                      dma(t0, self.sR, "s3", 0, o.rflags, f"raw{q}"),
                      salu("s_add_u32", "s3", self.sRaw, q * 64 + 32768 - 1024),
                      dma(t0, self.sR, "s3", 1024, o.rflags, f"raw{q}")]
            b += only(r, True)
            b.append(salu("s_add_u32", self.sRaw, self.sRaw, D * D * 2))
        else:
            b += pl[npre:]
        if selfw:
            b += self.rawdma(0, o.selfp[0])
        b += later
        b += srd(20, "s60", "s61", NL * D * 2)
        tb = 32
        b.append(salu("s_lshl_b32", "s3", "s7", 10))
        for m in range(3):
            b.append(bload(R("v", tb + 2 * m, 2), "v30", self.sB, "s3", w="dwordx2"))
            b.append(salu("s_add_u32", "s3", "s3", 4096))
        if o.jitter:
            b += [raw("s_memrealtime s[100:101]"), raw("s_waitcnt lgkmcnt(0)"), raw("s_lshl_b32 s23, s2, 2"),
                  raw(f"s_add_u32 s23, s23, {self.sWave}"), raw("s_mul_i32 s23, s23, 0x9e3779b1"), raw("s_add_u32 s23, s23, s100")]
        if o.init:
            b.append(salu("s_mov_b32", "s23", o.init))
        b += srd(8, "s56", "s57", NB * D * 2)
        b += srd(16, "s62", "s63", NB * D * 2)
        b += srd(12, "s66", "s67", NL * D * D * 2)
        b += srd(32, "s66", "s67", 0 if o.gather else 256 * MB)
        b += srd(44, "s64", "s65", 256)
        b += [salu("s_add_u32", self.sWoff, self.sWoff, 4096), salu("s_add_u32", "s70", "s66", self.sWoff),
              salu("s_addc_u32", "s71", "s67", 0), salu("s_sub_u32", self.sWoff, self.sWoff, 4096)]
        if o.tail4:
            b += [salu("s_and_b32", "s24", self.sWave, 1), salu("s_mul_i32", "s24", "s24", 6 * 2048),
                  salu("s_bfe_u32", "s3", "s2", "0x20005"), salu("s_lshl_b32", "s3", "s3", 12),
                  salu("s_sub_u32", "s24", "s24", "s3"),
                  salu("s_lshr_b32", "s3", "s2", 7), salu("s_lshr_b32", "s6", "s2", 2), salu("s_xor_b32", "s3", "s3", "s6"),
                  salu("s_lshr_b32", "s6", "s2", 4), salu("s_and_b32", "s3", "s3", "s6"), salu("s_bitcmp1_b32", "s3", 0),
                  salu("s_cselect_b32", "s24", "s24", 0)]
        b.append(salu("s_and_b32", "s3", "s2", 3))
        b.append(salu("s_lshl_b32", "s3", "s3", 6))
        b += srd_off(56, "s44", "s45", "s3", 4)
        b.append(salu("s_lshl_b32", "s3", "s2", 2))
        b.append(salu("s_add_u32", "s3", "s3", self.sWave))
        b.append(salu("s_lshl_b32", "s3", "s3", 7))
        b.append(salu("s_add_u32", "s3", "s3", WS_FLAGS))
        b += srd_off(60, "s32", "s33", "s3", 4)
        b.append(salu("s_xor_b32", "s3", "s3", 512))
        b += srd_off(64, "s32", "s33", "s3", 4)
        if o.delay:
            for _ in range(o.delay):
                b.append(raw("s_sleep 127"))
        if o.touch:
            for l in range(6):
                b.append(salu("s_add_u32", "s3", self.sXs, l * 32 * MB))
                if o.touch == 1:
                    b.append(bload(f"v{60 + l}", self.vXw, self.sE, "s3", w="dword"))
                else:
                    b.append(bstore(f"v{60 + l}", self.vXw, self.sE, "s3", w="dword", flags=" sc1"))
            b.append(Wait(all_vm=True))
        def x0dma(lo, hi):
            r = []
            for i in range(lo, hi):
                r.append(raw(f"s_add_u32 m0, {self.sLds}, {i * 1024}", "salu"))
                r.append(salu("s_add_u32", "s3", self.sRow, i * 8192))
                r.append(dma(f"v{20 + (i & 3)}", self.sX, "s3", 0, o.xflags, f"x0_{i >> 2}"))
            return r

        def x0fix(bt):
            r = [Wait(vm=[f"x0_{bt}"])]
            for kbl in range(4):
                r.append(dsread(self.x0reg(kbl, bt), f"v{24 + kbl}", bt * 4096))
            r.append(Wait(all_lg=True))
            for kbl in range(4):
                r.append(dswrite(self.vXw, self.x0reg(kbl, bt), bt * 4096 + kbl * 1024))
            if o.apub:
                r += self.x0pub_stream(0, 2 * bt, 2 * bt + 2)
            return r

        def accinit(pred):
            r = []
            for p in range(2):
                for i in range(128):
                    a = self.acc(p, i)
                    if pred(a):
                        r.append(valu("v_accvgpr_write_b32" if a[0] == "a" else "v_mov_b32", a, self.init))
            return r

        if o.early == 1 and o.selfw:
            return b + self.prologue_self(accinit, tb)
        if o.early == 1:
            return b + self.prologue_early(accinit, tb)
        late = lambda a: a[0] == "v" and 32 <= int(a[1:]) < 72
        final = lambda a: a[0] == "v" and int(a[1:]) < 32
        na, nb, ahead, npoll = o.x0split

        def biascvt():
            r = []
            for m in range(3):
                r.append(Wait(vm=[R("v", tb + 2 * m, 2)]))
                for j in range(2):
                    src = f"v{tb + 2 * m + j}"
                    r.append(valu("v_lshlrev_b32", f"v{40 + 4 * m + 2 * j}", 16, src))
                    r.append(valu("v_and_b32", f"v{41 + 4 * m + 2 * j}", self.sMask, src))
                r.append(dswrite("v31", R("v", 40 + 4 * m, 4), m * 4096))
            return r + [Wait(all_lg=True)]

        if o.w0prep:
            t0, t1, t2 = self.t
            r = [valu("v_lshlrev_b32", t1, 3, vL), valu("v_mov_b32", t2, 0), salu("s_mov_b32", "s62", 512),
                 tagged(bstore(t2, t1, self.sFm, 0, w="dword", flags=" sc1"), "pst"), salu("s_mov_b32", "s62", 4)]
            b += only(r, True)
            b += only(x0dma(0, nb), False)
            b += accinit(lambda a: not late(a) and not final(a))
            r = [valu("v_and_b32", t0, 0x300, vL), valu("v_add3_u32", t0, t0, vL, self.sStage)]
            qs = [8, 40, 48, 64]
            for q in range(4):
                r.append(Wait(vm=[f"raw{q}"]))
                for t in range(2):
                    for h in range(2):
                        d = R("v", qs[q] + 4 * t + 2 * h, 2)
                        r.append(I(f"ds_read_b64_tr_b16 {d}, {t0} offset:{q * 2048 + h * 256 + t * 8}", "dsr", rd=[t0], wr=[d]))
            for q in range(4):
                r += [salu("s_cmp_eq_u32", "s5", 0),
                      salu("s_cselect_b32", "s3", ((q >> 1) * 16 + 2 * (q & 1)) * 2048, "s6") if q > 1 else
                      salu("s_mov_b32", "s3", 2 * q * 2048),
                      salu("s_add_u32", "s3", "s3", self.sDst), salu("s_mov_b32", "s6", 2 * (q + 1) * 2048)]
                for t in range(2):
                    r.append(Wait(lg=[R("v", qs[q] + 4 * t, 4)]))
                    r.append(tagged(bstore(R("v", qs[q] + 4 * t, 4), vL, self.sW, "s3", t * 2048, flags=" sc1"), "pst"))
            r += x0dma(0, na) + [Wait(vm=["pst"])] + self.wsignal() + x0dma(na, nb)
            b += only(r, True)
            b.append(salu("s_add_u32", self.sDst, self.sDst, D * D * 2))
            b += self.stamp("signalled")
            b += biascvt() + accinit(late)
        else:
            b.append(valu("v_mov_b32", self.t[2], 0))
            b.append(tagged(bstore(self.t[2], vL, self.sFm, 0, w="dword", flags=" sc1"), "pst"))
            b += x0dma(0, na)
            b += accinit(lambda a: not late(a) and not final(a))
            b += self.prep_store()
            b += self.stamp("stores_issued")
            b += x0dma(na, nb)
            b += biascvt() + accinit(late)
            b += [Wait(vm=["pst"]), barrier()] + self.wsignal()
            b += self.stamp("signalled")
        def wring():
            r = []
            for s in [x for x in range(128) if self.site[x] < 0]:
                r += [self.wload(s, 1), self.wload(s, 0)] + self.wstep(s)
            return r

        def path(name, nb2, npoll, stamps):
            st = self.stamp if stamps else (lambda n: [])
            r = x0dma(nb, nb2)
            issued = max(nb, nb2)
            checked = False
            poll_before = None
            for bt in range(8):
                want = min(32, 4 * (bt + 1 + ahead))
                if bt == npoll:
                    r += self.wpoll_load()
                    poll_before = (issued + 3) // 4 if npoll else 0
                if want > issued and (npoll or checked):
                    r += x0dma(issued, want)
                    issued = want
                if poll_before is not None and not checked and bt >= poll_before:
                    r += st("x0_part")
                    r += self.poll_check(name, self.sNeed, 64, self.wpoll_load)
                    r += st("flag_seen")
                    checked = True
                    if npoll:
                        r += x0dma(issued, 32) + wring()
                        issued = 32
                    else:
                        r += wring() + x0dma(issued, want)
                        issued = max(issued, want)
                r += x0fix(bt)
            assert checked and issued == 32
            return r

        if o.stagger < 0:
            b += path("pro", nb, npoll, True)
        else:
            px = path("prox", nb, npoll, True)
            n0 = self.stampn
            self.stampn -= 2 if o.stamps and not o.pstamps else 0
            self.names = self.names[:self.stampn]
            py = path("proy", o.ynb, 0, True)
            assert self.stampn == n0
            for x in px:
                x.note = "gx"
            for x in py:
                x.note = "gy"
            b += [salu("s_bitcmp1_b32", "s2", o.stagger), raw("s_cbranch_scc1 Lgy", "branch")]
            b += px + [raw("s_branch Lgjoin", "branch"), Label("Lgy")] + py + [Label("Lgjoin")]
        b += accinit(final)
        if o.gather:
            b += [salu("s_xor_b32", self.sXl, self.sRow, 1024), salu("s_mov_b32", "s20", 64),
                  salu("s_mov_b32", "s21", 32768 - 64), salu("s_mov_b32", "s22", hex((128 - 64 - 7 * 32768) & 0xffffffff))]
        b += [Wait(all_lg=True), barrier()]
        for j in range(8):
            for i in range(2):
                b.append(self.xread(j, i ^ (j & 1), 0, 0))
        b.append(Wait(lg=[self.xf(j, c) for j in range(o.xw) for c in range(2)], vm=[self.wslot(0, 0), self.wslot(0, 1)]))
        if o.desync:
            b += [raw("s_lshr_b32 s3, s2, 1"), raw("s_and_b32 s3, s3, 15"), Label("Lds"), raw(f"s_sleep {o.desync}"),
                  raw("s_sub_u32 s3, s3, 1"), raw("s_cbranch_scc0 Lds")]
        b += self.stamp("pro_done")
        return b

    def selfw_setup(self):
        t0, t1, vL = self.t[0], self.t[1], self.vL
        return [valu("v_lshrrev_b32", t0, 2, vL), valu("v_and_b32", t0, 0x40, t0), valu("v_xor_b32", t0, t0, vL),
                valu("v_and_b32", t0, 0x70, t0), valu("v_lshrrev_b32", t1, 7, vL), valu("v_lshl_add_u32", "v23", t1, 11, t0),
                salu("s_and_b32", "s69", self.sRow, 2047), salu("s_lshl_b32", "s3", "s7", 20),
                salu("s_add_u32", "s69", "s69", "s3")]

    def rawdma(self, lo, hi):
        r = []
        for n in range(lo, min(hi, 4 * self.o.nself)):
            p, i = n >> 2, n & 3
            r.append(raw(f"s_add_u32 m0, {self.sLds}, {(2 * (p & 3) + (i >> 1)) * 4096 + (p >> 2) * 2048 + (i & 1) * 1024}", "salu"))
            r.append(salu("s_add_u32", "s3", "s69", (128 * (p >> 1) + 32 * (p & 1) + 8 * i) * 2048))
            r.append(dma("v23", self.sR, "s3", 0, "", f"sw{p}"))
        return r

    def prologue_self(self, accinit, tb):
        o = self.o
        vL = self.vL
        t0, t1 = self.t[0], self.t[1]
        b = []
        vG, vS, vR, vT = "v20", ["v21", "v22"], "v23", ["v24", "v25"]
        wbuf = set(r for s in range(16 - self.NS) for c in range(2) for r in regs(self.wreg0(s, c)))
        late = lambda a: a[0] == "v" and 32 <= int(a[1:]) < 64
        final = lambda a: a[0] == "v" and int(a[1:]) < 32
        ns1, psig, na, nB0, lead = o.selfp
        rawdma = self.rawdma

        def trans(p):
            if p >= o.nself:
                return []
            r = [Wait(vm=[f"sw{p}"])]
            for nt in range(4):
                d = int(regs(self.wreg0((p >> 1) * 4 + nt, p & 1))[0][1:])
                k = self.wreg0((p >> 1) * 4 + nt, p & 1)[0]
                for h in range(2):
                    dd = R(k, d + 2 * h, 2)
                    r.append(I(f"ds_read_b64_tr_b16 {dd}, {vT[nt >> 1]} offset:{(p & 3) * 8192 + (p >> 2) * 2048 + h * 512 + (nt & 1) * 8}", "dsr",
                               rd=[vT[nt >> 1]], wr=[dd]))
            return r

        b.append(valu("v_mov_b32", self.t[2], 0))
        b.append(tagged(bstore(self.t[2], vL, self.sFm, 0, w="dword", flags=" sc1"), "pst"))
        b += self.calc_vG(vG) + self.calc_vS(vS)
        b += [valu("v_lshrrev_b32", t0, 1, vL), valu("v_and_b32", t0, 0x40, t0), valu("v_and_b32", t1, 0x30, vL),
              valu("v_or_b32", t0, t0, t1), valu("v_and_b32", t1, 0xc0, vL), valu("v_lshl_add_u32", t0, t1, 1, t0),
              valu("v_and_b32", t1, 0x100, vL), valu("v_lshl_add_u32", t0, t1, 2, t0),
              valu("v_and_b32", t1, 0x200, vL), valu("v_lshl_add_u32", t0, t1, 3, t0),
              valu("v_add_u32", vT[0], self.sLds, t0), valu("v_xor_b32", vT[1], 64, vT[0])]
        b += accinit(lambda a: not late(a) and not final(a) and a not in wbuf)
        b += self.prep_store()
        ns2 = max(ns1, o.ns2)
        b += rawdma(ns1, ns2)
        b += self.stamp("stores_issued")
        for m in range(3):
            b.append(Wait(vm=[R("v", tb + 2 * m, 2)]))
            for j in range(2):
                src = f"v{tb + 2 * m + j}"
                b.append(valu("v_lshlrev_b32", f"v{40 + 4 * m + 2 * j}", 16, src))
                b.append(valu("v_and_b32", f"v{41 + 4 * m + 2 * j}", self.sMask, src))
            b.append(dswrite("v31", R("v", 40 + 4 * m, 4), m * 4096))
        b.append(Wait(all_lg=True))
        b += accinit(late)
        issued = 0
        pdone = lambda p: [self.wreg0((p >> 1) * 4 + nt, p & 1) for nt in range(4)]
        assert ns2 >= 16 and psig <= ns2 // 4
        nearly = 8 if not o.rawlate else ns2 // 4
        for p in range(nearly + 1):
            if p == psig:
                b += [Wait(vm=["pst"]), barrier()] + self.wsignal()
                b += self.stamp("signalled")
                if not o.rawlate:
                    b += rawdma(ns2, 32)
            if p < nearly and (p < 4 or p < psig):
                b += trans(p)
            if p:
                want = min(16, 4 * p) if p > psig else min(4 * p, na)
                if want > issued:
                    b.append(Wait(lg=pdone(min(p - 1, 3))))
                    b += self.x0h_dma(0, issued, want, vG)
                    issued = want
            if p >= 4 and p >= psig:
                break
        b.append(Wait(lg=pdone(3)))
        b += self.x0h_dma(0, issued, 16, vG)
        if o.rawlate:
            b += rawdma(ns2, 32)
        for p in range(max(4, psig), nearly):
            b += trans(p)
        lateT = [x for p in range(max(nearly, psig), 8) for x in trans(p)]
        b += self.stamp("x0A_issued")
        nB = 0
        polled = False
        for bt in range(min(0, -lead), 9):
            want = min(16, 2 * (bt + lead + 1)) if bt < 8 else (o.nb_pro if o.nb_pro else 16)
            if nB < want and nB == 0:
                b += lateT + [Wait(all_lg=True)]
                lateT = []
            while nB < want:
                if nB == nB0:
                    b += self.wpoll_load()
                    polled = True
                b += self.x0h_dma(1, nB, nB + 1, vG)
                nB += 1
            if 0 <= bt < 8:
                b += self.x0h_read(0, bt, vS)
            if 0 < bt < 8:
                b += self.x0h_write(0, bt - 1)
            if bt == 7:
                b += self.x0h_write(0, 7)
        b += lateT
        if not polled:
            b += self.wpoll_load()
        self.nB_done = nB
        b.append(valu("v_mov_b32", "v8", vG))
        b += self.stamp("x0_part")
        if o.wdma:
            b.append(raw(f"s_mov_b32 m0, {LDS_TOTAL + 4096}", "salu"))
        b += accinit(final)
        b += [I(f"s_add_u32 s70, s70, {4096 * o.nself}\n s_addc_u32 s71, s71, 0", "salu", rd=["s[70:71]"], wr=["s[70:71]"]),
              salu("s_xor_b32", self.sXl, self.sRow, 1024), salu("s_mov_b32", "s20", 64),
              salu("s_mov_b32", "s21", 32768 - 64), salu("s_mov_b32", "s22", hex((128 - 64 - 7 * 32768) & 0xffffffff))]
        b += [Wait(all_lg=True), barrier()]
        b += [self.xread(j, i ^ (j & 1), 0, 0) for j in range(8) for i in range(2)]
        b.append(Wait(lg=[self.xf(j, c) for j in range(o.xw) for c in range(2)]))
        b += self.stamp("pro_done")
        return b

    def prologue_early(self, accinit, tb):
        o = self.o
        vL = self.vL
        b = []
        vG, vS = "v20", ["v21", "v22"]
        wbuf = set(r for s in range(16 - self.NS) for c in range(2) for r in regs(self.wreg0(s, c)))
        late = lambda a: a[0] == "v" and 32 <= int(a[1:]) < 64
        final = lambda a: a[0] == "v" and int(a[1:]) < 32
        na, nb, npoll, nB0 = o.x0split
        b.append(valu("v_mov_b32", self.t[2], 0))
        b.append(tagged(bstore(self.t[2], vL, self.sFm, 0, w="dword", flags=" sc1"), "pst"))
        b += self.calc_vG(vG) + self.calc_vS(vS)
        b += self.x0h_dma(0, 0, na, vG)
        b += accinit(lambda a: not late(a) and not final(a) and a not in wbuf)
        b += self.prep_store()
        b += self.stamp("stores_issued")
        b += self.x0h_dma(0, na, nb, vG)
        for m in range(3):
            b.append(Wait(vm=[R("v", tb + 2 * m, 2)]))
            for j in range(2):
                src = f"v{tb + 2 * m + j}"
                b.append(valu("v_lshlrev_b32", f"v{40 + 4 * m + 2 * j}", 16, src))
                b.append(valu("v_and_b32", f"v{41 + 4 * m + 2 * j}", self.sMask, src))
            b.append(dswrite("v31", R("v", 40 + 4 * m, 4), m * 4096))
        b.append(Wait(all_lg=True))
        b += accinit(late)
        b += [Wait(vm=["pst"]), barrier()] + self.wsignal()
        b += self.stamp("signalled")
        b += self.x0h_dma(0, nb, 16, vG)
        def only0(ins):
            if not o.poll0:
                return ins
            n = self.nseg = getattr(self, "nseg", 0) + 1
            for x in ins:
                x.note = "gy"
            return [salu("s_cmp_eq_u32", self.sWave, 0), raw(f"s_cbranch_scc0 Lseg{n}", "branch")] + ins + [Label(f"Lseg{n}")]

        for bt in range(8):
            if bt == npoll:
                b += only0(self.wpoll_load()) + self.x0h_dma(1, 0, nB0, vG)
            b += self.x0h_read(0, bt, vS)
            if bt:
                b += self.x0h_write(0, bt - 1)
        if npoll >= 8:
            b += only0(self.wpoll_load()) + self.x0h_dma(1, 0, nB0, vG)
        b += self.x0h_write(0, 7)
        b += self.stamp("x0_part")
        chk = self.poll_check("pro", self.sNeed, 64, self.wpoll_load)
        if o.poll0:
            b += only0(chk[:-1]) + chk[-1:]
            chk = []
        b += [Wait(all_lg=True), barrier()]
        xr = [self.xread(j, i ^ (j & 1), 0, 0) for j in range(8) for i in range(2)]
        if not o.poll0:
            b += xr + chk
            xr = []
        b += self.stamp("flag_seen")
        for s in range(16):
            b += [self.wload(s, 1, self.wreg0(s, 1)), self.wload(s, 0, self.wreg0(s, 0))]
            b += self.wstep(s)
            if s == 3:
                b += xr
        b += self.x0h_dma(1, nB0, max(nB0, o.nb_pro) if o.gather else 16, vG)
        b.append(valu("v_mov_b32", "v8", vG))
        b += accinit(final)
        if o.gather:
            b += [salu("s_xor_b32", self.sXl, self.sRow, 1024), salu("s_mov_b32", "s20", 64),
                  salu("s_mov_b32", "s21", 32768 - 64), salu("s_mov_b32", "s22", hex((128 - 64 - 7 * 32768) & 0xffffffff))]
        b.append(Wait(lg=[self.xf(j, c) for j in range(o.xw) for c in range(2)], vm=[self.wreg0(0, 0), self.wreg0(0, 1)]))
        b += self.stamp("pro_done")
        return b

    def build(self):
        o = self.o
        A, B, AB = [0, 1, 2, 3], [4, 5, 6, 7], list(range(8))
        e = (lambda s: []) if o.noepi else (lambda s: s)
        unit_end = lambda x: x.kind in ("vst", "dsw")
        safe_bias = lambda x: x.kind == "valu" and "add_f32" in x.text and not x.wr & set(self.t)
        pro = self.prologue()
        PL = o.pstamps - 1
        dA, dB = o.direct
        g0, g1, g2, g3 = o.sg
        ep = o.earlyprep
        if o.gather and o.early == 1:
            ini = []
            for s in range(16 - self.NS):
                ini.append(([valu("v_mov_b32", r, self.init) for c in range(2) for r in regs(self.wreg0(s, c))],
                            16 * s + 18, 16 * s + 30))
            nB1 = o.x0split[3]
            late = self.x0h_dma(1, max(nB1, o.nb_pro), 16, "v8")
            fx = []
            if o.selfw:
                late = self.x0h_dma(1, self.nB_done, 16, "v8")
                chk = self.poll_check("pro", self.sNeed, 64, self.wpoll_load)
                if o.nself < 8:
                    wl = []
                    for s in range(2 * o.nself, 16):
                        wl += [self.wload(s, 1, self.wreg0(s, 1)), self.wload(s, 0, self.wreg0(s, 0))] + self.wstep(s)
                    late = chk + wl + late
                else:
                    fx = [(self.site[16] * 16 + 2, chk)]
            s1a0 = self.phase(0, A, 0, 0, late, wreg=self.wreg0, skip_below=16, extra=ini, end=o.pub0_end, fixed=fx)
            s1a0 += self.stamp("s1a0")
            vS = [f"v{self.Q[0]}", f"v{self.Q[0] + 1}"]
            fix = self.calc_vS(vS)
            for bt in range(8):
                fix += self.x0h_read(1, bt, vS) + space(3)
                if bt:
                    fix += self.x0h_write(1, bt - 1)
            fix += space(4) + self.x0h_write(1, 7)
            s1a0 += self.phase(16, B, 0, 1, fix + self.calc_vB() + e(self.bias_stream(0)), bar=True,
                               pre_bar=[salu("s_add_u32", self.sPNeed, self.sPNeed, 1)])
            s1a0 += self.stamp("s1b0")
            if o.stamps:
                s1a0.append(raw(f"s_lshl_b32 {self.sSpin}, {self.sSpin}, 8"))
        elif o.gather:
            assert not o.early
            s1a0 = self.phase(0, A, 0, 0, []) + self.stamp("s1a0")
        elif o.early == 2:
            s1a0 = self.phase(0, A, 0, 0, self.x0pub_stream(0), end=o.pub0_end) + self.stamp("s1a0")
            st = insert_at(self.calc_vB() + e(self.bias_stream(0)), o.sig0_at, self.psignal(0), safe_bias)
            st = insert_at(st, o.poll0_at, self.ppoll_load(), safe_bias)
            if o.wsig2:
                st = st + self.prep_load()
            s1a0 += self.phase(16, B, 0, 1, st, bar=True, extra=[(self.x0pub_stream(1), 0, 230)],
                               pre_bar=self.poll_check("pa0", self.sPNeed, 1, self.ppoll_load))
            s1a0 += self.stamp("s1b0")
        elif o.early:
            ini = []
            for s in range(16 - self.NS):
                ini.append(([valu("v_mov_b32", r, self.init) for c in range(2) for r in regs(self.wreg0(s, c))],
                            16 * s + 18, 16 * s + 30))
            s1a0 = self.phase(0, A, 0, 0, self.x0pub_stream(0), wreg=self.wreg0, skip_below=16, extra=ini,
                              end=o.pub0_end) + self.stamp("s1a0")
            vS = [f"v{self.Q[0]}", f"v{self.Q[0] + 1}"]
            fix = self.calc_vS(vS)
            for bt in range(8):
                fix += self.x0h_read(1, bt, vS)
                if bt:
                    fix += self.x0h_write(1, bt - 1) + self.x0pub_stream(1, 2 * bt - 2, 2 * bt)
                if bt == 1:
                    fix += self.psignal(0)
            fix += self.x0h_write(1, 7) + self.x0pub_stream(1, 14, 16)
            st = insert_at(self.calc_vB() + e(self.bias_stream(0)), 0.6, self.ppoll_load(), safe_bias)
            s1a0 += self.phase(16, B, 0, 1, fix + st, bar=True,
                               pre_bar=self.poll_check("pa0", self.sPNeed, 1, self.ppoll_load))
            s1a0 += self.stamp("s1b0")
        else:
            s1a0 = self.phase(0, A, 0, 0, (self.prep_load() if ep else []) + self.x0pub_stream(0) +
                              self.x0pub_stream(1, 0, dB) + (self.psignal(0) if dA == 16 else [])) + self.stamp("s1a0")
        lp = o.lateprep
        st = (self.prep_store() if ep else [] if lp else self.prep_load()) + self.calc_vB() + e(
            self.bias_stream(0, one=self.small and dB < 16))
        if o.wsig2:
            st = st + self.prep_load()
        if dA < 16:
            st = insert_at(st, o.siga2_at, self.psignal(0), safe_bias)
        if dB == 16 and not o.early:
            st = insert_at(st, o.sigb_at, self.psignal(1), safe_bias)
        fx2 = [(o.pollb_gap, self.ppoll_load()), (g3 + 1 if o.db2 else 1, self.xnext(self.sXs, 0))]
        if dB < 16 or o.early:
            fx2.append((g3, self.psignal(1)))
        if g0 < 0:
            st = insert_at(st, o.polla_at, self.ppoll_load(), safe_bias)
            pb1 = self.poll_check("pa", self.sPNeed, 1, self.ppoll_load)
            g1 = -1
        else:
            assert not o.early
            pb1 = []
            fx2 += [(g0, self.ppoll_load()), (g1, self.poll_check("pa", self.sPNeed, 1, self.ppoll_load))]
        if ep:
            pb1 = [Wait(vm=["pst"])] + pb1
            fx2.append((3, self.wsignal()))
        s1b = [Label("Ls1b")] + self.phase(16, B, 0, 1, st, bar=True, pre_bar=pb1, end=o.bias_end or None,
                                            extra=[(self.pub_stream(1, dB, 16 - o.db2), 0, 232)])
        s2 = self.phase(32, AB, 1, 0, self.xch_dma(0) + ([] if ep or lp else self.prep_store()), bar=True, start=max(g1 + 1, o.dma_start), end=g2, fixed=fx2,
                        post_bar=self.xr_gathered(),
                        extra=[(self.prep_store(10) if o.wsig2 else self.prep_load() if lp else [], lp, lp + (30 if o.wsig2 else 12)),
                               (self.pub_guard(self.pub_stream(1, 16 - o.db2, 16)), 2, max(3, g3 - 40))],
                        pre_bar=[Wait(vm=["xl0", "pst"] if o.wsig2 else ["xl0"])] + self.poll_check("pb", self.sPNeed, 1, self.ppoll_load))
        s3 = self.phase(64, AB, 0, 1, self.xch_dma(1), bar=True, end=o.dma_end, pre_bar=[Wait(vm=["xl1", "pst"])],
                        extra=[(self.wsignal(), 2, 6)] if o.wsig2 else
                        [(self.prep_store(10) if lp else [], o.preps_at, o.preps_at + 30)])
        s1b[1:1] = self.lstamp("pre", PL) if PL > 0 else []
        s1b += self.lstamp("s1b", PL)
        s2 += self.lstamp("s2", PL)
        s3 += self.lstamp("s3", PL)
        if o.tail4:
            s3 += [salu("s_cmp_eq_u32", self.sL, NL - 1), raw("s_cbranch_scc1 Llast", "branch")]
        preA = [2 * i for i in range(o.prea)]
        restA = [u for u in range(16) if u not in preA]
        s4a = self.phase(96, A, 1, 1, ([] if ep or o.wsig2 else self.wsignal()) + (self.calc_vB() if self.small else []) + e(self.bias_stream(1)),
                         end=220 if preA else (o.bias_end or None),
                         extra=[(e(self.epi_stream(0, 0, units=preA)), 256 - 30, 256)])
        if o.gather:
            s4a += self.xch_switch()
        s4a += self.lstamp("s4a", PL)
        s4a += [salu("s_add_u32", self.sBias, self.sBias, 2048), salu("s_add_u32", self.sL, self.sL, 1)]
        if not o.tail4:
            s4a += [salu("s_cmp_eq_u32", self.sL, NL), raw("s_cbranch_scc1 Llast", "branch")]
        st = insert_at(e(self.epi_stream(0, dA, units=restA)), o.pollw_at, self.wpoll_load(), unit_end)
        chk = (self.site[128] - 112) * 16 + 2
        s4b = self.phase(112, B, 1, 0, st, bar=True, post_bar=self.xr_plain(),
                         fixed=[(chk, self.poll_check("w", self.sNeed, 64, self.wpoll_load))])
        s4b += self.lstamp("s4b", PL + 1)
        st = e(self.epi_stream(1, dB, one=self.small and dA < 16))
        if dA == 16:
            st = insert_at(st, o.siga_at, self.psignal(0), unit_end)
        if ep:
            st = insert_at(st, o.prepl_at, self.prep_load(), unit_end)
        s1a = self.phase(0, A, 0, 0, st, extra=[(self.pub_stream(0, dA, 16, restA + preA), 0, o.puba_end)])
        if o.stamps:
            s1a += [raw(f"s_cmp_eq_u32 s25, {max(1, o.pstamps)}"), raw("s_cbranch_scc0 Lnostamp")] + self.stamp("layer1") + [
                raw("s_memrealtime s[4:5]"), Label("Lnostamp")]
        if o.early:
            assert lp
            s2 = [Label("Lloop")] + s2
            s1b += [raw("s_branch Lloop", "branch")]
        else:
            s1a += [raw("s_branch Ls1b", "branch")]
        s4bl = [Label("Llast")] + self.stamp("4.75layers") + ([raw("s_memrealtime s[6:7]")] if o.stamps else [])
        if o.tail4:
            s4bl += self.phase(96, [0, 1], 1, 1, self.calc_vB() + self.bias_stream(1), last=True)
            s4bl += self.phase(104, [2, 3], 1, 1, self.out_stream4(0), last=True)
            s4bl += self.phase(112, [4, 5], 1, 1, self.out_stream4(1), last=True)
            s4bl += self.phase(120, [6, 7], 1, None, self.out_stream4(2), last=True)
            tail = self.stamp("s4b_last") + [nop(7)] + self.out_stream4(3)
        else:
            s4bl += self.phase(112, B, 1, None, self.out_stream(0), last=True)
            tail = self.stamp("s4b_last") + [nop(7)] + [x for x in self.out_stream(1) if x.kind != "space"]
        if o.stamps:
            tail += self.stamp("tail_issued")
            tail += [Wait(all_vm=True)]
            tail += self.stamp("tail_drained")
            tail.append(raw("s_memrealtime s[38:39]"))
            tail.append(raw("s_waitcnt lgkmcnt(0)"))
            tail.append(raw("v_cmp_eq_u32 vcc, 0, v0"))
            tail.append(raw("s_and_saveexec_b64 s[68:69], vcc"))
            tail.append(raw("s_cbranch_execz Lend"))
            if o.dbgout >= 0:
                tail += [raw(f"s_cmp_lg_u32 s2, {o.dbgout}"), raw("s_cbranch_scc1 Lend"), raw("v_mov_b32 v1, 0")]
                tail += [raw("s_sub_u32 s3, s38, s36"), raw("v_mov_b32 v2, s3"),
                         raw("buffer_store_dword v2, v1, s[44:47], 0 offen offset:4"),
                         raw("s_sub_u32 s3, s6, s4"), raw("v_mov_b32 v2, s3"),
                         raw("buffer_store_dword v2, v1, s[44:47], 0 offen offset:8"),
                         raw("v_mov_b32 v2, s53"), raw("buffer_store_dword v2, v1, s[44:47], 0 offen offset:12")]
                for n in range(1, min(self.stampn, 13)):
                    tail += [raw(f"s_sub_u32 s3, s{72 + 2 * n}, s{70 + 2 * n}"), raw("v_mov_b32 v2, s3"),
                             raw(f"buffer_store_dword v2, v1, s[44:47], 0 offen offset:{12 + 4 * n}")]
            else:
                tail.append(raw("s_lshl_b32 s3, s2, 8"))
                tail.append(raw(f"s_add_u32 s3, s3, {WS_STAMP}"))
                tail.append(raw("v_mov_b32 v1, 0"))
                for n, i in enumerate(list(range(36, 40)) + list(range(72, 102)) + [4, 5, 6, 7, 53]):
                    tail.append(raw(f"v_mov_b32 v2, s{i}"))
                    tail.append(raw(f"buffer_store_dword v2, v1, s[32:35], s3 offen offset:{n * 4}"))
        tail += [Label("Lend"), raw("s_endpgm")]
        rest = s1a0 + ([] if o.early else s1b)
        for l in range(NL - 1):
            rest = rest + s2 + s3 + s4a + s4b + s1a + s1b
        rest = rest + s2 + s3 + ([] if o.tail4 else s4a) + s4bl + tail
        traces = [[x for x in pro if x.note != skip] + rest for skip in ("gx", "gy")]
        for tr in traces:
            resolve_waits(tr)
        for tr in traces:
            errs, mv, ml = check(tr)
            if errs and not o.now and o.slots <= 6:
                for x in errs[:20]:
                    print(x, file=sys.stderr)
                raise SystemExit("hazard/dependency errors")
        if o.early:
            prog = pro + s1a0 + s2 + s3 + s4a + s4b + s1a + s1b + s4bl + tail + self.ool + [Label("Lcend")]
        else:
            prog = pro + s1a0 + s1b + s2 + s3 + s4a + s4b + s1a + s4bl + tail + self.ool + [Label("Lcend")]
        txt = f".globl {KNAME}\n.p2align 8\n.type {KNAME},@function\n{KNAME}:\n" + emit(prog) + "\n"
        if self.names:
            txt = "; stamps: " + " ".join(self.names) + "\n" + txt
        return txt, kd(KNAME, 512, 102, 256)


def main():
    ap = argparse.ArgumentParser()
    ap.add_argument("-o", default="standalone__cross_network_dcn__recsys.s")
    ap.add_argument("--slots", type=int, default=6)
    ap.add_argument("--wflags", default="sc1")
    ap.add_argument("--xflags", default="")
    ap.add_argument("--oflags", default="nt")
    ap.add_argument("--rflags", default="")
    ap.add_argument("--xsflags", default="sc1")
    ap.add_argument("--xlflags", default="")
    ap.add_argument("--bar_lead", type=int, default=6)
    ap.add_argument("--xw", type=int, default=4)
    ap.add_argument("--x0split", type=int, nargs=4, default=[4, 4, 8, 0])
    ap.add_argument("--sigb_at", type=float, default=0.45)
    ap.add_argument("--polla_at", type=float, default=0.85)
    ap.add_argument("--siga_at", type=float, default=0.45)
    ap.add_argument("--pollw_at", type=float, default=0.3)
    ap.add_argument("--pollb_gap", type=int, default=386)
    ap.add_argument("--dma_end", type=int, default=440)
    ap.add_argument("--stamps", action="store_true")
    ap.add_argument("--lean", type=int, default=1)
    ap.add_argument("--wdma", type=int, default=0, help="diagnostic")
    ap.add_argument("--pair8", type=int, default=0, help="diagnostic")
    ap.add_argument("--dma_start", type=int, default=0)
    ap.add_argument("--prea", type=int, default=0)
    ap.add_argument("--db2", type=int, default=4, help="B units published in S2")
    ap.add_argument("--revb", type=int, default=1)
    ap.add_argument("--jitter", type=int, default=0, help="diagnostic: probability/256 of a delay per phase")
    ap.add_argument("--init", default="", help="accumulator start value (hex float bits)")
    ap.add_argument("--tail4", type=int, default=0)
    ap.add_argument("--nself", type=int, default=8)
    ap.add_argument("--rawlate", type=int, default=0)
    ap.add_argument("--ns2", type=int, default=24)
    ap.add_argument("--selfw", type=int, default=1)
    ap.add_argument("--selfp", type=int, nargs=5, default=[16, 4, 8, 0, -7],
                    help="raw DMAs before the prep stores, piece before which to signal, x0A DMAs before the signal, x0B DMAs before the poll, x0B lead")
    ap.add_argument("--wbunch", type=int, default=1)
    ap.add_argument("--bias_end", type=int, default=0)
    ap.add_argument("--quadg", type=int, default=1)
    ap.add_argument("--dmagroup", type=int, default=1)
    ap.add_argument("--poll0", type=int, default=1)
    ap.add_argument("--nox", action="store_true", help="diagnostic")
    ap.add_argument("--nost", action="store_true", help="diagnostic")
    ap.add_argument("--nodma", action="store_true", help="diagnostic")
    ap.add_argument("--nobias", action="store_true", help="diagnostic")
    ap.add_argument("--shift", type=int, default=0)
    ap.add_argument("--cpfsplit", type=int, default=1)
    ap.add_argument("--backoff", type=int, default=0)
    ap.add_argument("--w0prep", type=int, default=0)
    ap.add_argument("--nb_pro", type=int, default=6, help="early mode: x0 B-half DMAs issued before the first MFMA")
    ap.add_argument("--dmapair", type=int, default=10)
    ap.add_argument("--dbgout", type=int, default=-1)
    ap.add_argument("--tailpk", type=int, default=1)
    ap.add_argument("--gather", type=int, default=1)
    ap.add_argument("--wsig2", type=int, default=0)
    ap.add_argument("--stagger", type=int, default=-1, help="workgroup-id bit selecting the late group")
    ap.add_argument("--ynb", type=int, default=4)
    ap.add_argument("--sig0_at", type=float, default=0.1)
    ap.add_argument("--poll0_at", type=float, default=0.7)
    ap.add_argument("--verbose", action="store_true")
    ap.add_argument("--gload", type=int, default=1)
    ap.add_argument("--pace", type=float, default=0.1)
    ap.add_argument("--early", type=int, default=1)
    ap.add_argument("--pub0_end", type=int, default=40)
    ap.add_argument("--earlyprep", type=int, default=0)
    ap.add_argument("--lateprep", type=int, default=400)
    ap.add_argument("--preps_at", type=int, default=330)
    ap.add_argument("--prepl_at", type=float, default=0.1)
    ap.add_argument("--wdelay", type=int, default=2)
    ap.add_argument("--short_at", type=int, default=72)
    ap.add_argument("--pkmul", type=int, default=0)
    ap.add_argument("--pkadd", type=int, default=0)
    ap.add_argument("--apub", type=int, default=0, help="publish x0's A half in the prologue")
    ap.add_argument("--cpf", type=int, default=4, help="code prefetch loads per wave (16 KB each)")
    ap.add_argument("--desync", type=int, default=0, help="diagnostic")
    ap.add_argument("--direct", type=int, nargs=2, default=[12, 4])
    ap.add_argument("--siga2_at", type=float, default=0.08)
    ap.add_argument("--puba_end", type=int, default=160)
    ap.add_argument("--sg", type=int, nargs=4, default=[-1, 0, 390, 150])
    ap.add_argument("--delay", type=int, default=0, help="diagnostic")
    ap.add_argument("--touch", type=int, default=0, help="diagnostic")
    ap.add_argument("--pstamps", type=int, default=0, help="phase stamps in layer N-1")
    ap.add_argument("--xbase", type=int, default=32)
    ap.add_argument("--xbufs", type=int, default=6)
    ap.add_argument("--now", action="store_true", help="diagnostic: no W loads in the loop")
    ap.add_argument("--noxch", action="store_true", help="diagnostic: no exchange traffic")
    ap.add_argument("--noepi", action="store_true", help="diagnostic: no epilogue/bias in the loop")
    o = ap.parse_args()
    for k in ("wflags", "xflags", "oflags", "rflags", "xsflags", "xlflags"):
        v = getattr(o, k)
        setattr(o, k, (" " + v.replace(",", " ")) if v and v != "none" else "")
    mtxt, mkd = Main(o).build()
    opts = " ".join(a for a in sys.argv[1:] if not a.endswith(".s") and a != "-o")
    s = HEADER.format(opts=opts)
    s += f"; @launch grid=(256,1,1) block=(256,1,1) lds={163840 if o.wdma else LDS_TOTAL}\n"
    s += '.amdgcn_target "amdgcn-amd-amdhsa--gfx950"\n.text\n'
    s += mtxt + mkd
    open(o.o, "w").write(s)
    print(o.o, len(s), "bytes")


if __name__ == "__main__":
    main()
```

```python
import argparse
import sys
from asmir import *

KNAME = "standalone__cross_network_dcn__recsys_kernel"
NL = 6
D = 1024
NB = 16384
MB = 1 << 20

HEADER = """; Kernarg layout for this problem (48 bytes, ptrs only, base s[0:1]):
;   offset  40: d_ws      268435456 bytes workspace
; Generated by gen/gen3.py (hand-written generator). Options: {opts}
"""

LDS_BIAS = 131072
LDS_STAGE = LDS_BIAS + NL * 512 * 4
LDS_TOTAL = LDS_STAGE + 8192
WS_FLAGS = 15 * MB
WS_XCH = 32 * MB
WS_STAMP = 16 * MB


def kd(name, vgpr, sgpr, accum):
    return f""".section .rodata,"a"
.p2align 6
.amdhsa_kernel {name}
  .amdhsa_next_free_vgpr {vgpr}
  .amdhsa_next_free_sgpr {sgpr}
  .amdhsa_accum_offset {accum}
  .amdhsa_group_segment_fixed_size 0
  .amdhsa_kernarg_size 48
  .amdhsa_user_sgpr_count 2
  .amdhsa_user_sgpr_kernarg_segment_ptr 1
  .amdhsa_system_sgpr_workgroup_id_x 1
  .amdhsa_float_denorm_mode_32 3
.end_amdhsa_kernel
"""


def srd(base, lo, hi, nbytes):
    return [salu("s_mov_b32", f"s{base}", lo), salu("s_mov_b32", f"s{base + 1}", hi),
            salu("s_mov_b32", f"s{base + 2}", hex(nbytes)), salu("s_mov_b32", f"s{base + 3}", "0x20000")]


def srd_off(base, lo, hi, off, nbytes):
    return [salu("s_add_u32", f"s{base}", lo, off), salu("s_addc_u32", f"s{base + 1}", hi, 0),
            salu("s_mov_b32", f"s{base + 2}", hex(nbytes)), salu("s_mov_b32", f"s{base + 3}", "0x20000")]


def sload(d, off, n=2):
    return I(f"s_load_dwordx{n} {d}, s[0:1], {off}", "smem", wr=[d])


def tagged(ins, tag):
    ins.wr = set(ins.wr) | {tag}
    return ins


def dma(voff, srdn, soff, off, flags, tag):
    o = f" offset:{off}" if off else ""
    return tagged(I(f"buffer_load_dwordx4 {voff}, {srdn}, {soff} offen{o}{flags} lds", "vld", rd=[voff]), tag)


def hoist(ins):
    ins.note = "hoist"
    return ins


def space(n):
    return [I("", "space") for _ in range(n)]


def insert_at(stream, frac, items, ok):
    i = int(len(stream) * frac)
    while 0 < i < len(stream) and not ok(stream[i - 1]):
        i += 1
    return stream[:i] + items + stream[i:]


class Main:
    def __init__(self, o):
        self.o = o
        self.sX, self.sW, self.sO, self.sB = "s[8:11]", "s[12:15]", "s[16:19]", "s[20:23]"
        self.sE, self.sR, self.sD = "s[32:35]", "s[40:43]", "s[44:47]"
        self.sC, self.sFm, self.sFp = "s[56:59]", "s[60:63]", "s[64:67]"
        self.sWoff, self.sL, self.sMask, self.sNeed = "s24", "s25", "s26", "s27"
        self.sRow, self.sXs, self.sXl, self.sFlag = "s28", "s29", "s30", "s31"
        self.sRaw, self.sDst, self.sLds, self.sBias, self.sStage, self.sSpin, self.sWave, self.sPNeed = (
            "s48", "s49", "s50", "s51", "s52", "s53", "s54", "s55")
        self.vW, self.vXw, self.vB = "v0", "v3", "v4"
        self.vXr = ["v1", "v2"]
        self.vL = "v1"
        self.t = ["v5", "v6", "v7"]
        self.Q = [8, 12]
        self.vP, self.vG = "v16", "v17"
        self.vS = ["v18", "v19"]
        self.RQ = [20, 24]
        self.NS = o.slots
        self.aX0 = 0
        self.aXF = 128
        self.aW = 192
        self.aACC = self.aW + 8 * min(self.NS, 6)
        self.nA = 256 - self.aACC
        self.vACC = self.nA
        NS = self.NS
        nshort = (-128) % NS
        nlong = (128 - nshort * (NS - 1)) // NS
        first = min(nlong, o.short_at // NS)
        seq = list(range(NS)) * first + list(range(NS - 1)) * nshort + list(range(NS)) * (nlong - first)
        assert len(seq) == 128
        self.slot = seq
        site = {}
        for s2 in range(-128, 256):
            p = s2 - 1
            while seq[p % 128] != seq[s2 % 128]:
                p -= 1
            site[s2] = max(p, site.get(s2 - 1, -10 ** 9))
        if o.wbunch > 1:
            k = o.wbunch
            for s2 in site:
                site[s2] = ((site[s2] // k) + 1) * k - 1
        self.site = site
        self.loads_at = {}
        for s2 in range(0, 256):
            self.loads_at.setdefault(site[s2], []).append(s2)
        self.small = self.vACC < 28
        if self.small:
            self.vP = self.vB
            q0 = [int(self.acc_tile(nt, 0, 0, 1)[1:]) for nt in range(4)]
            self.vG, self.vS, self.RQ = f"v{q0[0]}", [f"v{q0[0] + 1}", f"v{q0[0] + 2}"], [q0[1], q0[2]]
        self.init = "1.0" if not o.init else "s23"
        self.stampn = 0
        self.names = []
        self.ool = []

    def acc(self, p, i, n=1):
        h = self.nA // 2
        nv = 128 - h
        if i < nv:
            assert i + n <= nv
            return R("v", self.vACC + p * nv + i, n)
        return R("a", self.aACC + p * h + (i - nv), n)

    def acc_tile(self, nt, bt, r=0, n=4):
        return self.acc(nt >> 2, ((nt & 3) * 8 + bt) * 4 + r, n)

    def x0reg(self, kbl, bt, j=0, n=4):
        return R("a", self.aX0 + (kbl * 8 + bt) * 4 + j, n)

    def xf(self, bt, c):
        return R("a", self.aXF + (bt * 2 + c) * 4, 4)

    def wslot(self, s, c):
        if self.slot[s % 128] >= 6:
            return R("a", ((self.slot[s % 128] - 6) * 2 + c) * 4, 4)
        return R("a", self.aW + (self.slot[s % 128] * 2 + c) * 4, 4)

    def wload(self, s, c, dst=None):
        if self.o.gload:
            d = dst or self.wslot(s, c)
            off = (s & 3) * 2048 + c * 1024 - 4096
            if self.o.wdma and not dst:
                return I(f"global_load_lds_dwordx4 {self.vW}, s[70:71] offset:{off}", "vld", rd=[self.vW, "s[70:71]"], wr=[d])
            return I(f"global_load_dwordx4 {d}, {self.vW}, s[70:71] offset:{off}{self.o.wflags}", "vld",
                     rd=[self.vW, "s[70:71]"], wr=[d])
        return bload(dst or self.wslot(s, c), self.vW, self.sW, self.sWoff, (s & 1) * 2048 + c * 1024, flags=self.o.wflags)

    def wstep(self, s):
        if self.o.gload:
            if (s & 3) != 3:
                return []
            d = 8192 if (s % 128) != 127 else 8192 + 2 * MB - 256 * 1024
            both = I(f"s_add_u32 s70, s70, {d}\n s_addc_u32 s71, s71, 0", "salu", rd=["s[70:71]"], wr=["s[70:71]"])
            both.states = 2
            return [both]
        if not s & 1:
            return []
        return [salu("s_add_u32", self.sWoff, self.sWoff, 4096 if (s % 128) != 127 else 4096 + 2 * MB - 256 * 1024)]

    def xread(self, bt, c, rho, ss):
        return dsread(self.xf(bt, c), self.vXr[ss >> 1], (ss & 1) * 32768 + bt * 4096 + rho * 2048 + c * 1024)

    def stamp(self, name="x"):
        if not self.o.stamps:
            return []
        if self.o.pstamps and name in ("kernarg", "x0A_issued", "stores_issued", "signalled", "x0_issued", "x0_part", "flag_seen"):
            return []
        n = self.stampn
        self.stampn += 1
        self.names.append(name)
        assert n < 15
        return [raw(f"s_memtime s[{72 + 2 * n}:{73 + 2 * n}]", "other")]

    def lstamp(self, name, lval):
        if not self.o.pstamps:
            return []
        n = self.stampn
        return [raw(f"s_cmp_eq_u32 s25, {lval}"), raw(f"s_cbranch_scc0 Lns{n}")] + self.stamp(name) + [Label(f"Lns{n}")]

    def epi_unit(self, kbl, bt, q, pk=False):
        s = []
        accs = [self.acc_tile(2 * kbl + t, bt, r, 1) for t in range(2) for r in range(4)]
        hi, lo, m = self.t
        for j in range(4):
            a0, a1 = accs[2 * j], accs[2 * j + 1]
            if self.o.pkmul or pk:
                s.append(valu("v_accvgpr_read_b32", "v7", self.x0reg(kbl, bt, j, 1)))
                ap = f"v[{a0[1:]}:{a1[1:]}]"
                if a0[0] == "a":
                    tp = int(self.acc_tile(3, 0, 0, 1)[1:]) if pk else 28
                    s.append(valu("v_accvgpr_read_b32", f"v{tp}", a0))
                    s.append(valu("v_accvgpr_read_b32", f"v{tp + 1}", a1))
                    ap = R("v", tp, 2)
                s.append(valu("v_lshlrev_b32", "v6", 16, "v7"))
                s.append(valu("v_and_b32", "v7", self.sMask, "v7"))
                s.append(valu("v_pk_mul_f32", "v[6:7]", "v[6:7]", ap))
                s.append(valu("v_cvt_pk_bf16_f32", f"v{q + j}", "v6", "v7"))
                continue
            s.append(valu("v_accvgpr_read_b32", hi, self.x0reg(kbl, bt, j, 1)))
            if a0[0] == "a":
                s.append(valu("v_accvgpr_read_b32", m, a0))
                a0 = m
            s.append(valu("v_lshlrev_b32", lo, 16, hi))
            s.append(valu("v_and_b32", hi, self.sMask, hi))
            s.append(valu("v_mul_f32", lo, lo, a0))
            if a1[0] == "a":
                s.append(valu("v_accvgpr_read_b32", m, a1))
                a1 = m
            s.append(valu("v_mul_f32", hi, hi, a1))
            s.append(valu("v_cvt_pk_bf16_f32", f"v{q + j}", lo, hi))
        return s

    def xstore(self, src, p, u, tmp, state):
        if self.o.noxch or self.o.nost:
            return []
        s = []
        off = p * 16384 + u * 1024
        if state.get("g") != off >> 12:
            state["g"] = off >> 12
            s.append(salu("s_add_u32", tmp, self.sXs, off & ~4095))
        s.append(tagged(bstore(src, self.vXw, self.sE, tmp, off & 4095, flags=self.o.xsflags), f"xs{p}"))
        return s

    def xnext(self, reg, back):
        n = self.o.xbufs
        if n == 1:
            return [salu("s_sub_u32", reg, reg, back)]
        if n == 2:
            return [salu("s_sub_u32", reg, reg, back), salu("s_xor_b32", reg, reg, hex(32 * MB))]
        return [salu("s_add_u32", reg, reg, hex(32 * MB - back))]

    def epi_stream(self, p, ndirect=16, one=False, units=None):
        s = []
        st = {}
        for n, u in enumerate(range(16) if units is None else units):
            bt, c = u >> 1, u & 1
            q = self.Q[0 if one else n & 1]
            s += self.epi_unit(2 * p + c, bt, q)
            s.append(dswrite(self.vXw, R("v", q, 4), bt * 4096 + p * 2048 + c * 1024))
            if n < ndirect:
                s += self.xstore(R("v", q, 4), p, u, "s68", st)
        return s

    def pub_stream(self, p, lo, hi, units=None):
        s = []
        st = {}
        if self.o.noxch or lo >= hi:
            return s
        if self.small:
            q = R("v", self.Q[1], 4)
            for u in (units or range(16))[lo:hi]:
                s.append(dsread(q, self.vXw, (u >> 1) * 4096 + p * 2048 + (u & 1) * 1024))
                s += space(7)
                s.append(Wait(lg=[q]))
                s += self.xstore(q, p, u, "s69", st) + space(2)
            return s

        def rd(u):
            return dsread(R("v", self.RQ[u & 1], 4), self.vXw, (u >> 1) * 4096 + p * 2048 + (u & 1) * 1024)

        s.append(rd(lo))
        s += space(6)
        for u in range(lo, hi):
            if u + 1 < hi:
                s.append(rd(u + 1))
            s.append(Wait(lg=[R("v", self.RQ[u & 1], 4)]))
            s += self.xstore(R("v", self.RQ[u & 1], 4), p, u, "s69", st)
        return s

    def pub_guard(self, st):
        return st

    def x0pub_stream(self, p, lo=0, hi=16):
        s = []
        st = {}
        for u in range(lo, hi):
            s += self.xstore(self.x0reg(2 * p + (u & 1), u >> 1), p, u, "s68", st)
        return s

    def xch_dma(self, p):
        if self.o.wdma:
            return []
        if self.o.gather:
            return self.xch_dma_g(p)
        s = [raw(f"s_add_u32 m0, {self.sLds}, {p * 2048}", "salu", rd=[self.sLds])] + space(1)
        for bt in range(8):
            for c in range(2):
                if not self.o.noxch:
                    s.append(dma(self.vXw, self.sE, self.sXl, c * 1024, self.o.xlflags, f"xl{p}"))
            if bt < 7:
                s.append(raw("s_add_u32 m0, m0, 4096", "salu"))
            if bt == 7 and p == 1:
                s += self.xnext(self.sXl, 15 * 2048)
            else:
                s.append(salu("s_add_u32", self.sXl, self.sXl, 2048))
        return s

    def xch_dma_g(self, p):
        t0, t1 = self.t[0], self.t[1]
        vL = self.vL
        if self.o.quadg:
            X = self.vXw
            self.ool += [Label(f"Lgat{p}"),
                         raw(f"v_lshrrev_b32 {t0}, 4, {X}"), raw(f"v_and_b32 {t0}, 0x20, {t0}"), raw(f"v_xor_b32 {t0}, {t0}, {X}"),
                         raw(f"v_and_b32 {t0}, 0x30, {t0}"), raw(f"v_bfe_u32 {t1}, {X}, 6, 4"),
                         raw(f"v_lshl_add_u32 {t1}, {t1}, 11, {t0}"), raw(f"s_branch Lgatr{p}")]
        else:
            self.ool += [Label(f"Lgat{p}"),
                         raw(f"v_and_b32 {t0}, 0xf0, {vL}"), raw(f"v_lshrrev_b32 {t1}, 4, {vL}"),
                         raw(f"v_and_b32 {t1}, 0x30, {t1}"), raw(f"v_lshl_add_u32 {t1}, {t0}, 7, {t1}"),
                         raw(f"s_branch Lgatr{p}")]
        sel = I(f"v_mov_b32 {t1}, {self.vXw}\n s_cmp_eq_u32 {self.sL}, 0\n s_cbranch_scc1 Lgat{p}\nLgatr{p}:", "valu",
                rd=[self.vXw], wr=[t0, t1])
        s = [sel, raw(f"s_add_u32 m0, {self.sLds}, {p * 2048}", "salu", rd=[self.sLds])] + space(1)
        for bt in range(8):
            for c in range(2):
                if not self.o.noxch and not self.o.nodma:
                    s.append(dma(t1, self.sX, self.sXl, 0, self.o.xlflags, f"xl{p}"))
                s.append(raw(f"s_add_u32 m0, m0, {1024 if c == 0 else 3072}", "salu"))
                s.append(salu("s_add_u32", self.sXl, self.sXl, "s20" if c == 0 else "s21" if bt < 7 else "s22"))
            if bt < 7 and (bt + 1) % self.o.dmagroup == 0:
                s += space(self.o.dmapair * self.o.dmagroup)
        return s

    def xr_gathered(self):
        if not self.o.quadg:
            return []
        t0, X, r0, r1 = self.t[0], self.vXw, self.vXr[0], self.vXr[1]
        self.ool += [Label("Lxrg"),
                     raw(f"v_lshrrev_b32 {t0}, 2, {X}"), raw(f"v_and_b32 {t0}, 0x20, {t0}"),
                     raw(f"v_lshrrev_b32 {r1}, 4, {X}"), raw(f"v_xor_b32 {t0}, {t0}, {r1}"),
                     raw(f"v_and_b32 {t0}, 0x30, {t0}"), raw(f"v_bfe_u32 {r0}, {X}, 4, 4"),
                     raw(f"v_lshl_add_u32 {r0}, {r0}, 6, {t0}"), raw(f"v_add_u32 {r1}, 0x10000, {r0}"),
                     raw("s_branch Lxrgr")]
        return [I(f"s_cmp_eq_u32 {self.sL}, 0\n s_cbranch_scc1 Lxrg\nLxrgr:", "valu", rd=[X], wr=[t0, r0, r1])]

    def xr_plain(self):
        if not self.o.quadg:
            return []
        return [valu("v_and_b32", self.vXr[0], 0x3ff, self.vXw), valu("v_add_u32", self.vXr[1], 65536, self.vXr[0])]

    def xch_switch(self):
        return [salu("s_mov_b32", "s34", hex(256 * MB)),
                salu("s_mov_b32", "s8", "s32"), salu("s_mov_b32", "s9", "s33"), salu("s_mov_b32", "s10", "s34"),
                salu("s_mov_b32", "s20", 1024), salu("s_mov_b32", "s21", 1024), salu("s_mov_b32", "s22", 1024),
                salu("s_xor_b32", self.sXl, self.sXs, 1 << 17)]

    def calc_vG(self, vG):
        t0, t1 = self.t[0], self.t[1]
        return [valu("v_lshrrev_b32", t0, 7, self.vL), valu("v_lshlrev_b32", t1, 4, t0),
                valu("v_xor_b32", t1, t1, self.vL), valu("v_and_b32", t1, 0x70, t1),
                valu("v_lshl_add_u32", vG, t0, 11, t1)]

    def calc_vS(self, vS):
        t0, t1 = self.t[0], self.t[1]
        vL = self.vL
        return [valu("v_lshrrev_b32", t0, 4, vL), valu("v_and_b32", t0, 0x30, t0), valu("v_xor_b32", t0, t0, vL),
                valu("v_and_b32", t0, 0x70, t0), valu("v_and_b32", t1, 0xf0, vL),
                valu("v_lshl_add_u32", t0, t1, 3, t0), valu("v_add_u32", vS[0], self.sLds, t0),
                valu("v_xor_b32", vS[1], 64, vS[0])]

    def out_setup(self):
        return self.calc_vG(self.vG) + self.calc_vS(self.vS)

    def x0h_dma(self, p, lo, hi, vG):
        r = []
        for i in range(lo, hi):
            r.append(raw(f"s_add_u32 m0, {self.sLds}, {(i >> 1) * 4096 + p * 2048 + (i & 1) * 1024}", "salu"))
            r.append(salu("s_add_u32", "s3", self.sRow, i * 16384 + p * 128))
            r.append(dma(vG, self.sX, "s3", 0, self.o.xflags, f"x0_{p}_{i >> 1}"))
        return r

    def x0h_read(self, p, bt, vS):
        return [Wait(vm=[f"x0_{p}_{bt}"])] + [dsread(self.x0reg(2 * p + c, bt), vS[c], bt * 4096 + p * 2048)
                                              for c in range(2)]

    def x0h_write(self, p, bt):
        return [Wait(lg=[self.x0reg(2 * p + c, bt) for c in range(2)])] + [
            dswrite(self.vXw, self.x0reg(2 * p + c, bt), bt * 4096 + p * 2048 + c * 1024) for c in range(2)]

    def wreg0(self, s, c):
        if s < 16 - self.NS:
            return self.acc(1, (s * 2 + c) * 4, 4)
        return self.wslot(s, c)

    def out_stream(self, p):
        s = []
        pend = []
        for bt in range(8):
            for c in range(2):
                q = self.Q[c]
                u = self.epi_unit(2 * p + c, bt, q, pk=(p == 1 and self.o.tailpk))
                if c == 0 and pend:
                    u = u[:12] + pend + u[12:]
                    pend = []
                s += u
                if p == 0 and bt == 0 and c == 0:
                    s += self.out_setup()
                s.append(dswrite(self.vS[c], R("v", q, 4), bt * 4096))
            for i in range(2):
                s.append(dsread(R("v", self.RQ[i], 4), self.vXw, bt * 4096 + i * 1024))
            for i in range(2):
                pend.append(Wait(lg=[R("v", self.RQ[i], 4)]))
                pend.append(salu("s_add_u32", "s3", self.sRow, bt * 32768 + i * 16384))
                pend.append(bstore(R("v", self.RQ[i], 4), self.vG, self.sO, "s3", p * 128, flags=self.o.oflags))
        return s + pend

    def out_stream4(self, kbl):
        s = []
        pend = []
        p, c = kbl >> 1, kbl & 1
        for bt in range(8):
            q = self.Q[bt & 1]
            u = self.epi_unit(kbl, bt, q, pk=(kbl == 3 and self.o.tailpk))
            s += u[:12] + pend + u[12:]
            pend = []
            if kbl == 0 and bt == 0:
                s += self.out_setup()
            s.append(dswrite(self.vS[c], R("v", q, 4), bt * 4096))
            if c:
                rq = [int(self.acc_tile(1, 0, 0, 1)[1:]), int(self.acc_tile(0, 1, 0, 1)[1:])]
                for i in range(2):
                    s.append(dsread(R("v", rq[i], 4), self.vXw, bt * 4096 + i * 1024))
                for i in range(2):
                    pend.append(Wait(lg=[R("v", rq[i], 4)]))
                    pend.append(salu("s_add_u32", "s3", self.sRow, bt * 32768 + i * 16384))
                    pend.append(bstore(R("v", rq[i], 4), self.vG, self.sO, "s3", p * 128, flags=self.o.oflags))
        return s + pend

    def calc_vB(self):
        return [valu("v_bfe_u32", self.vB, self.vXw, 8, 2),
                valu("v_lshl_add_u32", self.vB, self.vB, 5, self.sBias)]

    def bias_stream(self, p, one=False):
        s = []
        if one:
            q = self.Q[0]
            for nt in range(4 * p, 4 * p + 4):
                s.append(dsread(R("v", q, 4), self.vB, (nt >> 1) * 128 + (nt & 1) * 16))
                s += space(7)
                s.append(Wait(lg=[R("v", q, 4)]))
                cnt = 0
                for bt in range(8):
                    for r in range(4):
                        a = self.acc_tile(nt, bt, r, 1)
                        if a[0] == "a":
                            t = self.t[cnt & 1]
                            s += [valu("v_accvgpr_read_b32", t, a), valu("v_add_f32", t, t, f"v{q + r}"),
                                  valu("v_accvgpr_write_b32", a, t)]
                        else:
                            s.append(valu("v_add_f32", a, a, f"v{q + r}"))
                        cnt += 1
            return s
        if self.o.nobias:
            return [valu("v_add_f32", self.acc_tile(4 * p, 0, 0, 1), self.acc_tile(4 * p, 0, 0, 1), 0) for _ in range(8)]

        def rd(nt):
            return dsread(R("v", self.Q[nt & 1], 4), self.vB, (nt >> 1) * 128 + (nt & 1) * 16)

        s.append(rd(4 * p))
        s += space(8)
        for nt in range(4 * p, 4 * p + 4):
            q = self.Q[nt & 1]
            cnt = 0
            for bt in range(8):
                for r in range(4):
                    if cnt == 0:
                        s.append(Wait(lg=[R("v", q, 4)]))
                    a = self.acc_tile(nt, bt, r, 1)
                    if self.o.pkadd and a[0] == "v":
                        if not r & 1:
                            ap = self.acc_tile(nt, bt, r, 2)
                            s.append(valu("v_pk_add_f32", ap, ap, R("v", q + r, 2)))
                    elif a[0] == "a":
                        t = self.t[cnt & 1]
                        s.append(valu("v_accvgpr_read_b32", t, a))
                        s.append(valu("v_add_f32", t, t, f"v{q + r}"))
                        s.append(valu("v_accvgpr_write_b32", a, t))
                    else:
                        s.append(valu("v_add_f32", a, a, f"v{q + r}"))
                    cnt += 1
                    if cnt == 1 and nt + 1 < 4 * p + 4:
                        s.append(rd(nt + 1))
        return s

    def prep_load(self):
        if self.o.wdma and getattr(self, "pl0", 0):
            return []
        self.pl0 = 1
        t0, t1 = self.t[0], self.t[1]
        s = [valu("v_lshrrev_b32", t0, 6, self.vL),
             valu("v_and_b32", t1, 48, self.vL),
             valu("v_lshl_add_u32", t0, t0, 11, t1),
             raw(f"s_mov_b32 m0, {self.sStage}", "salu", rd=[self.sStage]),
             salu("s_add_u32", "s3", self.sRaw, 32768 - 1024)]
        s.append(dma(t0, self.sR, self.sRaw, 0, self.o.rflags, "raw"))
        s.append(dma(t0, self.sR, "s3", 1024, self.o.rflags, "raw"))
        s.append(salu("s_add_u32", self.sRaw, self.sRaw, D * D * 2))
        return s

    def prep_store(self, sp=0):
        t0 = self.t[0]
        t1 = self.t[2]
        s = [valu("v_and_b32", t0, 0x300, self.vXw),
             valu("v_and_b32", t1, 0x3ff, self.vXw),
             valu("v_add3_u32", t0, t0, t1, self.sStage),
             Wait(vm=["raw"])]
        for t in range(2):
            for h in range(2):
                s.append(I(f"ds_read_b64_tr_b16 {R('v', self.Q[t] + 2 * h, 2)}, {t0} offset:{h * 256 + t * 8}", "dsr",
                           rd=[t0], wr=[R("v", self.Q[t] + 2 * h, 2)]))
        dst = self.sDst
        if sp and self.o.tail4:
            dst = "s69"
            s.append(I(f"s_cmp_eq_u32 {self.sL}, {NL - 2}\n s_cselect_b32 s69, s24, 0\n s_add_u32 s69, s69, {self.sDst}",
                       "salu", rd=[self.sL, "s24", self.sDst], wr=["s69"]))
        s += space(sp)
        for t in range(2):
            s.append(Wait(lg=[R("v", self.Q[t], 4)]))
            s.append(tagged(bstore(R("v", self.Q[t], 4), t1, self.sW, dst, t * 2048, flags=" sc1"), "pst"))
        s.append(salu("s_add_u32", self.sDst, self.sDst, D * D * 2))
        return s

    def wsignal(self):
        t = self.t[2]
        return [valu("v_mov_b32", t, 1),
                I(f"buffer_atomic_add {t}, {self.vW}, {self.sC}, 0 offen sc1", "vst", rd=[t, self.vW])]

    def psignal(self, p):
        t = self.t[2]
        return [salu("s_add_u32", self.sFlag, self.sFlag, 1), Wait(vm=[f"xs{p}"]),
                valu("v_mov_b32", t, self.sFlag),
                bstore(t, self.vL, self.sFm, 0, w="dword", flags=" sc1")]

    def wpoll_load(self):
        v = self.vP
        return [valu("v_lshlrev_b32", v, 2, self.vXw), valu("v_and_b32", v, 0xc0, v),
                bload(v, v, self.sD, 0, w="dword", flags=" sc1")]

    def ppoll_load(self):
        return [I(f"buffer_load_dword {self.vP}, off, {self.sFp}, 0 sc1", "vld", wr=[self.vP])]

    def poll_check(self, name, need, inc, loader):
        v = self.vP
        spin = [Label(f"Lspin_{name}"), raw(f"s_add_u32 {self.sSpin}, {self.sSpin}, 1")]
        if self.o.backoff:
            spin.append(raw(f"s_sleep {self.o.backoff}"))
        spin += [raw(x.text) for x in loader()]
        spin += [raw(f"s_cmp_ge_u32 {self.sSpin}, 0x100000"),
                 raw(f"s_cbranch_scc1 Lgiveup_{name}"),
                 raw("s_waitcnt vmcnt(0)"),
                 raw(f"v_cmp_gt_i32 vcc, {need}, {v}"),
                 raw("s_and_b64 vcc, exec, vcc"),
                 raw(f"s_cbranch_vccnz Lspin_{name}"),
                 Label(f"Lgiveup_{name}"),
                 raw("s_waitcnt vmcnt(0)"),
                 raw(f"s_branch Lok_{name}")]
        self.ool += spin
        return [Wait(vm=[v]), I(f"v_cmp_gt_i32 vcc, {need}, {v}", "valu", rd=[v, need]),
                raw(f"s_and_b64 vcc, exec, vcc\n s_cbranch_vccnz Lspin_{name}\nLok_{name}:", "branch"),
                salu("s_add_u32", need, need, inc)]

    def phase(self, s0, nts, rho, next_rho, stream=(), bar=False, last=False, start=0, end=None, pre_bar=(),
              fixed=(), extra=(), wreg=None, skip_below=0, post_bar=()):
        o = self.o
        NS = self.NS
        NT = len(nts)
        L = NT * 16
        mf = []
        gaps = [[] for _ in range(4 * L)]
        fwd = list(range(8))
        keepx = o.revb and s0 in (0, 96)
        rev = o.revb and s0 in (16, 112)
        flip = 1 if (o.revb and 16 <= s0 <= 96) else 0
        wreg = wreg or self.wslot
        for ss in range(4):
            base = ss * L
            for k, nt in enumerate(nts):
                s = s0 + ss * NT + k
                order = fwd if ((ss + k + flip) & 1) == 0 else fwd[::-1]
                for j, bt in enumerate(order):
                    for i in range(2):
                        c = i ^ (j & 1)
                        mf.append(mfma(16, self.acc_tile(nt, bt), wreg(s, c), self.xf(bt, c)))
                g = base + k * 16
                at = self.loads_at.get(s, [])
                for n, sn in enumerate(at):
                    if (last and sn >= 128) or o.now or sn < skip_below:
                        continue
                    ga, gb, gc = g + (14 if n == 0 else 15), g + 15, g + 18
                    if o.wdelay and g + 16 < 4 * L and (o.wdelay == 2 or k == NT - 1):
                        ga, gb, gc = g + 17 + 4 * n, g + 19 + 4 * n, g + 20 + 4 * n
                    elif o.wdelay and g + 16 < 4 * L and len(at) == 1:
                        gb, gc = g + 17, g + 19
                    elif not (g + 18 < 4 * L and n == len(at) - 1):
                        gc = g + 15
                    gaps[ga].append(hoist(self.wload(sn, 1)))
                    gaps[gb].append(hoist(self.wload(sn, 0)))
                    gaps[gc] += self.wstep(sn)
                if k < NT - 1:
                    gaps[g + 15].append(Wait(vm=[wreg(s + 1, 0), wreg(s + 1, 1)]))
                if k == 0:
                    for j in range(o.xw, 8, o.xw):
                        gaps[g + 2 * j - 1].append(
                            Wait(lg=[self.xf(order[jj], c) for jj in range(j, min(8, j + o.xw)) for c in range(2)]))
            nrho, nss = (rho, 2 - ss if rev else ss + 1) if ss < 3 else (next_rho, 0)
            if ss == 3 and keepx:
                nrho = None
                s = s0 + 4 * NT
                gaps[base + L - 1].append(Wait(vm=[wreg(s, 0), wreg(s, 1)]))
            gl = base + L - 16
            if ss == 3 and bar:
                gaps[gl - o.bar_lead] += list(pre_bar) + [Wait(all_lg=True), barrier()]
                gaps[gl - o.bar_lead + 1] += list(post_bar)
            if nrho is not None:
                for j, bt in enumerate(order):
                    for i in range(2):
                        c = i ^ (j & 1)
                        if not o.nox:
                            gaps[gl + 2 * j + i].append(hoist(self.xread(bt, c, nrho, nss)))
                s = s0 + (ss + 1) * NT
                gaps[base + L - 1].append(Wait(vm=[wreg(s, 0), wreg(s, 1)],
                                               lg=[self.xf(order[jj], c) for jj in range(o.xw) for c in range(2)]))
        for gi, inss in fixed:
            gaps[gi] += inss
        hi = end if end is not None else (4 * L - 16 - o.bar_lead if bar else 4 * L - 1)
        for st, lo2, hi2 in extra:
            self.place(gaps, list(st), lo2, hi2)
        self.place(gaps, list(stream), start, hi)
        out = []
        if o.jitter:
            n = self.njit = getattr(self, "njit", 0) + 1
            out.append(raw(f"s_mul_i32 s23, s23, 1664525\n s_add_u32 s23, s23, 1013904223\n s_lshr_b32 s101, s23, 24\n"
                           f" s_cmp_ge_u32 s101, {o.jitter}\n s_cbranch_scc1 Ljit{n}\n s_bfe_u32 s101, s23, 0x40010\nLjs{n}:\n s_sleep 20\n"
                           f" s_sub_u32 s101, s101, 1\n s_cbranch_scc0 Ljs{n}\nLjit{n}:", "salu"))
        for i, m in enumerate(mf):
            out.append(m)
            gaps[i] = self.merge([], gaps[i])
            out += gaps[i]
        if o.verbose:
            print(f"; phase s0={s0} mfma={len(mf)} modelled excess={sum(self.gap_excess(g) for g in gaps)}", file=sys.stderr)
        return out

    @staticmethod
    def gap_excess(items):
        slots = 0
        ex = 0
        free = 2
        seenv = False
        for x in items:
            k = x.kind
            if k in ("valu", "nop"):
                slots += 1
                seenv = True
                continue
            if k in ("dsr", "vld", "dsw", "vst") and seenv:
                ex += 8
            if k == "dsr":
                slots += 1
            elif k == "vld":
                slots += 1 if x.text.startswith("global") else 2
            elif k == "dsw":
                ex += 12
                free -= 2
            elif k == "vst":
                ex += (20 if x.big else 4) + 4 * slots + (8 if free < 2 else 0)
                free = 3 if x.big else free - 1
            elif k == "barrier":
                ex += 24
        return ex + 4 * max(0, slots - max(free, 0))

    @staticmethod
    def merge(items, fixed):
        k = 0
        lead, rest = [], []
        stop = False
        for x in fixed:
            if not stop and x.kind in ("dsr", "vld") and getattr(x, "note", "") == "hoist":
                lead.append(x)
            else:
                rest.append(x)
                if x.kind not in ("wait",):
                    stop = True
        items = [x for x in items if x.kind != "space"]
        j = 0
        while j < len(items) and items[j].kind in ("salu", "wait"):
            j += 1
        if j < len(items) and items[j].kind == "vst":
            return items[:j + 1] + lead + items[j + 1:] + rest
        return lead + items + rest

    def place(self, gaps, stream, lo, hi):
        if not stream:
            return
        n, G = len(stream), hi - lo
        KMAX = 8
        INF = float("inf")
        dp = [INF] * (n + 1)
        dp[0] = 0.0
        back = []
        NG = len(gaps)
        cnt = lambda g, kind: sum(1 for x in gaps[g] if x.kind == kind) if g < NG else 0
        for g in range(G):
            fixed = gaps[lo + g]
            base = self.gap_excess(self.merge([], fixed))
            wpen = 7 * sum(cnt(lo + g + d, "dsr") for d in (1, 2, 3)) + 4 * cnt(lo + g, "dsr")
            spen = 12 * cnt(lo + g + 1, "vld") + 6 * cnt(lo + g, "vld") + 4 * cnt(lo + g + 2, "vld")
            nd = [INF] * (n + 1)
            bk = [0] * (n + 1)
            tgt = n * (g + 1) / G
            for i in range(n + 1):
                if dp[i] == INF:
                    continue
                for k in range(0, min(KMAX, n - i) + 1):
                    c = dp[i]
                    if k:
                        its = stream[i:i + k]
                        if k > 1 and its[-2].kind == "space":
                            break
                        c += self.gap_excess(self.merge(its, fixed)) - base
                        c += sum(wpen if x.kind == "dsw" else spen if x.kind == "vst" else 0 for x in its)
                    c += self.o.pace * ((i + k - tgt) / max(1.0, n / G)) ** 2 + 0.02 * k * k
                    if c < nd[i + k]:
                        nd[i + k] = c
                        bk[i + k] = k
            dp = nd
            back.append(bk)
        assert dp[n] < INF
        i = n
        for g in range(G - 1, -1, -1):
            k = back[g][i]
            gaps[lo + g] = self.merge(stream[i - k:i], gaps[lo + g])
            i -= k

    def prologue(self):
        o = self.o
        vL = self.vL
        b = []
        b.append(salu("s_cmp_ge_u32", "s2", 256))
        b.append(raw("s_cbranch_scc1 Lend", "branch"))
        if o.pair8:
            b += [raw("s_lshr_b32 s3, s2, 3"), raw("s_xor_b32 s3, s3, s2"), raw("s_and_b32 s3, s3, 1"), raw("s_mul_i32 s3, s3, 9"),
                  raw("s_xor_b32 s2, s2, s3")]
        b += self.stamp("start")
        if o.stamps:
            b.append(raw("s_memrealtime s[36:37]"))
        b += [nop(0) for _ in range(o.shift)]
        b += [sload("s[56:59]", 0, 4), sload("s[60:63]", 16, 4), sload("s[64:67]", 32, 4)]
        b.append(valu("v_lshrrev_b32", "v9", 6, "v0"))
        b.append(valu("v_and_b32", "v10", 63, "v0"))
        b.append(valu("v_readfirstlane_b32", self.sWave, "v9"))
        b.append(valu("v_lshlrev_b32", vL, 4, "v10"))
        if o.cpf:
            b.append(raw("s_getpc_b64 s[4:5]", "salu"))
            b.append(Label("Lpc"))
            b.append(valu("v_lshlrev_b32", "v11", 6, "v0"))
            if o.cpfsplit:
                b += [salu("s_bfe_u32", "s3", "s2", "0x20003"), salu("s_lshl_b32", "s3", "s3", 14),
                      valu("v_add_u32", "v11", "s3", "v11")]
            for i in range(1 if o.cpfsplit else o.cpf):
                b.append(raw(f"v_min_u32 v12, Lcend-4-Lpc, v11", "valu", rd=["v11"], wr=["v12"]))
                b.append(I(f"global_load_dword v{60 + i}, v12, s[4:5]", "vld", rd=["v12"], wr=[f"v{60 + i}"]))
                b.append(valu("v_add_u32", "v11", 16384, "v11"))
        b.append(valu("v_lshrrev_b32", "v11", 7, "v0"))
        b.append(valu("v_and_b32", "v12", 127, "v0"))
        b.append(valu("v_lshlrev_b32", "v12", 3, "v12"))
        b.append(valu("v_lshl_add_u32", "v30", "v11", 11, "v12"))
        b.append(valu("v_lshlrev_b32", "v31", 4, "v0"))
        b.append(valu("v_add_u32", "v31", LDS_BIAS, "v31"))
        b.append(valu("v_add_u32", self.vXr[1], 65536, vL))
        b.append(valu("v_lshl_add_u32", self.vXw, "v9", 15, vL))
        b.append(valu("v_lshl_add_u32", self.vW, "v9", 18, vL))
        nb0 = len(b)
        b.append(valu("v_lshrrev_b32", "v11", 4, "v10"))
        b.append(valu("v_and_b32", "v12", 15, "v10"))
        b.append(valu("v_xor_b32", "v13", "v11", "v12"))
        b.append(valu("v_lshlrev_b32", "v13", 4, "v13"))
        b.append(valu("v_lshl_add_u32", "v20", "v11", 11, "v13"))
        for i in range(1, 4):
            b.append(valu("v_xor_b32", f"v{20 + i}", 64 * i, "v20"))
        b.append(valu("v_lshl_add_u32", "v24", "v12", 8, "v13"))
        b.append(valu("v_lshl_add_u32", "v24", "v9", 15, "v24"))
        for i in range(1, 4):
            b.append(valu("v_xor_b32", f"v{24 + i}", 64 * i, "v24"))
        if o.early == 1:
            del b[nb0:]
        b.append(salu("s_and_b32", "s7", "s2", 1))
        b.append(salu("s_lshr_b32", self.sRow, "s2", 1))
        b.append(salu("s_lshl_b32", self.sRow, self.sRow, 18))
        b.append(salu("s_lshl_b32", "s6", "s7", 10))
        b.append(salu("s_add_u32", self.sRow, self.sRow, "s6"))
        b.append(salu("s_lshl_b32", "s6", self.sWave, 8))
        b.append(salu("s_add_u32", self.sRow, self.sRow, "s6"))
        b.append(salu("s_mov_b32", self.sMask, "0xffff0000"))
        b.append(salu("s_lshl_b32", self.sWoff, "s7", 20))
        b.append(salu("s_mov_b32", self.sL, 0))
        b.append(salu("s_mov_b32", self.sSpin, 0))
        b.append(salu("s_mov_b32", self.sFlag, -1 if o.gather else 0))
        b.append(salu("s_mov_b32", self.sNeed, 64))
        b.append(salu("s_mov_b32", self.sPNeed, -1 if o.gather else 1))
        b.append(salu("s_lshl_b32", self.sLds, self.sWave, 15))
        b.append(salu("s_lshl_b32", self.sXs, "s2", 17))
        b.append(salu("s_add_u32", self.sXs, self.sXs, o.xbase * MB))
        b.append(salu("s_xor_b32", self.sXl, self.sXs, 1 << 17))
        b.append(salu("s_lshr_b32", "s4", "s2", 3))
        b.append(salu("s_and_b32", "s5", "s2", 7))
        b.append(salu("s_lshl_b32", self.sRaw, "s4", 16))
        b.append(salu("s_lshl_b32", "s6", "s5", 8))
        b.append(salu("s_add_u32", self.sRaw, self.sRaw, "s6"))
        b.append(salu("s_lshl_b32", "s6", self.sWave, 6))
        b.append(salu("s_add_u32", self.sRaw, self.sRaw, "s6"))
        b.append(salu("s_lshl_b32", self.sDst, "s5", 18))
        b.append(salu("s_and_b32", "s6", "s4", 1))
        b.append(salu("s_lshl_b32", "s6", "s6", 10))
        b.append(salu("s_add_u32", self.sDst, self.sDst, "s6"))
        b.append(salu("s_lshr_b32", "s6", "s4", 4))
        b.append(salu("s_lshr_b32", "s5", "s5", 2))
        b.append(salu("s_xor_b32", "s5", "s5", "s6"))
        b.append(salu("s_bfe_u32", "s6", "s4", "0x10001"))
        b.append(salu("s_lshl_b32", "s3", "s5", 1))
        b.append(salu("s_add_u32", "s3", "s3", "s6"))
        b.append(salu("s_lshl_b32", "s3", "s3", 16))
        b.append(salu("s_add_u32", self.sDst, self.sDst, "s3"))
        b.append(salu("s_bfe_u32", "s4", "s4", "0x20002"))
        b.append(salu("s_xor_b32", "s5", "s5", "s6"))
        b.append(salu("s_lshr_b32", "s3", self.sWave, 1))
        b.append(salu("s_lshl_b32", "s3", "s3", 4))
        if o.revb:
            assert not o.tail4 and not o.w0prep
            b += [salu("s_lshr_b32", "s6", self.sWave, 1), salu("s_mul_i32", "s6", "s6", 3), salu("s_xor_b32", "s6", "s6", "s4"),
                  salu("s_lshl_b32", "s6", "s6", 2)]
        else:
            b.append(salu("s_lshl_b32", "s6", "s4", 2))
        b.append(salu("s_add_u32", "s3", "s3", "s6"))
        b.append(salu("s_and_b32", "s6", self.sWave, 1))
        b.append(salu("s_lshl_b32", "s6", "s6", 1))
        b.append(salu("s_add_u32", "s3", "s3", "s6"))
        b.append(salu("s_lshl_b32", "s4", "s4", 3))
        b.append(salu("s_lshl_b32", "s6", self.sWave, 1))
        b.append(salu("s_add_u32", "s4", "s4", "s6"))
        b.append(salu("s_cmp_eq_u32", "s5", 0))
        b.append(salu("s_cselect_b32", "s3", "s3", "s4"))
        b.append(salu("s_lshl_b32", "s3", "s3", 11))
        b.append(salu("s_add_u32", self.sDst, self.sDst, "s3"))
        b.append(salu("s_lshl_b32", self.sStage, self.sWave, 11))
        b.append(salu("s_add_u32", self.sStage, self.sStage, LDS_STAGE))
        b.append(salu("s_lshl_b32", self.sBias, self.sWave, 9))
        b.append(salu("s_add_u32", self.sBias, self.sBias, LDS_BIAS))
        selfw = o.early == 1 and o.selfw
        later = []
        if selfw and o.lean:
            need = {self.sRaw, self.sStage, self.sLds, self.sRow, "s7", self.vL, self.sWave}
            i0 = next(i for i, x in enumerate(b) if x.text.startswith("v_lshrrev_b32 v11, 7, v0"))
            rest = b[i0:]
            del b[i0:]
            keep = [False] * len(rest)
            live = set(need)
            for i in range(len(rest) - 1, -1, -1):
                if rest[i].wr & live:
                    keep[i] = True
                    live = (live - rest[i].wr) | rest[i].rd
            front = [I(x.text, x.kind, rd=(), wr=()) for x, k in zip(rest, keep) if k]
            for f, x in zip(front, [x for x, k in zip(rest, keep) if k]):
                f.rd, f.wr = set(x.rd), set(x.wr)
            b += front
            later = [x for x in rest if not (x.wr & (need - {"s7"}))]
        pl = [] if o.w0prep else self.prep_load()
        npre = next((i for i, x in enumerate(pl) if x.kind == "vld"), 0)
        if selfw:
            b += self.selfw_setup()
        if selfw and o.rawpf:
            b += [valu("v_lshrrev_b32", "v12", 2, "v0"), valu("v_and_b32", "v13", 3, "v0"), valu("v_lshlrev_b32", "v13", 8, "v13"),
                  valu("v_lshl_add_u32", "v12", "v12", 11, "v13"),
                  salu("s_bfe_u32", "s6", "s2", "0x20003"), salu("s_lshl_b32", "s6", "s6", 18),
                  salu("s_mul_i32", "s68", "s7", (1 << 20) + 1024), salu("s_add_u32", "s68", "s68", "s6")]
        b += pl[:npre] + srd(40, "s58", "s59", NL * D * D * 2)[2:]
        b.append(Wait(all_lg=True))
        b += self.stamp("kernarg")
        b += srd(40, "s58", "s59", NL * D * D * 2)[:2]

        def only(ins, w0):
            n = self.nseg = getattr(self, "nseg", 0) + 1
            for x in ins:
                x.note = "gy" if w0 else "gx"
            return [salu("s_cmp_eq_u32", self.sWave, 0), raw(f"s_cbranch_scc{0 if w0 else 1} Lseg{n}", "branch")] + \
                ins + [Label(f"Lseg{n}")]

        if o.w0prep:
            t0, t1 = self.t[0], self.t[1]
            r = [valu("v_lshrrev_b32", t0, 6, vL), valu("v_and_b32", t1, 48, vL), valu("v_lshl_add_u32", t0, t0, 11, t1)]
            for q in range(4):
                r += [raw(f"s_mov_b32 m0, {LDS_STAGE + q * 2048}", "salu"), salu("s_add_u32", "s3", self.sRaw, q * 64),
                      dma(t0, self.sR, "s3", 0, o.rflags, f"raw{q}"),
                      salu("s_add_u32", "s3", self.sRaw, q * 64 + 32768 - 1024),
                      dma(t0, self.sR, "s3", 1024, o.rflags, f"raw{q}")]
            b += only(r, True)
            b.append(salu("s_add_u32", self.sRaw, self.sRaw, D * D * 2))
        else:
            b += pl[npre:]
        if selfw and o.rawpf:
            b.append(bload("v61", "v12", self.sR, "s68", w="dword"))
        if selfw:
            b += self.rawdma(0, o.selfp[0])
        b += later
        b += srd(20, "s60", "s61", NL * D * 2)
        tb = 32
        b.append(salu("s_lshl_b32", "s3", "s7", 10))
        for m in range(3):
            b.append(bload(R("v", tb + 2 * m, 2), "v30", self.sB, "s3", w="dwordx2"))
            b.append(salu("s_add_u32", "s3", "s3", 4096))
        if o.jitter:
            b += [raw("s_memrealtime s[100:101]"), raw("s_waitcnt lgkmcnt(0)"), raw("s_lshl_b32 s23, s2, 2"),
                  raw(f"s_add_u32 s23, s23, {self.sWave}"), raw("s_mul_i32 s23, s23, 0x9e3779b1"), raw("s_add_u32 s23, s23, s100")]
        if o.init:
            b.append(salu("s_mov_b32", "s23", o.init))
        b += srd(8, "s56", "s57", NB * D * 2)
        b += srd(16, "s62", "s63", NB * D * 2)
        b += srd(12, "s66", "s67", NL * D * D * 2)
        b += srd(32, "s66", "s67", 0 if o.gather else 256 * MB)
        b += srd(44, "s64", "s65", 256)
        b += [salu("s_add_u32", self.sWoff, self.sWoff, 4096), salu("s_add_u32", "s70", "s66", self.sWoff),
              salu("s_addc_u32", "s71", "s67", 0), salu("s_sub_u32", self.sWoff, self.sWoff, 4096)]
        if o.tail4:
            b += [salu("s_and_b32", "s24", self.sWave, 1), salu("s_mul_i32", "s24", "s24", 6 * 2048),
                  salu("s_bfe_u32", "s3", "s2", "0x20005"), salu("s_lshl_b32", "s3", "s3", 12),
                  salu("s_sub_u32", "s24", "s24", "s3"),
                  salu("s_lshr_b32", "s3", "s2", 7), salu("s_lshr_b32", "s6", "s2", 2), salu("s_xor_b32", "s3", "s3", "s6"),
                  salu("s_lshr_b32", "s6", "s2", 4), salu("s_and_b32", "s3", "s3", "s6"), salu("s_bitcmp1_b32", "s3", 0),
                  salu("s_cselect_b32", "s24", "s24", 0)]
        b.append(salu("s_and_b32", "s3", "s2", 3))
        b.append(salu("s_lshl_b32", "s3", "s3", 6))
        b += srd_off(56, "s44", "s45", "s3", 4)
        b.append(salu("s_lshl_b32", "s3", "s2", 2))
        b.append(salu("s_add_u32", "s3", "s3", self.sWave))
        b.append(salu("s_lshl_b32", "s3", "s3", 7))
        b.append(salu("s_add_u32", "s3", "s3", WS_FLAGS))
        b += srd_off(60, "s32", "s33", "s3", 4)
        b.append(salu("s_xor_b32", "s3", "s3", 512))
        b += srd_off(64, "s32", "s33", "s3", 4)
        if o.delay:
            for _ in range(o.delay):
                b.append(raw("s_sleep 127"))
        if o.touch:
            for l in range(6):
                b.append(salu("s_add_u32", "s3", self.sXs, l * 32 * MB))
                if o.touch == 1:
                    b.append(bload(f"v{60 + l}", self.vXw, self.sE, "s3", w="dword"))
                else:
                    b.append(bstore(f"v{60 + l}", self.vXw, self.sE, "s3", w="dword", flags=" sc1"))
            b.append(Wait(all_vm=True))
        def x0dma(lo, hi):
            r = []
            for i in range(lo, hi):
                r.append(raw(f"s_add_u32 m0, {self.sLds}, {i * 1024}", "salu"))
                r.append(salu("s_add_u32", "s3", self.sRow, i * 8192))
                r.append(dma(f"v{20 + (i & 3)}", self.sX, "s3", 0, o.xflags, f"x0_{i >> 2}"))
            return r

        def x0fix(bt):
            r = [Wait(vm=[f"x0_{bt}"])]
            for kbl in range(4):
                r.append(dsread(self.x0reg(kbl, bt), f"v{24 + kbl}", bt * 4096))
            r.append(Wait(all_lg=True))
            for kbl in range(4):
                r.append(dswrite(self.vXw, self.x0reg(kbl, bt), bt * 4096 + kbl * 1024))
            if o.apub:
                r += self.x0pub_stream(0, 2 * bt, 2 * bt + 2)
            return r

        def accinit(pred):
            r = []
            for p in range(2):
                for i in range(128):
                    a = self.acc(p, i)
                    if pred(a):
                        r.append(valu("v_accvgpr_write_b32" if a[0] == "a" else "v_mov_b32", a, self.init))
            return r

        if o.early == 1 and o.selfw:
            return b + self.prologue_self(accinit, tb)
        if o.early == 1:
            return b + self.prologue_early(accinit, tb)
        late = lambda a: a[0] == "v" and 32 <= int(a[1:]) < 72
        final = lambda a: a[0] == "v" and int(a[1:]) < 32
        na, nb, ahead, npoll = o.x0split

        def biascvt():
            r = []
            for m in range(3):
                r.append(Wait(vm=[R("v", tb + 2 * m, 2)]))
                for j in range(2):
                    src = f"v{tb + 2 * m + j}"
                    r.append(valu("v_lshlrev_b32", f"v{40 + 4 * m + 2 * j}", 16, src))
                    r.append(valu("v_and_b32", f"v{41 + 4 * m + 2 * j}", self.sMask, src))
                r.append(dswrite("v31", R("v", 40 + 4 * m, 4), m * 4096))
            return r + [Wait(all_lg=True)]

        if o.w0prep:
            t0, t1, t2 = self.t
            r = [valu("v_lshlrev_b32", t1, 3, vL), valu("v_mov_b32", t2, 0), salu("s_mov_b32", "s62", 512),
                 tagged(bstore(t2, t1, self.sFm, 0, w="dword", flags=" sc1"), "pst"), salu("s_mov_b32", "s62", 4)]
            b += only(r, True)
            b += only(x0dma(0, nb), False)
            b += accinit(lambda a: not late(a) and not final(a))
            r = [valu("v_and_b32", t0, 0x300, vL), valu("v_add3_u32", t0, t0, vL, self.sStage)]
            qs = [8, 40, 48, 64]
            for q in range(4):
                r.append(Wait(vm=[f"raw{q}"]))
                for t in range(2):
                    for h in range(2):
                        d = R("v", qs[q] + 4 * t + 2 * h, 2)
                        r.append(I(f"ds_read_b64_tr_b16 {d}, {t0} offset:{q * 2048 + h * 256 + t * 8}", "dsr", rd=[t0], wr=[d]))
            for q in range(4):
                r += [salu("s_cmp_eq_u32", "s5", 0),
                      salu("s_cselect_b32", "s3", ((q >> 1) * 16 + 2 * (q & 1)) * 2048, "s6") if q > 1 else
                      salu("s_mov_b32", "s3", 2 * q * 2048),
                      salu("s_add_u32", "s3", "s3", self.sDst), salu("s_mov_b32", "s6", 2 * (q + 1) * 2048)]
                for t in range(2):
                    r.append(Wait(lg=[R("v", qs[q] + 4 * t, 4)]))
                    r.append(tagged(bstore(R("v", qs[q] + 4 * t, 4), vL, self.sW, "s3", t * 2048, flags=" sc1"), "pst"))
            r += x0dma(0, na) + [Wait(vm=["pst"])] + self.wsignal() + x0dma(na, nb)
            b += only(r, True)
            b.append(salu("s_add_u32", self.sDst, self.sDst, D * D * 2))
            b += self.stamp("signalled")
            b += biascvt() + accinit(late)
        else:
            b.append(valu("v_mov_b32", self.t[2], 0))
            b.append(tagged(bstore(self.t[2], vL, self.sFm, 0, w="dword", flags=" sc1"), "pst"))
            b += x0dma(0, na)
            b += accinit(lambda a: not late(a) and not final(a))
            b += self.prep_store()
            b += self.stamp("stores_issued")
            b += x0dma(na, nb)
            b += biascvt() + accinit(late)
            b += [Wait(vm=["pst"]), barrier()] + self.wsignal()
            b += self.stamp("signalled")
        def wring():
            r = []
            for s in [x for x in range(128) if self.site[x] < 0]:
                r += [self.wload(s, 1), self.wload(s, 0)] + self.wstep(s)
            return r

        def path(name, nb2, npoll, stamps):
            st = self.stamp if stamps else (lambda n: [])
            r = x0dma(nb, nb2)
            issued = max(nb, nb2)
            checked = False
            poll_before = None
            for bt in range(8):
                want = min(32, 4 * (bt + 1 + ahead))
                if bt == npoll:
                    r += self.wpoll_load()
                    poll_before = (issued + 3) // 4 if npoll else 0
                if want > issued and (npoll or checked):
                    r += x0dma(issued, want)
                    issued = want
                if poll_before is not None and not checked and bt >= poll_before:
                    r += st("x0_part")
                    r += self.poll_check(name, self.sNeed, 64, self.wpoll_load)
                    r += st("flag_seen")
                    checked = True
                    if npoll:
                        r += x0dma(issued, 32) + wring()
                        issued = 32
                    else:
                        r += wring() + x0dma(issued, want)
                        issued = max(issued, want)
                r += x0fix(bt)
            assert checked and issued == 32
            return r

        if o.stagger < 0:
            b += path("pro", nb, npoll, True)
        else:
            px = path("prox", nb, npoll, True)
            n0 = self.stampn
            self.stampn -= 2 if o.stamps and not o.pstamps else 0
            self.names = self.names[:self.stampn]
            py = path("proy", o.ynb, 0, True)
            assert self.stampn == n0
            for x in px:
                x.note = "gx"
            for x in py:
                x.note = "gy"
            b += [salu("s_bitcmp1_b32", "s2", o.stagger), raw("s_cbranch_scc1 Lgy", "branch")]
            b += px + [raw("s_branch Lgjoin", "branch"), Label("Lgy")] + py + [Label("Lgjoin")]
        b += accinit(final)
        if o.gather:
            b += [salu("s_xor_b32", self.sXl, self.sRow, 1024), salu("s_mov_b32", "s20", 64),
                  salu("s_mov_b32", "s21", 32768 - 64), salu("s_mov_b32", "s22", hex((128 - 64 - 7 * 32768) & 0xffffffff))]
        b += [Wait(all_lg=True), barrier()]
        for j in range(8):
            for i in range(2):
                b.append(self.xread(j, i ^ (j & 1), 0, 0))
        b.append(Wait(lg=[self.xf(j, c) for j in range(o.xw) for c in range(2)], vm=[self.wslot(0, 0), self.wslot(0, 1)]))
        if o.desync:
            b += [raw("s_lshr_b32 s3, s2, 1"), raw("s_and_b32 s3, s3, 15"), Label("Lds"), raw(f"s_sleep {o.desync}"),
                  raw("s_sub_u32 s3, s3, 1"), raw("s_cbranch_scc0 Lds")]
        b += self.stamp("pro_done")
        return b

    def selfw_setup(self):
        t0, t1, vL = self.t[0], self.t[1], self.vL
        return [valu("v_lshrrev_b32", t0, 2, vL), valu("v_and_b32", t0, 0x40, t0), valu("v_xor_b32", t0, t0, vL),
                valu("v_and_b32", t0, 0x70, t0), valu("v_lshrrev_b32", t1, 7, vL), valu("v_lshl_add_u32", "v23", t1, 11, t0),
                salu("s_and_b32", "s69", self.sRow, 2047), salu("s_lshl_b32", "s3", "s7", 20),
                salu("s_add_u32", "s69", "s69", "s3")]

    def rawdma(self, lo, hi):
        r = []
        for n in range(lo, min(hi, 4 * self.o.nself)):
            p, i = n >> 2, n & 3
            r.append(raw(f"s_add_u32 m0, {self.sLds}, {(2 * (p & 3) + (i >> 1)) * 4096 + (p >> 2) * 2048 + (i & 1) * 1024}", "salu"))
            r.append(salu("s_add_u32", "s3", "s69", (128 * (p >> 1) + 32 * (p & 1) + 8 * i) * 2048))
            r.append(dma("v23", self.sR, "s3", 0, "", f"sw{p}"))
        return r

    def prologue_self(self, accinit, tb):
        o = self.o
        vL = self.vL
        t0, t1 = self.t[0], self.t[1]
        b = []
        vG, vS, vR, vT = "v20", ["v21", "v22"], "v23", ["v24", "v25"]
        wbuf = set(r for s in range(16 - self.NS) for c in range(2) for r in regs(self.wreg0(s, c)))
        late = lambda a: a[0] == "v" and 32 <= int(a[1:]) < 64
        final = lambda a: a[0] == "v" and int(a[1:]) < 32
        ns1, psig, na, nB0, lead = o.selfp
        rawdma = self.rawdma

        def trans(p):
            if p >= o.nself:
                return []
            r = [Wait(vm=[f"sw{p}"])]
            for nt in range(4):
                d = int(regs(self.wreg0((p >> 1) * 4 + nt, p & 1))[0][1:])
                k = self.wreg0((p >> 1) * 4 + nt, p & 1)[0]
                for h in range(2):
                    dd = R(k, d + 2 * h, 2)
                    r.append(I(f"ds_read_b64_tr_b16 {dd}, {vT[nt >> 1]} offset:{(p & 3) * 8192 + (p >> 2) * 2048 + h * 512 + (nt & 1) * 8}", "dsr",
                               rd=[vT[nt >> 1]], wr=[dd]))
            return r

        b.append(valu("v_mov_b32", self.t[2], 0))
        b.append(tagged(bstore(self.t[2], vL, self.sFm, 0, w="dword", flags=" sc1"), "pst"))
        b += self.calc_vG(vG) + self.calc_vS(vS)
        b += [valu("v_lshrrev_b32", t0, 1, vL), valu("v_and_b32", t0, 0x40, t0), valu("v_and_b32", t1, 0x30, vL),
              valu("v_or_b32", t0, t0, t1), valu("v_and_b32", t1, 0xc0, vL), valu("v_lshl_add_u32", t0, t1, 1, t0),
              valu("v_and_b32", t1, 0x100, vL), valu("v_lshl_add_u32", t0, t1, 2, t0),
              valu("v_and_b32", t1, 0x200, vL), valu("v_lshl_add_u32", t0, t1, 3, t0),
              valu("v_add_u32", vT[0], self.sLds, t0), valu("v_xor_b32", vT[1], 64, vT[0])]
        b += accinit(lambda a: not late(a) and not final(a) and a not in wbuf)
        b += self.prep_store()
        ns2 = max(ns1, o.ns2)
        b += rawdma(ns1, ns2)
        b += self.stamp("stores_issued")
        for m in range(3):
            b.append(Wait(vm=[R("v", tb + 2 * m, 2)]))
            for j in range(2):
                src = f"v{tb + 2 * m + j}"
                b.append(valu("v_lshlrev_b32", f"v{40 + 4 * m + 2 * j}", 16, src))
                b.append(valu("v_and_b32", f"v{41 + 4 * m + 2 * j}", self.sMask, src))
            b.append(dswrite("v31", R("v", 40 + 4 * m, 4), m * 4096))
        b.append(Wait(all_lg=True))
        b += accinit(late)
        issued = 0
        pdone = lambda p: [self.wreg0((p >> 1) * 4 + nt, p & 1) for nt in range(4)]
        assert ns2 >= 16 and psig <= ns2 // 4
        nearly = 8 if not o.rawlate else ns2 // 4
        for p in range(nearly + 1):
            if p == psig:
                b += [Wait(vm=["pst"]), barrier()] + self.wsignal()
                b += self.stamp("signalled")
                if not o.rawlate:
                    b += rawdma(ns2, 32)
            if p < nearly and (p < 4 or p < psig):
                b += trans(p)
            if p:
                want = min(16, 4 * p) if p > psig else min(4 * p, na)
                if want > issued:
                    b.append(Wait(lg=pdone(min(p - 1, 3))))
                    b += self.x0h_dma(0, issued, want, vG)
                    issued = want
            if p >= 4 and p >= psig:
                break
        b.append(Wait(lg=pdone(3)))
        b += self.x0h_dma(0, issued, 16, vG)
        if o.rawlate:
            b += rawdma(ns2, 32)
        for p in range(max(4, psig), nearly):
            b += trans(p)
        lateT = [x for p in range(max(nearly, psig), 8) for x in trans(p)]
        b += self.stamp("x0A_issued")
        nB = 0
        polled = False
        for bt in range(min(0, -lead), 9):
            want = min(16, 2 * (bt + lead + 1)) if bt < 8 else (o.nb_pro if o.nb_pro else 16)
            if nB < want and nB == 0:
                b += lateT + [Wait(all_lg=True)]
                lateT = []
            while nB < want:
                if nB == nB0:
                    b += self.wpoll_load()
                    polled = True
                b += self.x0h_dma(1, nB, nB + 1, vG)
                nB += 1
            if 0 <= bt < 8:
                b += self.x0h_read(0, bt, vS)
            if 0 < bt < 8:
                b += self.x0h_write(0, bt - 1)
            if bt == 7:
                b += self.x0h_write(0, 7)
        b += lateT
        if not polled:
            b += self.wpoll_load()
        self.nB_done = nB
        b.append(valu("v_mov_b32", "v8", vG))
        b += self.stamp("x0_part")
        if o.wdma:
            b.append(raw(f"s_mov_b32 m0, {LDS_TOTAL + 4096}", "salu"))
        b += accinit(final)
        b += [I(f"s_add_u32 s70, s70, {4096 * o.nself}\n s_addc_u32 s71, s71, 0", "salu", rd=["s[70:71]"], wr=["s[70:71]"]),
              salu("s_xor_b32", self.sXl, self.sRow, 1024), salu("s_mov_b32", "s20", 64),
              salu("s_mov_b32", "s21", 32768 - 64), salu("s_mov_b32", "s22", hex((128 - 64 - 7 * 32768) & 0xffffffff))]
        b += [Wait(all_lg=True), barrier()]
        b += [self.xread(j, i ^ (j & 1), 0, 0) for j in range(8) for i in range(2)]
        b.append(Wait(lg=[self.xf(j, c) for j in range(o.xw) for c in range(2)]))
        b += self.stamp("pro_done")
        return b

    def prologue_early(self, accinit, tb):
        o = self.o
        vL = self.vL
        b = []
        vG, vS = "v20", ["v21", "v22"]
        wbuf = set(r for s in range(16 - self.NS) for c in range(2) for r in regs(self.wreg0(s, c)))
        late = lambda a: a[0] == "v" and 32 <= int(a[1:]) < 64
        final = lambda a: a[0] == "v" and int(a[1:]) < 32
        na, nb, npoll, nB0 = o.x0split
        b.append(valu("v_mov_b32", self.t[2], 0))
        b.append(tagged(bstore(self.t[2], vL, self.sFm, 0, w="dword", flags=" sc1"), "pst"))
        b += self.calc_vG(vG) + self.calc_vS(vS)
        b += self.x0h_dma(0, 0, na, vG)
        b += accinit(lambda a: not late(a) and not final(a) and a not in wbuf)
        b += self.prep_store()
        b += self.stamp("stores_issued")
        b += self.x0h_dma(0, na, nb, vG)
        for m in range(3):
            b.append(Wait(vm=[R("v", tb + 2 * m, 2)]))
            for j in range(2):
                src = f"v{tb + 2 * m + j}"
                b.append(valu("v_lshlrev_b32", f"v{40 + 4 * m + 2 * j}", 16, src))
                b.append(valu("v_and_b32", f"v{41 + 4 * m + 2 * j}", self.sMask, src))
            b.append(dswrite("v31", R("v", 40 + 4 * m, 4), m * 4096))
        b.append(Wait(all_lg=True))
        b += accinit(late)
        b += [Wait(vm=["pst"]), barrier()] + self.wsignal()
        b += self.stamp("signalled")
        b += self.x0h_dma(0, nb, 16, vG)
        def only0(ins):
            if not o.poll0:
                return ins
            n = self.nseg = getattr(self, "nseg", 0) + 1
            for x in ins:
                x.note = "gy"
            return [salu("s_cmp_eq_u32", self.sWave, 0), raw(f"s_cbranch_scc0 Lseg{n}", "branch")] + ins + [Label(f"Lseg{n}")]

        for bt in range(8):
            if bt == npoll:
                b += only0(self.wpoll_load()) + self.x0h_dma(1, 0, nB0, vG)
            b += self.x0h_read(0, bt, vS)
            if bt:
                b += self.x0h_write(0, bt - 1)
        if npoll >= 8:
            b += only0(self.wpoll_load()) + self.x0h_dma(1, 0, nB0, vG)
        b += self.x0h_write(0, 7)
        b += self.stamp("x0_part")
        chk = self.poll_check("pro", self.sNeed, 64, self.wpoll_load)
        if o.poll0:
            b += only0(chk[:-1]) + chk[-1:]
            chk = []
        b += [Wait(all_lg=True), barrier()]
        xr = [self.xread(j, i ^ (j & 1), 0, 0) for j in range(8) for i in range(2)]
        if not o.poll0:
            b += xr + chk
            xr = []
        b += self.stamp("flag_seen")
        for s in range(16):
            b += [self.wload(s, 1, self.wreg0(s, 1)), self.wload(s, 0, self.wreg0(s, 0))]
            b += self.wstep(s)
            if s == 3:
                b += xr
        b += self.x0h_dma(1, nB0, max(nB0, o.nb_pro) if o.gather else 16, vG)
        b.append(valu("v_mov_b32", "v8", vG))
        b += accinit(final)
        if o.gather:
            b += [salu("s_xor_b32", self.sXl, self.sRow, 1024), salu("s_mov_b32", "s20", 64),
                  salu("s_mov_b32", "s21", 32768 - 64), salu("s_mov_b32", "s22", hex((128 - 64 - 7 * 32768) & 0xffffffff))]
        b.append(Wait(lg=[self.xf(j, c) for j in range(o.xw) for c in range(2)], vm=[self.wreg0(0, 0), self.wreg0(0, 1)]))
        b += self.stamp("pro_done")
        return b

    def build(self):
        o = self.o
        A, B, AB = [0, 1, 2, 3], [4, 5, 6, 7], list(range(8))
        e = (lambda s: []) if o.noepi else (lambda s: s)
        unit_end = lambda x: x.kind in ("vst", "dsw")
        safe_bias = lambda x: x.kind == "valu" and "add_f32" in x.text and not x.wr & set(self.t)
        pro = self.prologue()
        PL = o.pstamps - 1
        dA, dB = o.direct
        g0, g1, g2, g3 = o.sg
        ep = o.earlyprep
        if o.gather and o.early == 1:
            ini = []
            for s in range(16 - self.NS):
                ini.append(([valu("v_mov_b32", r, self.init) for c in range(2) for r in regs(self.wreg0(s, c))],
                            16 * s + 18, 16 * s + 30))
            nB1 = o.x0split[3]
            late = self.x0h_dma(1, max(nB1, o.nb_pro), 16, "v8")
            fx = []
            if o.selfw:
                late = self.x0h_dma(1, self.nB_done, 16, "v8")
                chk = self.poll_check("pro", self.sNeed, 64, self.wpoll_load)
                if o.nself < 8:
                    wl = []
                    for s in range(2 * o.nself, 16):
                        wl += [self.wload(s, 1, self.wreg0(s, 1)), self.wload(s, 0, self.wreg0(s, 0))] + self.wstep(s)
                    late = chk + wl + late
                else:
                    fx = [(self.site[16] * 16 + 2, chk)]
            s1a0 = self.phase(0, A, 0, 0, late, wreg=self.wreg0, skip_below=16, extra=ini, end=o.pub0_end, fixed=fx)
            s1a0 += self.stamp("s1a0")
            vS = [f"v{self.Q[0]}", f"v{self.Q[0] + 1}"]
            fix = self.calc_vS(vS)
            for bt in range(8):
                fix += self.x0h_read(1, bt, vS) + space(3)
                if bt:
                    fix += self.x0h_write(1, bt - 1)
            fix += space(4) + self.x0h_write(1, 7)
            s1a0 += self.phase(16, B, 0, 1, fix + self.calc_vB() + e(self.bias_stream(0)), bar=True,
                               pre_bar=[salu("s_add_u32", self.sPNeed, self.sPNeed, 1)])
            s1a0 += self.stamp("s1b0")
            if o.stamps:
                s1a0.append(raw(f"s_lshl_b32 {self.sSpin}, {self.sSpin}, 8"))
        elif o.gather:
            assert not o.early
            s1a0 = self.phase(0, A, 0, 0, []) + self.stamp("s1a0")
        elif o.early == 2:
            s1a0 = self.phase(0, A, 0, 0, self.x0pub_stream(0), end=o.pub0_end) + self.stamp("s1a0")
            st = insert_at(self.calc_vB() + e(self.bias_stream(0)), o.sig0_at, self.psignal(0), safe_bias)
            st = insert_at(st, o.poll0_at, self.ppoll_load(), safe_bias)
            if o.wsig2:
                st = st + self.prep_load()
            s1a0 += self.phase(16, B, 0, 1, st, bar=True, extra=[(self.x0pub_stream(1), 0, 230)],
                               pre_bar=self.poll_check("pa0", self.sPNeed, 1, self.ppoll_load))
            s1a0 += self.stamp("s1b0")
        elif o.early:
            ini = []
            for s in range(16 - self.NS):
                ini.append(([valu("v_mov_b32", r, self.init) for c in range(2) for r in regs(self.wreg0(s, c))],
                            16 * s + 18, 16 * s + 30))
            s1a0 = self.phase(0, A, 0, 0, self.x0pub_stream(0), wreg=self.wreg0, skip_below=16, extra=ini,
                              end=o.pub0_end) + self.stamp("s1a0")
            vS = [f"v{self.Q[0]}", f"v{self.Q[0] + 1}"]
            fix = self.calc_vS(vS)
            for bt in range(8):
                fix += self.x0h_read(1, bt, vS)
                if bt:
                    fix += self.x0h_write(1, bt - 1) + self.x0pub_stream(1, 2 * bt - 2, 2 * bt)
                if bt == 1:
                    fix += self.psignal(0)
            fix += self.x0h_write(1, 7) + self.x0pub_stream(1, 14, 16)
            st = insert_at(self.calc_vB() + e(self.bias_stream(0)), 0.6, self.ppoll_load(), safe_bias)
            s1a0 += self.phase(16, B, 0, 1, fix + st, bar=True,
                               pre_bar=self.poll_check("pa0", self.sPNeed, 1, self.ppoll_load))
            s1a0 += self.stamp("s1b0")
        else:
            s1a0 = self.phase(0, A, 0, 0, (self.prep_load() if ep else []) + self.x0pub_stream(0) +
                              self.x0pub_stream(1, 0, dB) + (self.psignal(0) if dA == 16 else [])) + self.stamp("s1a0")
        lp = o.lateprep
        st = (self.prep_store() if ep else [] if lp else self.prep_load()) + self.calc_vB() + e(
            self.bias_stream(0, one=self.small and dB < 16))
        if o.wsig2:
            st = st + self.prep_load()
        if dA < 16:
            st = insert_at(st, o.siga2_at, self.psignal(0), safe_bias)
        if dB == 16 and not o.early:
            st = insert_at(st, o.sigb_at, self.psignal(1), safe_bias)
        fx2 = [(o.pollb_gap, self.ppoll_load()), (g3 + 1 if o.db2 else 1, self.xnext(self.sXs, 0))]
        if dB < 16 or o.early:
            fx2.append((g3, self.psignal(1)))
        if g0 < 0:
            st = insert_at(st, o.polla_at, self.ppoll_load(), safe_bias)
            pb1 = self.poll_check("pa", self.sPNeed, 1, self.ppoll_load)
            g1 = -1
        else:
            assert not o.early
            pb1 = []
            fx2 += [(g0, self.ppoll_load()), (g1, self.poll_check("pa", self.sPNeed, 1, self.ppoll_load))]
        if ep:
            pb1 = [Wait(vm=["pst"])] + pb1
            fx2.append((3, self.wsignal()))
        s1b = [Label("Ls1b")] + self.phase(16, B, 0, 1, st, bar=True, pre_bar=pb1, end=o.bias_end or None,
                                            extra=[(self.pub_stream(1, dB, 16 - o.db2), 0, 232)])
        s2 = self.phase(32, AB, 1, 0, self.xch_dma(0) + ([] if ep or lp else self.prep_store()), bar=True, start=max(g1 + 1, o.dma_start), end=g2, fixed=fx2,
                        post_bar=self.xr_gathered(),
                        extra=[(self.prep_store(10) if o.wsig2 else self.prep_load() if lp else [], lp, lp + (30 if o.wsig2 else 12)),
                               (self.pub_guard(self.pub_stream(1, 16 - o.db2, 16)), 2, max(3, g3 - 40))],
                        pre_bar=[Wait(vm=["xl0", "pst"] if o.wsig2 else ["xl0"])] + self.poll_check("pb", self.sPNeed, 1, self.ppoll_load))
        s3 = self.phase(64, AB, 0, 1, self.xch_dma(1), bar=True, end=o.dma_end, pre_bar=[Wait(vm=["xl1", "pst"])],
                        extra=[(self.wsignal(), 2, 6)] if o.wsig2 else
                        [(self.prep_store(10) if lp else [], o.preps_at, o.preps_at + 30)])
        s1b[1:1] = self.lstamp("pre", PL) if PL > 0 else []
        s1b += self.lstamp("s1b", PL)
        s2 += self.lstamp("s2", PL)
        s3 += self.lstamp("s3", PL)
        if o.tail4:
            s3 += [salu("s_cmp_eq_u32", self.sL, NL - 1), raw("s_cbranch_scc1 Llast", "branch")]
        preA = [2 * i for i in range(o.prea)]
        restA = [u for u in range(16) if u not in preA]
        s4a = self.phase(96, A, 1, 1, ([] if ep or o.wsig2 else self.wsignal()) + (self.calc_vB() if self.small else []) + e(self.bias_stream(1)),
                         end=220 if preA else (o.bias_end or None),
                         extra=[(e(self.epi_stream(0, 0, units=preA)), 256 - 30, 256)])
        if o.gather:
            s4a += self.xch_switch()
        s4a += self.lstamp("s4a", PL)
        s4a += [salu("s_add_u32", self.sBias, self.sBias, 2048), salu("s_add_u32", self.sL, self.sL, 1)]
        if not o.tail4:
            s4a += [salu("s_cmp_eq_u32", self.sL, NL), raw("s_cbranch_scc1 Llast", "branch")]
        st = insert_at(e(self.epi_stream(0, dA, units=restA)), o.pollw_at, self.wpoll_load(), unit_end)
        chk = (self.site[128] - 112) * 16 + 2
        s4b = self.phase(112, B, 1, 0, st, bar=True, post_bar=self.xr_plain(),
                         fixed=[(chk, self.poll_check("w", self.sNeed, 64, self.wpoll_load))])
        s4b += self.lstamp("s4b", PL + 1)
        st = e(self.epi_stream(1, dB, one=self.small and dA < 16))
        if dA == 16:
            st = insert_at(st, o.siga_at, self.psignal(0), unit_end)
        if ep:
            st = insert_at(st, o.prepl_at, self.prep_load(), unit_end)
        s1a = self.phase(0, A, 0, 0, st, extra=[(self.pub_stream(0, dA, 16, restA + preA), 0, o.puba_end)])
        if o.stamps:
            s1a += [raw(f"s_cmp_eq_u32 s25, {max(1, o.pstamps)}"), raw("s_cbranch_scc0 Lnostamp")] + self.stamp("layer1") + [
                raw("s_memrealtime s[4:5]"), Label("Lnostamp")]
        if o.early:
            assert lp
            s2 = [Label("Lloop")] + s2
            s1b += [raw("s_branch Lloop", "branch")]
        else:
            s1a += [raw("s_branch Ls1b", "branch")]
        s4bl = [Label("Llast")] + self.stamp("4.75layers") + ([raw("s_memrealtime s[6:7]")] if o.stamps else [])
        if o.tail4:
            s4bl += self.phase(96, [0, 1], 1, 1, self.calc_vB() + self.bias_stream(1), last=True)
            s4bl += self.phase(104, [2, 3], 1, 1, self.out_stream4(0), last=True)
            s4bl += self.phase(112, [4, 5], 1, 1, self.out_stream4(1), last=True)
            s4bl += self.phase(120, [6, 7], 1, None, self.out_stream4(2), last=True)
            tail = self.stamp("s4b_last") + [nop(7)] + self.out_stream4(3)
        else:
            s4bl += self.phase(112, B, 1, None, self.out_stream(0), last=True)
            tail = self.stamp("s4b_last") + [nop(7)] + [x for x in self.out_stream(1) if x.kind != "space"]
        if o.stamps:
            tail += self.stamp("tail_issued")
            tail += [Wait(all_vm=True)]
            tail += self.stamp("tail_drained")
            tail.append(raw("s_memrealtime s[38:39]"))
            tail.append(raw("s_waitcnt lgkmcnt(0)"))
            tail.append(raw("v_cmp_eq_u32 vcc, 0, v0"))
            tail.append(raw("s_and_saveexec_b64 s[68:69], vcc"))
            tail.append(raw("s_cbranch_execz Lend"))
            if o.dbgout >= 0:
                tail += [raw(f"s_cmp_lg_u32 s2, {o.dbgout}"), raw("s_cbranch_scc1 Lend"), raw("v_mov_b32 v1, 0")]
                tail += [raw("s_sub_u32 s3, s38, s36"), raw("v_mov_b32 v2, s3"),
                         raw("buffer_store_dword v2, v1, s[44:47], 0 offen offset:4"),
                         raw("s_sub_u32 s3, s6, s4"), raw("v_mov_b32 v2, s3"),
                         raw("buffer_store_dword v2, v1, s[44:47], 0 offen offset:8"),
                         raw("v_mov_b32 v2, s53"), raw("buffer_store_dword v2, v1, s[44:47], 0 offen offset:12")]
                for n in range(1, min(self.stampn, 13)):
                    tail += [raw(f"s_sub_u32 s3, s{72 + 2 * n}, s{70 + 2 * n}"), raw("v_mov_b32 v2, s3"),
                             raw(f"buffer_store_dword v2, v1, s[44:47], 0 offen offset:{12 + 4 * n}")]
            else:
                tail.append(raw("s_lshl_b32 s3, s2, 8"))
                tail.append(raw(f"s_add_u32 s3, s3, {WS_STAMP}"))
                tail.append(raw("v_mov_b32 v1, 0"))
                for n, i in enumerate(list(range(36, 40)) + list(range(72, 102)) + [4, 5, 6, 7, 53]):
                    tail.append(raw(f"v_mov_b32 v2, s{i}"))
                    tail.append(raw(f"buffer_store_dword v2, v1, s[32:35], s3 offen offset:{n * 4}"))
        tail += [Label("Lend"), raw("s_endpgm")]
        rest = s1a0 + ([] if o.early else s1b)
        for l in range(NL - 1):
            rest = rest + s2 + s3 + s4a + s4b + s1a + s1b
        rest = rest + s2 + s3 + ([] if o.tail4 else s4a) + s4bl + tail
        traces = [[x for x in pro if x.note != skip] + rest for skip in ("gx", "gy")]
        for tr in traces:
            resolve_waits(tr)
        for tr in traces:
            errs, mv, ml = check(tr)
            if errs and not o.now and o.slots <= 6:
                for x in errs[:20]:
                    print(x, file=sys.stderr)
                raise SystemExit("hazard/dependency errors")
        if o.early:
            prog = pro + s1a0 + s2 + s3 + s4a + s4b + s1a + s1b + s4bl + tail + self.ool + [Label("Lcend")]
        else:
            prog = pro + s1a0 + s1b + s2 + s3 + s4a + s4b + s1a + s4bl + tail + self.ool + [Label("Lcend")]
        txt = f".globl {KNAME}\n.p2align 8\n.type {KNAME},@function\n{KNAME}:\n" + emit(prog) + "\n"
        if self.names:
            txt = "; stamps: " + " ".join(self.names) + "\n" + txt
        return txt, kd(KNAME, 512, 102, 256)


def main():
    ap = argparse.ArgumentParser()
    ap.add_argument("-o", default="standalone__cross_network_dcn__recsys.s")
    ap.add_argument("--slots", type=int, default=6)
    ap.add_argument("--wflags", default="sc1")
    ap.add_argument("--xflags", default="")
    ap.add_argument("--oflags", default="nt")
    ap.add_argument("--rflags", default="")
    ap.add_argument("--xsflags", default="sc1")
    ap.add_argument("--xlflags", default="")
    ap.add_argument("--bar_lead", type=int, default=6)
    ap.add_argument("--xw", type=int, default=4)
    ap.add_argument("--x0split", type=int, nargs=4, default=[4, 4, 8, 0])
    ap.add_argument("--sigb_at", type=float, default=0.45)
    ap.add_argument("--polla_at", type=float, default=0.85)
    ap.add_argument("--siga_at", type=float, default=0.45)
    ap.add_argument("--pollw_at", type=float, default=0.3)
    ap.add_argument("--pollb_gap", type=int, default=386)
    ap.add_argument("--dma_end", type=int, default=440)
    ap.add_argument("--stamps", action="store_true")
    ap.add_argument("--rawpf", type=int, default=0)
    ap.add_argument("--lean", type=int, default=1)
    ap.add_argument("--wdma", type=int, default=0, help="diagnostic")
    ap.add_argument("--pair8", type=int, default=0, help="diagnostic")
    ap.add_argument("--dma_start", type=int, default=0)
    ap.add_argument("--prea", type=int, default=0)
    ap.add_argument("--db2", type=int, default=4, help="B units published in S2")
    ap.add_argument("--revb", type=int, default=1)
    ap.add_argument("--jitter", type=int, default=0, help="diagnostic: probability/256 of a delay per phase")
    ap.add_argument("--init", default="", help="accumulator start value (hex float bits)")
    ap.add_argument("--tail4", type=int, default=0)
    ap.add_argument("--nself", type=int, default=8)
    ap.add_argument("--rawlate", type=int, default=0)
    ap.add_argument("--ns2", type=int, default=24)
    ap.add_argument("--selfw", type=int, default=1)
    ap.add_argument("--selfp", type=int, nargs=5, default=[16, 4, 8, 0, -7],
                    help="raw DMAs before the prep stores, piece before which to signal, x0A DMAs before the signal, x0B DMAs before the poll, x0B lead")
    ap.add_argument("--wbunch", type=int, default=1)
    ap.add_argument("--bias_end", type=int, default=0)
    ap.add_argument("--quadg", type=int, default=1)
    ap.add_argument("--dmagroup", type=int, default=1)
    ap.add_argument("--poll0", type=int, default=1)
    ap.add_argument("--nox", action="store_true", help="diagnostic")
    ap.add_argument("--nost", action="store_true", help="diagnostic")
    ap.add_argument("--nodma", action="store_true", help="diagnostic")
    ap.add_argument("--nobias", action="store_true", help="diagnostic")
    ap.add_argument("--shift", type=int, default=0)
    ap.add_argument("--cpfsplit", type=int, default=1)
    ap.add_argument("--backoff", type=int, default=0)
    ap.add_argument("--w0prep", type=int, default=0)
    ap.add_argument("--nb_pro", type=int, default=6, help="early mode: x0 B-half DMAs issued before the first MFMA")
    ap.add_argument("--dmapair", type=int, default=10)
    ap.add_argument("--dbgout", type=int, default=-1)
    ap.add_argument("--tailpk", type=int, default=1)
    ap.add_argument("--gather", type=int, default=1)
    ap.add_argument("--wsig2", type=int, default=0)
    ap.add_argument("--stagger", type=int, default=-1, help="workgroup-id bit selecting the late group")
    ap.add_argument("--ynb", type=int, default=4)
    ap.add_argument("--sig0_at", type=float, default=0.1)
    ap.add_argument("--poll0_at", type=float, default=0.7)
    ap.add_argument("--verbose", action="store_true")
    ap.add_argument("--gload", type=int, default=1)
    ap.add_argument("--pace", type=float, default=0.1)
    ap.add_argument("--early", type=int, default=1)
    ap.add_argument("--pub0_end", type=int, default=40)
    ap.add_argument("--earlyprep", type=int, default=0)
    ap.add_argument("--lateprep", type=int, default=400)
    ap.add_argument("--preps_at", type=int, default=330)
    ap.add_argument("--prepl_at", type=float, default=0.1)
    ap.add_argument("--wdelay", type=int, default=2)
    ap.add_argument("--short_at", type=int, default=72)
    ap.add_argument("--pkmul", type=int, default=0)
    ap.add_argument("--pkadd", type=int, default=0)
    ap.add_argument("--apub", type=int, default=0, help="publish x0's A half in the prologue")
    ap.add_argument("--cpf", type=int, default=4, help="code prefetch loads per wave (16 KB each)")
    ap.add_argument("--desync", type=int, default=0, help="diagnostic")
    ap.add_argument("--direct", type=int, nargs=2, default=[12, 4])
    ap.add_argument("--siga2_at", type=float, default=0.08)
    ap.add_argument("--puba_end", type=int, default=160)
    ap.add_argument("--sg", type=int, nargs=4, default=[-1, 0, 390, 150])
    ap.add_argument("--delay", type=int, default=0, help="diagnostic")
    ap.add_argument("--touch", type=int, default=0, help="diagnostic")
    ap.add_argument("--pstamps", type=int, default=0, help="phase stamps in layer N-1")
    ap.add_argument("--xbase", type=int, default=32)
    ap.add_argument("--xbufs", type=int, default=6)
    ap.add_argument("--now", action="store_true", help="diagnostic: no W loads in the loop")
    ap.add_argument("--noxch", action="store_true", help="diagnostic: no exchange traffic")
    ap.add_argument("--noepi", action="store_true", help="diagnostic: no epilogue/bias in the loop")
    o = ap.parse_args()
    for k in ("wflags", "xflags", "oflags", "rflags", "xsflags", "xlflags"):
        v = getattr(o, k)
        setattr(o, k, (" " + v.replace(",", " ")) if v and v != "none" else "")
    mtxt, mkd = Main(o).build()
    opts = " ".join(a for a in sys.argv[1:] if not a.endswith(".s") and a != "-o")
    s = HEADER.format(opts=opts)
    s += f"; @launch grid=(256,1,1) block=(256,1,1) lds={163840 if o.wdma else LDS_TOTAL}\n"
    s += '.amdgcn_target "amdgcn-amd-amdhsa--gfx950"\n.text\n'
    s += mtxt + mkd
    open(o.o, "w").write(s)
    print(o.o, len(s), "bytes")


if __name__ == "__main__":
    main()
```
